```python
import torch

def _softmax(x, axis=-1):
    return torch.softmax(x, dim=axis)

def _gelu(x):
    return torch.nn.functional.gelu(x, approximate='tanh')

def _silu(x):
    return torch.nn.functional.silu(x)

def _sigmoid(x):
    return torch.sigmoid(x)

def _layernorm(x, axis=-1, eps=1e-05):
    m = x.mean(dim=axis, keepdim=True)
    v = x.var(dim=axis, keepdim=True, unbiased=False)
    return (x - m) / torch.sqrt(v + eps)

def _scatter_add(tgt, idx, src, axis=0):
    return tgt.clone().index_add_(axis, idx, src)

def _segment_sum(src, seg, n):
    out = torch.zeros((n,) + src.shape[1:], dtype=src.dtype)
    return out.index_add_(0, seg, src)

def _pad(x, pw):
    flat = tuple((v for pair in reversed(pw) for v in pair))
    return torch.nn.functional.pad(x, flat)
kernel_name = 'recurrent_scan__memory_aug_recurrent_mem_tr__swiglu_ffn__prompt'

def setup_inputs():

    _w = lambda a: (lambda t: t.to(torch.bfloat16) if t.is_floating_point() else t)(torch.as_tensor(a))

    def _A_setup():
        B, S, Dm = (1, 2048, 640)
        H, Dh = (32, 192)
        M, seg = (8, 32)
        seg = min(seg, S)
        S = S // seg * seg
        return {'x': _w((lambda *s: torch.randn(*s, dtype=torch.bfloat16) * 0.05)(B, S, Dm)), 'mem0': _w((lambda *s: torch.randn(*s, dtype=torch.bfloat16) * 0.2)(B, M, Dm)), 'Wq': _w((lambda *s: torch.randn(*s, dtype=torch.bfloat16) * 0.8)(Dm, H, Dh) * Dm ** (-0.5)), 'Wk': _w((lambda *s: torch.randn(*s, dtype=torch.bfloat16) * 0.8)(Dm, H, Dh) * Dm ** (-0.5)), 'Wv': _w((lambda *s: torch.randn(*s, dtype=torch.bfloat16) * 0.2)(Dm, H, Dh) * Dm ** (-0.5)), 'Wo': _w((lambda *s: torch.randn(*s, dtype=torch.bfloat16) * 0.2)(H, Dh, Dm) * (H * Dh) ** (-0.5)), 'seg_len': seg}
    _A_in = _A_setup()

    def _B_setup():
        B, S, D, F = (1, 2048, 640, 1536)
        return {'x': _w((lambda *s: torch.randn(*s, dtype=torch.bfloat16) * 0.05)(B, S, D)), 'w_gate': _w((lambda *s: torch.randn(*s, dtype=torch.bfloat16) * 0.1)(D, F)), 'w_up': _w((lambda *s: torch.randn(*s, dtype=torch.bfloat16) * 0.1)(D, F)), 'w_down': _w((lambda *s: torch.randn(*s, dtype=torch.bfloat16) * 0.1)(F, D))}
    _B_in = _B_setup()
    return {'A_x': _A_in['x'], 'A_mem0': _A_in['mem0'], 'A_Wq': _A_in['Wq'], 'A_Wk': _A_in['Wk'], 'A_Wv': _A_in['Wv'], 'A_Wo': _A_in['Wo'], 'A_seg_len': _A_in['seg_len'], 'B_x': _B_in['x'], 'B_w_gate': _B_in['w_gate'], 'B_w_up': _B_in['w_up'], 'B_w_down': _B_in['w_down']}

def reference(A_x, A_mem0, A_Wq, A_Wk, A_Wv, A_Wo, A_seg_len, B_x, B_w_gate, B_w_up, B_w_down):

    def _A_ref(x, mem0, Wq, Wk, Wv, Wo, seg_len):
        B, S, Dm = x.shape
        H, Dh = (Wq.shape[1], Wq.shape[2])
        M = mem0.shape[1]
        scale = Dh ** (-0.5)
        n_seg = S // seg_len
        L = M + seg_len
        idx = torch.arange(L)
        mask = (idx[:, None] < M) | (idx[:, None] >= idx[None, :])
        mem = mem0
        outs = []
        for s in range(n_seg):
            xs = x[:, s * seg_len:(s + 1) * seg_len, :].clone()
            h = torch.concatenate([mem, xs], axis=1)
            q = torch.einsum('btd,dhe->bhte', h, Wq)
            k = torch.einsum('btd,dhe->bhte', h, Wk)
            v = torch.einsum('btd,dhe->bhte', h, Wv)
            scores = torch.einsum('bhqe,bhke->bhqk', q, k) * scale
            scores = torch.where(mask[None, None], scores, -1000000000.0)
            p = _softmax(scores, axis=-1)
            o = torch.einsum('bhqk,bhke->bhqe', p, v)
            o = torch.einsum('bhte,hed->btd', o, Wo)
            mem = o[:, :M, :].clone()
            outs.append(o[:, M:, :])
        return torch.concatenate(outs, axis=1)

    def _B_ref(x, w_gate, w_up, w_down):
        g = _silu(x @ w_gate)
        u = x @ w_up
        return g * u @ w_down
    x = A_x
    xn = _layernorm(x, axis=-1)
    s = _A_ref(xn, A_mem0, A_Wq, A_Wk, A_Wv, A_Wo, A_seg_len)
    g = _silu(_B_ref(xn, B_w_gate, B_w_up, B_w_down))
    return x + s * g
```

```python
import re

TRANS = ("v_exp_f32", "v_log_f32", "v_rcp_f32", "v_rsq_f32", "v_sqrt_f32", "v_sin_f32", "v_cos_f32", "v_rcp_iflag_f32")

def vr(b, n=1):
    return f"v{b}" if n == 1 else f"v[{b}:{b+n-1}]"
def sr(b, n=1):
    return f"s{b}" if n == 1 else f"s[{b}:{b+n-1}]"

_REG = re.compile(r"^(-|\|)?(v|s|a)(\d+|\[(\d+):(\d+)\])\|?$")
def regs_of(tok):
    tok = tok.strip()
    if tok in ("vcc",): return {("s", "vcc")}
    if tok in ("vcc_lo", "vcc_hi"): return {("s", "vcc")}
    if tok in ("exec", "exec_lo", "exec_hi"): return {("s", "exec")}
    if tok == "m0": return {("s", "m0")}
    m = _REG.match(tok)
    if not m: return set()
    k = m.group(2)
    if m.group(4) is not None:
        return {(k, i) for i in range(int(m.group(4)), int(m.group(5)) + 1)}
    return {(k, int(m.group(3)))}

class Ins:
    def __init__(self, text):
        self.text = text
        t = text.split(";")[0].strip()
        self.label = None
        self.op = ""
        self.dst = set(); self.src = set()
        self.kind = "none"
        self.target = None
        if t.endswith(":"):
            self.label = t[:-1]; self.kind = "label"; return
        if not t or t.startswith("."):
            self.kind = "dir"; return
        parts = t.split(None, 1)
        self.op = op = parts[0]
        rest = parts[1] if len(parts) > 1 else ""
        ops = []; depth = 0; cur = ""
        for ch in rest:
            if ch == "[": depth += 1
            if ch == "]": depth -= 1
            if ch == "," and depth == 0:
                ops.append(cur.strip()); cur = ""
            else: cur += ch
        if cur.strip(): ops.append(cur.strip())
        mods = ""
        if ops:
            last = ops[-1].split(None, 1)
            ops[-1] = last[0]
            if len(last) > 1: mods = last[1]
        self.ops = ops; self.mods = mods
        R = [regs_of(o) for o in ops]
        self.R = R
        self.dpp = ("_dpp" in op) or any(x in mods for x in ("row_", "quad_perm", "wave_"))
        if op.startswith("v_mfma") or op.startswith("v_smfmac"):
            self.kind = "mfma"
            self.passes = 8 if "32x32" in op else 4
            self.dst = R[0]
            self.A, self.B = R[1], R[2]
            if op.startswith("v_smfmac"):
                self.C = R[0]; self.idx = R[3]
            else:
                self.C = R[3]; self.idx = set()
            self.src = self.A | self.B | self.C | self.idx
        elif op.startswith("v_"):
            self.kind = "valu"
            if op == "v_nop": return
            if op.startswith("v_cmpx"):
                self.dst = {("s", "exec")} | (R[0] if len(R) == 3 else set()); self.src = set().union(*R[-2:])
            elif op.startswith("v_permlane") and "swap" in op or op.startswith("v_swap"):
                self.dst = R[0] | R[1]; self.src = R[0] | R[1]
            elif "_co_" in op:
                self.dst = R[0] | R[1]; self.src = set().union(*R[2:])
            else:
                self.dst = R[0]; self.src = set().union(*R[1:]) if len(R) > 1 else set()
                if op.startswith(("v_fmac", "v_mac", "v_writelane", "v_dot2c", "v_pk_fmac")) or self.dpp:
                    self.src |= R[0]
                if op.startswith("v_cndmask") and len(R) == 3: self.src |= {("s", "vcc")}
        elif op.startswith(("buffer_", "global_", "flat_")):
            self.kind = "vmem"
            lds = (" lds" in " " + mods) or "load_lds" in op
            self.lds = lds
            allr = set().union(*R) if R else set()
            if "load" in op and not lds:
                self.dst = R[0]; self.src = set().union(*R[1:])
            elif "atomic" in op and op.startswith("global_") and len(R) == 4:
                self.dst = R[0]; self.src = set().union(*R[1:])
            elif "atomic" in op and op.startswith("buffer_") and "sc0" in mods:
                self.dst = R[0]; self.src = allr
            else:
                self.src = allr
            self.wide_store = ("store" in op) and op.endswith(("x3", "x4"))
            if "store" in op:
                self.sdata = R[0] if op.startswith("buffer_") else R[1]
        elif op.startswith("ds_"):
            self.kind = "ds"
            if "read" in op or "permute" in op or "_rtn" in op or "swizzle" in op:
                self.dst = R[0]; self.src = set().union(*R[1:]) if len(R) > 1 else set()
            else:
                self.src = set().union(*R)
        elif op.startswith("s_"):
            self.kind = "salu"
            if op in ("s_branch",) or op.startswith("s_cbranch"):
                self.target = ops[0]
            elif op.startswith(("s_cmp", "s_waitcnt", "s_nop", "s_barrier", "s_sleep", "s_setprio", "s_endpgm", "s_bitcmp")):
                self.src = set().union(*R) if R else set()
            else:
                self.dst = R[0] if R else set(); self.src = set().union(*R[1:]) if len(R) > 1 else set()
                if "saveexec" in op: self.dst = self.dst | {("s", "exec")}
        else:
            raise ValueError("unknown op " + text)
    def states(self):
        if self.kind in ("label", "dir", "none"): return 0
        if self.op == "s_nop": return int(self.ops[0]) + 1
        return 1

def need(p, c):
    n = 0
    vdst = {r for r in p.dst if r[0] in "va"}
    sdst = {r for r in p.dst if r[0] == "s"}
    if p.kind == "valu":
        if c.kind == "mfma":
            if vdst & c.src: n = max(n, 2)
            if ("s", "exec") in sdst: n = max(n, 4)
        if c.kind == "valu":
            if c.dpp and (vdst & c.src): n = max(n, 2)
            if c.dpp and ("s", "exec") in sdst: n = max(n, 5)
            if c.op.startswith("v_permlane"):
                if vdst & c.src: n = max(n, 2)
                if ("s", "exec") in sdst: n = max(n, 4)
            if c.op.startswith(("v_readlane", "v_readfirstlane", "v_writelane")):
                if vdst & c.src: n = max(n, 1)
                if ("s", "exec") in sdst: n = max(n, 4)
                if c.op != "v_readfirstlane_b32" and (sdst & c.src): n = max(n, 4)
            if (sdst - {("s", "exec")}) & c.src: n = max(n, 2)
            if ("s", "exec") in sdst and ("s", "exec") in c.src: n = max(n, 2)
            if p.op.startswith(TRANS) and (vdst & c.src): n = max(n, 1)
            if ("op_sel" in p.mods or "sdwa" in p.op or "dst_sel" in p.mods) and (vdst & (c.src | c.dst)): n = max(n, 1)
        if c.kind == "vmem" and (sdst & c.src): n = max(n, 5)
    if p.kind == "mfma":
        big = 8 if p.passes == 4 else 12
        if c.kind == "mfma":
            if p.dst & (c.A | c.B | c.idx): n = max(n, big)
            if p.dst & c.C:
                if not (p.dst == c.C and p.passes == c.passes): n = max(n, 6 if p.passes == 4 else 10)
            elif p.dst & c.dst: n = max(n, big)
        elif c.kind in ("valu", "vmem", "ds"):
            if p.dst & (c.src | c.dst): n = max(n, big)
            if c.kind == "valu" and (p.C & c.dst): n = max(n, 3 if p.passes == 4 else 7)
    if p.kind == "vmem" and getattr(p, "wide_store", False):
        if c.kind == "valu" and (p.sdata & c.dst): n = max(n, 2)
        elif c.kind in ("vmem", "ds", "mfma") and (p.sdata & c.dst): n = max(n, 1)
    if p.kind == "salu" and ("s", "m0") in p.dst:
        if (c.kind == "vmem" and getattr(c, "lds", False)) or "addtid" in c.op or c.op.startswith("s_sendmsg"): n = max(n, 1)
    return n

MAXW = 12
def pad_hazards(lines):
    ins = [Ins(l) for l in lines]
    changed = True
    rounds = 0
    while changed:
        changed = False; rounds += 1
        lab = {x.label: i for i, x in enumerate(ins) if x.label}
        preds = [[] for _ in ins]
        for i, x in enumerate(ins):
            if i + 1 < len(ins) and x.op not in ("s_branch", "s_endpgm"): preds[i + 1].append(i)
            if x.target is not None:
                if x.target not in lab: raise ValueError("no label " + x.target)
                preds[lab[x.target]].append(i)
        out = []
        cool = 0
        for i, c in enumerate(ins):
            if cool > 0:
                cool -= max(c.states(), 0)
                out.append(c); continue
            if c.kind in ("mfma", "valu", "vmem", "ds"):
                worst = 0
                seen = {}
                stack = [(p, 0) for p in preds[i]]
                while stack:
                    j, d = stack.pop()
                    if d >= MAXW: continue
                    if seen.get(j, 99) <= d: continue
                    seen[j] = d
                    p = ins[j]
                    if p.kind in ("mfma", "valu", "vmem", "salu"):
                        worst = max(worst, need(p, c) - d)
                    for q in preds[j]: stack.append((q, d + p.states()))
                if worst > 0:
                    out.append(Ins(f"s_nop {worst-1}")); changed = True; cool = MAXW + 1
            out.append(c)
        ins = out
        if rounds > 60: raise RuntimeError("padding does not settle")
    return [x.text for x in ins]

class Asm:
    def __init__(self):
        self.L = []; self._n = 0
    def __call__(self, s):
        for l in s.split("\n"):
            l = l.strip()
            if l: self.L.append(l)
    def lab(self, base="L"):
        self._n += 1; return f"{base}_{self._n}"
    def put(self, name): self.L.append(name + ":")
    def text(self, pad=True):
        L = pad_hazards(self.L) if pad else self.L
        return "\n".join((l if l.endswith(":") else "    " + l) for l in L) + "\n"

def wrap(body, name, launch, vgpr=256, accum=256, sgpr=102, header=""):
    return (header + f"; @launch {launch}\n.amdgcn_target \"amdgcn-amd-amdhsa--gfx950\"\n.text\n.globl {name}\n.p2align 8\n"
            f".type {name},@function\n{name}:\n" + body + "s_endpgm\n.section .rodata,\"a\"\n.p2align 6\n"
            f".amdhsa_kernel {name}\n  .amdhsa_next_free_vgpr {vgpr}\n  .amdhsa_next_free_sgpr {sgpr}\n  .amdhsa_accum_offset {accum}\n"
            "  .amdhsa_group_segment_fixed_size 0\n  .amdhsa_kernarg_size 112\n  .amdhsa_user_sgpr_count 2\n"
            "  .amdhsa_user_sgpr_kernarg_segment_ptr 1\n  .amdhsa_system_sgpr_workgroup_id_x 1\n.end_amdhsa_kernel\n")
```

```python
from asmlib import *
OOB = 0x7fffff00

def chain(c, tag, ST):
    a, L, WS, NS, LOGNS, OPT, INSTR = c["a"], c["L"], c["WS"], c["NS"], c["LOGNS"], c["OPT"], c["INSTR"]
    sW, sQ, sR, sS, sBUD, sG = c["sW"], c["sQ"], c["sR"], c["sS"], c["sBUD"], c["sG"]
    slot, budget, srd = c["slot"], c["budget"], c["srd"]
    FLIP = OPT.get("FLIP", 1); DELTA = OPT.get("DELTA", 400); SSTEP = OPT.get("SSTEP", 55)
    POIS = NS < 64
    T = lambda n: n + "_" + tag
    sFL = "s33"
    def stamp(i):
        if INSTR == 2:
            l = a.lab("ST")
            a(f"s_cmp_lg_u32 {sS}, {SSTEP}\ns_cbranch_scc1 {l}\ns_memtime s[60:61]\ns_waitcnt lgkmcnt(0)\ns_mov_b32 s{44+i}, s60")
            a.put(l)
    def stamp0():
        if INSTR: a("s_memtime s[60:61]\ns_waitcnt lgkmcnt(0)\ns_sub_u32 s55, s60, s90")
    def finish():
        if INSTR:
            a("s_memtime s[60:61]\ns_waitcnt lgkmcnt(0)\ns_sub_u32 s59, s60, s90")
            a(f"s_lshl_b32 s3, {sQ}, 5\ns_add_u32 s3, s3, {sR}\ns_lshl_b32 s3, s3, 3\ns_add_u32 s3, s3, {sW}\ns_lshl_b32 s3, s3, 6\ns_add_u32 s3, s3, {L.DBG+4096}")
            a(f"s_mov_b32 s58, {sBUD}")
            l = a.lab("CAL")
            a("s_memrealtime s[62:63]\ns_waitcnt lgkmcnt(0)\ns_mov_b32 s4, 200")
            a.put(l)
            a("s_memrealtime s[6:7]\ns_memtime s[60:61]\ns_waitcnt lgkmcnt(0)\ns_sub_u32 s4, s4, 1")
            a(f"s_cbranch_scc1 {l}_x\ns_cmp_eq_u32 s6, s62\ns_cbranch_scc1 {l}")
            a.put(l + "_x")
            a("s_mov_b32 s57, s60\ns_mov_b32 s56, s6")
            for i in range(16): a(f"v_mov_b32 v{8+i}, s{44+i}")
            a("v_mov_b32 v4, 0\ns_mov_b64 exec, 1")
            for i in range(4): a(f"buffer_store_dwordx4 v[{8+4*i}:{11+4*i}], v4, {WS}, s3 offen offset:{16*i}")
        a("s_waitcnt vmcnt(0)\ns_branch END")
    def delay(n):
        while n > 0:
            m = min(n, 64); a(f"s_nop {max(m//4-1,0)}"); n -= m
    def onelane(v, saddr):
        a(f"v_mov_b32 {v}, {OOB}\nv_writelane_b32 {v}, {saddr}, 0")
    def xs_dma(slds, smem):
        for i in range(10):
            if i % 4 == 0:
                if i: a(f"s_add_u32 {slds}, {slds}, 4096\ns_add_u32 {smem}, {smem}, 4096")
                a(f"s_mov_b32 m0, {slds}")
            a(f"buffer_load_dwordx4 v2, {WS}, {smem} offen offset:{(i%4)*1024} sc1 lds")
    def flagwait(vaddr, vtmp, sval):
        lp = a.lab("FW"); ok = a.lab("FO")
        a.put(lp)
        a(f"buffer_load_dword {vtmp}, {vaddr}, {WS}, {sFL} offen sc1\ns_waitcnt vmcnt(0)")
        a(f"v_cmp_gt_u32 vcc, {sval}, {vtmp}\ns_cbranch_vccz {ok}")
        budget(lp)
        a.put(ok)
    def idxreg(v):
        a(f"v_and_b32 v4, 15, v0\nv_cmp_gt_u32 vcc, 8, v4\nv_mov_b32 {v}, 0xeeee\nv_mov_b32 v6, 0x4444\nv_cndmask_b32 {v}, {v}, v6, vcc")
    def tagreg(s):
        a(f"s_lshr_b32 {s}, {sS}, {LOGNS}\ns_and_b32 {s}, {s}, 1\ns_add_u32 {s}, {s}, 1")

    a(f"s_lshl_b32 {sFL}, {sQ}, 12\ns_add_u32 {sFL}, {sFL}, {L.FL}")
    a(f"s_cmp_ge_u32 {sR}, 18\ns_cbranch_scc1 {T('COMB')}")
    MEM, QKM, QX, KX, DUM = 81920, 92160, 94208, 98304, 102400
    a(f"s_mul_i32 s3, {sW}, 10240\ns_add_u32 s4, s3, {L.XN}")
    xs_dma("s3", "s4")
    a(f"s_cmp_ge_u32 {sW}, 4\ns_cbranch_scc1 {T('PAUX')}")
    idxreg("v5")
    a(f"v_add_u32 v11, {MEM}, v2")
    NB = 5
    def tokgemm():
        R = lambda i: 16 + 4*(i % NB)
        off = lambda i: (i % 2)*20480 + (i // 2)*1024
        for i in range(NB - 1): a(f"ds_read_b128 v[{R(i)}:{R(i)+3}], v9 offset:{off(i)}")
        for i in range(40):
            if i + NB - 1 < 40: a(f"ds_read_b128 v[{R(i+NB-1)}:{R(i+NB-1)+3}], v9 offset:{off(i+NB-1)}")
            a(f"s_waitcnt lgkmcnt({min(NB-1, 39-i)})")
            kk, tt = i // 2, i % 2
            for t in range(2):
                w = 64 + 16*(kk // 2) + 8*t + 4*(kk % 2); d = 224 + 8*t + 4*tt
                a(f"v_mfma_f32_16x16x32_bf16 v[{d}:{d+3}], v[{w}:{w+3}], v[{R(i)}:{R(i)+3}], " + ("0" if kk == 0 else f"v[{d}:{d+3}]"))
    def crit():
        for b in range(10): a(f"ds_read_b128 v[{16+4*b}:{19+4*b}], v11 offset:{1024*b}")
        for b in range(10):
            a(f"s_waitcnt lgkmcnt({9-b})")
            a(f"v_smfmac_f32_16x16x64_bf16 v[56:59], v[{16+4*b}:{19+4*b}], v[{64+16*b}:{71+16*b}], v5")
            a(f"v_smfmac_f32_16x16x64_bf16 v[60:63], v[{16+4*b}:{19+4*b}], v[{72+16*b}:{79+16*b}], v5")
        for i in range(4): a(f"v_permlane32_swap_b32 v{56+i}, v{60+i}")
        a("v_pk_add_f32 v[56:57], v[56:57], v[60:61]\nv_pk_add_f32 v[58:59], v[58:59], v[62:63]")
        a("v_cvt_pk_bf16_f32 v56, v56, v57\nv_cvt_pk_bf16_f32 v57, v58, v59\nds_write_b64 v6, v[56:57]")
    a(f"s_cmp_ge_u32 {sR}, 12\ns_cbranch_scc1 {T('VG')}")
    a(f"v_and_b32 v4, 15, v0\nv_lshlrev_b32 v6, 5, v4\nv_lshrrev_b32 v7, 4, v0\nv_lshl_add_u32 v6, v7, 3, v6\ns_lshl_b32 s3, {sW}, 9\ns_add_u32 s3, s3, {QKM}\nv_add_u32 v6, s3, v6")
    a(f"s_lshr_b32 s3, {sW}, 1\ns_lshl_b32 s3, s3, 10\ns_and_b32 s4, {sW}, 1\ns_lshl_b32 s4, s4, 3\ns_add_u32 s3, s3, s4\ns_add_u32 s3, s3, {QX}\nv_add_u32 v7, s3, v2")
    a(f"s_mov_b32 {sS}, -1\ns_waitcnt vmcnt(0)\ns_barrier\ns_branch {T('SG_TOK')}")
    a.put(T("SG_LOOP"))
    for i in range(56, 64): a(f"v_mov_b32 v{i}, 0")
    a("s_waitcnt lgkmcnt(0)")
    stamp(0)
    a("s_barrier")
    crit()
    a("s_waitcnt lgkmcnt(0)\ns_barrier")
    a(f"s_cmp_eq_u32 {sS}, 63\ns_cbranch_scc1 {T('SG_END')}")
    a.put(T("SG_TOK"))
    a(f"s_add_u32 {sS}, {sS}, 1\ns_and_b32 s3, {sS}, 1\ns_mul_i32 s3, s3, 40960\nv_add_u32 v9, s3, v2")
    tokgemm()
    for t in range(2):
        for tt in range(2):
            d = 224 + 8*t + 4*tt
            a(f"v_cvt_pk_bf16_f32 v{d}, v{d}, v{d+1}\nv_cvt_pk_bf16_f32 v{d+1}, v{d+2}, v{d+3}\nds_write_b64 v7, v[{d}:{d+1}] offset:{4096*t + 2048*tt}")
    a(f"s_branch {T('SG_LOOP')}")
    a.put(T("SG_END"))
    finish()
    a.put(T("VG"))
    a("v_bfe_u32 v6, v0, 3, 1\nv_lshlrev_b32 v6, 8, v6\nv_bfe_u32 v7, v0, 2, 1\nv_lshl_add_u32 v6, v7, 7, v6\nv_lshrrev_b32 v7, 5, v0\nv_lshl_add_u32 v6, v7, 6, v6\nv_and_b32 v7, 1, v0\nv_lshl_add_u32 v6, v7, 5, v6")
    a(f"v_bfe_u32 v7, v0, 1, 1\nv_lshl_add_u32 v6, v7, 4, v6\nv_bfe_u32 v7, v0, 4, 1\nv_lshl_add_u32 v6, v7, 3, v6\ns_lshl_b32 s3, {sW}, 9\ns_add_u32 s3, s3, {QKM}\nv_add_u32 v6, s3, v6")
    a("v_bfe_u32 v7, v0, 4, 1\nv_lshlrev_b32 v7, 8, v7\nv_and_b32 v8, 15, v0\nv_lshl_add_u32 v7, v8, 3, v7\nv_add_u32 v7, s3, v7")
    a(f"s_sub_u32 s4, {sR}, 12\ns_lshl_b32 s4, s4, 2\ns_add_u32 s4, s4, {sW}")
    a(f"s_lshl_b32 s3, s4, 9\nv_add_u32 v10, s3, v2\nv_mov_b32 v8, {OOB}\nv_cmp_gt_u32 vcc, 32, v0\nv_cndmask_b32 v10, v8, v10, vcc")
    a("s_lshl_b32 s3, s4, 11\nv_add_u32 v8, s3, v2\ns_lshl_b32 s3, s4, 2")
    onelane("v15", "s3")
    for i in range(4): a(f"v_mov_b32 v{240+i}, -1")
    a(f"s_mov_b32 {sS}, -2\ns_waitcnt vmcnt(0)\ns_barrier\ns_branch {T('VG_TOK')}")
    a.put(T("VG_LOOP"))
    for i in range(56, 64): a(f"v_mov_b32 v{i}, 0")
    slot("s34", L.VMS, L.VM); slot("s35", L.VMS, L.VM, NS - 1)
    a("s_barrier")
    crit()
    a("ds_read_b64_tr_b16 v[56:57], v7\nds_read_b64_tr_b16 v[58:59], v7 offset:128\ns_waitcnt lgkmcnt(1)\nv_min_u32 v56, -2, v56\nv_min_u32 v57, -2, v57\ns_waitcnt lgkmcnt(0)\nv_min_u32 v58, -2, v58\nv_min_u32 v59, -2, v59")
    a(f"buffer_store_dwordx4 v[56:59], v10, {WS}, s34 offen{ST}")
    stamp(0)
    if POIS: a(f"buffer_store_dwordx4 v[240:243], v10, {WS}, s35 offen{ST}")
    a("s_barrier")
    a(f"s_cmp_lt_u32 {sS}, 62\ns_cbranch_scc1 {T('VG_TOK')}\ns_cmp_eq_u32 {sS}, 63\ns_cbranch_scc1 {T('VG_END')}\ns_add_u32 {sS}, {sS}, 1\ns_waitcnt vmcnt(0)\ns_branch {T('VG_LOOP')}")
    a.put(T("VG_TOK"))
    a(f"s_and_b32 s3, {sS}, 1\ns_mul_i32 s3, s3, 40960\nv_add_u32 v9, s3, v2\ns_add_u32 s3, {sS}, 3\nv_mov_b32 v14, s3")
    slot("s36", L.VXS, L.VX, 2)
    tokgemm()
    for tt in range(2):
        for t in range(2):
            d = 224 + 8*t + 4*tt; o = 16 + 4*tt + 2*t
            a(f"v_cvt_pk_bf16_f32 v{o}, v{d}, v{d+1}\nv_cvt_pk_bf16_f32 v{o+1}, v{d+2}, v{d+3}")
        a(f"buffer_store_dwordx4 v[{16+4*tt}:{19+4*tt}], v8, {WS}, s36 offen offset:{1024*tt}{ST}")
    a(f"s_waitcnt vmcnt(0)\nbuffer_store_dword v14, v15, {WS}, {sFL} offen{ST}")
    stamp(1)
    a(f"s_add_u32 {sS}, {sS}, 1\ns_cmp_lg_u32 {sS}, -1\ns_cbranch_scc1 {T('VG_LOOP')}\ns_barrier\ns_branch {T('VG_TOK')}")
    a.put(T("VG_END"))
    finish()

    a.put(T("PAUX"))
    a(f"s_setprio 2\ns_sub_u32 s14, {sW}, 4")
    a(f"s_lshl_b32 s3, s14, 10\nv_add_u32 v4, s3, v2\nv_add_u32 v12, {MEM}, v4\ns_cmp_lt_u32 s14, 2\ns_cselect_b64 vcc, -1, 0")
    a(f"v_mov_b32 v8, {OOB}\nv_cndmask_b32 v8, v8, v4, vcc\nv_add_u32 v13, {DUM}, v2\nv_add_u32 v5, 8192, v12\nv_cndmask_b32 v13, v13, v5, vcc")
    srd(16, c["pM0"], 10240)
    a("v_and_b32 v5, 7, v0\nv_mul_u32_u24 v5, 1280, v5\nv_lshrrev_b32 v6, 3, v0\nv_lshl_add_u32 v5, v6, 4, v5\ns_lshl_b32 s3, s14, 7\nv_add_u32 v5, s3, v5")
    def mem0(got):
        for i in range(3): a(f"buffer_load_dwordx4 v[{16+4*i}:{19+4*i}], v5, s[16:19], 0 offen offset:{512*i}")
        a(f"s_waitcnt vmcnt(0)\nds_write_b128 v12, v[16:19]\nds_write_b128 v12, v[20:23] offset:4096\nds_write_b128 v13, v[24:27]")
        stamp0()
        a(f"s_branch {got}")
    def h1poll(got):
        slot("s34", L.H1S, L.H1)
        a("s_add_u32 s35, s34, 4096\ns_add_u32 s36, s34, 8192")
        lp = a.lab("H1P"); a.put(lp)
        a(f"buffer_load_dwordx4 v[16:19], v4, {WS}, s34 offen sc1\nbuffer_load_dwordx4 v[20:23], v4, {WS}, s35 offen sc1\nbuffer_load_dwordx4 v[24:27], v8, {WS}, s36 offen sc1")
        a("s_waitcnt vmcnt(2)\nds_write_b128 v12, v[16:19]\nv_max3_u32 v52, v16, v17, v18")
        a("s_waitcnt vmcnt(1)\nds_write_b128 v12, v[20:23] offset:4096\nv_max3_u32 v52, v19, v20, v52\nv_max3_u32 v52, v21, v22, v52")
        a("s_waitcnt vmcnt(0)\nds_write_b128 v13, v[24:27]\nv_max3_u32 v52, v23, v24, v52\nv_max3_u32 v52, v25, v26, v52\nv_max_u32 v52, v27, v52")
        a(f"v_cmp_eq_u32 vcc, -1, v52\ns_cbranch_vccz {got}\ns_waitcnt lgkmcnt(0)")
        budget(lp)
    a(f"s_cmp_ge_u32 {sR}, 12\ns_cbranch_scc1 {T('VA')}")
    a(f"s_cmp_eq_u32 s14, 3\ns_cselect_b32 s3, 0, {KX-QX}\ns_cmp_eq_u32 s14, 1\ns_cselect_b32 s4, 2048, 0\ns_add_u32 s3, s3, s4\ns_add_u32 s3, s3, {QX}\nv_add_u32 v14, s3, v2")
    a(f"s_cmp_eq_u32 s14, 0\ns_cselect_b32 s3, 0, 2048\ns_add_u32 s3, s3, {QX}\nv_add_u32 v15, s3, v2\nv_add_u32 v7, {QKM}, v3")
    a("v_and_b32 v6, 7, v0\nv_lshrrev_b32 v9, 4, v0\nv_lshl_add_u32 v11, v6, 2, v9\nv_lshlrev_b32 v11, 4, v11\ns_lshl_b32 s3, s14, 9\nv_add_u32 v11, s3, v11")
    a("v_lshl_add_u32 v9, v9, 3, v6\nv_lshlrev_b32 v9, 4, v9\nv_add_u32 v9, 768, v9\ns_cmp_eq_u32 s14, 2\ns_cselect_b64 vcc, -1, 0\nv_cndmask_b32 v11, v11, v9, vcc")
    a(f"s_mul_i32 s3, {sR}, 1280\nv_add_u32 v11, s3, v11\ns_mov_b32 s5, 0x00ff00ff\ns_cselect_b32 s4, 0, s5\ns_mov_b64 vcc, s[4:5]\nv_mov_b32 v9, {OOB}\nv_cndmask_b32 v11, v9, v11, vcc")
    a(f"s_lshl_b32 s3, {sR}, 2\ns_add_u32 s3, s3, s14\ns_lshl_b32 s4, s3, 10\nv_add_u32 v10, s4, v2\ns_lshl_b32 s3, s3, 2\ns_add_u32 s3, s3, 128")
    onelane("v6", "s3")
    a(f"s_mov_b32 {sS}, 0\ns_waitcnt vmcnt(0)\ns_barrier")
    mem0(T("SA_GOT"))
    a.put(T("SA_LOOP"))
    h1poll(T("SA_GOT"))
    a.put(T("SA_GOT"))
    stamp(0)
    a("s_waitcnt lgkmcnt(0)\ns_barrier")
    stamp(1)
    a("ds_read_b128 v[24:27], v14\nds_read_b128 v[28:31], v14 offset:1024\nds_read_b128 v[32:35], v15\nds_read_b128 v[36:39], v15 offset:1024")
    slot("s35", L.H2S, L.H2); slot("s36", L.HXS, L.HX); tagreg("s37")
    a(f"s_add_u32 s3, {sS}, 1\nv_mov_b32 v9, s3\ns_waitcnt lgkmcnt(0)")
    a(f"s_cmp_eq_u32 s14, 2\ns_cbranch_scc1 {T('SA_2')}\ns_cmp_eq_u32 s14, 3\ns_cbranch_scc1 {T('SA_3')}")
    def qkread():
        a("s_barrier")
        stamp(2)
        for i in range(4): a(f"ds_read_b64_tr_b16 v[{40+2*i}:{41+2*i}], v7 offset:{512*i}")
    def h2out(A0, A1):
        a(f"s_waitcnt lgkmcnt(2)\nv_mfma_f32_16x16x32_bf16 v[48:51], v[{A0}:{A0+3}], v[40:43], 0\ns_waitcnt lgkmcnt(0)\nv_mfma_f32_16x16x32_bf16 v[48:51], v[{A1}:{A1+3}], v[44:47], v[48:51]")
        for i in range(4): a(f"v_and_or_b32 v{48+i}, v{48+i}, -4, s37")
        a(f"buffer_store_dwordx4 v[48:51], v11, {WS}, s35 offen{ST}")
        stamp(3)
    qkread(); h2out(24, 28)
    a(f"s_branch {T('SA_X')}")
    a.put(T("SA_2"))
    qkread(); h2out(40, 44)
    a.put(T("SA_X"))
    a("v_mfma_f32_16x16x32_bf16 v[56:59], v[24:27], v[32:35], 0\nv_mfma_f32_16x16x32_bf16 v[56:59], v[28:31], v[36:39], v[56:59]")
    a(f"s_branch {T('SA_F')}")
    a.put(T("SA_3"))
    qkread()
    a("s_waitcnt lgkmcnt(0)\nv_mfma_f32_16x16x32_bf16 v[52:55], v[40:43], v[24:27], 0\nv_mfma_f32_16x16x32_bf16 v[56:59], v[40:43], v[32:35], 0")
    a("v_mfma_f32_16x16x32_bf16 v[52:55], v[44:47], v[28:31], v[52:55]\nv_mfma_f32_16x16x32_bf16 v[56:59], v[44:47], v[36:39], v[56:59]")
    for i in range(4): a(f"v_permlane32_swap_b32 v{52+i}, v{56+i}")
    a.put(T("SA_F"))
    a(f"buffer_store_dwordx4 v[56:59], v10, {WS}, s36 offen{ST}\ns_waitcnt vmcnt(0)\nbuffer_store_dword v9, v6, {WS}, {sFL} offen{ST}")
    stamp(4)
    a(f"s_cmp_eq_u32 {sS}, 63\ns_cbranch_scc1 {T('SA_END')}\ns_cmp_eq_u32 {sS}, 62\ns_cbranch_scc1 {T('SA_N')}")
    a(f"s_mul_i32 s5, s14, 10240\ns_and_b32 s3, {sS}, 1\ns_mul_i32 s3, s3, 40960\ns_add_u32 s3, s3, s5\ns_mul_i32 s4, {sS}, 40960\ns_add_u32 s4, s4, s5\ns_add_u32 s4, s4, {L.XN + 2*40960}")
    xs_dma("s3", "s4")
    a.put(T("SA_N"))
    stamp(5)
    a(f"s_add_u32 {sS}, {sS}, 1\ns_branch {T('SA_LOOP')}")
    a.put(T("SA_END"))
    finish()
    a.put(T("VA"))
    a(f"s_sub_u32 s15, {sR}, 12")
    a(f"s_mul_i32 s3, s15, 12288\ns_lshl_b32 s4, s14, 11\ns_add_u32 s4, s4, s3\nv_add_u32 v14, s4, v2")
    a(f"s_add_u32 s4, s3, 1024\nv_add_u32 v15, s4, v2\nv_mov_b32 v9, {OOB}\ns_cmp_eq_u32 s14, 1\ns_cselect_b64 vcc, -1, 0\nv_cndmask_b32 v15, v9, v15, vcc")
    a(f"s_lshl_b32 s4, s14, 9\ns_add_u32 s4, s4, s3\ns_add_u32 s4, s4, {3072-512}\nv_add_u32 v7, s4, v2\nv_cmp_le_u32 vcc, 32, v0\nv_cndmask_b32 v7, v9, v7, vcc")
    a("s_mul_i32 s3, s14, 5120\ns_lshl_b32 s4, s15, 10\ns_add_u32 s4, s4, s3\nv_add_u32 v10, s4, v2")
    a("v_and_b32 v6, 15, v0\nv_lshlrev_b32 v11, 4, v6\nv_bfe_u32 v64, v0, 4, 1\nv_lshl_add_u32 v11, v64, 3, v11\ns_lshl_b32 s4, s15, 8\ns_add_u32 s4, s4, s3\ns_add_u32 s4, s4, 4096\nv_add_u32 v11, s4, v11\nv_cndmask_b32 v11, v9, v11, vcc")
    a("v_mov_b32 v65, 0xf149f2ca\nv_mov_b32 v66, 0")
    for i in range(4): a(f"v_cndmask_b32 v{108+i}, v65, v66, vcc")
    a("s_lshl_b32 s3, s14, 4\nv_add_u32 v6, s3, v6\nv_lshrrev_b32 v64, 4, v0\nv_lshlrev_b32 v64, 2, v64\nv_sub_u32 v6, v6, v64")
    for i in range(8): a(f"v_cmp_le_i32 vcc, {i if i < 4 else 12+i}, v6\nv_cndmask_b32 v{100+i}, v65, v66, vcc")
    a("v_min_u32 v6, 11, v0\nv_lshlrev_b32 v6, 2, v6\ns_mul_i32 s3, s15, 48\ns_add_u32 s3, s3, 128\nv_add_u32 v6, s3, v6")
    a("s_lshl_b32 s3, s14, 2\ns_add_u32 s3, s3, s15\ns_lshl_b32 s3, s3, 2\ns_add_u32 s3, s3, 384")
    onelane("v112", "s3")
    a("s_mov_b32 s38, 0x3dd53b95\nv_mov_b32 v114, s38\nv_mov_b32 v115, s38")
    a("s_cmp_lt_u32 s15, 4\ns_cselect_b32 s39, 1, 0\ns_cmp_lt_u32 s14, 2\ns_cselect_b32 s39, s39, 0")
    a(f"s_mov_b32 {sS}, 0\ns_waitcnt vmcnt(0)\ns_barrier\ns_barrier")
    a(f"s_mul_i32 s3, s14, 10240\ns_add_u32 s4, s3, {L.XN + 2*40960}")
    xs_dma("s3", "s4")
    mem0(T("VA_GOT"))
    a.put(T("VA_LOOP"))
    h1poll(T("VA_GOT"))
    a.put(T("VA_GOT"))
    stamp(0)
    a("s_waitcnt lgkmcnt(0)\ns_barrier")
    stamp(1)
    a("s_barrier")
    a(f"s_cmp_ge_u32 {sS}, 61\ns_cbranch_scc1 {T('VA_S')}")
    a(f"s_mul_i32 s5, s14, 10240\ns_and_b32 s3, {sS}, 1\ns_xor_b32 s3, s3, 1\ns_mul_i32 s3, s3, 40960\ns_add_u32 s3, s3, s5\ns_mul_i32 s4, {sS}, 40960\ns_add_u32 s4, s4, s5\ns_add_u32 s4, s4, {L.XN + 3*40960}")
    xs_dma("s3", "s4")
    a.put(T("VA_S"))
    a(f"s_cmp_eq_u32 s39, 0\ns_cbranch_scc1 {T('VA_N')}")
    slot("s34", L.HXS, L.HX); slot("s37", L.PXS, L.PX)
    a(f"s_add_u32 s35, s34, 4096\ns_add_u32 s36, s34, 8192\ns_add_u32 s3, {sS}, 1\nv_mov_b32 v113, s3")
    flagwait("v6", "v64", "s3")
    stamp(4)
    for p in range(3):
        for i, v in enumerate(("v14", "v15", "v7")): a(f"buffer_load_dwordx4 v[{64+12*p+4*i}:{67+12*p+4*i}], {v}, {WS}, s{34+p} offen sc1")
    a("s_waitcnt vmcnt(3)")
    for i in range(6): a(f"v_pk_add_f32 v[{64+2*i}:{65+2*i}], v[{64+2*i}:{65+2*i}], v[{76+2*i}:{77+2*i}]")
    for i in range(6): a(f"v_pk_add_f32 v[{64+2*i}:{65+2*i}], v[{64+2*i}:{65+2*i}], v[{100+2*i}:{101+2*i}]")
    a("s_waitcnt vmcnt(0)")
    for i in range(6): a(f"v_pk_add_f32 v[{64+2*i}:{65+2*i}], v[{64+2*i}:{65+2*i}], v[{88+2*i}:{89+2*i}]")
    a("v_max3_f32 v76, v64, v65, v66")
    for i in range(4): a(f"v_max3_f32 v76, v76, v{67+2*i}, v{68+2*i}")
    a("v_max_f32 v76, v76, v75")
    def xred(op):
        a(f"v_mov_b32 v77, v76\nv_permlane16_swap_b32 v76, v77\n{op} v76, v76, v77\nv_mov_b32 v77, v76\nv_permlane32_swap_b32 v76, v77\n{op} v76, v76, v77")
    xred("v_max_f32")
    a("v_mul_f32 v78, s38, v76")
    for i in range(6): a(f"v_pk_fma_f32 v[{64+2*i}:{65+2*i}], v[{64+2*i}:{65+2*i}], v[114:115], v[78:79] op_sel_hi:[1,1,0] neg_lo:[0,0,1] neg_hi:[0,0,1]")
    for i in range(12): a(f"v_exp_f32 v{64+i}, v{64+i}")
    a("v_pk_add_f32 v[76:77], v[64:65], v[66:67]")
    for i in range(2, 6): a(f"v_pk_add_f32 v[76:77], v[76:77], v[{64+2*i}:{65+2*i}]")
    a("v_add_f32 v76, v76, v77")
    xred("v_add_f32")
    a("v_rcp_f32 v78, v76")
    for i in range(6): a(f"v_pk_mul_f32 v[{64+2*i}:{65+2*i}], v[{64+2*i}:{65+2*i}], v[78:79] op_sel_hi:[1,0]")
    for i in range(6): a(f"v_cvt_pk_bf16_f32 v{80+i}, v{64+2*i}, v{65+2*i}")
    a(f"buffer_store_dwordx4 v[80:83], v10, {WS}, s37 offen{ST}\nbuffer_store_dwordx2 v[84:85], v11, {WS}, s37 offen{ST}")
    a(f"s_waitcnt vmcnt(0)\nbuffer_store_dword v113, v112, {WS}, {sFL} offen{ST}")
    stamp(5)
    a.put(T("VA_N"))
    a(f"s_add_u32 {sS}, {sS}, 1\ns_cmp_lt_u32 {sS}, 64\ns_cbranch_scc1 {T('VA_LOOP')}")
    finish()

    a.put(T("COMB"))
    ZM, PT, PM = 49152, 57344, 59392
    zA, zB, zC = "s40", "s41", "s42"
    def rot(): a(f"s_mov_b32 s3, {zA}\ns_mov_b32 {zA}, {zB}\ns_mov_b32 {zB}, {zC}\ns_mov_b32 {zC}, s3")
    a(f"s_sub_u32 s15, {sR}, 18\ns_mov_b32 {zA}, 32768\ns_mov_b32 {zB}, 0\ns_mov_b32 {zC}, 16384")
    a(f"s_cmp_ge_u32 {sW}, 4\ns_cbranch_scc1 {T('CAUX')}")
    idxreg("v5")
    a(f"s_mul_i32 s3, {sW}, 3072\nv_add_u32 v4, s3, v2")
    a(f"v_and_b32 v6, 15, v0\nv_lshlrev_b32 v6, 4, v6\nv_bfe_u32 v7, v0, 4, 1\nv_lshl_add_u32 v6, v7, 3, v6\nv_lshrrev_b32 v7, 5, v0\nv_lshl_add_u32 v6, v7, 10, v6\ns_lshl_b32 s3, {sW}, 8\ns_add_u32 s3, s3, {ZM}\nv_add_u32 v6, s3, v6")
    a(f"s_lshl_b32 s3, {sW}, 12\nv_add_u32 v8, s3, v2\ns_mul_i32 s3, {sW}, 12288\nv_add_u32 v14, s3, v2")
    a(f"s_lshr_b32 s4, {sW}, 1\ns_lshl_b32 s3, s4, 11\nv_add_u32 v11, s3, v2\ns_and_b32 s5, {sW}, 1\ns_mul_i32 s3, s5, 5120\nv_add_u32 v12, s3, v2")
    a(f"v_and_b32 v13, 15, v0\nv_mul_u32_u24 v13, 20480, v13\nv_lshrrev_b32 v7, 4, v0\nv_lshl_add_u32 v13, v7, 4, v13\ns_mul_i32 s3, s5, {16*20480}\ns_mul_i32 s6, {sQ}, 2560\ns_add_u32 s3, s3, s6\ns_lshl_b32 s6, s15, 8\ns_add_u32 s3, s3, s6\ns_lshl_b32 s6, s4, 7\ns_add_u32 s3, s3, s6\nv_add_u32 v13, s3, v13")
    a(f"v_min_u32 v15, 5, v0\nv_lshlrev_b32 v15, 2, v15\ns_mul_i32 s3, {sW}, 24\nv_add_u32 v15, s3, v15")
    a("v_and_b32 v60, 3, v0\nv_lshlrev_b32 v60, 2, v60\ns_lshl_b32 s3, s5, 4\ns_add_u32 s3, s3, 384\nv_add_u32 v60, s3, v60")
    a(f"s_add_u32 s3, s15, {sW}\ns_cmp_eq_u32 s3, 0\ns_mov_b32 s4, {OOB}\ns_cselect_b32 s3, 1024, s4")
    onelane("v61", "s3")
    a(f"s_mov_b32 s43, {L.OUTP - 655360}")
    def vxloads(add):
        slot("s35", L.VXS, L.VX, add)
        a("s_add_u32 s36, s35, 4096\ns_add_u32 s37, s35, 8192")
        for i in range(12): a(f"buffer_load_dwordx4 v[{160+4*i}:{163+4*i}], v14, {WS}, s{35+i//4} offen offset:{(i%4)*1024} sc1")
    def zx(z):
        a(f"v_add_u32 v7, {z}, v8")
        for i in range(6):
            for ct in range(4):
                for tt in range(2):
                    w = 64 + 32*(i // 2) + 8*ct + 4*(i % 2); d = 16 + 8*ct + 4*tt; x = 160 + 8*i + 4*tt
                    a(f"v_mfma_f32_16x16x32_bf16 v[{d}:{d+3}], v[{x}:{x+3}], v[{w}:{w+3}], " + ("0" if i == 0 else f"v[{d}:{d+3}]"))
        for ct in range(4):
            d = 16 + 8*ct
            for i in range(4): a(f"v_cvt_pk_bf16_f32 v{d+i}, v{d+2*i}, v{d+2*i+1}")
            a(f"ds_write_b128 v7, v[{d}:{d+3}] offset:{1024*ct}")
    PA = [228, 232, 236, 240, 244, 248, 252, 48, 52, 56]
    def pzreads():
        a(f"v_add_u32 v9, {zA}, v11\ns_and_b32 s3, {sS}, 1\ns_xor_b32 s3, s3, 1\ns_lshl_b32 s3, s3, 12\ns_add_u32 s3, s3, {ZM}\nv_add_u32 v10, s3, v11")
        for cc in range(2):
            for h in range(4): a(f"ds_read_b128 v[{PA[5*cc+h]}:{PA[5*cc+h]+3}], v9 offset:{4096*h + 1024*cc}")
            a(f"ds_read_b128 v[{PA[5*cc+4]}:{PA[5*cc+4]+3}], v10 offset:{1024*cc}")
    def pz():
        for h in range(5):
            for cc in range(2):
                d = 20 + 8*cc
                a(f"v_mfma_f32_16x16x32_bf16 v[{d}:{d+3}], v[{PA[5*cc+h]}:{PA[5*cc+h]+3}], v[{208+4*h}:{211+4*h}], " + ("0" if h == 0 else f"v[{d}:{d+3}]"))
    def outp():
        if not OPT.get("NOOUTP"): a(f"buffer_store_dwordx4 v[20:23], v13, {WS}, s43 offen sc1\nbuffer_store_dwordx4 v[28:31], v13, {WS}, s43 offen offset:64 sc1")
    def otag():
        for d in (20, 21, 22, 23, 28, 29, 30, 31): a(f"v_and_or_b32 v{d}, v{d}, -4, 1")
    a(f"s_mov_b32 {sS}, 0\ns_mov_b32 s4, 1")
    flagwait("v15", "v62", "s4")
    vxloads(0)
    a("s_waitcnt vmcnt(0)")
    zx(zB)
    a("s_mov_b32 s4, 2")
    flagwait("v15", "v62", "s4")
    vxloads(1)
    a("s_waitcnt lgkmcnt(0)\ns_barrier")
    a.put(T("CG_LOOP"))
    slot("s34", L.VMS, L.VM)
    for i in range(32, 48): a(f"v_mov_b32 v{i}, 0")
    a(f"s_and_b32 s3, {sS}, 1\ns_lshl_b32 s3, s3, 12\nv_add_u32 v7, s3, v6")
    a.put(T("CG_P"))
    a(f"s_sub_u32 {sBUD}, {sBUD}, 1\ns_cbranch_scc1 END")
    for i in range(3): a(f"buffer_load_dwordx4 v[{48+4*i}:{51+4*i}], v4, {WS}, s34 offen offset:{1024*i} sc1")
    a("s_waitcnt vmcnt(2)\nv_max3_u32 v62, v48, v49, v50\ns_waitcnt vmcnt(1)\nv_max3_u32 v62, v62, v51, v52\nv_max3_u32 v62, v62, v53, v54")
    a(f"s_waitcnt vmcnt(0)\nv_max3_u32 v62, v62, v55, v56\nv_max3_u32 v62, v62, v57, v58\nv_max_u32 v62, v62, v59\nv_cmp_eq_u32 vcc, -1, v62\ns_cbranch_vccnz {T('CG_P')}")
    stamp(0)
    for kb in range(3):
        for t in range(4):
            a(f"v_smfmac_f32_16x16x64_bf16 v[{32+4*t}:{35+4*t}], v[{48+4*kb}:{51+4*kb}], v[{64+32*kb+8*t}:{71+32*kb+8*t}], v5")
    for p in range(2):
        o = 32 + 8*p
        for i in range(4): a(f"v_permlane32_swap_b32 v{o+i}, v{o+4+i}")
        a(f"v_pk_add_f32 v[{o}:{o+1}], v[{o}:{o+1}], v[{o+4}:{o+5}]\nv_pk_add_f32 v[{o+2}:{o+3}], v[{o+2}:{o+3}], v[{o+6}:{o+7}]")
        a(f"v_cvt_pk_bf16_f32 v{o}, v{o}, v{o+1}\nv_cvt_pk_bf16_f32 v{o+1}, v{o+2}, v{o+3}\nds_write_b64 v7, v[{o}:{o+1}] offset:{2048*p}")
    a("s_waitcnt lgkmcnt(0)")
    stamp(1)
    a("s_barrier")
    stamp(2)
    pzreads()
    a(f"s_cmp_eq_u32 {sS}, 63\ns_cbranch_scc1 {T('CG_1')}")
    zx(zC)
    a.put(T("CG_1"))
    a("s_waitcnt lgkmcnt(0)")
    pz()
    a(f"s_add_u32 s4, {sS}, 3\ns_min_u32 s4, s4, 64")
    a(f"s_sub_u32 s3, {sS}, 2\ns_max_i32 s3, s3, 0\nv_mov_b32 v63, s3\nbuffer_store_dword v63, v61, {WS}, {sFL} offen{ST}")
    otag()
    flagwait("v15", "v62", "s4")
    stamp(3)
    a("s_barrier")
    stamp(4)
    a(f"s_cmp_ge_u32 {sS}, 62\ns_cbranch_scc1 {T('CG_2')}")
    vxloads(2)
    a.put(T("CG_2"))
    slot("s35", L.PXS, L.PX)
    a(f"s_add_u32 s36, s35, 4096\ns_add_u32 s4, {sS}, 1\nbuffer_load_dword v62, v60, {WS}, {sFL} offen sc1")
    a(f"s_cmp_eq_u32 {sS}, 0\ns_cbranch_scc1 {T('CG_3')}")
    outp()
    a(f"s_waitcnt vmcnt({0 if OPT.get('NOOUTP') else 2})\nv_cmp_gt_u32 vcc, s4, v62\ns_cbranch_vccz {T('CG_4')}")
    a.put(T("CG_3"))
    flagwait("v60", "v62", "s4")
    a.put(T("CG_4"))
    stamp(5)
    for h in range(4): a(f"buffer_load_dwordx4 v[{208+4*h}:{211+4*h}], v12, {WS}, s35 offen offset:{1024*h} sc1")
    a(f"buffer_load_dwordx4 v[224:227], v12, {WS}, s36 offen sc1")
    rot()
    a(f"s_add_u32 s43, s43, 655360\ns_add_u32 {sS}, {sS}, 1\ns_cmp_lt_u32 {sS}, 64\ns_cbranch_scc1 {T('CG_LOOP')}")
    pzreads()
    a("s_waitcnt vmcnt(0) lgkmcnt(0)")
    pz()
    otag()
    outp()
    finish()

    a.put(T("CAUX"))
    a(f"s_setprio 2\ns_sub_u32 s14, {sW}, 4")
    a("s_mul_i32 s3, s14, 3840\nv_add_u32 v4, s3, v2\ns_add_u32 s3, s3, 1024\nv_lshlrev_b32 v5, 2, v0\nv_add_u32 v5, s3, v5")
    a("v_and_b32 v6, 3, v0\nv_bfe_u32 v7, v0, 2, 3\nv_lshl_add_u32 v12, v6, 3, v7\nv_lshlrev_b32 v12, 4, v12\nv_lshrrev_b32 v8, 5, v0\nv_lshl_add_u32 v12, v8, 3, v12\ns_lshl_b32 s3, s14, 9\nv_add_u32 v12, s3, v12")
    a("v_lshlrev_b32 v13, 4, v7\nv_lshl_add_u32 v13, v8, 3, v13\nv_lshl_add_u32 v13, v6, 1, v13\ns_lshl_b32 s3, s14, 7\nv_add_u32 v13, s3, v13")
    a("v_and_b32 v6, 7, v0\nv_lshrrev_b32 v7, 4, v0\nv_lshl_add_u32 v9, v7, 3, v6\nv_lshlrev_b32 v9, 4, v9")
    a("s_lshl_b32 s3, s14, 10\nv_add_u32 v14, s3, v2")
    a(f"s_lshl_b32 s3, s15, 15\ns_lshl_b32 s4, s14, 9\ns_add_u32 s3, s3, s4\ns_lshr_b32 s5, {sQ}, 2\ns_xor_b32 s4, s5, {FLIP}\ns_lshl_b32 s4, s4, 13\ns_add_u32 s4, s4, s3\nv_add_u32 v10, s4, v3")
    a(f"s_lshl_b32 s38, s5, 14\ns_xor_b32 s39, s38, 16384\ns_add_u32 s3, s3, s38\ns_and_b32 s4, {sQ}, 3\ns_lshl_b32 s4, s4, 11\ns_add_u32 s3, s3, s4")
    a("v_lshrrev_b32 v15, 5, v0\nv_lshlrev_b32 v15, 8, v15\nv_lshl_add_u32 v15, v6, 5, v15\nv_bfe_u32 v7, v0, 4, 1\nv_lshl_add_u32 v15, v7, 4, v15\nv_bfe_u32 v7, v0, 3, 1\nv_lshl_add_u32 v15, v7, 13, v15\nv_add_u32 v15, s3, v15")
    a("s_lshl_b32 s3, s15, 10\ns_lshl_b32 s4, s14, 8\ns_add_u32 s3, s3, s4\nv_lshlrev_b32 v11, 2, v0\nv_add_u32 v11, s3, v11")
    a("v_mov_b32 v16, -1\ns_mov_b32 s24, 0x3dd53b95\nv_mov_b32 v20, s24\nv_mov_b32 v21, s24")
    a(f"s_mov_b32 {sS}, 0\ns_barrier")
    stamp0()
    a.put(T("CA_LOOP"))
    slot("s34", L.H2S, L.H2); slot("s36", L.H3S, L.H3, 0, False); slot("s37", L.H1S, L.H1, 1); slot("s35", L.H1S, L.H1); tagreg("s25")
    a("s_add_u32 s16, s36, s38\ns_add_u32 s17, s16, 4096\ns_add_u32 s18, s36, s39\ns_add_u32 s19, s18, 4096")
    a(f"v_add_u32 v6, {zB}, v14\ns_and_b32 s3, {sS}, 1\ns_lshl_b32 s3, s3, 12\nv_add_u32 v7, s3, v14")
    for h in range(4): a(f"ds_read_b128 v[{84+8*h}:{87+8*h}], v6 offset:{4096*h}")
    a.put(T("CA_P2"))
    a(f"s_sub_u32 {sBUD}, {sBUD}, 1\ns_cbranch_scc1 END")
    for p in range(3): a(f"buffer_load_dwordx4 v[{24+4*p}:{27+4*p}], v4, {WS}, s34 offen offset:{1280*p} sc1")
    for p in range(3): a(f"buffer_load_dword v{36+p}, v5, {WS}, s34 offen offset:{1280*p} sc1")
    A3 = lambda d, x, y, z: f"v_bitop3_b32 {d}, {x}, {y}, {z} bitop3:0x80"
    a("s_waitcnt vmcnt(5)\n" + A3("v40", "s25", "v24", "v25") + "\n" + A3("v40", "v40", "v26", "v27"))
    a("s_waitcnt vmcnt(4)\nv_pk_add_f32 v[72:73], v[24:25], v[28:29]\nv_pk_add_f32 v[74:75], v[26:27], v[30:31]\n" + A3("v40", "v40", "v28", "v29") + "\n" + A3("v40", "v40", "v30", "v31"))
    a("s_waitcnt vmcnt(3)\nv_pk_add_f32 v[72:73], v[72:73], v[32:33]\nv_pk_add_f32 v[74:75], v[74:75], v[34:35]\n" + A3("v40", "v40", "v32", "v33") + "\n" + A3("v40", "v40", "v34", "v35"))
    a("v_max3_f32 v77, v72, v73, v74\ns_waitcnt vmcnt(0)\n" + A3("v40", "v40", "v36", "v37") + "\nv_add_f32 v76, v36, v37\nv_and_b32 v40, v40, v38\nv_add_f32 v76, v76, v38\nv_cmp_eq_u32 vcc, 0, v40\nv_max3_f32 v77, v77, v75, v76")
    a(f"s_cbranch_vccnz {T('CA_P2')}")
    stamp(0)
    a("v_max_f32_dpp v77, v77, v77 quad_perm:[1,0,3,2] row_mask:0xf bank_mask:0xf\nv_max_f32_dpp v77, v77, v77 quad_perm:[2,3,0,1] row_mask:0xf bank_mask:0xf")
    a("v_mov_b32 v78, v77\nv_permlane32_swap_b32 v77, v78\nv_max_f32 v77, v77, v78")
    a("v_mul_f32 v78, s24, v77")
    a("v_pk_fma_f32 v[72:73], v[72:73], v[20:21], v[78:79] op_sel_hi:[1,1,0] neg_lo:[0,0,1] neg_hi:[0,0,1]\nv_pk_fma_f32 v[74:75], v[74:75], v[20:21], v[78:79] op_sel_hi:[1,1,0] neg_lo:[0,0,1] neg_hi:[0,0,1]\nv_fma_f32 v76, v76, v20, -v78")
    for i in range(5): a(f"v_exp_f32 v{72+i}, v{72+i}")
    a("v_pk_add_f32 v[78:79], v[72:73], v[74:75]\nv_add_f32 v77, v78, v76\nv_add_f32 v77, v77, v79")
    a("v_add_f32_dpp v77, v77, v77 quad_perm:[1,0,3,2] row_mask:0xf bank_mask:0xf\nv_add_f32_dpp v77, v77, v77 quad_perm:[2,3,0,1] row_mask:0xf bank_mask:0xf")
    a("v_mov_b32 v78, v77\nv_permlane32_swap_b32 v77, v78\nv_add_f32 v77, v77, v78")
    a("v_rcp_f32 v78, v77")
    a("v_pk_mul_f32 v[72:73], v[72:73], v[78:79] op_sel_hi:[1,0]\nv_pk_mul_f32 v[74:75], v[74:75], v[78:79] op_sel_hi:[1,0]\nv_mul_f32 v76, v76, v78")
    a("v_cvt_pk_bf16_f32 v72, v72, v73\nv_cvt_pk_bf16_f32 v73, v74, v75\nv_cvt_pk_bf16_f32 v76, v76, v76")
    a(f"ds_write_b64 v12, v[72:73] offset:{PT}\nds_write_b16 v13, v76 offset:{PM}\ns_waitcnt lgkmcnt(0)")
    stamp(1)
    a("s_barrier")
    stamp(2)
    for h in range(4): a(f"ds_read_b128 v[{80+8*h}:{83+8*h}], v9 offset:{PT+512*h}")
    a(f"ds_read_b128 v[112:115], v9 offset:{PM}\nds_read_b128 v[116:119], v7 offset:{ZM}")
    for h in range(5):
        a(f"s_waitcnt lgkmcnt({[5,4,3,2,0][h]})")
        a(f"v_mfma_f32_16x16x32_bf16 v[72:75], v[{84+8*h}:{87+8*h}], v[{80+8*h}:{83+8*h}], " + ("0" if h == 0 else "v[72:75]"))
    for i in range(4): a(f"v_and_or_b32 v{72+i}, v{72+i}, -4, s25")
    a(f"buffer_store_dwordx4 v[72:75], v15, {WS}, s36 offen sc1")
    stamp(3)
    delay(DELTA)
    a.put(T("CA_P3"))
    a(f"s_sub_u32 {sBUD}, {sBUD}, 1\ns_cbranch_scc1 END")
    for q in range(8): a(f"buffer_load_dwordx2 v[{120+2*q}:{121+2*q}], v10, {WS}, s{16+q//2} offen offset:{2048*(q%2)} sc1")
    a("s_waitcnt vmcnt(6)\nv_pk_add_f32 v[72:73], v[120:121], v[122:123]\n" + A3("v40", "s25", "v120", "v121") + "\n" + A3("v40", "v40", "v122", "v123"))
    for i in range(1, 4):
        r = 120 + 4*i
        a(f"s_waitcnt vmcnt({6-2*i})\nv_pk_add_f32 v[74:75], v[{r}:{r+1}], v[{r+2}:{r+3}]\n" + A3("v40", "v40", f"v{r}", f"v{r+1}") + f"\nv_pk_add_f32 v[72:73], v[72:73], v[74:75]\n" + A3("v40", "v40", f"v{r+2}", f"v{r+3}"))
    a(f"v_cvt_pk_bf16_f32 v74, v72, v73\nv_cmp_eq_u32 vcc, 0, v40\nv_min_u32 v74, -2, v74\ns_cbranch_vccnz {T('CA_P3')}")
    a(f"buffer_store_dword v74, v11, {WS}, s37 offen{ST}")
    stamp(4)
    if POIS: a(f"buffer_store_dword v16, v11, {WS}, s35 offen{ST}")
    if INSTR:
        a(f"s_memtime s[60:61]\ns_lshl_b32 s3, {sQ}, 8\ns_lshl_b32 s4, {sS}, 2\ns_add_u32 s3, s3, s4\ns_add_u32 s3, s3, {L.DBG+262144}\ns_add_u32 s4, s14, s15\ns_cmp_eq_u32 s4, 0\ns_cselect_b32 s4, 0, {OOB}")
        a(f"s_waitcnt lgkmcnt(0)\ns_sub_u32 s60, s60, s90\nv_mov_b32 v41, s60\nv_mov_b32 v42, s4\nbuffer_store_dword v41, v42, {WS}, s3 offen")
    a("s_barrier")
    rot()
    a(f"s_add_u32 {sS}, {sS}, 1\ns_cmp_lt_u32 {sS}, 63\ns_cbranch_scc1 {T('CA_LOOP')}")
    a("s_barrier\ns_barrier")
    finish()
```

```python
class Lay:
    def __init__(self, NS):
        self.NS = NS
        self.H1S, self.H2S, self.VMS, self.VXS, self.HXS, self.PXS, self.H3S = 10240, 15360, 12288, 49152, 49152, 10240, 327680
        self.H1 = 0
        self.VM = self.H1 + NS * self.H1S
        self.H2 = self.VM + NS * self.VMS
        e = self.H2 + NS * self.H2S
        self.GPOIS = (e + 32 * 1024 - 1) // (32 * 1024) * (32 * 1024)
        self.VX = self.GPOIS
        self.HX = self.VX + NS * self.VXS
        self.PX = self.HX + NS * self.HXS
        e = self.PX + NS * self.PXS
        self.GS = (e + (1 << 20) - 1) >> 20 << 20
        self.H3 = (8 * self.GS + (4 << 20) - 1) // (4 << 20) * (4 << 20)
        e = self.H3 + NS * self.H3S
        self.XN = (e + (1 << 20) - 1) >> 20 << 20
        self.FL = self.XN + (3 << 20)
        self.OFL = self.FL + 32768
        self.OUTP = self.FL + (1 << 20)
        self.DBG = self.OUTP + 64 * 655360
        assert self.DBG + (8 << 20) < (256 << 20)
```

```python
import sys
from asmlib import *

KNAME = "recurrent_scan__memory_aug_recurrent_mem_tr__swiglu_ffn__prompt_kernel"
OOB = 0x7fffff00

from lay import Lay

def gen(NS=4, FORCE_SLOW=0, BUDGET=300000, PARTS="all", INSTR=0, **OPT):
    L = Lay(NS)
    a = Asm()
    LOGNS = NS.bit_length() - 1
    WS = "s[8:11]"
    sW, sQ, sR, sS, sBUD, sMODE, sG = "s26", "s27", "s28", "s29", "s30", "s31", "s32"
    pX, pM0, pWQ, pWK, pWV, pWO, pWG, pWU, pWD, pOUT, pDBG, pWS = 64, 66, 68, 70, 72, 74, 76, 78, 80, 82, 84, 86
    def srd(d, p, n):
        a(f"s_mov_b32 s{d}, s{p}\ns_mov_b32 s{d+1}, s{p+1}\ns_mov_b32 s{d+2}, {n}\ns_mov_b32 s{d+3}, 0x00020000")
    def budget(lp):
        a(f"s_sub_u32 {sBUD}, {sBUD}, 1\ns_cbranch_scc0 {lp}\ns_branch END")
    def slot(dst, size, base, add=0, grp=True):
        if add: a(f"s_add_u32 {dst}, {sS}, {add}\ns_and_b32 {dst}, {dst}, {NS-1}")
        else: a(f"s_and_b32 {dst}, {sS}, {NS-1}")
        a(f"s_mul_i32 {dst}, {dst}, {size}")
        if base: a(f"s_add_u32 {dst}, {dst}, {base}")
        if grp: a(f"s_add_u32 {dst}, {dst}, {sG}")
    def dma(vaddr, srdn, soff, m0, extra=""):
        a(f"s_mov_b32 m0, {m0}\nbuffer_load_dwordx4 {vaddr}, {srdn}, {soff} offen {extra} lds")

    def layernorm(R, F, O, perm):
        T = F + 80
        for i in range(40):
            a(f"v_lshlrev_b32 v{F+2*i}, 16, v{R+i}\nv_and_b32 v{F+2*i+1}, 0xffff0000, v{R+i}")
        def red(v):
            a(f"v_add_f32_dpp v{v}, v{v}, v{v} row_ror:8 row_mask:0xf bank_mask:0xf")
            a(f"v_mov_b32 v{v+1}, v{v}\nv_permlane16_swap_b32 v{v}, v{v+1}\nv_add_f32 v{v}, v{v}, v{v+1}")
            a(f"v_mov_b32 v{v+1}, v{v}\nv_permlane32_swap_b32 v{v}, v{v+1}\nv_add_f32 v{v}, v{v}, v{v+1}")
        a(f"v_pk_add_f32 v[{T}:{T+1}], v[{F}:{F+1}], v[{F+2}:{F+3}]\nv_pk_add_f32 v[{T+2}:{T+3}], v[{F+4}:{F+5}], v[{F+6}:{F+7}]")
        for i in range(4, 40): t = T + 2*(i % 2); a(f"v_pk_add_f32 v[{t}:{t+1}], v[{t}:{t+1}], v[{F+2*i}:{F+2*i+1}]")
        a(f"v_pk_add_f32 v[{T}:{T+1}], v[{T}:{T+1}], v[{T+2}:{T+3}]\nv_add_f32 v{T}, v{T}, v{T+1}")
        red(T)
        a(f"v_mul_f32 v{T}, 0x3acccccd, v{T}")
        for i in range(40):
            t = T + 2 + 2*(i % 2); c = T + 6 + 2*(i % 2)
            a(f"v_pk_add_f32 v[{t}:{t+1}], v[{F+2*i}:{F+2*i+1}], v[{T}:{T+1}] op_sel_hi:[1,0] neg_lo:[0,1] neg_hi:[0,1]")
            if i < 2: a(f"v_pk_mul_f32 v[{c}:{c+1}], v[{t}:{t+1}], v[{t}:{t+1}]")
            else: a(f"v_pk_fma_f32 v[{c}:{c+1}], v[{t}:{t+1}], v[{t}:{t+1}], v[{c}:{c+1}]")
        a(f"v_pk_add_f32 v[{T+6}:{T+7}], v[{T+6}:{T+7}], v[{T+8}:{T+9}]\nv_add_f32 v{T+2}, v{T+6}, v{T+7}")
        red(T + 2)
        a(f"v_mul_f32 v{T+2}, 0x3acccccd, v{T+2}")
        a(f"v_cvt_pk_bf16_f32 v{T+2}, v{T+2}, v{T+2}\nv_lshlrev_b32 v{T+2}, 16, v{T+2}\nv_add_f32 v{T+2}, 0x3727c5ac, v{T+2}")
        a(f"v_cvt_pk_bf16_f32 v{T+2}, v{T+2}, v{T+2}\nv_lshlrev_b32 v{T+2}, 16, v{T+2}\nv_sqrt_f32 v{T+2}, v{T+2}")
        a(f"v_cvt_pk_bf16_f32 v{T+2}, v{T+2}, v{T+2}\nv_lshlrev_b32 v{T+2}, 16, v{T+2}\nv_rcp_f32 v{T+2}, v{T+2}")
        a(f"v_cvt_pk_bf16_f32 v{T}, v{T}, v{T}\nv_lshlrev_b32 v{T}, 16, v{T}")
        pos = [0, 2, 4, 6, 1, 3, 5, 7] if perm else list(range(8))
        for i in range(40):
            t = T + 4 + 2*(i % 2)
            o = O + 8*(i // 8) + pos[i % 8]
            a(f"v_pk_add_f32 v[{t}:{t+1}], v[{F+2*i}:{F+2*i+1}], v[{T}:{T+1}] op_sel_hi:[1,0] neg_lo:[0,1] neg_hi:[0,1]")
            a(f"v_cvt_pk_bf16_f32 v{t}, v{t}, v{t+1}\nv_and_b32 v{t+1}, 0xffff0000, v{t}\nv_lshlrev_b32 v{t}, 16, v{t}")
            a(f"v_pk_mul_f32 v[{t}:{t+1}], v[{t}:{t+1}], v[{T+2}:{T+3}] op_sel_hi:[1,0]")
            a(f"v_cvt_pk_bf16_f32 v{o}, v{t}, v{t+1}")
    def ln_loads(R, vaddr, srdn):
        for m in range(5):
            a(f"buffer_load_dwordx4 v[{R+8*m}:{R+8*m+3}], {vaddr}, {srdn}, 0 offen offset:{256*m}")
            a(f"buffer_load_dwordx4 v[{R+8*m+4}:{R+8*m+7}], {vaddr}, {srdn}, 0 offen offset:{256*m+16}")

    a("s_cmp_ge_u32 s2, 256\ns_cbranch_scc1 END")
    a("s_load_dwordx8 s[64:71], s[0:1], 0\ns_load_dwordx4 s[72:75], s[0:1], 32\ns_load_dwordx8 s[76:83], s[0:1], 64\ns_load_dwordx4 s[84:87], s[0:1], 96")
    a("v_lshrrev_b32 v1, 6, v0\nv_and_b32 v0, 63, v0")
    a(f"v_readfirstlane_b32 {sW}, v1")
    a(f"s_getreg_b32 {sQ}, hwreg(HW_REG_XCC_ID, 0, 4)\ns_and_b32 {sQ}, {sQ}, 7")
    a(f"s_mov_b32 {sBUD}, {BUDGET}\ns_mov_b32 {sMODE}, 0")
    a("v_lshlrev_b32 v2, 4, v0\nv_lshlrev_b32 v3, 3, v0")
    a("s_waitcnt lgkmcnt(0)")
    srd(8, pWS, 0x10000000)
    srd(20, pX, 2048*1280)
    if INSTR: a("s_memtime s[90:91]")
    a(f"s_cmp_lg_u32 {sW}, 7\ns_cbranch_scc1 E1")
    a("v_and_b32 v4, 7, v0\nv_mul_u32_u24 v4, 1280, v4\nv_lshrrev_b32 v5, 3, v0\nv_lshlrev_b32 v5, 5, v5\nv_add_u32 v4, v4, v5\ns_mul_i32 s3, s2, 10240\nv_add_u32 v4, s3, v4")
    ln_loads(16, "v4", "s[20:23]")
    a.put("E1")
    a(f"s_cmp_lg_u32 {sW}, 0\ns_cbranch_scc1 E2")
    a(f"s_lshl_b32 s3, {sQ}, 5\nv_mov_b32 v4, s3\nv_mov_b32 v5, 1\ns_mov_b64 exec, 1")
    a(f"global_atomic_add v6, v4, v5, s[{pDBG}:{pDBG+1}] sc0 sc1\ns_waitcnt vmcnt(0)\nv_mov_b32 v5, 0\nds_write_b32 v5, v6\ns_waitcnt lgkmcnt(0)\ns_mov_b64 exec, -1")
    a.put("E2")
    a(f"s_cmp_eq_u32 {sW}, 0\ns_cbranch_scc1 E3\ns_cmp_eq_u32 {sW}, 7\ns_cbranch_scc1 E3")
    a(f"s_cmp_eq_u32 {sW}, 6\ns_cbranch_scc1 E4")
    gper = L.GPOIS // 32; hper = NS * L.H3S // 256
    assert gper % 1024 == 0 and hper % 1024 == 0 and L.H2 % 1024 == 0
    for per, base in ((gper, None), (hper, L.H3), (8192, L.OUTP + 64*655360 - 256*8192)):
        n = per // 1024
        if base is None: a(f"s_lshr_b32 s3, s2, 5\ns_mul_i32 s3, s3, {L.GS}\ns_and_b32 s6, s2, 31\ns_mul_i32 s6, s6, {per}\ns_add_u32 s3, s3, s6")
        else: a(f"s_mul_i32 s3, s2, {per}\ns_add_u32 s3, s3, {base}\ns_mov_b32 s6, {L.H2}")
        a(f"s_sub_u32 s4, {sW}, 1")
        lp = a.lab("IN"); a.put(lp)
        a(f"s_lshl_b32 s5, s4, 10\ns_add_u32 s7, s5, s6\ns_cmp_lt_u32 s7, {L.H2}\ns_cselect_b32 s7, -1, 0\ns_add_u32 s5, s5, s3")
        a("v_mov_b32 v4, s7\nv_mov_b32 v5, s7\nv_mov_b32 v6, s7\nv_mov_b32 v7, s7")
        a(f"buffer_store_dwordx4 v[4:7], v2, {WS}, s5 offen sc1")
        a(f"s_add_u32 s4, s4, 5\ns_cmp_lt_u32 s4, {n}\ns_cbranch_scc1 {lp}")
    a("s_branch E3")
    a.put("E4")
    a(f"v_mov_b32 v4, 0\nv_mov_b32 v5, 0\ns_lshl_b32 s3, s2, 9\ns_add_u32 s3, s3, {L.FL}\nbuffer_store_dwordx2 v[4:5], v3, {WS}, s3 offen sc1")
    a.put("E3")
    a("s_barrier\nv_mov_b32 v5, 0\nds_read_b32 v4, v5\ns_waitcnt lgkmcnt(0)")
    a(f"v_readfirstlane_b32 {sR}, v4\ns_barrier")
    if FORCE_SLOW: a(f"s_mov_b32 {sR}, 99")
    a.put("ROLE")
    a(f"s_mul_i32 {sG}, {sQ}, {L.GS}")
    a(f"s_cmp_lt_u32 {sR}, 18\ns_cbranch_scc1 PRO_P\ns_cmp_lt_u32 {sR}, 28\ns_cbranch_scc1 PRO_C\ns_cmp_lt_u32 {sR}, 32\ns_cbranch_scc1 PRO_F")
    a("s_waitcnt vmcnt(0)\ns_branch COM1")
    a.put("PRO_P")
    a(f"s_cmp_lt_u32 {sR}, 12\ns_cbranch_scc0 PRO_PV")
    srd(12, pWQ, 640*12288); srd(16, pWK, 640*12288)
    a(f"s_mul_i32 s3, {sQ}, 1536\ns_lshl_b32 s4, {sR}, 7\ns_add_u32 s3, s3, s4\ns_mov_b32 s4, s3\ns_branch PRO_P2")
    a.put("PRO_PV")
    srd(12, pWV, 640*12288); srd(16, pWV, 640*12288)
    a(f"s_mul_i32 s3, {sQ}, 1536\ns_sub_u32 s4, {sR}, 12\ns_lshl_b32 s4, s4, 8\ns_add_u32 s3, s3, s4\ns_add_u32 s4, s3, 128")
    a.put("PRO_P2")
    a(f"v_lshrrev_b32 v4, 3, v0\nv_mul_u32_u24 v4, 12288, v4\ns_and_b32 s5, {sW}, 1\ns_lshl_b32 s5, s5, 1\nv_lshrrev_b32 v5, 5, v0\nv_add_u32 v5, s5, v5")
    a("v_bfe_u32 v6, v0, 1, 2\nv_xor_b32 v5, v5, v6\nv_lshlrev_b32 v5, 5, v5\nv_and_b32 v6, 1, v0\nv_lshlrev_b32 v6, 4, v6\nv_add3_u32 v4, v4, v5, v6")
    a(f"s_mul_i32 s5, {sW}, 98304\ns_add_u32 s3, s3, s5\ns_add_u32 s4, s4, s5\ns_lshl_b32 s6, {sW}, 10")
    for i in range(10):
        dma("v4", "s[12:15]", "s3", "s6")
        a("s_add_u32 s7, s6, 81920")
        dma("v4", "s[16:19]", "s4", "s7")
        if i < 9: a(f"s_add_u32 s3, s3, {8*98304}\ns_add_u32 s4, s4, {8*98304}\ns_add_u32 s6, s6, 8192")
    a("s_waitcnt vmcnt(20)\ns_branch COM1")
    a.put("PRO_C")
    srd(12, pWO, 6144*1280)
    a(f"v_lshrrev_b32 v4, 3, v0\nv_mul_u32_u24 v4, 1280, v4\nv_lshrrev_b32 v5, 4, v0\nv_bfe_u32 v6, v0, 1, 2\nv_xor_b32 v5, v5, v6\nv_lshlrev_b32 v5, 5, v5\nv_and_b32 v6, 1, v0\nv_lshlrev_b32 v6, 4, v6\nv_add3_u32 v4, v4, v5, v6")
    a(f"s_mul_i32 s3, {sQ}, {768*1280}\ns_sub_u32 s4, {sR}, 18\ns_lshl_b32 s4, s4, 7\ns_add_u32 s3, s3, s4\ns_mul_i32 s5, {sW}, 10240\ns_add_u32 s3, s3, s5\ns_lshl_b32 s6, {sW}, 10")
    for i in range(12):
        dma("v4", "s[12:15]", "s3", "s6")
        if i < 11: a("s_add_u32 s3, s3, 81920\ns_add_u32 s6, s6, 8192")
    a("s_waitcnt vmcnt(12)\ns_branch COM1")
    a.put("PRO_F")
    a(f"s_lshl_b32 s33, {sQ}, 2\ns_add_u32 s33, s33, {sR}\ns_sub_u32 s33, s33, 28")
    a(f"v_and_b32 v4, 7, v0\ns_lshl_b32 s3, {sW}, 3\nv_add_u32 v4, s3, v4\nv_mul_u32_u24 v4, 40960, v4\nv_lshrrev_b32 v5, 3, v0\nv_lshlrev_b32 v5, 5, v5\nv_add_u32 v4, v4, v5\ns_mul_i32 s3, s33, 1280\nv_add_u32 v4, s3, v4")
    ln_loads(200, "v4", "s[20:23]")
    a("s_waitcnt vmcnt(10)")
    a.put("COM1")
    a(f"s_cmp_lg_u32 {sW}, 7\ns_cbranch_scc1 C2\ns_cmp_lg_u32 {sMODE}, 0\ns_cbranch_scc1 C2")
    layernorm(16, 64, 16, True)
    a("v_lshrrev_b32 v4, 4, v0\nv_lshlrev_b32 v4, 10, v4\nv_bfe_u32 v5, v0, 3, 1\nv_lshlrev_b32 v5, 9, v5\nv_and_b32 v6, 7, v0\nv_lshlrev_b32 v6, 4, v6\nv_add3_u32 v4, v4, v5, v6")
    a(f"s_lshr_b32 s3, s2, 1\ns_mul_i32 s3, s3, 20480\ns_and_b32 s4, s2, 1\ns_lshl_b32 s4, s4, 7\ns_add_u32 s3, s3, s4\ns_add_u32 s3, s3, {L.XN}")
    for m in range(5):
        a(f"buffer_store_dwordx4 v[{16+8*m}:{19+8*m}], v4, {WS}, s3 offen sc1\nbuffer_store_dwordx4 v[{20+8*m}:{23+8*m}], v4, {WS}, s3 offen offset:256 sc1")
        if m < 4: a("s_add_u32 s3, s3, 4096")
    a.put("C2")
    a("s_waitcnt vmcnt(0)\ns_barrier")
    a(f"s_cmp_lg_u32 {sW}, 0\ns_cbranch_scc1 C3\ns_cmp_lg_u32 {sMODE}, 0\ns_cbranch_scc1 C3")
    a(f"s_lshl_b32 s3, {sQ}, 5\ns_add_u32 s3, s3, 4\nv_mov_b32 v4, s3\nv_mov_b32 v5, 1\ns_mov_b64 exec, 1\nglobal_atomic_add v4, v5, s[{pDBG}:{pDBG+1}] sc1\ns_mov_b64 exec, -1")
    a.put("C3")
    a(f"s_cmp_lt_u32 {sR}, 18\ns_cbranch_scc1 WR_P\ns_cmp_lt_u32 {sR}, 28\ns_cbranch_scc1 WR_C\ns_cmp_lt_u32 {sR}, 32\ns_cbranch_scc1 WR_F\ns_branch GBAR")
    a.put("WR_P")
    a(f"s_cmp_ge_u32 {sW}, 4\ns_cbranch_scc1 GBAR")
    a("v_lshrrev_b32 v4, 5, v0\nv_lshlrev_b32 v4, 4, v4\nv_bfe_u32 v5, v0, 4, 1\nv_lshl_add_u32 v4, v5, 2, v4\nv_bfe_u32 v6, v0, 2, 1\nv_add_u32 v4, v4, v6\nv_bfe_u32 v6, v0, 3, 1\nv_lshl_add_u32 v4, v6, 3, v4")
    a("v_lshlrev_b32 v4, 7, v4\nv_lshl_add_u32 v5, v6, 1, v5\nv_and_b32 v6, 3, v0\nv_lshl_add_u32 v4, v6, 3, v4")
    a(f"s_and_b32 s3, {sW}, 1\ns_lshl_b32 s3, s3, 1\ns_add_u32 s4, s3, 1\ns_lshr_b32 s5, {sW}, 1\ns_mul_i32 s5, s5, 81920\ns_mov_b32 s6, s5")
    a(f"s_cmp_lt_u32 {sR}, 12\ns_cselect_b32 s3, {sW}, s3\ns_cselect_b32 s4, {sW}, s4\ns_cselect_b32 s5, 0, s5\ns_cselect_b32 s6, 81920, s6")
    a("v_xor_b32 v6, s3, v5\nv_lshl_add_u32 v6, v6, 5, v4\nv_add_u32 v6, s5, v6\nv_add_u32 v8, 40960, v6")
    a("v_xor_b32 v7, s4, v5\nv_lshl_add_u32 v7, v7, 5, v4\nv_add_u32 v7, s6, v7\nv_add_u32 v9, 40960, v7")
    n = 0
    for kb in range(10):
        for T in range(2):
            for b in range(2):
                for rd in range(2):
                    d = 64 + 16*kb + 8*T + 4*b + 2*rd
                    a(f"ds_read_b64_tr_b16 v[{d}:{d+1}], v{6+T+(2 if kb >= 5 else 0)} offset:{(kb % 5)*8192 + b*4096 + rd*256}")
                    n += 1
                    if n % 8 == 0 and n > 8: a("s_waitcnt lgkmcnt(8)")
    a("s_branch GBAR")
    a.put("WR_C")
    a(f"s_cmp_ge_u32 {sW}, 4\ns_cbranch_scc1 GBAR")
    a(f"v_lshrrev_b32 v4, 2, v0\nv_lshlrev_b32 v4, 7, v4\nv_and_b32 v5, 3, v0\nv_lshl_add_u32 v4, v5, 3, v4\ns_mul_i32 s3, {sW}, 24576\nv_add_u32 v4, s3, v4\nv_bfe_u32 v5, v0, 3, 2")
    for ct in range(4): a(f"v_xor_b32 v{6+ct}, {ct}, v5\nv_lshl_add_u32 v{6+ct}, v{6+ct}, 5, v4")
    n = 0
    for kb in range(3):
        for ct in range(4):
            for b in range(2):
                for rd in range(2):
                    d = 64 + 32*kb + 8*ct + 4*b + 2*rd
                    a(f"ds_read_b64_tr_b16 v[{d}:{d+1}], v{6+ct} offset:{kb*8192 + b*4096 + rd*2048}")
                    n += 1
                    if n % 8 == 0 and n > 8: a("s_waitcnt lgkmcnt(8)")
    a("s_branch GBAR")
    a.put("WR_F")
    layernorm(200, 64, 16, False)
    a(f"v_lshrrev_b32 v4, 3, v0\nv_lshlrev_b32 v4, 10, v4\nv_and_b32 v5, 7, v0\nv_lshl_add_u32 v4, v5, 4, v4\ns_lshr_b32 s3, {sW}, 2\ns_mul_i32 s3, s3, 40960\ns_and_b32 s4, {sW}, 3\ns_lshl_b32 s4, s4, 7\ns_add_u32 s3, s3, s4\nv_add_u32 v4, s3, v4")
    for m in range(5):
        a(f"ds_write_b128 v4, v[{16+8*m}:{19+8*m}] offset:{8192*m}\nds_write_b128 v4, v[{20+8*m}:{23+8*m}] offset:{8192*m+512}")
    a.put("GBAR")
    a("s_waitcnt lgkmcnt(0)")
    a(f"s_cmp_lg_u32 {sMODE}, 0\ns_cbranch_scc1 GO")
    a("s_barrier\nv_mov_b32 v4, 163832")
    a(f"s_cmp_lg_u32 {sW}, 0\ns_cbranch_scc1 G2")
    a("s_mov_b64 exec, 0xff\nv_lshlrev_b32 v5, 5, v0")
    a.put("G1")
    a(f"global_load_dword v6, v5, s[{pDBG}:{pDBG+1}] offset:4 sc1\ns_waitcnt vmcnt(0)\ns_mov_b32 s3, 0")
    for i in range(8): a(f"v_readlane_b32 s4, v6, {i}\ns_add_u32 s3, s3, s4")
    a("s_cmp_ge_u32 s3, 256\ns_cbranch_scc1 G3\ns_sleep 1")
    budget("G1")
    a.put("G3")
    a("v_cmp_ne_u32 vcc, 32, v6\ns_cmp_lg_u64 vcc, 0\ns_cselect_b32 s3, 1, 0")
    if FORCE_SLOW: a("s_mov_b32 s3, 1")
    a("s_mov_b64 exec, 1\nv_mov_b32 v5, s3\nds_write_b32 v4, v5\ns_waitcnt lgkmcnt(0)\ns_mov_b64 exec, -1")
    a.put("G2")
    a("s_barrier\nds_read_b32 v5, v4\ns_waitcnt lgkmcnt(0)\nv_readfirstlane_b32 s3, v5")
    a(f"s_cmp_eq_u32 s3, 0\ns_cbranch_scc1 GO\ns_mov_b32 {sMODE}, 1\ns_lshr_b32 {sQ}, s2, 5\ns_and_b32 {sR}, s2, 31\ns_barrier\ns_branch ROLE")
    a.put("GO")
    a(f"s_barrier\ns_mov_b32 {sS}, 0")
    a(f"s_cmp_ge_u32 {sR}, 28\ns_cbranch_scc1 FFN")
    if PARTS == "ffn": a("s_branch END")
    else:
        a(f"s_cmp_lg_u32 {sMODE}, 0\ns_cbranch_scc1 CHAIN_S")
        from chain import chain
        ctx = dict(locals())
        chain(ctx, "F", "")
        a.put("CHAIN_S")
        chain(ctx, "S", " sc1")

    a.put("FFN")
    if OPT.get("NOFFN"): a("s_branch END")
    srd(12, pWG, 640*3072); srd(16, pWU, 640*3072)
    LOG2E = "0x3fb8aa3b"
    RING1 = 81920
    a("v_lshrrev_b32 v4, 2, v0\nv_mul_u32_u24 v4, 3072, v4\nv_and_b32 v5, 3, v0\nv_lshl_add_u32 v4, v5, 4, v4")
    a("v_lshrrev_b32 v5, 5, v0\nv_lshlrev_b32 v5, 9, v5\nv_bfe_u32 v6, v0, 2, 2\nv_lshl_add_u32 v5, v6, 6, v5\nv_bfe_u32 v6, v0, 4, 1\nv_lshl_add_u32 v5, v6, 5, v5\nv_and_b32 v6, 3, v0\nv_lshl_add_u32 v5, v6, 3, v5")
    a(f"s_mul_i32 s34, {sW}, 10240\ns_add_u32 s34, s34, {RING1}")
    a(f"s_lshl_b32 s35, {sW}, 6")
    a("s_mov_b32 s36, 0\ns_mov_b32 s37, 0\ns_mov_b32 s38, 0")
    def ffn1_issue():
        a("s_add_u32 s3, s34, s37")
        dma("v4", "s[12:15]", "s35", "s3")
        a("s_add_u32 s3, s3, 1024")
        dma("v4", "s[16:19]", "s35", "s3")
        a("s_add_u32 s37, s37, 2048\ns_cmp_eq_u32 s37, 10240\ns_cselect_b32 s37, 0, s37")
        a(f"s_add_u32 s35, s35, 49152\ns_add_u32 s36, s36, 1\ns_cmp_eq_u32 s36, 40\ns_cselect_b32 s3, {40*49152-512}, 0\ns_cselect_b32 s36, 0, s36\ns_sub_u32 s35, s35, s3")
    for i in range(4): ffn1_issue()
    a("s_mov_b32 s39, 0")
    a.put("F1_PASS")
    for i in range(64, 128): a(f"v_mov_b32 v{i}, 0")
    a("v_mov_b32 v6, v2\ns_mov_b32 s40, 0")
    a.put("F1_K")
    a("s_add_u32 s3, s34, s39\nv_add_u32 v7, s3, v5\ns_waitcnt vmcnt(6)")
    a("ds_read_b64_tr_b16 v[16:17], v7\nds_read_b64_tr_b16 v[18:19], v7 offset:256\nds_read_b128 v[24:27], v6\nds_read_b128 v[28:31], v6 offset:40960")
    a("ds_read_b64_tr_b16 v[20:21], v7 offset:1024\nds_read_b64_tr_b16 v[22:23], v7 offset:1280")
    ffn1_issue()
    a("s_add_u32 s39, s39, 2048\ns_cmp_eq_u32 s39, 10240\ns_cselect_b32 s39, 0, s39\nv_add_u32 v6, 1024, v6")
    a("s_waitcnt lgkmcnt(3)\nv_mfma_f32_32x32x16_bf16 v[64:79], v[16:19], v[24:27], v[64:79]")
    a("s_waitcnt lgkmcnt(2)\nv_mfma_f32_32x32x16_bf16 v[80:95], v[16:19], v[28:31], v[80:95]")
    a("s_waitcnt lgkmcnt(0)\nv_mfma_f32_32x32x16_bf16 v[96:111], v[20:23], v[24:27], v[96:111]\nv_mfma_f32_32x32x16_bf16 v[112:127], v[20:23], v[28:31], v[112:127]")
    a("s_add_u32 s40, s40, 1\ns_cmp_lt_u32 s40, 40\ns_cbranch_scc1 F1_K")
    a(f"s_mov_b32 s3, {LOG2E}")
    def silu_pair(x, t):
        a(f"v_cvt_pk_bf16_f32 v{t}, v{x}, v{x+1}\nv_lshlrev_b32 v{x}, 16, v{t}\nv_and_b32 v{x+1}, 0xffff0000, v{t}")
        a(f"v_mul_f32 v{t}, s3, v{x}\nv_mul_f32 v{t+1}, s3, v{x+1}\nv_exp_f32 v{t}, -v{t}\nv_exp_f32 v{t+1}, -v{t+1}")
        a(f"v_add_f32 v{t}, 1.0, v{t}\nv_add_f32 v{t+1}, 1.0, v{t+1}\nv_rcp_f32 v{t}, v{t}\nv_rcp_f32 v{t+1}, v{t+1}")
        a(f"v_pk_mul_f32 v[{x}:{x+1}], v[{x}:{x+1}], v[{t}:{t+1}]")
    for i in range(16):
        g = 64 + 2*i; u = 96 + 2*i; t = 16 + 2*(i % 4)
        silu_pair(g, t)
        a(f"v_cvt_pk_bf16_f32 v{t}, v{g}, v{g+1}\nv_lshlrev_b32 v{g}, 16, v{t}\nv_and_b32 v{g+1}, 0xffff0000, v{t}")
        a(f"v_cvt_pk_bf16_f32 v{t}, v{u}, v{u+1}\nv_lshlrev_b32 v{u}, 16, v{t}\nv_and_b32 v{u+1}, 0xffff0000, v{t}")
        a(f"v_pk_mul_f32 v[{g}:{g+1}], v[{g}:{g+1}], v[{u}:{u+1}]")
    for p in range(6):
        nx = a.lab("F1S")
        if p < 5: a(f"s_cmp_lg_u32 s38, {p}\ns_cbranch_scc1 {nx}")
        for i in range(16): a(f"v_cvt_pk_bf16_f32 v{160+16*p+i}, v{64+2*i}, v{65+2*i}")
        if p < 5: a("s_add_u32 s38, s38, 1\ns_branch F1_PASS"); a.put(nx)
    a("s_waitcnt vmcnt(0)\ns_barrier")
    srd(12, pWD, 1536*1280)
    for i in range(5):
        a(f"v_add_u32 v7, {64*i}, v0\nv_mul_u32_u24 v13, 6554, v7\nv_lshrrev_b32 v13, 16, v13\nv_mul_u32_u24 v14, 10, v13\nv_sub_u32 v7, v7, v14\nv_mul_u32_u24 v13, 1280, v13\nv_lshl_add_u32 v{8+i}, v7, 4, v13")
    a("v_lshrrev_b32 v5, 5, v0\nv_lshlrev_b32 v5, 4, v5\nv_bfe_u32 v6, v0, 2, 3\nv_add_u32 v5, v5, v6\nv_mul_u32_u24 v5, 160, v5\nv_and_b32 v6, 3, v0\nv_lshl_add_u32 v5, v6, 3, v5")
    a(f"v_bfe_u32 v13, v0, 4, 1\nv_lshlrev_b32 v13, 10, v13\nv_lshrrev_b32 v14, 5, v0\nv_lshl_add_u32 v13, v14, 8, v13\nv_and_b32 v14, 15, v0\nv_lshl_add_u32 v13, v14, 4, v13\ns_lshl_b32 s3, {sW}, 12\nv_add_u32 v13, s3, v13")
    a(f"s_lshl_b32 s34, {sW}, 14\ns_add_u32 s34, s34, 32768\ns_mul_i32 s35, {sW}, 160\ns_mov_b32 s37, 0\ns_mov_b32 s39, 0\ns_mov_b32 s40, 0")
    def ffn2_issue():
        a("s_add_u32 s3, s34, s37")
        for i in range(5):
            dma(f"v{8+i}", "s[12:15]", "s35", "s3")
            if i < 4: a("s_add_u32 s3, s3, 1024")
        a("s_add_u32 s37, s37, 5120\ns_cmp_eq_u32 s37, 15360\ns_cselect_b32 s37, 0, s37\ns_add_u32 s35, s35, 40960")
    for i in range(2): ffn2_issue()
    for i in range(64, 144): a(f"v_mov_b32 v{i}, 0")
    a.put("F2_K")
    a("s_and_b32 s3, s40, 7\ns_cmp_lg_u32 s3, 0\ns_cbranch_scc1 F2_M\ns_barrier\ns_lshr_b32 s3, s40, 3")
    for p in range(6):
        nx = a.lab("F2S")
        if p < 5: a(f"s_cmp_lg_u32 s3, {p}\ns_cbranch_scc1 {nx}")
        for tt in range(2):
            for ip in range(2):
                r = 160 + 16*p + 8*tt + 4*ip
                a(f"ds_write_b128 v13, v[{r}:{r+3}] offset:{2048*tt + 512*ip}")
        if p < 5: a("s_branch F2_W"); a.put(nx)
    a.put("F2_W")
    a("s_waitcnt lgkmcnt(0)\ns_barrier\nv_mov_b32 v6, v2")
    a.put("F2_M")
    a("s_add_u32 s3, s34, s39\nv_add_u32 v7, s3, v5\ns_waitcnt vmcnt(5)")
    for t in range(4): a(f"ds_read_b128 v[{36+4*t}:{39+4*t}], v6 offset:{1024*t}")
    for ct in range(5): a(f"ds_read_b64_tr_b16 v[{16+4*ct}:{17+4*ct}], v7 offset:{32*ct}\nds_read_b64_tr_b16 v[{18+4*ct}:{19+4*ct}], v7 offset:{1280+32*ct}")
    ffn2_issue()
    a("s_add_u32 s39, s39, 5120\ns_cmp_eq_u32 s39, 15360\ns_cselect_b32 s39, 0, s39\nv_add_u32 v6, 4096, v6")
    for ct in range(5):
        a(f"s_waitcnt lgkmcnt({8-2*ct})")
        for t in range(4):
            d = 64 + 16*ct + 4*t
            a(f"v_mfma_f32_16x16x32_bf16 v[{d}:{d+3}], v[{16+4*ct}:{19+4*ct}], v[{36+4*t}:{39+4*t}], v[{d}:{d+3}]")
    a("s_add_u32 s40, s40, 1\ns_cmp_lt_u32 s40, 48\ns_cbranch_scc1 F2_K")
    a(f"s_waitcnt vmcnt(0)\ns_mov_b32 s3, {LOG2E}")
    a("v_and_b32 v5, 15, v0\nv_mul_u32_u24 v5, 160, v5\nv_lshrrev_b32 v6, 4, v0\nv_lshl_add_u32 v5, v6, 3, v5\nv_add_u32 v5, s34, v5")
    for ct in range(5):
        for t in range(4):
            d = 64 + 16*ct + 4*t
            silu_pair(d, 16); silu_pair(d + 2, 18)
            a(f"v_cvt_pk_bf16_f32 v{d}, v{d}, v{d+1}\nv_cvt_pk_bf16_f32 v{d+1}, v{d+2}, v{d+3}\nds_write_b64 v5, v[{d}:{d+1}] offset:{2560*t + 32*ct}")
    if INSTR:
        a(f"s_memtime s[92:93]\ns_waitcnt lgkmcnt(0)\ns_sub_u32 s92, s92, s90\nv_mov_b32 v16, s92\ns_lshl_b32 s3, s33, 3\ns_add_u32 s3, s3, {sW}\ns_lshl_b32 s3, s3, 2\ns_add_u32 s3, s3, {L.DBG}\nv_mov_b32 v17, 0\nbuffer_store_dword v16, v17, {WS}, s3 offen")
    srd(12, pOUT, 2048*1280)
    a("v_mul_u32_u24 v4, 52, v0\nv_lshrrev_b32 v4, 10, v4\nv_mul_u32_u24 v5, 20, v4\nv_sub_u32 v5, v0, v5")
    a(f"v_mul_u32_u24 v6, 655360, v4\nv_lshl_add_u32 v6, v5, 4, v6\ns_mul_i32 s3, s33, 20480\ns_mul_i32 s4, {sW}, 320\ns_add_u32 s3, s3, s4\nv_add_u32 v6, s3, v6")
    a(f"v_mul_u32_u24 v7, 40960, v4\nv_lshl_add_u32 v7, v5, 3, v7\ns_mul_i32 s3, s33, 1280\ns_mul_i32 s4, {sW}, 160\ns_add_u32 s3, s3, s4\nv_add_u32 v7, s3, v7")
    a("v_mul_u32_u24 v8, 160, v4\nv_lshl_add_u32 v8, v5, 3, v8\nv_add_u32 v8, s34, v8")
    a(f"s_lshl_b32 s3, {sQ}, 12\ns_add_u32 s3, s3, {L.FL + 1024}\nv_mov_b32 v9, s3")
    a(f"s_mov_b32 s40, 0\ns_mov_b32 s41, {L.OUTP}\ns_mov_b32 s42, 0\ns_waitcnt lgkmcnt(0)")
    a.put("FIN")
    if PARTS == "ffn": a("s_mov_b32 s3, 61")
    else: a(f"buffer_load_dword v16, v9, {WS}, 0 offen sc1\ns_waitcnt vmcnt(0)\nv_readfirstlane_b32 s3, v16")
    a("s_cmp_ge_u32 s3, 61\ns_cselect_b32 s3, 64, s3\ns_sub_u32 s43, s3, s40\ns_min_u32 s43, s43, 3\ns_mul_i32 s3, s43, 20\ns_bfm_b64 s[44:45], s3, 0")
    a(f"s_cmp_lg_u32 s43, 0\ns_cbranch_scc1 FIN_GO\ns_sleep {OPT.get('FINSL', 8)}")
    budget("FIN")
    a.put("FIN_GO")
    a("s_mov_b64 exec, s[44:45]")
    if PARTS == "ffn":
        for i in range(32): a(f"v_mov_b32 v{20+i}, " + ("1.0" if i < 4 else "0"))
    else:
        for q in range(8):
            a(f"s_add_u32 s3, s41, {2560*q}\nbuffer_load_dwordx4 v[{20+4*q}:{23+4*q}], v6, {WS}, s3 offen sc1")
    a("buffer_load_dwordx2 v[52:53], v7, s[20:23], s42 offen\nds_read_b64 v[54:55], v8")
    A3 = lambda d, x, y, z: f"v_bitop3_b32 {d}, {x}, {y}, {z} bitop3:0x80"
    a("s_waitcnt vmcnt(8)\n" + A3("v17", "1", "v20", "v21") + "\n" + A3("v17", "v17", "v22", "v23"))
    for q in range(1, 8):
        a(f"s_waitcnt vmcnt({8-q})\nv_pk_add_f32 v[20:21], v[20:21], v[{20+4*q}:{21+4*q}]\nv_pk_add_f32 v[22:23], v[22:23], v[{22+4*q}:{23+4*q}]")
        a(A3("v17", "v17", f"v{20+4*q}", f"v{21+4*q}") + "\n" + A3("v17", "v17", f"v{22+4*q}", f"v{23+4*q}"))
    if PARTS != "ffn":
        a("v_cmp_eq_u32 vcc, 0, v17\ns_cbranch_vccz FIN_OK\ns_waitcnt vmcnt(0) lgkmcnt(0)")
        budget("FIN_GO")
        a.put("FIN_OK")
    a("v_cvt_pk_bf16_f32 v20, v20, v21\nv_cvt_pk_bf16_f32 v22, v22, v23\nv_and_b32 v21, 0xffff0000, v20\nv_lshlrev_b32 v20, 16, v20\nv_and_b32 v23, 0xffff0000, v22\nv_lshlrev_b32 v22, 16, v22")
    a("s_waitcnt lgkmcnt(0)\nv_lshlrev_b32 v24, 16, v54\nv_and_b32 v25, 0xffff0000, v54\nv_lshlrev_b32 v26, 16, v55\nv_and_b32 v27, 0xffff0000, v55")
    a("v_pk_mul_f32 v[20:21], v[20:21], v[24:25]\nv_pk_mul_f32 v[22:23], v[22:23], v[26:27]")
    a("v_cvt_pk_bf16_f32 v20, v20, v21\nv_cvt_pk_bf16_f32 v22, v22, v23\nv_and_b32 v21, 0xffff0000, v20\nv_lshlrev_b32 v20, 16, v20\nv_and_b32 v23, 0xffff0000, v22\nv_lshlrev_b32 v22, 16, v22")
    a("s_waitcnt vmcnt(0)\nv_lshlrev_b32 v24, 16, v52\nv_and_b32 v25, 0xffff0000, v52\nv_lshlrev_b32 v26, 16, v53\nv_and_b32 v27, 0xffff0000, v53")
    a("v_pk_add_f32 v[20:21], v[20:21], v[24:25]\nv_pk_add_f32 v[22:23], v[22:23], v[26:27]")
    a("v_cvt_pk_bf16_f32 v20, v20, v21\nv_cvt_pk_bf16_f32 v21, v22, v23\nbuffer_store_dwordx2 v[20:21], v7, s[12:15], s42 offen")
    a("s_mov_b64 exec, -1\ns_add_u32 s40, s40, s43\ns_mul_i32 s3, s43, 655360\ns_add_u32 s41, s41, s3\ns_mul_i32 s3, s43, 40960\ns_add_u32 s42, s42, s3\ns_mul_i32 s3, s43, 160\nv_add_u32 v8, s3, v8")
    a("s_cmp_lt_u32 s40, 64\ns_cbranch_scc1 FIN")
    if INSTR:
        a(f"s_memtime s[92:93]\ns_waitcnt lgkmcnt(0)\ns_sub_u32 s92, s92, s90\nv_mov_b32 v16, s92\ns_lshl_b32 s3, s33, 3\ns_add_u32 s3, s3, {sW}\ns_lshl_b32 s3, s3, 2\ns_add_u32 s3, s3, {L.DBG+1024}\nv_mov_b32 v17, 0\nbuffer_store_dword v16, v17, {WS}, s3 offen")
    a("s_waitcnt vmcnt(0)")
    a.put("END")
    hdr = "".join(l for l in open("cdna_kernels/" + KNAME[:-7] + ".s.ref") if l.startswith(";") and "@launch" not in l)
    return wrap(a.text(), KNAME, "grid=(256,1,1) block=(512,1,1) lds=163840", header=hdr)

if __name__ == "__main__":
    from build import build
    cfg = eval(sys.argv[2]) if len(sys.argv) > 2 else {}
    open(sys.argv[1], "w").write(gen(**cfg)); build(sys.argv[1], KNAME)
```

```python
from asmlib import *
OOB = 0x7fffff00

def chain(c, tag, ST):
    a, L, WS, NS, LOGNS, OPT, INSTR = c["a"], c["L"], c["WS"], c["NS"], c["LOGNS"], c["OPT"], c["INSTR"]
    sW, sQ, sR, sS, sBUD, sG = c["sW"], c["sQ"], c["sR"], c["sS"], c["sBUD"], c["sG"]
    slot, budget, srd = c["slot"], c["budget"], c["srd"]
    FLIP = OPT.get("FLIP", 0); DELTA = OPT.get("DELTA", 200); SSTEP = OPT.get("SSTEP", 55)
    POIS = NS < 64
    T = lambda n: n + "_" + tag
    sFL = "s33"
    def stamp(i):
        if INSTR == 2:
            l = a.lab("ST")
            a(f"s_cmp_lg_u32 {sS}, {SSTEP}\ns_cbranch_scc1 {l}\ns_memtime s[60:61]\ns_waitcnt lgkmcnt(0)\ns_mov_b32 s{44+i}, s60")
            a.put(l)
        if INSTR == 3: a(f"s_memtime s[{64+2*i}:{65+2*i}]")
    def dump():
        if INSTR == 3:
            a(f"s_lshl_b32 s3, {sQ}, 5\ns_add_u32 s3, s3, {sR}\ns_lshl_b32 s3, s3, 3\ns_add_u32 s3, s3, {sW}\ns_lshl_b32 s3, s3, 6\ns_and_b32 s4, {sS}, 63\ns_add_u32 s3, s3, s4\ns_lshl_b32 s3, s3, 5\ns_add_u32 s3, s3, {L.DBG + (1 << 20)}\ns_waitcnt lgkmcnt(0)")
            a("v_mov_b32 v254, s64")
            for i in range(1, 8): a(f"v_writelane_b32 v254, s{64+2*i}, {i}")
            a(f"s_mov_b64 exec, 0xff\nv_lshlrev_b32 v255, 2, v0\nbuffer_store_dword v254, v255, {WS}, s3 offen\ns_mov_b64 exec, -1")
    def stamp0():
        if INSTR: a("s_memtime s[60:61]\ns_waitcnt lgkmcnt(0)\ns_sub_u32 s55, s60, s90")
    def finish():
        if INSTR:
            a("s_memtime s[60:61]\ns_waitcnt lgkmcnt(0)\ns_sub_u32 s59, s60, s90")
            a(f"s_lshl_b32 s3, {sQ}, 5\ns_add_u32 s3, s3, {sR}\ns_lshl_b32 s3, s3, 3\ns_add_u32 s3, s3, {sW}\ns_lshl_b32 s3, s3, 6\ns_add_u32 s3, s3, {L.DBG+4096}")
            a(f"s_mov_b32 s58, {sBUD}")
            l = a.lab("CAL")
            a("s_memrealtime s[62:63]\ns_waitcnt lgkmcnt(0)\ns_mov_b32 s4, 200")
            a.put(l)
            a("s_memrealtime s[6:7]\ns_memtime s[60:61]\ns_waitcnt lgkmcnt(0)\ns_sub_u32 s4, s4, 1")
            a(f"s_cbranch_scc1 {l}_x\ns_cmp_eq_u32 s6, s62\ns_cbranch_scc1 {l}")
            a.put(l + "_x")
            a("s_mov_b32 s57, s60\ns_mov_b32 s56, s6")
            for i in range(16): a(f"v_mov_b32 v{8+i}, s{44+i}")
            a("v_mov_b32 v4, 0\ns_mov_b64 exec, 1")
            for i in range(4): a(f"buffer_store_dwordx4 v[{8+4*i}:{11+4*i}], v4, {WS}, s3 offen offset:{16*i}")
        a("s_waitcnt vmcnt(0)\ns_branch END")
    def delay(n):
        while n > 0:
            m = min(n, 64); a(f"s_nop {max(m//4-1,0)}"); n -= m
    def onelane(v, saddr):
        a(f"v_mov_b32 {v}, {OOB}\nv_writelane_b32 {v}, {saddr}, 0")
    def xs_dma(slds, smem):
        for i in range(10):
            if i % 4 == 0:
                if i: a(f"s_add_u32 {slds}, {slds}, 4096\ns_add_u32 {smem}, {smem}, 4096")
                a(f"s_mov_b32 m0, {slds}")
            a(f"buffer_load_dwordx4 v2, {WS}, {smem} offen offset:{(i%4)*1024} sc1 lds")
    def flagwait(vaddr, vtmp, sval):
        lp = a.lab("FW"); ok = a.lab("FO")
        a.put(lp)
        a(f"buffer_load_dword {vtmp}, {vaddr}, {WS}, {sFL} offen sc1\ns_waitcnt vmcnt(0)")
        a(f"v_cmp_gt_u32 vcc, {sval}, {vtmp}\ns_cbranch_vccz {ok}")
        budget(lp)
        a.put(ok)
    def idxreg(v):
        a(f"v_and_b32 v4, 15, v0\nv_cmp_gt_u32 vcc, 8, v4\nv_mov_b32 {v}, 0xeeee\nv_mov_b32 v6, 0x4444\nv_cndmask_b32 {v}, {v}, v6, vcc")
    def tagreg(s):
        a(f"s_lshr_b32 {s}, {sS}, {LOGNS}\ns_and_b32 {s}, {s}, 1\ns_add_u32 {s}, {s}, 1")

    a(f"s_lshl_b32 {sFL}, {sQ}, 12\ns_add_u32 {sFL}, {sFL}, {L.FL}")
    a(f"s_cmp_ge_u32 {sR}, 18\ns_cbranch_scc1 {T('COMB')}")
    MEM, QKM, QX, KX, DUM = 81920, 92160, 94208, 98304, 102400
    a(f"s_mul_i32 s3, {sW}, 10240\ns_add_u32 s4, s3, {L.XN}")
    xs_dma("s3", "s4")
    a(f"s_cmp_ge_u32 {sW}, 4\ns_cbranch_scc1 {T('PAUX')}")
    idxreg("v5")
    a(f"v_add_u32 v11, {MEM}, v2")
    NB = 5
    def tokgemm():
        R = lambda i: 16 + 4*(i % NB)
        off = lambda i: (i % 2)*20480 + (i // 2)*1024
        for i in range(NB - 1): a(f"ds_read_b128 v[{R(i)}:{R(i)+3}], v9 offset:{off(i)}")
        for i in range(40):
            if i + NB - 1 < 40: a(f"ds_read_b128 v[{R(i+NB-1)}:{R(i+NB-1)+3}], v9 offset:{off(i+NB-1)}")
            a(f"s_waitcnt lgkmcnt({min(NB-1, 39-i)})")
            kk, tt = i // 2, i % 2
            for t in range(2):
                w = 64 + 16*(kk // 2) + 8*t + 4*(kk % 2); d = 224 + 8*t + 4*tt
                a(f"v_mfma_f32_16x16x32_bf16 v[{d}:{d+3}], v[{w}:{w+3}], v[{R(i)}:{R(i)+3}], " + ("0" if kk == 0 else f"v[{d}:{d+3}]"))
    def crit():
        for b in range(10): a(f"ds_read_b128 v[{16+4*b}:{19+4*b}], v11 offset:{1024*b}")
        for b in range(10):
            a(f"s_waitcnt lgkmcnt({9-b})")
            a(f"v_smfmac_f32_16x16x64_bf16 v[56:59], v[{16+4*b}:{19+4*b}], v[{64+16*b}:{71+16*b}], v5")
            a(f"v_smfmac_f32_16x16x64_bf16 v[60:63], v[{16+4*b}:{19+4*b}], v[{72+16*b}:{79+16*b}], v5")
        for i in range(4): a(f"v_permlane32_swap_b32 v{56+i}, v{60+i}")
        a("v_pk_add_f32 v[56:57], v[56:57], v[60:61]\nv_pk_add_f32 v[58:59], v[58:59], v[62:63]")
        a("v_cvt_pk_bf16_f32 v56, v56, v57\nv_cvt_pk_bf16_f32 v57, v58, v59\nds_write_b64 v6, v[56:57]")
    a(f"s_cmp_ge_u32 {sR}, 12\ns_cbranch_scc1 {T('VG')}")
    a(f"v_and_b32 v4, 15, v0\nv_lshlrev_b32 v6, 5, v4\nv_lshrrev_b32 v7, 4, v0\nv_lshl_add_u32 v6, v7, 3, v6\ns_lshl_b32 s3, {sW}, 9\ns_add_u32 s3, s3, {QKM}\nv_add_u32 v6, s3, v6")
    a(f"s_lshr_b32 s3, {sW}, 1\ns_lshl_b32 s3, s3, 10\ns_and_b32 s4, {sW}, 1\ns_lshl_b32 s4, s4, 3\ns_add_u32 s3, s3, s4\ns_add_u32 s3, s3, {QX}\nv_add_u32 v7, s3, v2")
    a(f"s_mov_b32 {sS}, -1\ns_waitcnt vmcnt(0)\ns_barrier\ns_branch {T('SG_TOK')}")
    a.put(T("SG_LOOP"))
    for i in range(56, 64): a(f"v_mov_b32 v{i}, 0")
    a("s_waitcnt lgkmcnt(0)")
    stamp(0)
    a("s_barrier")
    crit()
    a("s_waitcnt lgkmcnt(0)")
    stamp(1)
    a("s_barrier")
    a(f"s_cmp_eq_u32 {sS}, 63\ns_cbranch_scc1 {T('SG_END')}")
    a.put(T("SG_TOK"))
    a(f"s_add_u32 {sS}, {sS}, 1\ns_and_b32 s3, {sS}, 1\ns_mul_i32 s3, s3, 40960\nv_add_u32 v9, s3, v2")
    tokgemm()
    for t in range(2):
        for tt in range(2):
            d = 224 + 8*t + 4*tt
            a(f"v_cvt_pk_bf16_f32 v{d}, v{d}, v{d+1}\nv_cvt_pk_bf16_f32 v{d+1}, v{d+2}, v{d+3}\nds_write_b64 v7, v[{d}:{d+1}] offset:{4096*t + 2048*tt}")
    dump()
    a(f"s_branch {T('SG_LOOP')}")
    a.put(T("SG_END"))
    finish()
    a.put(T("VG"))
    a("v_bfe_u32 v6, v0, 3, 1\nv_lshlrev_b32 v6, 8, v6\nv_bfe_u32 v7, v0, 2, 1\nv_lshl_add_u32 v6, v7, 7, v6\nv_lshrrev_b32 v7, 5, v0\nv_lshl_add_u32 v6, v7, 6, v6\nv_and_b32 v7, 1, v0\nv_lshl_add_u32 v6, v7, 5, v6")
    a(f"v_bfe_u32 v7, v0, 1, 1\nv_lshl_add_u32 v6, v7, 4, v6\nv_bfe_u32 v7, v0, 4, 1\nv_lshl_add_u32 v6, v7, 3, v6\ns_lshl_b32 s3, {sW}, 9\ns_add_u32 s3, s3, {QKM}\nv_add_u32 v6, s3, v6")
    a("v_bfe_u32 v7, v0, 4, 1\nv_lshlrev_b32 v7, 8, v7\nv_and_b32 v8, 15, v0\nv_lshl_add_u32 v7, v8, 3, v7\nv_add_u32 v7, s3, v7")
    a(f"s_sub_u32 s4, {sR}, 12\ns_lshl_b32 s4, s4, 2\ns_add_u32 s4, s4, {sW}")
    a(f"s_lshl_b32 s3, s4, 9\nv_add_u32 v10, s3, v2\nv_mov_b32 v8, {OOB}\nv_cmp_gt_u32 vcc, 32, v0\nv_cndmask_b32 v10, v8, v10, vcc")
    a("s_lshl_b32 s3, s4, 11\nv_add_u32 v8, s3, v2\ns_lshl_b32 s3, s4, 2")
    onelane("v15", "s3")
    for i in range(4): a(f"v_mov_b32 v{240+i}, -1")
    a(f"s_mov_b32 {sS}, -3\ns_waitcnt vmcnt(0)\ns_barrier\ns_branch {T('VG_TOK')}")
    a.put(T("VG_LOOP"))
    for i in range(56, 64): a(f"v_mov_b32 v{i}, 0")
    slot("s34", L.VMS, L.VM); slot("s35", L.VMS, L.VM, NS - 1)
    a("s_barrier")
    crit()
    a("ds_read_b64_tr_b16 v[56:57], v7\nds_read_b64_tr_b16 v[58:59], v7 offset:128\ns_waitcnt lgkmcnt(1)\nv_min_u32 v56, -2, v56\nv_min_u32 v57, -2, v57\ns_waitcnt lgkmcnt(0)\nv_min_u32 v58, -2, v58\nv_min_u32 v59, -2, v59")
    a(f"buffer_store_dwordx4 v[56:59], v10, {WS}, s34 offen{ST}")
    stamp(0)
    if POIS: a(f"buffer_store_dwordx4 v[240:243], v10, {WS}, s35 offen{ST}")
    a("s_barrier")
    a(f"s_cmp_lt_u32 {sS}, 61\ns_cbranch_scc1 {T('VG_TOK')}\ns_cmp_eq_u32 {sS}, 63\ns_cbranch_scc1 {T('VG_END')}\ns_add_u32 {sS}, {sS}, 1\ns_waitcnt vmcnt(0)\ns_branch {T('VG_LOOP')}")
    a.put(T("VG_TOK"))
    a(f"s_and_b32 s3, {sS}, 1\ns_xor_b32 s3, s3, 1\ns_mul_i32 s3, s3, 40960\nv_add_u32 v9, s3, v2\ns_add_u32 s3, {sS}, 4\nv_mov_b32 v14, s3")
    slot("s36", L.VXS, L.VX, 3)
    tokgemm()
    for tt in range(2):
        for t in range(2):
            d = 224 + 8*t + 4*tt; o = 16 + 4*tt + 2*t
            a(f"v_cvt_pk_bf16_f32 v{o}, v{d}, v{d+1}\nv_cvt_pk_bf16_f32 v{o+1}, v{d+2}, v{d+3}")
        a(f"buffer_store_dwordx4 v[{16+4*tt}:{19+4*tt}], v8, {WS}, s36 offen offset:{1024*tt}{ST}")
    a(f"s_waitcnt vmcnt(0)\nbuffer_store_dword v14, v15, {WS}, {sFL} offen{ST}")
    stamp(1)
    dump()
    a(f"s_add_u32 {sS}, {sS}, 1\ns_cmp_ge_i32 {sS}, 0\ns_cbranch_scc1 {T('VG_LOOP')}\ns_barrier\ns_branch {T('VG_TOK')}")
    a.put(T("VG_END"))
    finish()

    a.put(T("PAUX"))
    a(f"s_setprio 2\ns_sub_u32 s14, {sW}, 4")
    a(f"s_lshl_b32 s3, s14, 10\nv_add_u32 v4, s3, v2\nv_add_u32 v12, {MEM}, v4\ns_cmp_lt_u32 s14, 2\ns_cselect_b64 vcc, -1, 0")
    a(f"v_mov_b32 v8, {OOB}\nv_cndmask_b32 v8, v8, v4, vcc\nv_add_u32 v13, {DUM}, v2\nv_add_u32 v5, 8192, v12\nv_cndmask_b32 v13, v13, v5, vcc")
    srd(16, c["pM0"], 10240)
    a("v_and_b32 v5, 7, v0\nv_mul_u32_u24 v5, 1280, v5\nv_lshrrev_b32 v6, 3, v0\nv_lshl_add_u32 v5, v6, 4, v5\ns_lshl_b32 s3, s14, 7\nv_add_u32 v5, s3, v5")
    SPREAD = OPT.get("SPREAD", 0)
    if SPREAD:
        a(f"s_cmp_ge_u32 {sR}, 12\ns_cselect_b32 s3, 2, 0\ns_xor_b32 s3, s3, s14\ns_lshl_b32 s40, {sR}, 1\ns_add_u32 s40, s40, s3\ns_cmp_lt_u32 s3, 2\ns_cselect_b32 s40, s40, -1")
        a(f"s_lshl_b32 s3, {sR}, 2\ns_add_u32 s3, s3, s14\ns_and_b32 s4, s3, 0xfffffff3\ns_add_u32 s3, {sR}, 36\ns_cmp_eq_u32 s4, 2\ns_cselect_b32 s40, s3, s40")
    else:
        a(f"s_lshl_b32 s40, {sR}, 2\ns_add_u32 s40, s40, s14\ns_cmp_lt_u32 {sR}, 10\ns_cselect_b32 s40, s40, -1")
    a(f"s_lshr_b32 s3, {sR}, 1\ns_lshr_b32 s4, s40, 2\ns_cmp_lt_i32 s40, 0\ns_cselect_b32 s3, s3, s4\ns_lshl_b32 s3, s3, 7\ns_add_u32 s3, s3, 2048\nv_mov_b32 v140, s3")
    a("s_max_i32 s5, s40, 0\ns_lshr_b32 s3, s5, 2\ns_lshl_b32 s3, s3, 15\ns_and_b32 s4, s5, 3\ns_lshl_b32 s4, s4, 9\ns_add_u32 s3, s3, s4")
    a("v_and_b32 v142, 31, v0\nv_lshlrev_b32 v141, 4, v142\nv_lshrrev_b32 v143, 5, v0\nv_lshl_add_u32 v141, v143, 11, v141\nv_add_u32 v141, s3, v141")
    a("s_lshl_b32 s3, s5, 8\nv_lshlrev_b32 v142, 3, v142\nv_lshl_add_u32 v142, v143, 2, v142\nv_add_u32 v142, s3, v142\nv_mov_b32 v143, -1")
    a(f"s_lshr_b32 s41, {sQ}, 2\ns_lshl_b32 s41, s41, 14")
    a(f"s_mov_b32 s6, -1\ns_mov_b32 s7, -1\ns_mov_b32 s4, {L.H3 + 2*L.H3S}\nbuffer_load_dwordx2 v[144:145], v141, {WS}, s4 offen sc1\ns_waitcnt vmcnt(0)")
    for it in range(3):
        for cp in range(2):
            a(f"s_mov_b32 s4, {L.H3 + 3*L.H3S + 8192*cp + 4096*(it % 2) + 16384*(it // 2)}\ns_memtime s[60:61]\ns_waitcnt lgkmcnt(0)\nbuffer_load_dwordx2 v[144:145], v141, {WS}, s4 offen sc1\ns_waitcnt vmcnt(0)")
            a(f"s_memtime s[62:63]\ns_waitcnt lgkmcnt(0)\ns_sub_u32 s3, s62, s60\ns_min_u32 s{6+cp}, s{6+cp}, s3")
    a("s_cmp_lt_u32 s7, s6\ns_cselect_b32 s3, 8192, 0")
    if FLIP: a("s_xor_b32 s3, s3, 8192")
    if INSTR == 2: a("s_mov_b32 s53, s6\ns_mov_b32 s54, s7")
    a("v_add_u32 v141, s3, v141")
    A3 = lambda d, x, y, z: f"v_bitop3_b32 {d}, {x}, {y}, {z} bitop3:0x80"
    def h3task():
        skip = a.lab("H3N"); done = a.lab("H3D"); lp = a.lab("H3F"); go = a.lab("H3G")
        slot("s36", L.H3S, L.H3, NS - 1, False); slot("s37", L.H1S, L.H1); slot("s35", L.H1S, L.H1, NS - 1)
        a(f"s_sub_u32 s3, {sS}, 1\ns_lshr_b32 s25, s3, {LOGNS}\ns_and_b32 s25, s25, 1\ns_add_u32 s25, s25, 1")
        a("s_xor_b32 s3, s41, 16384\ns_add_u32 s16, s36, s41\ns_add_u32 s17, s16, 4096\ns_add_u32 s18, s36, s3\ns_add_u32 s19, s18, 4096")
        NF = 3
        for k in range(NF - 1):
            a(f"buffer_load_dword v{144+k}, v140, {WS}, {sFL} offen sc1"); delay(64)
        a.put(lp)
        for k in range(NF):
            a(f"buffer_load_dword v{144+(k+NF-1)%NF}, v140, {WS}, {sFL} offen sc1\ns_waitcnt vmcnt({NF-1})\nv_cmp_gt_u32 vcc, {sS}, v{144+k}\ns_cbranch_vccz {go}")
        budget(lp)
        a.put(go)
        stamp(6)
        a(f"s_cmp_lt_i32 s40, 0\ns_cbranch_scc1 {skip}")
        delay(DELTA)
        lp = a.lab("H3P"); a.put(lp)
        a(f"s_sub_u32 {sBUD}, {sBUD}, 1\ns_cbranch_scc1 END")
        for q in range(4): a(f"buffer_load_dwordx4 v[{148+4*q}:{151+4*q}], v141, {WS}, s{16+q} offen sc1")
        a("s_waitcnt vmcnt(3)\n" + A3("v52", "s25", "v148", "v149") + "\n" + A3("v52", "v52", "v150", "v151"))
        for i in range(1, 4):
            r = 148 + 4*i; p = 148 if i == 1 else 164
            a(f"s_waitcnt vmcnt({3-i})\nv_pk_add_f32 v[164:165], v[{p}:{p+1}], v[{r}:{r+1}]\nv_pk_add_f32 v[166:167], v[{p+2}:{p+3}], v[{r+2}:{r+3}]\n" + A3("v52", "v52", f"v{r}", f"v{r+1}") + "\n" + A3("v52", "v52", f"v{r+2}", f"v{r+3}"))
        a("v_permlane32_swap_b32 v164, v166\nv_permlane32_swap_b32 v165, v167\nv_cmp_eq_u32 vcc, 0, v52\nv_pk_add_f32 v[164:165], v[164:165], v[166:167]")
        a(f"v_cvt_pk_bf16_f32 v166, v164, v165\nv_min_u32 v166, -2, v166\ns_cbranch_vccnz {lp}")
        a(f"buffer_store_dword v166, v142, {WS}, s37 offen{ST}")
        stamp(7)
        if POIS: a(f"buffer_store_dword v143, v142, {WS}, s35 offen{ST}")
        if INSTR in (1, 2):
            a(f"s_memtime s[60:61]\ns_lshl_b32 s3, {sQ}, 8\ns_lshl_b32 s4, {sS}, 2\ns_add_u32 s3, s3, s4\ns_add_u32 s3, s3, {L.DBG+262144-4}\ns_cmp_eq_u32 s40, 0\ns_cselect_b32 s4, 0, {OOB}")
            a(f"s_waitcnt lgkmcnt(0)\ns_sub_u32 s60, s60, s90\nv_mov_b32 v164, s60\nv_mov_b32 v165, s4\nbuffer_store_dword v164, v165, {WS}, s3 offen")
        a(f"s_branch {done}")
        a.put(skip)
        if OPT.get("D2"): a(f"s_sleep {OPT['D2']}")
        a.put(done)
    def mem0(got):
        for i in range(3): a(f"buffer_load_dwordx4 v[{16+4*i}:{19+4*i}], v5, s[16:19], 0 offen offset:{512*i}")
        a(f"s_waitcnt vmcnt(0)\nds_write_b128 v12, v[16:19]\nds_write_b128 v12, v[20:23] offset:4096\nds_write_b128 v13, v[24:27]")
        stamp0()
        a(f"s_branch {got}")
    def h1poll(got, sl):
        if sl: a(f"s_sleep {sl}")
        slot("s34", L.H1S, L.H1)
        a("s_add_u32 s35, s34, 4096\ns_add_u32 s36, s34, 8192")
        def issue(r): a(f"buffer_load_dwordx4 v[{r}:{r+3}], v4, {WS}, s34 offen sc1\nbuffer_load_dwordx4 v[{r+4}:{r+7}], v4, {WS}, s35 offen sc1\nbuffer_load_dwordx4 v[{r+8}:{r+11}], v8, {WS}, s36 offen sc1")
        def check(r, n):
            a(f"s_waitcnt vmcnt({n+2})\nds_write_b128 v12, v[{r}:{r+3}]\nv_max3_u32 v52, v{r}, v{r+1}, v{r+2}")
            a(f"s_waitcnt vmcnt({n+1})\nds_write_b128 v12, v[{r+4}:{r+7}] offset:4096\nv_max3_u32 v52, v{r+3}, v{r+4}, v52\nv_max3_u32 v52, v{r+5}, v{r+6}, v52")
            a(f"s_waitcnt vmcnt({n})\nds_write_b128 v13, v[{r+8}:{r+11}]\nv_max3_u32 v52, v{r+7}, v{r+8}, v52\nv_max3_u32 v52, v{r+9}, v{r+10}, v52\nv_max_u32 v52, v{r+11}, v52")
            a(f"v_cmp_eq_u32 vcc, -1, v52\ns_cbranch_vccz {got}\ns_waitcnt lgkmcnt(0)")
        lp = a.lab("H1P")
        P1 = OPT.get("P1", 2)
        if P1 == 1:
            a.put(lp); issue(116); check(116, 0)
        else:
            for k in range(P1 - 1):
                issue(116 + 12*k)
                if OPT.get("P1D"): delay(OPT["P1D"])
            a.put(lp)
            for k in range(P1):
                issue(116 + 12*((k + P1 - 1) % P1)); check(116 + 12*k, 3*(P1 - 1))
        budget(lp)
    a(f"s_cmp_ge_u32 {sR}, 12\ns_cbranch_scc1 {T('VA')}")
    a(f"s_cmp_eq_u32 s14, 3\ns_cselect_b32 s3, 0, {KX-QX}\ns_cmp_eq_u32 s14, 1\ns_cselect_b32 s4, 2048, 0\ns_add_u32 s3, s3, s4\ns_add_u32 s3, s3, {QX}\nv_add_u32 v14, s3, v2")
    a(f"s_cmp_eq_u32 s14, 0\ns_cselect_b32 s3, 0, 2048\ns_add_u32 s3, s3, {QX}\nv_add_u32 v15, s3, v2\nv_add_u32 v7, {QKM}, v3")
    a("v_and_b32 v6, 7, v0\nv_lshrrev_b32 v9, 4, v0\nv_lshl_add_u32 v11, v6, 2, v9\nv_lshlrev_b32 v11, 4, v11\ns_lshl_b32 s3, s14, 9\nv_add_u32 v11, s3, v11")
    a("v_lshl_add_u32 v9, v9, 3, v6\nv_lshlrev_b32 v9, 4, v9\nv_add_u32 v9, 768, v9\ns_cmp_eq_u32 s14, 2\ns_cselect_b64 vcc, -1, 0\nv_cndmask_b32 v11, v11, v9, vcc")
    a(f"s_mul_i32 s3, {sR}, 1280\nv_add_u32 v11, s3, v11\ns_mov_b32 s5, 0x00ff00ff\ns_cselect_b32 s4, 0, s5\ns_mov_b64 vcc, s[4:5]\nv_mov_b32 v9, {OOB}\nv_cndmask_b32 v11, v9, v11, vcc")
    a(f"s_lshl_b32 s3, {sR}, 2\ns_add_u32 s3, s3, s14\ns_lshl_b32 s4, s3, 10\nv_add_u32 v10, s4, v2\ns_lshl_b32 s3, s3, 2\ns_add_u32 s3, s3, 128")
    onelane("v6", "s3")
    a(f"s_mov_b32 {sS}, 0\ns_waitcnt vmcnt(0)\ns_barrier")
    mem0(T("SA_GOT"))
    a.put(T("SA_LOOP"))
    h3task()
    h1poll(T("SA_GOT"), 0)
    a.put(T("SA_GOT"))
    stamp(0)
    a("s_waitcnt lgkmcnt(0)\ns_barrier")
    stamp(1)
    a("ds_read_b128 v[24:27], v14\nds_read_b128 v[28:31], v14 offset:1024\nds_read_b128 v[32:35], v15\nds_read_b128 v[36:39], v15 offset:1024")
    slot("s35", L.H2S, L.H2); slot("s36", L.HXS, L.HX); tagreg("s37")
    a(f"s_add_u32 s3, {sS}, 1\nv_mov_b32 v9, s3\ns_waitcnt lgkmcnt(0)")
    a(f"s_cmp_eq_u32 s14, 2\ns_cbranch_scc1 {T('SA_2')}\ns_cmp_eq_u32 s14, 3\ns_cbranch_scc1 {T('SA_3')}")
    def qkread():
        a("s_barrier")
        stamp(2)
        for i in range(4): a(f"ds_read_b64_tr_b16 v[{40+2*i}:{41+2*i}], v7 offset:{512*i}")
    def h2out(A0, A1):
        a(f"s_waitcnt lgkmcnt(2)\nv_mfma_f32_16x16x32_bf16 v[48:51], v[{A0}:{A0+3}], v[40:43], 0\ns_waitcnt lgkmcnt(0)\nv_mfma_f32_16x16x32_bf16 v[48:51], v[{A1}:{A1+3}], v[44:47], v[48:51]")
        for i in range(4): a(f"v_and_or_b32 v{48+i}, v{48+i}, -4, s37")
        a(f"buffer_store_dwordx4 v[48:51], v11, {WS}, s35 offen{ST}")
        stamp(3)
    qkread(); h2out(24, 28)
    a(f"s_branch {T('SA_X')}")
    a.put(T("SA_2"))
    qkread(); h2out(40, 44)
    a.put(T("SA_X"))
    a("v_mfma_f32_16x16x32_bf16 v[56:59], v[24:27], v[32:35], 0\nv_mfma_f32_16x16x32_bf16 v[56:59], v[28:31], v[36:39], v[56:59]")
    a(f"s_branch {T('SA_F')}")
    a.put(T("SA_3"))
    qkread()
    a("s_waitcnt lgkmcnt(0)\nv_mfma_f32_16x16x32_bf16 v[52:55], v[40:43], v[24:27], 0\nv_mfma_f32_16x16x32_bf16 v[56:59], v[40:43], v[32:35], 0")
    a("v_mfma_f32_16x16x32_bf16 v[52:55], v[44:47], v[28:31], v[52:55]\nv_mfma_f32_16x16x32_bf16 v[56:59], v[44:47], v[36:39], v[56:59]")
    for i in range(4): a(f"v_permlane32_swap_b32 v{52+i}, v{56+i}")
    a.put(T("SA_F"))
    a(f"buffer_store_dwordx4 v[56:59], v10, {WS}, s36 offen{ST}\ns_waitcnt vmcnt(0)\nbuffer_store_dword v9, v6, {WS}, {sFL} offen{ST}")
    stamp(4)
    a(f"s_cmp_eq_u32 {sS}, 63\ns_cbranch_scc1 {T('SA_END')}\ns_cmp_eq_u32 {sS}, 62\ns_cbranch_scc1 {T('SA_N')}")
    a(f"s_mul_i32 s5, s14, 10240\ns_and_b32 s3, {sS}, 1\ns_mul_i32 s3, s3, 40960\ns_add_u32 s3, s3, s5\ns_mul_i32 s4, {sS}, 40960\ns_add_u32 s4, s4, s5\ns_add_u32 s4, s4, {L.XN + 2*40960}")
    xs_dma("s3", "s4")
    a.put(T("SA_N"))
    stamp(5)
    dump()
    a(f"s_add_u32 {sS}, {sS}, 1\ns_branch {T('SA_LOOP')}")
    a.put(T("SA_END"))
    finish()
    a.put(T("VA"))
    a(f"s_sub_u32 s15, {sR}, 12")
    a(f"s_mul_i32 s3, s15, 12288\ns_lshl_b32 s4, s14, 11\ns_add_u32 s4, s4, s3\nv_add_u32 v14, s4, v2")
    a(f"s_add_u32 s4, s3, 1024\nv_add_u32 v15, s4, v2\nv_mov_b32 v9, {OOB}\ns_cmp_eq_u32 s14, 1\ns_cselect_b64 vcc, -1, 0\nv_cndmask_b32 v15, v9, v15, vcc")
    a(f"s_lshl_b32 s4, s14, 9\ns_add_u32 s4, s4, s3\ns_add_u32 s4, s4, {3072-512}\nv_add_u32 v7, s4, v2\nv_cmp_le_u32 vcc, 32, v0\nv_cndmask_b32 v7, v9, v7, vcc")
    a("s_mul_i32 s3, s14, 5120\ns_lshl_b32 s4, s15, 10\ns_add_u32 s4, s4, s3\nv_add_u32 v10, s4, v2")
    a("v_and_b32 v6, 15, v0\nv_lshlrev_b32 v11, 4, v6\nv_bfe_u32 v64, v0, 4, 1\nv_lshl_add_u32 v11, v64, 3, v11\ns_lshl_b32 s4, s15, 8\ns_add_u32 s4, s4, s3\ns_add_u32 s4, s4, 4096\nv_add_u32 v11, s4, v11\nv_cndmask_b32 v11, v9, v11, vcc")
    a("v_mov_b32 v65, 0xf149f2ca\nv_mov_b32 v66, 0")
    for i in range(4): a(f"v_cndmask_b32 v{108+i}, v65, v66, vcc")
    a("s_lshl_b32 s3, s14, 4\nv_add_u32 v6, s3, v6\nv_lshrrev_b32 v64, 4, v0\nv_lshlrev_b32 v64, 2, v64\nv_sub_u32 v6, v6, v64")
    for i in range(8): a(f"v_cmp_le_i32 vcc, {i if i < 4 else 12+i}, v6\nv_cndmask_b32 v{100+i}, v65, v66, vcc")
    a("v_min_u32 v6, 11, v0\nv_lshlrev_b32 v6, 2, v6\ns_mul_i32 s3, s15, 48\ns_add_u32 s3, s3, 128\nv_add_u32 v6, s3, v6")
    a("s_lshl_b32 s3, s14, 2\ns_add_u32 s3, s3, s15\ns_lshl_b32 s3, s3, 2\ns_add_u32 s3, s3, 384")
    onelane("v112", "s3")
    a("s_mov_b32 s38, 0x3dd53b95\nv_mov_b32 v114, s38\nv_mov_b32 v115, s38")
    a("s_cmp_lt_u32 s15, 4\ns_cselect_b32 s39, 1, 0\ns_cmp_lt_u32 s14, 2\ns_cselect_b32 s39, s39, 0")
    a(f"s_mov_b32 {sS}, 0\ns_waitcnt vmcnt(0)\ns_barrier\ns_barrier")
    a(f"s_mul_i32 s3, s14, 10240\ns_add_u32 s4, s3, {L.XN + 2*40960}")
    xs_dma("s3", "s4")
    a(f"s_waitcnt vmcnt(0)\ns_barrier\ns_mul_i32 s3, s14, 10240\ns_add_u32 s4, s3, {L.XN + 3*40960}\ns_add_u32 s3, s3, 40960")
    xs_dma("s3", "s4")
    mem0(T("VA_GOT"))
    a.put(T("VA_LOOP"))
    h3task()
    h1poll(T("VA_GOT"), 0)
    a.put(T("VA_GOT"))
    stamp(0)
    a("s_waitcnt lgkmcnt(0)\ns_barrier")
    stamp(1)
    a("s_barrier")
    a(f"s_cmp_ge_u32 {sS}, 60\ns_cbranch_scc1 {T('VA_S')}")
    a(f"s_mul_i32 s5, s14, 10240\ns_and_b32 s3, {sS}, 1\ns_mul_i32 s3, s3, 40960\ns_add_u32 s3, s3, s5\ns_mul_i32 s4, {sS}, 40960\ns_add_u32 s4, s4, s5\ns_add_u32 s4, s4, {L.XN + 4*40960}")
    xs_dma("s3", "s4")
    a.put(T("VA_S"))
    a(f"s_cmp_eq_u32 s39, 0\ns_cbranch_scc1 {T('VA_N')}")
    slot("s34", L.HXS, L.HX); slot("s37", L.PXS, L.PX)
    a(f"s_add_u32 s35, s34, 4096\ns_add_u32 s36, s34, 8192\ns_add_u32 s3, {sS}, 1\nv_mov_b32 v113, s3")
    flagwait("v6", "v64", "s3")
    stamp(4)
    for p in range(3):
        for i, v in enumerate(("v14", "v15", "v7")): a(f"buffer_load_dwordx4 v[{64+12*p+4*i}:{67+12*p+4*i}], {v}, {WS}, s{34+p} offen sc1")
    a("s_waitcnt vmcnt(3)")
    for i in range(6): a(f"v_pk_add_f32 v[{64+2*i}:{65+2*i}], v[{64+2*i}:{65+2*i}], v[{76+2*i}:{77+2*i}]")
    for i in range(6): a(f"v_pk_add_f32 v[{64+2*i}:{65+2*i}], v[{64+2*i}:{65+2*i}], v[{100+2*i}:{101+2*i}]")
    a("s_waitcnt vmcnt(0)")
    for i in range(6): a(f"v_pk_add_f32 v[{64+2*i}:{65+2*i}], v[{64+2*i}:{65+2*i}], v[{88+2*i}:{89+2*i}]")
    a("v_max3_f32 v76, v64, v65, v66")
    for i in range(4): a(f"v_max3_f32 v76, v76, v{67+2*i}, v{68+2*i}")
    a("v_max_f32 v76, v76, v75")
    def xred(op):
        a(f"v_mov_b32 v77, v76\nv_permlane16_swap_b32 v76, v77\n{op} v76, v76, v77\nv_mov_b32 v77, v76\nv_permlane32_swap_b32 v76, v77\n{op} v76, v76, v77")
    xred("v_max_f32")
    a("v_mul_f32 v78, s38, v76")
    for i in range(6): a(f"v_pk_fma_f32 v[{64+2*i}:{65+2*i}], v[{64+2*i}:{65+2*i}], v[114:115], v[78:79] op_sel_hi:[1,1,0] neg_lo:[0,0,1] neg_hi:[0,0,1]")
    for i in range(12): a(f"v_exp_f32 v{64+i}, v{64+i}")
    a("v_pk_add_f32 v[76:77], v[64:65], v[66:67]")
    for i in range(2, 6): a(f"v_pk_add_f32 v[76:77], v[76:77], v[{64+2*i}:{65+2*i}]")
    a("v_add_f32 v76, v76, v77")
    xred("v_add_f32")
    a("v_rcp_f32 v78, v76")
    for i in range(6): a(f"v_pk_mul_f32 v[{64+2*i}:{65+2*i}], v[{64+2*i}:{65+2*i}], v[78:79] op_sel_hi:[1,0]")
    for i in range(6): a(f"v_cvt_pk_bf16_f32 v{80+i}, v{64+2*i}, v{65+2*i}")
    a(f"buffer_store_dwordx4 v[80:83], v10, {WS}, s37 offen{ST}\nbuffer_store_dwordx2 v[84:85], v11, {WS}, s37 offen{ST}")
    a(f"s_waitcnt vmcnt(0)\nbuffer_store_dword v113, v112, {WS}, {sFL} offen{ST}")
    stamp(5)
    a.put(T("VA_N"))
    dump()
    a(f"s_add_u32 {sS}, {sS}, 1\ns_cmp_lt_u32 {sS}, 64\ns_cbranch_scc1 {T('VA_LOOP')}")
    finish()

    a.put(T("COMB"))
    ZM, PT, PM = 65536, 81920, 83968
    TAILS = 60
    a(f"s_sub_u32 s15, {sR}, 18")
    a(f"s_cmp_ge_u32 {sW}, 4\ns_cbranch_scc1 {T('CAUX')}")
    idxreg("v5")
    a(f"s_mul_i32 s3, {sW}, 3072\nv_add_u32 v4, s3, v2")
    a(f"v_and_b32 v6, 15, v0\nv_lshlrev_b32 v6, 4, v6\nv_bfe_u32 v7, v0, 4, 1\nv_lshl_add_u32 v6, v7, 3, v6\nv_lshrrev_b32 v7, 5, v0\nv_lshl_add_u32 v6, v7, 10, v6\ns_lshl_b32 s3, {sW}, 8\ns_add_u32 s3, s3, {ZM}\nv_add_u32 v6, s3, v6")
    a(f"s_lshl_b32 s3, {sW}, 12\nv_add_u32 v8, s3, v2\ns_mul_i32 s3, {sW}, 12288\nv_add_u32 v14, s3, v2")
    a(f"s_lshr_b32 s4, {sW}, 1\ns_lshl_b32 s3, s4, 11\nv_add_u32 v11, s3, v2\ns_and_b32 s5, {sW}, 1\ns_mul_i32 s3, s5, 5120\nv_add_u32 v12, s3, v2")
    a(f"v_and_b32 v13, 7, v0\nv_lshlrev_b32 v13, 7, v13\nv_lshrrev_b32 v7, 4, v0\nv_lshl_add_u32 v13, v7, 4, v13\nv_bfe_u32 v7, v0, 3, 1\nv_lshl_add_u32 v13, v7, 6, v13\ns_mul_i32 s3, {sQ}, 81920\ns_lshl_b32 s6, s15, 13\ns_add_u32 s3, s3, s6\ns_lshl_b32 s6, {sW}, 11\ns_add_u32 s3, s3, s6\nv_add_u32 v13, s3, v13")
    a(f"v_min_u32 v15, 5, v0\nv_lshlrev_b32 v15, 2, v15\ns_mul_i32 s3, {sW}, 24\nv_add_u32 v15, s3, v15")
    a("v_and_b32 v60, 3, v0\nv_lshlrev_b32 v60, 2, v60\ns_lshl_b32 s3, s5, 4\ns_add_u32 s3, s3, 384\nv_add_u32 v60, s3, v60")
    a(f"s_add_u32 s3, s15, {sW}\ns_cmp_eq_u32 s3, 0\ns_mov_b32 s4, {OOB}\ns_cselect_b32 s3, 1024, s4")
    onelane("v61", "s3")
    a(f"s_mov_b32 s43, {L.OUTP - 2*655360}")
    a(f"s_lshl_b32 s3, s15, 15\ns_lshl_b32 s4, {sW}, 9\ns_add_u32 s3, s3, s4\ns_lshr_b32 s5, {sQ}, 2\ns_lshl_b32 s5, s5, 14\ns_add_u32 s3, s3, s5\ns_and_b32 s4, {sQ}, 3\ns_lshl_b32 s4, s4, 11\ns_add_u32 s3, s3, s4")
    a("v_and_b32 v62, 7, v0\nv_lshrrev_b32 v3, 5, v0\nv_lshlrev_b32 v3, 8, v3\nv_lshl_add_u32 v3, v62, 5, v3\nv_bfe_u32 v7, v0, 4, 1\nv_lshl_add_u32 v3, v7, 4, v3\nv_bfe_u32 v7, v0, 3, 1\nv_lshl_add_u32 v3, v7, 13, v3\nv_add_u32 v3, s3, v3")
    a("v_lshrrev_b32 v7, 4, v0\nv_lshl_add_u32 v1, v7, 3, v62\nv_lshlrev_b32 v1, 4, v1\nv_add_u32 v1, %d, v1" % PT)
    a(f"s_lshl_b32 s38, {sW}, 10")
    def vxloads(add):
        slot("s35", L.VXS, L.VX, add)
        a("s_add_u32 s36, s35, 4096\ns_add_u32 s37, s35, 8192")
        for i in range(12): a(f"buffer_load_dwordx4 v[{160+4*i}:{163+4*i}], v14, {WS}, s{35+i//4} offen offset:{(i%4)*1024} sc1")
    def pxloads():
        slot("s35", L.PXS, L.PX, NS - 1)
        a("s_add_u32 s36, s35, 4096")
        for h in range(4): a(f"buffer_load_dwordx4 v[{208+4*h}:{211+4*h}], v12, {WS}, s35 offen offset:{1024*h} sc1")
        a(f"buffer_load_dwordx4 v[224:227], v12, {WS}, s36 offen sc1")
    VXI = OPT.get("VXI", 1)
    def zx(add, nxt=False):
        if nxt:
            slot("s35", L.VXS, L.VX, 2)
            a(f"s_cmp_ge_u32 {sS}, 62\ns_cselect_b32 s35, {OOB - 65536}, s35\ns_add_u32 s36, s35, 4096\ns_add_u32 s37, s35, 8192")
        a(f"s_add_u32 s3, {sS}, {add}\ns_and_b32 s3, s3, 3\ns_lshl_b32 s3, s3, 14\nv_add_u32 v7, s3, v8")
        for i in range(6):
            for ct in range(4):
                for tt in range(2):
                    w = 64 + 32*(i // 2) + 8*ct + 4*(i % 2); d = 16 + 8*ct + 4*tt; x = 160 + 8*i + 4*tt
                    a(f"v_mfma_f32_16x16x32_bf16 v[{d}:{d+3}], v[{x}:{x+3}], v[{w}:{w+3}], " + ("0" if i == 0 else f"v[{d}:{d+3}]"))
            if nxt and i > 0:
                for k in (2*i - 2, 2*i - 1) + ((10, 11) if i == 5 else ()):
                    a(f"buffer_load_dwordx4 v[{160+4*k}:{163+4*k}], v14, {WS}, s{35+k//4} offen offset:{(k%4)*1024} sc1")
        for ct in range(4):
            d = 16 + 8*ct
            for i in range(4): a(f"v_cvt_pk_bf16_f32 v{d+i}, v{d+2*i}, v{d+2*i+1}")
            a(f"ds_write_b128 v7, v[{d}:{d+3}] offset:{1024*ct}")
    PA = [228, 232, 236, 240, 244, 248, 252, 48, 52, 56]
    def pzreads():
        a(f"s_add_u32 s3, {sS}, 2\ns_and_b32 s3, s3, 3\ns_lshl_b32 s4, s3, 14\nv_add_u32 v9, s4, v11\ns_lshl_b32 s3, s3, 12\ns_add_u32 s3, s3, {ZM}\nv_add_u32 v10, s3, v11")
        for cc in range(2):
            for h in range(4): a(f"ds_read_b128 v[{PA[5*cc+h]}:{PA[5*cc+h]+3}], v9 offset:{4096*h + 1024*cc}")
            a(f"ds_read_b128 v[{PA[5*cc+4]}:{PA[5*cc+4]+3}], v10 offset:{1024*cc}")
    def pz():
        for h in range(5):
            for cc in range(2):
                d = 20 + 8*cc
                a(f"v_mfma_f32_16x16x32_bf16 v[{d}:{d+3}], v[{PA[5*cc+h]}:{PA[5*cc+h]+3}], v[{208+4*h}:{211+4*h}], " + ("0" if h == 0 else f"v[{d}:{d+3}]"))
        for i in range(4): a(f"v_and_or_b32 v{24+i}, v{20+i}, -4, 1\nv_and_or_b32 v{28+i}, v{28+i}, -4, 1")
        for i in range(4): a(f"v_mov_b32 v{20+i}, v{24+i}")
        for i in range(4): a(f"v_mov_b32_dpp v{20+i}, v{28+i} row_ror:8 row_mask:0xf bank_mask:0xc")
        for i in range(4): a(f"v_mov_b32_dpp v{28+i}, v{24+i} row_ror:8 row_mask:0xf bank_mask:0x3")
    OSC = OPT.get("OSC", " sc1")
    def outp():
        if not OPT.get("NOOUTP"): a(f"buffer_store_dwordx4 v[20:23], v13, {WS}, s43 offen{OSC}\nbuffer_store_dwordx4 v[28:31], v13, {WS}, s43 offen offset:1024{OSC}")
    a(f"s_mov_b32 {sS}, 0\ns_mov_b32 s4, 1")
    flagwait("v15", "v62", "s4")
    vxloads(0)
    a("s_waitcnt vmcnt(0)")
    zx(0)
    a("s_mov_b32 s4, 2")
    flagwait("v15", "v62", "s4")
    vxloads(1)
    a("s_waitcnt lgkmcnt(0)\ns_barrier")
    a.put(T("CG_LOOP"))
    slot("s34", L.VMS, L.VM)
    for i in range(32, 48): a(f"v_mov_b32 v{i}, 0")
    a(f"s_and_b32 s3, {sS}, 3\ns_lshl_b32 s4, s3, 14\ns_add_u32 s4, s4, s38\nv_add_u32 v9, s4, v2\ns_lshl_b32 s3, s3, 12\nv_add_u32 v7, s3, v6\ns_add_u32 s3, s3, s38\ns_add_u32 s3, s3, {ZM}\nv_add_u32 v10, s3, v2")
    for h in range(4): a(f"ds_read_b128 v[{228+4*h}:{231+4*h}], v9 offset:{4096*h}")
    slot("s39", L.H3S, L.H3, 0, False); tagreg("s25")
    if OPT.get("SLV"): a(f"s_sleep {OPT['SLV']}")
    stamp(6)
    a.put(T("CG_P"))
    a(f"s_sub_u32 {sBUD}, {sBUD}, 1\ns_cbranch_scc1 END")
    for i in range(3): a(f"buffer_load_dwordx4 v[{48+4*i}:{51+4*i}], v4, {WS}, s34 offen offset:{1024*i} sc1")
    a("s_waitcnt vmcnt(2)\nv_max3_u32 v62, v48, v49, v50\ns_waitcnt vmcnt(1)\nv_max3_u32 v62, v62, v51, v52\nv_max3_u32 v62, v62, v53, v54")
    a(f"s_waitcnt vmcnt(0)\nv_max3_u32 v62, v62, v55, v56\nv_max3_u32 v62, v62, v57, v58\nv_max_u32 v62, v62, v59\nv_cmp_eq_u32 vcc, -1, v62\ns_cbranch_vccnz {T('CG_P')}")
    stamp(0)
    for kb in range(3):
        for t in range(4):
            a(f"v_smfmac_f32_16x16x64_bf16 v[{32+4*t}:{35+4*t}], v[{48+4*kb}:{51+4*kb}], v[{64+32*kb+8*t}:{71+32*kb+8*t}], v5")
    for p in range(2):
        o = 32 + 8*p
        for i in range(4): a(f"v_permlane32_swap_b32 v{o+i}, v{o+4+i}")
        a(f"v_pk_add_f32 v[{o}:{o+1}], v[{o}:{o+1}], v[{o+4}:{o+5}]\nv_pk_add_f32 v[{o+2}:{o+3}], v[{o+2}:{o+3}], v[{o+6}:{o+7}]")
        a(f"v_cvt_pk_bf16_f32 v{o}, v{o}, v{o+1}\nv_cvt_pk_bf16_f32 v{o+1}, v{o+2}, v{o+3}\nds_write_b64 v7, v[{o}:{o+1}] offset:{2048*p}")
    a("s_waitcnt lgkmcnt(0)")
    stamp(1)
    a("s_barrier")
    stamp(2)
    a(f"s_cmp_eq_u32 {sS}, 63\ns_cbranch_scc1 {T('CG_0')}")
    for h in range(4): a(f"ds_read_b128 v[{16+4*h}:{19+4*h}], v1 offset:{512*h}")
    a(f"ds_read_b128 v[32:35], v1 offset:{PM-PT}\nds_read_b128 v[36:39], v10")
    for h in range(5):
        a(f"s_waitcnt lgkmcnt({[5,4,3,2,0][h]})")
        z = 228 + 4*h if h < 4 else 36
        a(f"v_mfma_f32_16x16x32_bf16 v[40:43], v[{z}:{z+3}], v[{16+4*h}:{19+4*h}], " + ("0" if h == 0 else "v[40:43]"))
    for i in range(4): a(f"v_and_or_b32 v{40+i}, v{40+i}, -4, s25")
    a(f"buffer_store_dwordx4 v[40:43], v3, {WS}, s39 offen sc1")
    stamp(7)
    a.put(T("CG_0"))
    pzreads()
    a(f"s_cmp_eq_u32 {sS}, 63\ns_cbranch_scc1 {T('CG_1')}")
    zx(1, VXI)
    a.put(T("CG_1"))
    a("s_waitcnt lgkmcnt(0)")
    pz()
    a(f"s_sub_u32 s3, {sS}, 3\ns_max_i32 s3, s3, 0\nv_mov_b32 v63, s3")
    OF = OPT.get("OFIRST", 1)
    def outp_c():
        a(f"s_cmp_lt_u32 {sS}, 2\ns_cbranch_scc1 {T('CG_3')}")
        outp()
        a.put(T("CG_3"))
    stamp(3)
    if OPT.get("BD"): a(f"s_sleep {OPT['BD']}")
    if OF == 1: outp_c()
    a(f"buffer_store_dword v63, v61, {WS}, {sFL} offen{ST}")
    if not VXI:
        a(f"s_cmp_ge_u32 {sS}, 62\ns_cbranch_scc1 {T('CG_2')}")
        vxloads(2)
        a.put(T("CG_2"))
    pxloads()
    if OF == 0: outp_c()
    stamp(4)
    a("s_barrier")
    if OPT.get("PROBE"):
        stamp(5)
        for i, n in enumerate((13, 7, 2, 0) if OF == 0 else (18, 11, 5, 0)):
            a(f"s_waitcnt vmcnt({n})"); stamp(6 + i)
    stamp(5)
    dump()
    a(f"s_add_u32 s43, s43, 655360\ns_add_u32 {sS}, {sS}, 1\ns_cmp_lt_u32 {sS}, 64\ns_cbranch_scc1 {T('CG_LOOP')}")
    pzreads()
    a("s_waitcnt vmcnt(%d) lgkmcnt(0)" % (2 if OF == 0 else 0))
    pz()
    outp()
    a("s_mov_b32 s4, 64")
    flagwait("v60", "v62", "s4")
    pxloads()
    a(f"s_add_u32 s43, s43, 655360\ns_add_u32 {sS}, {sS}, 1")
    pzreads()
    a("s_waitcnt vmcnt(0) lgkmcnt(0)")
    pz()
    outp()
    finish()

    a.put(T("CAUX"))
    a(f"s_setprio 2\ns_sub_u32 s14, {sW}, 4")
    a("s_mul_i32 s3, s14, 3840\nv_add_u32 v4, s3, v2\ns_add_u32 s3, s3, 1024\nv_lshlrev_b32 v5, 2, v0\nv_add_u32 v5, s3, v5")
    a("v_and_b32 v6, 3, v0\nv_bfe_u32 v7, v0, 2, 3\nv_lshl_add_u32 v12, v6, 3, v7\nv_lshlrev_b32 v12, 4, v12\nv_lshrrev_b32 v8, 5, v0\nv_lshl_add_u32 v12, v8, 3, v12\ns_lshl_b32 s3, s14, 9\ns_add_u32 s3, s3, %d\nv_add_u32 v12, s3, v12" % PT)
    a("v_lshlrev_b32 v13, 4, v7\nv_lshl_add_u32 v13, v8, 3, v13\nv_lshl_add_u32 v13, v6, 1, v13\ns_lshl_b32 s3, s14, 7\ns_add_u32 s3, s3, %d\nv_add_u32 v13, s3, v13" % PM)
    a(f"s_lshl_b32 s3, s15, 7\ns_add_u32 s3, s3, 2048\ns_cmp_eq_u32 s14, 0\ns_cselect_b32 s3, s3, {OOB}")
    onelane("v10", "s3")
    a("s_mov_b32 s24, 0x3dd53b95\nv_mov_b32 v20, s24\nv_mov_b32 v21, s24")
    a(f"s_mov_b32 {sS}, 0\ns_barrier")
    stamp0()
    a.put(T("CA_LOOP"))
    slot("s34", L.H2S, L.H2); tagreg("s25")
    a(f"s_add_u32 s3, {sS}, 1\nv_mov_b32 v11, s3")
    if OPT.get("SL2"): a(f"s_sleep {OPT['SL2']}")
    stamp(5)
    a.put(T("CA_P2"))
    a(f"s_sub_u32 {sBUD}, {sBUD}, 1\ns_cbranch_scc1 END")
    for p in range(3): a(f"buffer_load_dwordx4 v[{24+4*p}:{27+4*p}], v4, {WS}, s34 offen offset:{1280*p} sc1")
    for p in range(3): a(f"buffer_load_dword v{36+p}, v5, {WS}, s34 offen offset:{1280*p} sc1")
    a("s_waitcnt vmcnt(5)\n" + A3("v40", "s25", "v24", "v25") + "\n" + A3("v40", "v40", "v26", "v27"))
    a("s_waitcnt vmcnt(4)\nv_pk_add_f32 v[72:73], v[24:25], v[28:29]\nv_pk_add_f32 v[74:75], v[26:27], v[30:31]\n" + A3("v40", "v40", "v28", "v29") + "\n" + A3("v40", "v40", "v30", "v31"))
    a("s_waitcnt vmcnt(3)\nv_pk_add_f32 v[72:73], v[72:73], v[32:33]\nv_pk_add_f32 v[74:75], v[74:75], v[34:35]\n" + A3("v40", "v40", "v32", "v33") + "\n" + A3("v40", "v40", "v34", "v35"))
    a("v_max3_f32 v77, v72, v73, v74\ns_waitcnt vmcnt(0)\n" + A3("v40", "v40", "v36", "v37") + "\nv_add_f32 v76, v36, v37\nv_and_b32 v40, v40, v38\nv_add_f32 v76, v76, v38\nv_cmp_eq_u32 vcc, 0, v40\nv_max3_f32 v77, v77, v75, v76")
    a(f"s_cbranch_vccnz {T('CA_P2')}")
    stamp(0)
    a("v_max_f32_dpp v77, v77, v77 quad_perm:[1,0,3,2] row_mask:0xf bank_mask:0xf\nv_max_f32_dpp v77, v77, v77 quad_perm:[2,3,0,1] row_mask:0xf bank_mask:0xf")
    a("v_mov_b32 v78, v77\nv_permlane32_swap_b32 v77, v78\nv_max_f32 v77, v77, v78")
    a("v_mul_f32 v78, s24, v77")
    a("v_pk_fma_f32 v[72:73], v[72:73], v[20:21], v[78:79] op_sel_hi:[1,1,0] neg_lo:[0,0,1] neg_hi:[0,0,1]\nv_pk_fma_f32 v[74:75], v[74:75], v[20:21], v[78:79] op_sel_hi:[1,1,0] neg_lo:[0,0,1] neg_hi:[0,0,1]\nv_fma_f32 v76, v76, v20, -v78")
    for i in range(5): a(f"v_exp_f32 v{72+i}, v{72+i}")
    a("v_pk_add_f32 v[78:79], v[72:73], v[74:75]\nv_add_f32 v77, v78, v76\nv_add_f32 v77, v77, v79")
    a("v_add_f32_dpp v77, v77, v77 quad_perm:[1,0,3,2] row_mask:0xf bank_mask:0xf\nv_add_f32_dpp v77, v77, v77 quad_perm:[2,3,0,1] row_mask:0xf bank_mask:0xf")
    a("v_mov_b32 v78, v77\nv_permlane32_swap_b32 v77, v78\nv_add_f32 v77, v77, v78")
    a("v_rcp_f32 v78, v77")
    a("v_pk_mul_f32 v[72:73], v[72:73], v[78:79] op_sel_hi:[1,0]\nv_pk_mul_f32 v[74:75], v[74:75], v[78:79] op_sel_hi:[1,0]\nv_mul_f32 v76, v76, v78")
    a("v_cvt_pk_bf16_f32 v72, v72, v73\nv_cvt_pk_bf16_f32 v73, v74, v75\nv_cvt_pk_bf16_f32 v76, v76, v76")
    a(f"ds_write_b64 v12, v[72:73]\nds_write_b16 v13, v76\ns_waitcnt lgkmcnt(0)")
    stamp(1)
    a("s_barrier")
    stamp(2)
    a(f"buffer_store_dword v11, v10, {WS}, {sFL} offen{ST}")
    a("s_barrier")
    dump()
    a(f"s_add_u32 {sS}, {sS}, 1\ns_cmp_lt_u32 {sS}, 63\ns_cbranch_scc1 {T('CA_LOOP')}")
    a("s_barrier\ns_barrier")
    finish()
```

```python
import sys
from asmlib import *

KNAME = "recurrent_scan__memory_aug_recurrent_mem_tr__swiglu_ffn__prompt_kernel"
OOB = 0x7fffff00

from lay import Lay

def gen(NS=4, FORCE_SLOW=0, BUDGET=300000, PARTS="all", INSTR=0, **OPT):
    L = Lay(NS)
    a = Asm()
    LOGNS = NS.bit_length() - 1
    WS = "s[8:11]"
    sW, sQ, sR, sS, sBUD, sMODE, sG = "s26", "s27", "s28", "s29", "s30", "s31", "s32"
    pX, pM0, pWQ, pWK, pWV, pWO, pWG, pWU, pWD, pOUT, pDBG, pWS = 64, 66, 68, 70, 72, 74, 76, 78, 80, 82, 84, 86
    def srd(d, p, n):
        a(f"s_mov_b32 s{d}, s{p}\ns_mov_b32 s{d+1}, s{p+1}\ns_mov_b32 s{d+2}, {n}\ns_mov_b32 s{d+3}, 0x00020000")
    def budget(lp):
        a(f"s_sub_u32 {sBUD}, {sBUD}, 1\ns_cbranch_scc0 {lp}\ns_branch END")
    def slot(dst, size, base, add=0, grp=True):
        if add: a(f"s_add_u32 {dst}, {sS}, {add}\ns_and_b32 {dst}, {dst}, {NS-1}")
        else: a(f"s_and_b32 {dst}, {sS}, {NS-1}")
        a(f"s_mul_i32 {dst}, {dst}, {size}")
        if base: a(f"s_add_u32 {dst}, {dst}, {base}")
        if grp: a(f"s_add_u32 {dst}, {dst}, {sG}")
    def dma(vaddr, srdn, soff, m0, extra=""):
        a(f"s_mov_b32 m0, {m0}\nbuffer_load_dwordx4 {vaddr}, {srdn}, {soff} offen {extra} lds")

    def layernorm(R, F, O, perm):
        T = F + 80
        for i in range(40):
            a(f"v_lshlrev_b32 v{F+2*i}, 16, v{R+i}\nv_and_b32 v{F+2*i+1}, 0xffff0000, v{R+i}")
        def red(v):
            a(f"v_add_f32_dpp v{v}, v{v}, v{v} row_ror:8 row_mask:0xf bank_mask:0xf")
            a(f"v_mov_b32 v{v+1}, v{v}\nv_permlane16_swap_b32 v{v}, v{v+1}\nv_add_f32 v{v}, v{v}, v{v+1}")
            a(f"v_mov_b32 v{v+1}, v{v}\nv_permlane32_swap_b32 v{v}, v{v+1}\nv_add_f32 v{v}, v{v}, v{v+1}")
        a(f"v_pk_add_f32 v[{T}:{T+1}], v[{F}:{F+1}], v[{F+2}:{F+3}]\nv_pk_add_f32 v[{T+2}:{T+3}], v[{F+4}:{F+5}], v[{F+6}:{F+7}]")
        for i in range(4, 40): t = T + 2*(i % 2); a(f"v_pk_add_f32 v[{t}:{t+1}], v[{t}:{t+1}], v[{F+2*i}:{F+2*i+1}]")
        a(f"v_pk_add_f32 v[{T}:{T+1}], v[{T}:{T+1}], v[{T+2}:{T+3}]\nv_add_f32 v{T}, v{T}, v{T+1}")
        red(T)
        a(f"v_mul_f32 v{T}, 0x3acccccd, v{T}")
        for i in range(40):
            t = T + 2 + 2*(i % 2); c = T + 6 + 2*(i % 2)
            a(f"v_pk_add_f32 v[{t}:{t+1}], v[{F+2*i}:{F+2*i+1}], v[{T}:{T+1}] op_sel_hi:[1,0] neg_lo:[0,1] neg_hi:[0,1]")
            if i < 2: a(f"v_pk_mul_f32 v[{c}:{c+1}], v[{t}:{t+1}], v[{t}:{t+1}]")
            else: a(f"v_pk_fma_f32 v[{c}:{c+1}], v[{t}:{t+1}], v[{t}:{t+1}], v[{c}:{c+1}]")
        a(f"v_pk_add_f32 v[{T+6}:{T+7}], v[{T+6}:{T+7}], v[{T+8}:{T+9}]\nv_add_f32 v{T+2}, v{T+6}, v{T+7}")
        red(T + 2)
        a(f"v_mul_f32 v{T+2}, 0x3acccccd, v{T+2}")
        a(f"v_cvt_pk_bf16_f32 v{T+2}, v{T+2}, v{T+2}\nv_lshlrev_b32 v{T+2}, 16, v{T+2}\nv_add_f32 v{T+2}, 0x3727c5ac, v{T+2}")
        a(f"v_cvt_pk_bf16_f32 v{T+2}, v{T+2}, v{T+2}\nv_lshlrev_b32 v{T+2}, 16, v{T+2}\nv_sqrt_f32 v{T+2}, v{T+2}")
        a(f"v_cvt_pk_bf16_f32 v{T+2}, v{T+2}, v{T+2}\nv_lshlrev_b32 v{T+2}, 16, v{T+2}\nv_rcp_f32 v{T+2}, v{T+2}")
        a(f"v_cvt_pk_bf16_f32 v{T}, v{T}, v{T}\nv_lshlrev_b32 v{T}, 16, v{T}")
        pos = [0, 2, 4, 6, 1, 3, 5, 7] if perm else list(range(8))
        for i in range(40):
            t = T + 4 + 2*(i % 2)
            o = O + 8*(i // 8) + pos[i % 8]
            a(f"v_pk_add_f32 v[{t}:{t+1}], v[{F+2*i}:{F+2*i+1}], v[{T}:{T+1}] op_sel_hi:[1,0] neg_lo:[0,1] neg_hi:[0,1]")
            a(f"v_cvt_pk_bf16_f32 v{t}, v{t}, v{t+1}\nv_and_b32 v{t+1}, 0xffff0000, v{t}\nv_lshlrev_b32 v{t}, 16, v{t}")
            a(f"v_pk_mul_f32 v[{t}:{t+1}], v[{t}:{t+1}], v[{T+2}:{T+3}] op_sel_hi:[1,0]")
            a(f"v_cvt_pk_bf16_f32 v{o}, v{t}, v{t+1}")
    def ln_loads(R, vaddr, srdn):
        for m in range(5):
            a(f"buffer_load_dwordx4 v[{R+8*m}:{R+8*m+3}], {vaddr}, {srdn}, 0 offen offset:{256*m}")
            a(f"buffer_load_dwordx4 v[{R+8*m+4}:{R+8*m+7}], {vaddr}, {srdn}, 0 offen offset:{256*m+16}")

    a("s_cmp_ge_u32 s2, 256\ns_cbranch_scc1 END")
    a("s_load_dwordx8 s[64:71], s[0:1], 0\ns_load_dwordx4 s[72:75], s[0:1], 32\ns_load_dwordx8 s[76:83], s[0:1], 64\ns_load_dwordx4 s[84:87], s[0:1], 96")
    a("v_lshrrev_b32 v1, 6, v0\nv_and_b32 v0, 63, v0")
    a(f"v_readfirstlane_b32 {sW}, v1")
    a(f"s_getreg_b32 {sQ}, hwreg(HW_REG_XCC_ID, 0, 4)\ns_and_b32 {sQ}, {sQ}, 7")
    a(f"s_mov_b32 {sBUD}, {BUDGET}\ns_mov_b32 {sMODE}, 0")
    a("v_lshlrev_b32 v2, 4, v0\nv_lshlrev_b32 v3, 3, v0")
    a("s_waitcnt lgkmcnt(0)")
    srd(8, pWS, 0x10000000)
    srd(20, pX, 2048*1280)
    if INSTR: a("s_memtime s[90:91]")
    a(f"s_cmp_lg_u32 {sW}, 7\ns_cbranch_scc1 E1")
    a("v_and_b32 v4, 7, v0\nv_mul_u32_u24 v4, 1280, v4\nv_lshrrev_b32 v5, 3, v0\nv_lshlrev_b32 v5, 5, v5\nv_add_u32 v4, v4, v5\ns_mul_i32 s3, s2, 10240\nv_add_u32 v4, s3, v4")
    ln_loads(16, "v4", "s[20:23]")
    a.put("E1")
    a(f"s_cmp_lg_u32 {sW}, 0\ns_cbranch_scc1 E2")
    a(f"s_lshl_b32 s3, {sQ}, 5\nv_mov_b32 v4, s3\nv_mov_b32 v5, 1\ns_mov_b64 exec, 1")
    a(f"global_atomic_add v6, v4, v5, s[{pDBG}:{pDBG+1}] sc0 sc1\ns_waitcnt vmcnt(0)\nv_mov_b32 v5, 0\nds_write_b32 v5, v6\ns_waitcnt lgkmcnt(0)\ns_mov_b64 exec, -1")
    a.put("E2")
    a(f"s_cmp_eq_u32 {sW}, 0\ns_cbranch_scc1 E3\ns_cmp_eq_u32 {sW}, 7\ns_cbranch_scc1 E3")
    a(f"s_cmp_eq_u32 {sW}, 6\ns_cbranch_scc1 E4")
    gper = L.GPOIS // 32; hper = NS * L.H3S // 256
    assert gper % 1024 == 0 and hper % 1024 == 0 and L.H2 % 1024 == 0
    for per, base in ((gper, None), (hper, L.H3), (10240, L.OUTP + 60*655360)):
        n = per // 1024
        if base is None: a(f"s_lshr_b32 s3, s2, 5\ns_mul_i32 s3, s3, {L.GS}\ns_and_b32 s6, s2, 31\ns_mul_i32 s6, s6, {per}\ns_add_u32 s3, s3, s6")
        else: a(f"s_mul_i32 s3, s2, {per}\ns_add_u32 s3, s3, {base}\ns_mov_b32 s6, {L.H2}")
        a(f"s_sub_u32 s4, {sW}, 1")
        lp = a.lab("IN"); a.put(lp)
        a(f"s_lshl_b32 s5, s4, 10\ns_add_u32 s7, s5, s6\ns_cmp_lt_u32 s7, {L.H2}\ns_cselect_b32 s7, -1, 0\ns_add_u32 s5, s5, s3")
        a("v_mov_b32 v4, s7\nv_mov_b32 v5, s7\nv_mov_b32 v6, s7\nv_mov_b32 v7, s7")
        a(f"buffer_store_dwordx4 v[4:7], v2, {WS}, s5 offen sc1")
        a(f"s_add_u32 s4, s4, 5\ns_cmp_lt_u32 s4, {n}\ns_cbranch_scc1 {lp}")
    a("s_branch E3")
    a.put("E4")
    a(f"v_mov_b32 v4, 0\nv_mov_b32 v5, 0\ns_lshl_b32 s3, s2, 9\ns_add_u32 s3, s3, {L.FL}\nbuffer_store_dwordx2 v[4:5], v3, {WS}, s3 offen sc1")
    a.put("E3")
    a("s_barrier\nv_mov_b32 v5, 0\nds_read_b32 v4, v5\ns_waitcnt lgkmcnt(0)")
    a(f"v_readfirstlane_b32 {sR}, v4\ns_barrier")
    if FORCE_SLOW: a(f"s_mov_b32 {sR}, 99")
    a.put("ROLE")
    a(f"s_mul_i32 {sG}, {sQ}, {L.GS}")
    a(f"s_cmp_lt_u32 {sR}, 18\ns_cbranch_scc1 PRO_P\ns_cmp_lt_u32 {sR}, 28\ns_cbranch_scc1 PRO_C\ns_cmp_lt_u32 {sR}, 32\ns_cbranch_scc1 PRO_F")
    a("s_waitcnt vmcnt(0)\ns_branch COM1")
    a.put("PRO_P")
    a(f"s_cmp_lt_u32 {sR}, 12\ns_cbranch_scc0 PRO_PV")
    srd(12, pWQ, 640*12288); srd(16, pWK, 640*12288)
    a(f"s_mul_i32 s3, {sQ}, 1536\ns_lshl_b32 s4, {sR}, 7\ns_add_u32 s3, s3, s4\ns_mov_b32 s4, s3\ns_branch PRO_P2")
    a.put("PRO_PV")
    srd(12, pWV, 640*12288); srd(16, pWV, 640*12288)
    a(f"s_mul_i32 s3, {sQ}, 1536\ns_sub_u32 s4, {sR}, 12\ns_lshl_b32 s4, s4, 8\ns_add_u32 s3, s3, s4\ns_add_u32 s4, s3, 128")
    a.put("PRO_P2")
    a(f"v_lshrrev_b32 v4, 3, v0\nv_mul_u32_u24 v4, 12288, v4\ns_and_b32 s5, {sW}, 1\ns_lshl_b32 s5, s5, 1\nv_lshrrev_b32 v5, 5, v0\nv_add_u32 v5, s5, v5")
    a("v_bfe_u32 v6, v0, 1, 2\nv_xor_b32 v5, v5, v6\nv_lshlrev_b32 v5, 5, v5\nv_and_b32 v6, 1, v0\nv_lshlrev_b32 v6, 4, v6\nv_add3_u32 v4, v4, v5, v6")
    a(f"s_mul_i32 s5, {sW}, 98304\ns_add_u32 s3, s3, s5\ns_add_u32 s4, s4, s5\ns_lshl_b32 s6, {sW}, 10")
    for i in range(10):
        dma("v4", "s[12:15]", "s3", "s6")
        a("s_add_u32 s7, s6, 81920")
        dma("v4", "s[16:19]", "s4", "s7")
        if i < 9: a(f"s_add_u32 s3, s3, {8*98304}\ns_add_u32 s4, s4, {8*98304}\ns_add_u32 s6, s6, 8192")
    a("s_waitcnt vmcnt(20)\ns_branch COM1")
    a.put("PRO_C")
    srd(12, pWO, 6144*1280)
    a(f"v_lshrrev_b32 v4, 3, v0\nv_mul_u32_u24 v4, 1280, v4\nv_lshrrev_b32 v5, 4, v0\nv_bfe_u32 v6, v0, 1, 2\nv_xor_b32 v5, v5, v6\nv_lshlrev_b32 v5, 5, v5\nv_and_b32 v6, 1, v0\nv_lshlrev_b32 v6, 4, v6\nv_add3_u32 v4, v4, v5, v6")
    a(f"s_mul_i32 s3, {sQ}, {768*1280}\ns_sub_u32 s4, {sR}, 18\ns_lshl_b32 s4, s4, 7\ns_add_u32 s3, s3, s4\ns_mul_i32 s5, {sW}, 10240\ns_add_u32 s3, s3, s5\ns_lshl_b32 s6, {sW}, 10")
    for i in range(12):
        dma("v4", "s[12:15]", "s3", "s6")
        if i < 11: a("s_add_u32 s3, s3, 81920\ns_add_u32 s6, s6, 8192")
    a("s_waitcnt vmcnt(12)\ns_branch COM1")
    a.put("PRO_F")
    a(f"s_lshl_b32 s33, {sQ}, 2\ns_add_u32 s33, s33, {sR}\ns_sub_u32 s33, s33, 28")
    a(f"v_and_b32 v4, 7, v0\ns_lshl_b32 s3, {sW}, 3\nv_add_u32 v4, s3, v4\nv_mul_u32_u24 v4, 40960, v4\nv_lshrrev_b32 v5, 3, v0\nv_lshlrev_b32 v5, 5, v5\nv_add_u32 v4, v4, v5\ns_mul_i32 s3, s33, 1280\nv_add_u32 v4, s3, v4")
    ln_loads(200, "v4", "s[20:23]")
    a("s_waitcnt vmcnt(10)")
    a.put("COM1")
    a(f"s_cmp_lg_u32 {sW}, 7\ns_cbranch_scc1 C2\ns_cmp_lg_u32 {sMODE}, 0\ns_cbranch_scc1 C2")
    layernorm(16, 64, 16, True)
    a("v_lshrrev_b32 v4, 4, v0\nv_lshlrev_b32 v4, 10, v4\nv_bfe_u32 v5, v0, 3, 1\nv_lshlrev_b32 v5, 9, v5\nv_and_b32 v6, 7, v0\nv_lshlrev_b32 v6, 4, v6\nv_add3_u32 v4, v4, v5, v6")
    a(f"s_lshr_b32 s3, s2, 1\ns_mul_i32 s3, s3, 20480\ns_and_b32 s4, s2, 1\ns_lshl_b32 s4, s4, 7\ns_add_u32 s3, s3, s4\ns_add_u32 s3, s3, {L.XN}")
    for m in range(5):
        a(f"buffer_store_dwordx4 v[{16+8*m}:{19+8*m}], v4, {WS}, s3 offen sc1\nbuffer_store_dwordx4 v[{20+8*m}:{23+8*m}], v4, {WS}, s3 offen offset:256 sc1")
        if m < 4: a("s_add_u32 s3, s3, 4096")
    a.put("C2")
    a("s_waitcnt vmcnt(0)\ns_barrier")
    a(f"s_cmp_lg_u32 {sW}, 0\ns_cbranch_scc1 C3\ns_cmp_lg_u32 {sMODE}, 0\ns_cbranch_scc1 C3")
    a(f"s_lshl_b32 s3, {sQ}, 5\ns_add_u32 s3, s3, 4\nv_mov_b32 v4, s3\nv_mov_b32 v5, 1\ns_mov_b64 exec, 1\nglobal_atomic_add v4, v5, s[{pDBG}:{pDBG+1}] sc1\ns_mov_b64 exec, -1")
    a.put("C3")
    a(f"s_cmp_lt_u32 {sR}, 18\ns_cbranch_scc1 WR_P\ns_cmp_lt_u32 {sR}, 28\ns_cbranch_scc1 WR_C\ns_cmp_lt_u32 {sR}, 32\ns_cbranch_scc1 WR_F\ns_branch GBAR")
    a.put("WR_P")
    a(f"s_cmp_ge_u32 {sW}, 4\ns_cbranch_scc1 GBAR")
    a("v_lshrrev_b32 v4, 5, v0\nv_lshlrev_b32 v4, 4, v4\nv_bfe_u32 v5, v0, 4, 1\nv_lshl_add_u32 v4, v5, 2, v4\nv_bfe_u32 v6, v0, 2, 1\nv_add_u32 v4, v4, v6\nv_bfe_u32 v6, v0, 3, 1\nv_lshl_add_u32 v4, v6, 3, v4")
    a("v_lshlrev_b32 v4, 7, v4\nv_lshl_add_u32 v5, v6, 1, v5\nv_and_b32 v6, 3, v0\nv_lshl_add_u32 v4, v6, 3, v4")
    a(f"s_and_b32 s3, {sW}, 1\ns_lshl_b32 s3, s3, 1\ns_add_u32 s4, s3, 1\ns_lshr_b32 s5, {sW}, 1\ns_mul_i32 s5, s5, 81920\ns_mov_b32 s6, s5")
    a(f"s_cmp_lt_u32 {sR}, 12\ns_cselect_b32 s3, {sW}, s3\ns_cselect_b32 s4, {sW}, s4\ns_cselect_b32 s5, 0, s5\ns_cselect_b32 s6, 81920, s6")
    a("v_xor_b32 v6, s3, v5\nv_lshl_add_u32 v6, v6, 5, v4\nv_add_u32 v6, s5, v6\nv_add_u32 v8, 40960, v6")
    a("v_xor_b32 v7, s4, v5\nv_lshl_add_u32 v7, v7, 5, v4\nv_add_u32 v7, s6, v7\nv_add_u32 v9, 40960, v7")
    n = 0
    for kb in range(10):
        for T in range(2):
            for b in range(2):
                for rd in range(2):
                    d = 64 + 16*kb + 8*T + 4*b + 2*rd
                    a(f"ds_read_b64_tr_b16 v[{d}:{d+1}], v{6+T+(2 if kb >= 5 else 0)} offset:{(kb % 5)*8192 + b*4096 + rd*256}")
                    n += 1
                    if n % 8 == 0 and n > 8: a("s_waitcnt lgkmcnt(8)")
    a("s_branch GBAR")
    a.put("WR_C")
    a(f"s_cmp_ge_u32 {sW}, 4\ns_cbranch_scc1 GBAR")
    a(f"v_lshrrev_b32 v4, 2, v0\nv_lshlrev_b32 v4, 7, v4\nv_and_b32 v5, 3, v0\nv_lshl_add_u32 v4, v5, 3, v4\ns_mul_i32 s3, {sW}, 24576\nv_add_u32 v4, s3, v4\nv_bfe_u32 v5, v0, 3, 2")
    for ct in range(4): a(f"v_xor_b32 v{6+ct}, {ct}, v5\nv_lshl_add_u32 v{6+ct}, v{6+ct}, 5, v4")
    n = 0
    for kb in range(3):
        for ct in range(4):
            for b in range(2):
                for rd in range(2):
                    d = 64 + 32*kb + 8*ct + 4*b + 2*rd
                    a(f"ds_read_b64_tr_b16 v[{d}:{d+1}], v{6+ct} offset:{kb*8192 + b*4096 + rd*2048}")
                    n += 1
                    if n % 8 == 0 and n > 8: a("s_waitcnt lgkmcnt(8)")
    a("s_branch GBAR")
    a.put("WR_F")
    layernorm(200, 64, 16, False)
    a(f"v_lshrrev_b32 v4, 3, v0\nv_lshlrev_b32 v4, 10, v4\nv_and_b32 v5, 7, v0\nv_lshl_add_u32 v4, v5, 4, v4\ns_lshr_b32 s3, {sW}, 2\ns_mul_i32 s3, s3, 40960\ns_and_b32 s4, {sW}, 3\ns_lshl_b32 s4, s4, 7\ns_add_u32 s3, s3, s4\nv_add_u32 v4, s3, v4")
    for m in range(5):
        a(f"ds_write_b128 v4, v[{16+8*m}:{19+8*m}] offset:{8192*m}\nds_write_b128 v4, v[{20+8*m}:{23+8*m}] offset:{8192*m+512}")
    a.put("GBAR")
    a("s_waitcnt lgkmcnt(0)")
    a(f"s_cmp_lg_u32 {sMODE}, 0\ns_cbranch_scc1 GO")
    a("s_barrier\nv_mov_b32 v4, 163832")
    a(f"s_cmp_lg_u32 {sW}, 0\ns_cbranch_scc1 G2")
    a("s_mov_b64 exec, 0xff\nv_lshlrev_b32 v5, 5, v0")
    a.put("G1")
    a(f"global_load_dword v6, v5, s[{pDBG}:{pDBG+1}] offset:4 sc1\ns_waitcnt vmcnt(0)\ns_mov_b32 s3, 0")
    for i in range(8): a(f"v_readlane_b32 s4, v6, {i}\ns_add_u32 s3, s3, s4")
    a("s_cmp_ge_u32 s3, 256\ns_cbranch_scc1 G3\ns_sleep 1")
    budget("G1")
    a.put("G3")
    a("v_cmp_ne_u32 vcc, 32, v6\ns_cmp_lg_u64 vcc, 0\ns_cselect_b32 s3, 1, 0")
    if FORCE_SLOW: a("s_mov_b32 s3, 1")
    a("s_mov_b64 exec, 1\nv_mov_b32 v5, s3\nds_write_b32 v4, v5\ns_waitcnt lgkmcnt(0)\ns_mov_b64 exec, -1")
    a.put("G2")
    a("s_barrier\nds_read_b32 v5, v4\ns_waitcnt lgkmcnt(0)\nv_readfirstlane_b32 s3, v5")
    a(f"s_cmp_eq_u32 s3, 0\ns_cbranch_scc1 GO\ns_mov_b32 {sMODE}, 1\ns_lshr_b32 {sQ}, s2, 5\ns_and_b32 {sR}, s2, 31\ns_barrier\ns_branch ROLE")
    a.put("GO")
    a(f"s_barrier\ns_mov_b32 {sS}, 0")
    a(f"s_cmp_ge_u32 {sR}, 28\ns_cbranch_scc1 FFN")
    if PARTS == "ffn": a("s_branch END")
    else:
        a(f"s_cmp_lg_u32 {sMODE}, 0\ns_cbranch_scc1 CHAIN_S")
        from chain import chain
        ctx = dict(locals())
        chain(ctx, "F", "")
        a.put("CHAIN_S")
        chain(ctx, "S", " sc1")

    a.put("FFN")
    if OPT.get("NOFFN"): a("s_branch END")
    srd(12, pWG, 640*3072); srd(16, pWU, 640*3072)
    LOG2E = "0x3fb8aa3b"
    RING1 = 81920
    a("v_lshrrev_b32 v4, 2, v0\nv_mul_u32_u24 v4, 3072, v4\nv_and_b32 v5, 3, v0\nv_lshl_add_u32 v4, v5, 4, v4")
    a("v_lshrrev_b32 v5, 5, v0\nv_lshlrev_b32 v5, 9, v5\nv_bfe_u32 v6, v0, 2, 2\nv_lshl_add_u32 v5, v6, 6, v5\nv_bfe_u32 v6, v0, 4, 1\nv_lshl_add_u32 v5, v6, 5, v5\nv_and_b32 v6, 3, v0\nv_lshl_add_u32 v5, v6, 3, v5")
    a(f"s_mul_i32 s34, {sW}, 10240\ns_add_u32 s34, s34, {RING1}")
    a(f"s_lshl_b32 s35, {sW}, 6")
    a("s_mov_b32 s36, 0\ns_mov_b32 s37, 0\ns_mov_b32 s38, 0")
    def ffn1_issue():
        a("s_add_u32 s3, s34, s37")
        dma("v4", "s[12:15]", "s35", "s3")
        a("s_add_u32 s3, s3, 1024")
        dma("v4", "s[16:19]", "s35", "s3")
        a("s_add_u32 s37, s37, 2048\ns_cmp_eq_u32 s37, 10240\ns_cselect_b32 s37, 0, s37")
        a(f"s_add_u32 s35, s35, 49152\ns_add_u32 s36, s36, 1\ns_cmp_eq_u32 s36, 40\ns_cselect_b32 s3, {40*49152-512}, 0\ns_cselect_b32 s36, 0, s36\ns_sub_u32 s35, s35, s3")
    for i in range(4): ffn1_issue()
    a("s_mov_b32 s39, 0")
    a.put("F1_PASS")
    for i in range(64, 128): a(f"v_mov_b32 v{i}, 0")
    a("v_mov_b32 v6, v2\ns_mov_b32 s40, 0")
    a.put("F1_K")
    a("s_add_u32 s3, s34, s39\nv_add_u32 v7, s3, v5\ns_waitcnt vmcnt(6)")
    a("ds_read_b64_tr_b16 v[16:17], v7\nds_read_b64_tr_b16 v[18:19], v7 offset:256\nds_read_b128 v[24:27], v6\nds_read_b128 v[28:31], v6 offset:40960")
    a("ds_read_b64_tr_b16 v[20:21], v7 offset:1024\nds_read_b64_tr_b16 v[22:23], v7 offset:1280")
    ffn1_issue()
    a("s_add_u32 s39, s39, 2048\ns_cmp_eq_u32 s39, 10240\ns_cselect_b32 s39, 0, s39\nv_add_u32 v6, 1024, v6")
    a("s_waitcnt lgkmcnt(3)\nv_mfma_f32_32x32x16_bf16 v[64:79], v[16:19], v[24:27], v[64:79]")
    a("s_waitcnt lgkmcnt(2)\nv_mfma_f32_32x32x16_bf16 v[80:95], v[16:19], v[28:31], v[80:95]")
    a("s_waitcnt lgkmcnt(0)\nv_mfma_f32_32x32x16_bf16 v[96:111], v[20:23], v[24:27], v[96:111]\nv_mfma_f32_32x32x16_bf16 v[112:127], v[20:23], v[28:31], v[112:127]")
    a("s_add_u32 s40, s40, 1\ns_cmp_lt_u32 s40, 40\ns_cbranch_scc1 F1_K")
    a(f"s_mov_b32 s3, {LOG2E}")
    def silu_pair(x, t):
        a(f"v_cvt_pk_bf16_f32 v{t}, v{x}, v{x+1}\nv_lshlrev_b32 v{x}, 16, v{t}\nv_and_b32 v{x+1}, 0xffff0000, v{t}")
        a(f"v_mul_f32 v{t}, s3, v{x}\nv_mul_f32 v{t+1}, s3, v{x+1}\nv_exp_f32 v{t}, -v{t}\nv_exp_f32 v{t+1}, -v{t+1}")
        a(f"v_add_f32 v{t}, 1.0, v{t}\nv_add_f32 v{t+1}, 1.0, v{t+1}\nv_rcp_f32 v{t}, v{t}\nv_rcp_f32 v{t+1}, v{t+1}")
        a(f"v_pk_mul_f32 v[{x}:{x+1}], v[{x}:{x+1}], v[{t}:{t+1}]")
    for i in range(16):
        g = 64 + 2*i; u = 96 + 2*i; t = 16 + 2*(i % 4)
        silu_pair(g, t)
        a(f"v_cvt_pk_bf16_f32 v{t}, v{g}, v{g+1}\nv_lshlrev_b32 v{g}, 16, v{t}\nv_and_b32 v{g+1}, 0xffff0000, v{t}")
        a(f"v_cvt_pk_bf16_f32 v{t}, v{u}, v{u+1}\nv_lshlrev_b32 v{u}, 16, v{t}\nv_and_b32 v{u+1}, 0xffff0000, v{t}")
        a(f"v_pk_mul_f32 v[{g}:{g+1}], v[{g}:{g+1}], v[{u}:{u+1}]")
    for p in range(6):
        nx = a.lab("F1S")
        if p < 5: a(f"s_cmp_lg_u32 s38, {p}\ns_cbranch_scc1 {nx}")
        for i in range(16): a(f"v_cvt_pk_bf16_f32 v{160+16*p+i}, v{64+2*i}, v{65+2*i}")
        if p < 5: a("s_add_u32 s38, s38, 1\ns_branch F1_PASS"); a.put(nx)
    a("s_waitcnt vmcnt(0)\ns_barrier")
    srd(12, pWD, 1536*1280)
    for i in range(5):
        a(f"v_add_u32 v7, {64*i}, v0\nv_mul_u32_u24 v13, 6554, v7\nv_lshrrev_b32 v13, 16, v13\nv_mul_u32_u24 v14, 10, v13\nv_sub_u32 v7, v7, v14\nv_mul_u32_u24 v13, 1280, v13\nv_lshl_add_u32 v{8+i}, v7, 4, v13")
    a("v_lshrrev_b32 v5, 5, v0\nv_lshlrev_b32 v5, 4, v5\nv_bfe_u32 v6, v0, 2, 3\nv_add_u32 v5, v5, v6\nv_mul_u32_u24 v5, 160, v5\nv_and_b32 v6, 3, v0\nv_lshl_add_u32 v5, v6, 3, v5")
    a(f"v_bfe_u32 v13, v0, 4, 1\nv_lshlrev_b32 v13, 10, v13\nv_lshrrev_b32 v14, 5, v0\nv_lshl_add_u32 v13, v14, 8, v13\nv_and_b32 v14, 15, v0\nv_lshl_add_u32 v13, v14, 4, v13\ns_lshl_b32 s3, {sW}, 12\nv_add_u32 v13, s3, v13")
    a(f"s_lshl_b32 s34, {sW}, 14\ns_add_u32 s34, s34, 32768\ns_mul_i32 s35, {sW}, 160\ns_mov_b32 s37, 0\ns_mov_b32 s39, 0\ns_mov_b32 s40, 0")
    def ffn2_issue():
        a("s_add_u32 s3, s34, s37")
        for i in range(5):
            dma(f"v{8+i}", "s[12:15]", "s35", "s3")
            if i < 4: a("s_add_u32 s3, s3, 1024")
        a("s_add_u32 s37, s37, 5120\ns_cmp_eq_u32 s37, 15360\ns_cselect_b32 s37, 0, s37\ns_add_u32 s35, s35, 40960")
    for i in range(2): ffn2_issue()
    for i in range(64, 144): a(f"v_mov_b32 v{i}, 0")
    a.put("F2_K")
    a("s_and_b32 s3, s40, 7\ns_cmp_lg_u32 s3, 0\ns_cbranch_scc1 F2_M\ns_barrier\ns_lshr_b32 s3, s40, 3")
    for p in range(6):
        nx = a.lab("F2S")
        if p < 5: a(f"s_cmp_lg_u32 s3, {p}\ns_cbranch_scc1 {nx}")
        for tt in range(2):
            for ip in range(2):
                r = 160 + 16*p + 8*tt + 4*ip
                a(f"ds_write_b128 v13, v[{r}:{r+3}] offset:{2048*tt + 512*ip}")
        if p < 5: a("s_branch F2_W"); a.put(nx)
    a.put("F2_W")
    a("s_waitcnt lgkmcnt(0)\ns_barrier\nv_mov_b32 v6, v2")
    a.put("F2_M")
    a("s_add_u32 s3, s34, s39\nv_add_u32 v7, s3, v5\ns_waitcnt vmcnt(5)")
    for t in range(4): a(f"ds_read_b128 v[{36+4*t}:{39+4*t}], v6 offset:{1024*t}")
    for ct in range(5): a(f"ds_read_b64_tr_b16 v[{16+4*ct}:{17+4*ct}], v7 offset:{32*ct}\nds_read_b64_tr_b16 v[{18+4*ct}:{19+4*ct}], v7 offset:{1280+32*ct}")
    ffn2_issue()
    a("s_add_u32 s39, s39, 5120\ns_cmp_eq_u32 s39, 15360\ns_cselect_b32 s39, 0, s39\nv_add_u32 v6, 4096, v6")
    for ct in range(5):
        a(f"s_waitcnt lgkmcnt({8-2*ct})")
        for t in range(4):
            d = 64 + 16*ct + 4*t
            a(f"v_mfma_f32_16x16x32_bf16 v[{d}:{d+3}], v[{16+4*ct}:{19+4*ct}], v[{36+4*t}:{39+4*t}], v[{d}:{d+3}]")
    a("s_add_u32 s40, s40, 1\ns_cmp_lt_u32 s40, 48\ns_cbranch_scc1 F2_K")
    a(f"s_waitcnt vmcnt(0)\ns_mov_b32 s3, {LOG2E}")
    a("v_and_b32 v5, 15, v0\nv_mul_u32_u24 v5, 160, v5\nv_lshrrev_b32 v6, 4, v0\nv_lshl_add_u32 v5, v6, 3, v5\nv_add_u32 v5, s34, v5")
    for ct in range(5):
        for t in range(4):
            d = 64 + 16*ct + 4*t
            silu_pair(d, 16); silu_pair(d + 2, 18)
            a(f"v_cvt_pk_bf16_f32 v{d}, v{d}, v{d+1}\nv_cvt_pk_bf16_f32 v{d+1}, v{d+2}, v{d+3}\nds_write_b64 v5, v[{d}:{d+1}] offset:{2560*t + 32*ct}")
    if INSTR:
        a(f"s_memtime s[92:93]\ns_waitcnt lgkmcnt(0)\ns_sub_u32 s92, s92, s90\nv_mov_b32 v16, s92\ns_lshl_b32 s3, s33, 3\ns_add_u32 s3, s3, {sW}\ns_lshl_b32 s3, s3, 2\ns_add_u32 s3, s3, {L.DBG}\nv_mov_b32 v17, 0\nbuffer_store_dword v16, v17, {WS}, s3 offen")
    srd(12, pOUT, 2048*1280)
    a("v_mul_u32_u24 v4, 52, v0\nv_lshrrev_b32 v4, 10, v4\nv_mul_u32_u24 v5, 20, v4\nv_sub_u32 v5, v0, v5")
    a(f"s_mul_i32 s4, {sW}, 20\nv_add_u32 v7, s4, v5\nv_lshrrev_b32 v6, 3, v7\nv_lshlrev_b32 v6, 12, v6\nv_and_b32 v7, 7, v7\nv_lshl_add_u32 v6, v7, 4, v6\nv_mul_u32_u24 v7, 655360, v4\nv_add_u32 v6, v6, v7\ns_lshl_b32 s3, s33, 7\nv_add_u32 v6, s3, v6")
    a(f"v_mul_u32_u24 v7, 40960, v4\nv_lshl_add_u32 v7, v5, 3, v7\ns_mul_i32 s3, s33, 1280\ns_mul_i32 s4, {sW}, 160\ns_add_u32 s3, s3, s4\nv_add_u32 v7, s3, v7")
    a("v_mul_u32_u24 v8, 160, v4\nv_lshl_add_u32 v8, v5, 3, v8\nv_add_u32 v8, s34, v8")
    a(f"s_lshl_b32 s3, {sQ}, 12\ns_add_u32 s3, s3, {L.FL + 1024}\nv_mov_b32 v9, s3")
    a(f"s_mov_b32 s40, 0\ns_mov_b32 s41, {L.OUTP}\ns_mov_b32 s42, 0\ns_waitcnt lgkmcnt(0)")
    a.put("FIN")
    if PARTS == "ffn": a("s_mov_b32 s3, 60")
    else: a(f"buffer_load_dword v16, v9, {WS}, 0 offen sc1\ns_waitcnt vmcnt(0)\nv_readfirstlane_b32 s3, v16")
    a("s_cmp_ge_u32 s3, 60\ns_cselect_b32 s3, 64, s3\ns_sub_u32 s43, s3, s40\ns_min_u32 s43, s43, 3\ns_mul_i32 s3, s43, 20\ns_bfm_b64 s[44:45], s3, 0")
    a(f"s_cmp_lg_u32 s43, 0\ns_cbranch_scc1 FIN_GO\ns_sleep {OPT.get('FINSL', 8)}")
    budget("FIN")
    a.put("FIN_GO")
    a("s_mov_b64 exec, s[44:45]")
    if PARTS == "ffn":
        for i in range(32): a(f"v_mov_b32 v{20+i}, " + ("1.0" if i < 4 else "0"))
    else:
        for q in range(8):
            a(f"s_add_u32 s3, s41, {81920*q}\nbuffer_load_dwordx4 v[{20+4*q}:{23+4*q}], v6, {WS}, s3 offen sc1")
    a("buffer_load_dwordx2 v[52:53], v7, s[20:23], s42 offen\nds_read_b64 v[54:55], v8")
    A3 = lambda d, x, y, z: f"v_bitop3_b32 {d}, {x}, {y}, {z} bitop3:0x80"
    a("s_waitcnt vmcnt(8)\n" + A3("v17", "1", "v20", "v21") + "\n" + A3("v17", "v17", "v22", "v23"))
    for q in range(1, 8):
        a(f"s_waitcnt vmcnt({8-q})\nv_pk_add_f32 v[20:21], v[20:21], v[{20+4*q}:{21+4*q}]\nv_pk_add_f32 v[22:23], v[22:23], v[{22+4*q}:{23+4*q}]")
        a(A3("v17", "v17", f"v{20+4*q}", f"v{21+4*q}") + "\n" + A3("v17", "v17", f"v{22+4*q}", f"v{23+4*q}"))
    if PARTS != "ffn":
        a("v_cmp_eq_u32 vcc, 0, v17\ns_cbranch_vccz FIN_OK\ns_waitcnt vmcnt(0) lgkmcnt(0)")
        budget("FIN_GO")
        a.put("FIN_OK")
    a("v_cvt_pk_bf16_f32 v20, v20, v21\nv_cvt_pk_bf16_f32 v22, v22, v23\nv_and_b32 v21, 0xffff0000, v20\nv_lshlrev_b32 v20, 16, v20\nv_and_b32 v23, 0xffff0000, v22\nv_lshlrev_b32 v22, 16, v22")
    a("s_waitcnt lgkmcnt(0)\nv_lshlrev_b32 v24, 16, v54\nv_and_b32 v25, 0xffff0000, v54\nv_lshlrev_b32 v26, 16, v55\nv_and_b32 v27, 0xffff0000, v55")
    a("v_pk_mul_f32 v[20:21], v[20:21], v[24:25]\nv_pk_mul_f32 v[22:23], v[22:23], v[26:27]")
    a("v_cvt_pk_bf16_f32 v20, v20, v21\nv_cvt_pk_bf16_f32 v22, v22, v23\nv_and_b32 v21, 0xffff0000, v20\nv_lshlrev_b32 v20, 16, v20\nv_and_b32 v23, 0xffff0000, v22\nv_lshlrev_b32 v22, 16, v22")
    a("s_waitcnt vmcnt(0)\nv_lshlrev_b32 v24, 16, v52\nv_and_b32 v25, 0xffff0000, v52\nv_lshlrev_b32 v26, 16, v53\nv_and_b32 v27, 0xffff0000, v53")
    a("v_pk_add_f32 v[20:21], v[20:21], v[24:25]\nv_pk_add_f32 v[22:23], v[22:23], v[26:27]")
    a("v_cvt_pk_bf16_f32 v20, v20, v21\nv_cvt_pk_bf16_f32 v21, v22, v23\nbuffer_store_dwordx2 v[20:21], v7, s[12:15], s42 offen")
    a("s_mov_b64 exec, -1\ns_add_u32 s40, s40, s43\ns_mul_i32 s3, s43, 655360\ns_add_u32 s41, s41, s3\ns_mul_i32 s3, s43, 40960\ns_add_u32 s42, s42, s3\ns_mul_i32 s3, s43, 160\nv_add_u32 v8, s3, v8")
    a("s_cmp_lt_u32 s40, 64\ns_cbranch_scc1 FIN")
    if INSTR:
        a(f"s_memtime s[92:93]\ns_waitcnt lgkmcnt(0)\ns_sub_u32 s92, s92, s90\nv_mov_b32 v16, s92\ns_lshl_b32 s3, s33, 3\ns_add_u32 s3, s3, {sW}\ns_lshl_b32 s3, s3, 2\ns_add_u32 s3, s3, {L.DBG+1024}\nv_mov_b32 v17, 0\nbuffer_store_dword v16, v17, {WS}, s3 offen")
    a("s_waitcnt vmcnt(0)")
    a.put("END")
    hdr = "".join(l for l in open("cdna_kernels/" + KNAME[:-7] + ".s.ref") if l.startswith(";") and "@launch" not in l)
    return wrap(a.text(), KNAME, "grid=(256,1,1) block=(512,1,1) lds=163840", header=hdr)

if __name__ == "__main__":
    from build import build
    cfg = eval(sys.argv[2]) if len(sys.argv) > 2 else {}
    open(sys.argv[1], "w").write(gen(**cfg)); build(sys.argv[1], KNAME)
```

```python
from asmlib import *
OOB = 0x7fffff00

def chain(c, tag, ST):
    a, L, WS, NS, LOGNS, OPT, INSTR = c["a"], c["L"], c["WS"], c["NS"], c["LOGNS"], c["OPT"], c["INSTR"]
    sW, sQ, sR, sS, sBUD, sG = c["sW"], c["sQ"], c["sR"], c["sS"], c["sBUD"], c["sG"]
    slot, budget, srd = c["slot"], c["budget"], c["srd"]
    FLIP = OPT.get("FLIP", 0); DELTA = OPT.get("DELTA", 200); SSTEP = OPT.get("SSTEP", 55)
    POIS = NS < 64
    T = lambda n: n + "_" + tag
    sFL = "s33"
    def stamp(i):
        if INSTR == 2:
            l = a.lab("ST")
            a(f"s_cmp_lg_u32 {sS}, {SSTEP}\ns_cbranch_scc1 {l}\ns_memtime s[60:61]\ns_waitcnt lgkmcnt(0)\ns_mov_b32 s{44+i}, s60")
            a.put(l)
        if INSTR == 3: a(f"s_memtime s[{64+2*i}:{65+2*i}]")
    def dump():
        if INSTR == 3:
            a(f"s_lshl_b32 s3, {sQ}, 5\ns_add_u32 s3, s3, {sR}\ns_lshl_b32 s3, s3, 3\ns_add_u32 s3, s3, {sW}\ns_lshl_b32 s3, s3, 6\ns_and_b32 s4, {sS}, 63\ns_add_u32 s3, s3, s4\ns_lshl_b32 s3, s3, 5\ns_add_u32 s3, s3, {L.DBG + (1 << 20)}\ns_waitcnt lgkmcnt(0)")
            a("v_mov_b32 v254, s64")
            for i in range(1, 8): a(f"v_writelane_b32 v254, s{64+2*i}, {i}")
            a(f"s_mov_b64 exec, 0xff\nv_lshlrev_b32 v255, 2, v0\nbuffer_store_dword v254, v255, {WS}, s3 offen\ns_mov_b64 exec, -1")
    def stamp0():
        c["rt"](5)
        if INSTR: a("s_memtime s[60:61]\ns_waitcnt lgkmcnt(0)\ns_sub_u32 s55, s60, s90")
    def finish():
        if INSTR:
            a("s_memtime s[60:61]\ns_waitcnt lgkmcnt(0)\ns_sub_u32 s59, s60, s90")
            a(f"s_lshl_b32 s3, {sQ}, 5\ns_add_u32 s3, s3, {sR}\ns_lshl_b32 s3, s3, 3\ns_add_u32 s3, s3, {sW}\ns_lshl_b32 s3, s3, 6\ns_add_u32 s3, s3, {L.DBG+4096}")
            a(f"s_mov_b32 s58, {sBUD}")
            l = a.lab("CAL")
            a("s_memrealtime s[62:63]\ns_waitcnt lgkmcnt(0)\ns_mov_b32 s4, 200")
            a.put(l)
            a("s_memrealtime s[6:7]\ns_memtime s[60:61]\ns_waitcnt lgkmcnt(0)\ns_sub_u32 s4, s4, 1")
            a(f"s_cbranch_scc1 {l}_x\ns_cmp_eq_u32 s6, s62\ns_cbranch_scc1 {l}")
            a.put(l + "_x")
            a("s_mov_b32 s57, s60\ns_mov_b32 s56, s6")
            for i in range(16): a(f"v_mov_b32 v{8+i}, s{44+i}")
            a("v_mov_b32 v4, 0\ns_mov_b64 exec, 1")
            for i in range(4): a(f"buffer_store_dwordx4 v[{8+4*i}:{11+4*i}], v4, {WS}, s3 offen offset:{16*i}")
        a("s_waitcnt vmcnt(0)")
        c["rtdump"]()
        a("s_waitcnt vmcnt(0)\ns_branch END")
    def delay(n):
        while n > 0:
            m = min(n, 64); a(f"s_nop {max(m//4-1,0)}"); n -= m
    def onelane(v, saddr):
        a(f"v_mov_b32 {v}, {OOB}\nv_writelane_b32 {v}, {saddr}, 0")
    xs_dma = c["xs_dma"]
    def flagwait(vaddr, vtmp, sval):
        lp = a.lab("FW"); ok = a.lab("FO")
        a.put(lp)
        a(f"buffer_load_dword {vtmp}, {vaddr}, {WS}, {sFL} offen sc1\ns_waitcnt vmcnt(0)")
        a(f"v_cmp_gt_u32 vcc, {sval}, {vtmp}\ns_cbranch_vccz {ok}")
        budget(lp)
        a.put(ok)
    def idxreg(v):
        a(f"v_and_b32 v4, 15, v0\nv_cmp_gt_u32 vcc, 8, v4\nv_mov_b32 {v}, 0xeeee\nv_mov_b32 v6, 0x4444\nv_cndmask_b32 {v}, {v}, v6, vcc")
    def tagreg(s):
        a(f"s_lshr_b32 {s}, {sS}, {LOGNS}\ns_and_b32 {s}, {s}, 1\ns_add_u32 {s}, {s}, 1")

    a(f"s_lshl_b32 {sFL}, {sQ}, 12\ns_add_u32 {sFL}, {sFL}, {L.FL}")
    a(f"s_cmp_ge_u32 {sR}, 18\ns_cbranch_scc1 {T('COMB')}")
    MEM, QKM, QX, KX, DUM = 81920, 92160, 94208, 98304, 102400
    a(f"s_cmp_ge_u32 {sW}, 4\ns_cbranch_scc1 {T('PAUX')}")
    idxreg("v5")
    a(f"v_add_u32 v11, {MEM}, v2")
    NB = 5
    def tokgemm():
        R = lambda i: 16 + 4*(i % NB)
        off = lambda i: (i % 2)*20480 + (i // 2)*1024
        for i in range(NB - 1): a(f"ds_read_b128 v[{R(i)}:{R(i)+3}], v9 offset:{off(i)}")
        for i in range(40):
            if i + NB - 1 < 40: a(f"ds_read_b128 v[{R(i+NB-1)}:{R(i+NB-1)+3}], v9 offset:{off(i+NB-1)}")
            a(f"s_waitcnt lgkmcnt({min(NB-1, 39-i)})")
            kk, tt = i // 2, i % 2
            for t in range(2):
                w = 64 + 16*(kk // 2) + 8*t + 4*(kk % 2); d = 224 + 8*t + 4*tt
                a(f"v_mfma_f32_16x16x32_bf16 v[{d}:{d+3}], v[{w}:{w+3}], v[{R(i)}:{R(i)+3}], " + ("0" if kk == 0 else f"v[{d}:{d+3}]"))
    def crit():
        for b in range(10): a(f"ds_read_b128 v[{16+4*b}:{19+4*b}], v11 offset:{1024*b}")
        for b in range(10):
            a(f"s_waitcnt lgkmcnt({9-b})")
            a(f"v_smfmac_f32_16x16x64_bf16 v[56:59], v[{16+4*b}:{19+4*b}], v[{64+16*b}:{71+16*b}], v5")
            a(f"v_smfmac_f32_16x16x64_bf16 v[60:63], v[{16+4*b}:{19+4*b}], v[{72+16*b}:{79+16*b}], v5")
        for i in range(4): a(f"v_permlane32_swap_b32 v{56+i}, v{60+i}")
        a("v_pk_add_f32 v[56:57], v[56:57], v[60:61]\nv_pk_add_f32 v[58:59], v[58:59], v[62:63]")
        a("v_cvt_pk_bf16_f32 v56, v56, v57\nv_cvt_pk_bf16_f32 v57, v58, v59\nds_write_b64 v6, v[56:57]")
    a(f"s_cmp_ge_u32 {sR}, 12\ns_cbranch_scc1 {T('VG')}")
    a(f"v_and_b32 v4, 15, v0\nv_lshlrev_b32 v6, 5, v4\nv_lshrrev_b32 v7, 4, v0\nv_lshl_add_u32 v6, v7, 3, v6\ns_lshl_b32 s3, {sW}, 9\ns_add_u32 s3, s3, {QKM}\nv_add_u32 v6, s3, v6")
    a(f"s_lshr_b32 s3, {sW}, 1\ns_lshl_b32 s3, s3, 10\ns_and_b32 s4, {sW}, 1\ns_lshl_b32 s4, s4, 3\ns_add_u32 s3, s3, s4\ns_add_u32 s3, s3, {QX}\nv_add_u32 v7, s3, v2")
    a(f"s_mov_b32 {sS}, -1\ns_barrier\ns_branch {T('SG_TOK')}")
    a.put(T("SG_LOOP"))
    for i in range(56, 64): a(f"v_mov_b32 v{i}, 0")
    a("s_waitcnt lgkmcnt(0)")
    stamp(0)
    a("s_barrier")
    crit()
    a("s_waitcnt lgkmcnt(0)")
    stamp(1)
    a("s_barrier")
    a(f"s_cmp_eq_u32 {sS}, 63\ns_cbranch_scc1 {T('SG_END')}")
    a.put(T("SG_TOK"))
    a(f"s_add_u32 {sS}, {sS}, 1\ns_and_b32 s3, {sS}, 1\ns_mul_i32 s3, s3, 40960\nv_add_u32 v9, s3, v2")
    tokgemm()
    for t in range(2):
        for tt in range(2):
            d = 224 + 8*t + 4*tt
            a(f"v_cvt_pk_bf16_f32 v{d}, v{d}, v{d+1}\nv_cvt_pk_bf16_f32 v{d+1}, v{d+2}, v{d+3}\nds_write_b64 v7, v[{d}:{d+1}] offset:{4096*t + 2048*tt}")
    dump()
    a(f"s_branch {T('SG_LOOP')}")
    a.put(T("SG_END"))
    finish()
    a.put(T("VG"))
    a("v_bfe_u32 v6, v0, 3, 1\nv_lshlrev_b32 v6, 8, v6\nv_bfe_u32 v7, v0, 2, 1\nv_lshl_add_u32 v6, v7, 7, v6\nv_lshrrev_b32 v7, 5, v0\nv_lshl_add_u32 v6, v7, 6, v6\nv_and_b32 v7, 1, v0\nv_lshl_add_u32 v6, v7, 5, v6")
    a(f"v_bfe_u32 v7, v0, 1, 1\nv_lshl_add_u32 v6, v7, 4, v6\nv_bfe_u32 v7, v0, 4, 1\nv_lshl_add_u32 v6, v7, 3, v6\ns_lshl_b32 s3, {sW}, 9\ns_add_u32 s3, s3, {QKM}\nv_add_u32 v6, s3, v6")
    a("v_bfe_u32 v7, v0, 4, 1\nv_lshlrev_b32 v7, 8, v7\nv_and_b32 v8, 15, v0\nv_lshl_add_u32 v7, v8, 3, v7\nv_add_u32 v7, s3, v7")
    a(f"s_sub_u32 s4, {sR}, 12\ns_lshl_b32 s4, s4, 2\ns_add_u32 s4, s4, {sW}")
    a(f"s_lshl_b32 s3, s4, 9\nv_add_u32 v10, s3, v2\nv_mov_b32 v8, {OOB}\nv_cmp_gt_u32 vcc, 32, v0\nv_cndmask_b32 v10, v8, v10, vcc")
    a("s_lshl_b32 s3, s4, 11\nv_add_u32 v8, s3, v2\ns_lshl_b32 s3, s4, 2")
    onelane("v15", "s3")
    for i in range(4): a(f"v_mov_b32 v{240+i}, -1")
    a(f"s_mov_b32 {sS}, -1\ns_mov_b32 s37, 0\ns_barrier\ns_branch {T('VG_TOK')}")
    a.put(T("VG_LOOP"))
    for i in range(56, 64): a(f"v_mov_b32 v{i}, 0")
    slot("s34", L.VMS, L.VM); slot("s35", L.VMS, L.VM, NS - 1)
    a("s_barrier")
    crit()
    a("ds_read_b64_tr_b16 v[56:57], v7\nds_read_b64_tr_b16 v[58:59], v7 offset:128\ns_waitcnt lgkmcnt(1)\nv_min_u32 v56, -2, v56\nv_min_u32 v57, -2, v57\ns_waitcnt lgkmcnt(0)\nv_min_u32 v58, -2, v58\nv_min_u32 v59, -2, v59")
    a(f"buffer_store_dwordx4 v[56:59], v10, {WS}, s34 offen{ST}")
    stamp(0)
    if POIS: a(f"buffer_store_dwordx4 v[240:243], v10, {WS}, s35 offen{ST}")
    a("s_barrier")
    a(f"s_cmp_lt_u32 {sS}, 61\ns_cbranch_scc1 {T('VG_TOK')}\ns_cmp_eq_u32 {sS}, 63\ns_cbranch_scc1 {T('VG_END')}\ns_add_u32 {sS}, {sS}, 1\ns_waitcnt vmcnt(0)\ns_branch {T('VG_LOOP')}")
    a.put(T("VG_TOK"))
    a(f"s_and_b32 s3, s37, 1\ns_mul_i32 s3, s3, 40960\nv_add_u32 v9, s3, v2\ns_and_b32 s36, s37, {NS-1}\ns_mul_i32 s36, s36, {L.VXS}\ns_add_u32 s36, s36, {L.VX}\ns_add_u32 s36, s36, {sG}\ns_add_u32 s37, s37, 1\nv_mov_b32 v14, s37")
    tokgemm()
    for tt in range(2):
        for t in range(2):
            d = 224 + 8*t + 4*tt; o = 16 + 4*tt + 2*t
            a(f"v_cvt_pk_bf16_f32 v{o}, v{d}, v{d+1}\nv_cvt_pk_bf16_f32 v{o+1}, v{d+2}, v{d+3}")
        a(f"buffer_store_dwordx4 v[{16+4*tt}:{19+4*tt}], v8, {WS}, s36 offen offset:{1024*tt}{ST}")
    a(f"s_waitcnt vmcnt(0)\nbuffer_store_dword v14, v15, {WS}, {sFL} offen{ST}")
    stamp(1)
    dump()
    a(f"s_lshl_b32 s3, {sS}, 1\ns_add_u32 s3, s3, 2\ns_add_u32 s4, {sS}, 3\ns_min_i32 s3, s3, s4\ns_cmp_le_i32 s37, s3\ns_cbranch_scc1 {T('VG_2')}\ns_add_u32 {sS}, {sS}, 1\ns_branch {T('VG_LOOP')}")
    a.put(T("VG_2"))
    a(f"s_barrier\ns_branch {T('VG_TOK')}")
    a.put(T("VG_END"))
    finish()

    a.put(T("PAUX"))
    a(f"s_setprio 2\ns_sub_u32 s14, {sW}, 4")
    a(f"s_lshl_b32 s3, s14, 10\nv_add_u32 v4, s3, v2\nv_add_u32 v12, {MEM}, v4\ns_cmp_lt_u32 s14, 2\ns_cselect_b64 vcc, -1, 0")
    a(f"v_mov_b32 v8, {OOB}\nv_cndmask_b32 v8, v8, v4, vcc\nv_add_u32 v13, {DUM}, v2\nv_add_u32 v5, 8192, v12\nv_cndmask_b32 v13, v13, v5, vcc")
    a("ds_write_b128 v12, v[16:19]\nds_write_b128 v12, v[20:23] offset:4096\nds_write_b128 v13, v[24:27]\ns_waitcnt vmcnt(10)\ns_barrier")
    SPREAD = OPT.get("SPREAD", 0)
    if SPREAD:
        a(f"s_cmp_ge_u32 {sR}, 12\ns_cselect_b32 s3, 2, 0\ns_xor_b32 s3, s3, s14\ns_lshl_b32 s40, {sR}, 1\ns_add_u32 s40, s40, s3\ns_cmp_lt_u32 s3, 2\ns_cselect_b32 s40, s40, -1")
        a(f"s_lshl_b32 s3, {sR}, 2\ns_add_u32 s3, s3, s14\ns_and_b32 s4, s3, 0xfffffff3\ns_add_u32 s3, {sR}, 36\ns_cmp_eq_u32 s4, 2\ns_cselect_b32 s40, s3, s40")
    else:
        a(f"s_lshl_b32 s40, {sR}, 2\ns_add_u32 s40, s40, s14\ns_cmp_lt_u32 {sR}, 10\ns_cselect_b32 s40, s40, -1")
    a(f"s_lshr_b32 s3, {sR}, 1\ns_lshr_b32 s4, s40, 2\ns_cmp_lt_i32 s40, 0\ns_cselect_b32 s3, s3, s4\ns_lshl_b32 s3, s3, 7\ns_add_u32 s3, s3, 2048\nv_mov_b32 v140, s3")
    a("s_max_i32 s5, s40, 0\ns_lshr_b32 s3, s5, 2\ns_lshl_b32 s3, s3, 15\ns_and_b32 s4, s5, 3\ns_lshl_b32 s4, s4, 9\ns_add_u32 s3, s3, s4")
    a("v_and_b32 v142, 31, v0\nv_lshlrev_b32 v141, 4, v142\nv_lshrrev_b32 v143, 5, v0\nv_lshl_add_u32 v141, v143, 11, v141\nv_add_u32 v141, s3, v141")
    a("s_lshl_b32 s3, s5, 8\nv_lshlrev_b32 v142, 3, v142\nv_lshl_add_u32 v142, v143, 2, v142\nv_add_u32 v142, s3, v142\nv_mov_b32 v143, -1")
    a(f"s_lshr_b32 s41, {sQ}, 2\ns_lshl_b32 s41, s41, 14")
    A3 = lambda d, x, y, z: f"v_bitop3_b32 {d}, {x}, {y}, {z} bitop3:0x80"
    def h3task():
        skip = a.lab("H3N"); done = a.lab("H3D"); lp = a.lab("H3F"); go = a.lab("H3G")
        slot("s36", L.H3S, L.H3, NS - 1, False); slot("s37", L.H1S, L.H1); slot("s35", L.H1S, L.H1, NS - 1)
        a(f"s_sub_u32 s3, {sS}, 1\ns_lshr_b32 s25, s3, {LOGNS}\ns_and_b32 s25, s25, 1\ns_add_u32 s25, s25, 1")
        a("s_xor_b32 s3, s41, 16384\ns_add_u32 s16, s36, s41\ns_add_u32 s17, s16, 4096\ns_add_u32 s18, s36, s3\ns_add_u32 s19, s18, 4096")
        NF = 3
        a(f"s_lshl_b32 s43, {sS}, 1")
        for k in range(NF - 1):
            a(f"buffer_load_dword v{144+k}, v140, {WS}, {sFL} offen sc1"); delay(64)
        a.put(lp)
        for k in range(NF):
            a(f"buffer_load_dword v{144+(k+NF-1)%NF}, v140, {WS}, {sFL} offen sc1\ns_waitcnt vmcnt({NF-1})\nv_cmp_gt_u32 vcc, s43, v{144+k}\ns_cbranch_vccz {go}")
        budget(lp)
        a.put(go)
        stamp(6)
        a(f"s_cmp_lt_i32 s40, 0\ns_cbranch_scc1 {skip}")
        a(f"s_cmp_lg_u32 {sS}, 1\ns_cbranch_scc1 {go}_c\ns_waitcnt vmcnt(0)\nv_max3_u32 v147, v144, v145, v146\nv_and_b32 v147, 1, v147\nv_lshl_add_u32 v141, v147, 13, v141")
        a.put(go + "_c")
        delay(DELTA)
        lp = a.lab("H3P"); a.put(lp)
        a(f"s_sub_u32 {sBUD}, {sBUD}, 1\ns_cbranch_scc1 END")
        for q in range(4): a(f"buffer_load_dwordx4 v[{148+4*q}:{151+4*q}], v141, {WS}, s{16+q} offen sc1")
        a("s_waitcnt vmcnt(3)\n" + A3("v52", "s25", "v148", "v149") + "\n" + A3("v52", "v52", "v150", "v151"))
        for i in range(1, 4):
            r = 148 + 4*i; p = 148 if i == 1 else 164
            a(f"s_waitcnt vmcnt({3-i})\nv_pk_add_f32 v[164:165], v[{p}:{p+1}], v[{r}:{r+1}]\nv_pk_add_f32 v[166:167], v[{p+2}:{p+3}], v[{r+2}:{r+3}]\n" + A3("v52", "v52", f"v{r}", f"v{r+1}") + "\n" + A3("v52", "v52", f"v{r+2}", f"v{r+3}"))
        a("v_permlane32_swap_b32 v164, v166\nv_permlane32_swap_b32 v165, v167\nv_cmp_eq_u32 vcc, 0, v52\nv_pk_add_f32 v[164:165], v[164:165], v[166:167]")
        a(f"v_cvt_pk_bf16_f32 v166, v164, v165\nv_min_u32 v166, -2, v166\ns_cbranch_vccnz {lp}")
        a(f"buffer_store_dword v166, v142, {WS}, s37 offen{ST}")
        stamp(7)
        if POIS: a(f"buffer_store_dword v143, v142, {WS}, s35 offen{ST}")
        if INSTR in (1, 2):
            a(f"s_memtime s[60:61]\ns_lshl_b32 s3, {sQ}, 8\ns_lshl_b32 s4, {sS}, 2\ns_add_u32 s3, s3, s4\ns_add_u32 s3, s3, {L.DBG+262144-4}\ns_cmp_eq_u32 s40, 0\ns_cselect_b32 s4, 0, {OOB}")
            a(f"s_waitcnt lgkmcnt(0)\ns_sub_u32 s60, s60, s90\nv_mov_b32 v164, s60\nv_mov_b32 v165, s4\nbuffer_store_dword v164, v165, {WS}, s3 offen")
        a(f"s_branch {done}")
        a.put(skip)
        if OPT.get("D2"): a(f"s_sleep {OPT['D2']}")
        a.put(done)
    def mem0(got):
        stamp0()
        a(f"s_branch {got}")
    def h1poll(got, sl):
        if sl: a(f"s_sleep {sl}")
        slot("s34", L.H1S, L.H1)
        a("s_add_u32 s35, s34, 4096\ns_add_u32 s36, s34, 8192")
        def issue(r): a(f"buffer_load_dwordx4 v[{r}:{r+3}], v4, {WS}, s34 offen sc1\nbuffer_load_dwordx4 v[{r+4}:{r+7}], v4, {WS}, s35 offen sc1\nbuffer_load_dwordx4 v[{r+8}:{r+11}], v8, {WS}, s36 offen sc1")
        def check(r, n):
            a(f"s_waitcnt vmcnt({n+2})\nds_write_b128 v12, v[{r}:{r+3}]\nv_max3_u32 v52, v{r}, v{r+1}, v{r+2}")
            a(f"s_waitcnt vmcnt({n+1})\nds_write_b128 v12, v[{r+4}:{r+7}] offset:4096\nv_max3_u32 v52, v{r+3}, v{r+4}, v52\nv_max3_u32 v52, v{r+5}, v{r+6}, v52")
            a(f"s_waitcnt vmcnt({n})\nds_write_b128 v13, v[{r+8}:{r+11}]\nv_max3_u32 v52, v{r+7}, v{r+8}, v52\nv_max3_u32 v52, v{r+9}, v{r+10}, v52\nv_max_u32 v52, v{r+11}, v52")
            a(f"v_cmp_eq_u32 vcc, -1, v52\ns_cbranch_vccz {got}\ns_waitcnt lgkmcnt(0)")
        lp = a.lab("H1P")
        P1 = OPT.get("P1", 2)
        if P1 == 1:
            a.put(lp); issue(116); check(116, 0)
        else:
            for k in range(P1 - 1):
                issue(116 + 12*k)
                if OPT.get("P1D"): delay(OPT["P1D"])
            a.put(lp)
            for k in range(P1):
                issue(116 + 12*((k + P1 - 1) % P1)); check(116 + 12*k, 3*(P1 - 1))
        budget(lp)
    a(f"s_cmp_ge_u32 {sR}, 12\ns_cbranch_scc1 {T('VA')}")
    a(f"s_cmp_eq_u32 s14, 3\ns_cselect_b32 s3, 0, {KX-QX}\ns_cmp_eq_u32 s14, 1\ns_cselect_b32 s4, 2048, 0\ns_add_u32 s3, s3, s4\ns_add_u32 s3, s3, {QX}\nv_add_u32 v14, s3, v2")
    a(f"s_cmp_eq_u32 s14, 0\ns_cselect_b32 s3, 0, 2048\ns_add_u32 s3, s3, {QX}\nv_add_u32 v15, s3, v2\nv_add_u32 v7, {QKM}, v3")
    a("v_and_b32 v6, 7, v0\nv_lshrrev_b32 v9, 4, v0\nv_lshl_add_u32 v11, v6, 2, v9\nv_lshlrev_b32 v11, 4, v11\ns_lshl_b32 s3, s14, 9\nv_add_u32 v11, s3, v11")
    a("v_lshl_add_u32 v9, v9, 3, v6\nv_lshlrev_b32 v9, 4, v9\nv_add_u32 v9, 768, v9\ns_cmp_eq_u32 s14, 2\ns_cselect_b64 vcc, -1, 0\nv_cndmask_b32 v11, v11, v9, vcc")
    a(f"s_mul_i32 s3, {sR}, 1280\nv_add_u32 v11, s3, v11\ns_mov_b32 s5, 0x00ff00ff\ns_cselect_b32 s4, 0, s5\ns_mov_b64 vcc, s[4:5]\nv_mov_b32 v9, {OOB}\nv_cndmask_b32 v11, v9, v11, vcc")
    a(f"s_lshl_b32 s3, {sR}, 2\ns_add_u32 s3, s3, s14\ns_lshl_b32 s4, s3, 10\nv_add_u32 v10, s4, v2\ns_lshl_b32 s3, s3, 2\ns_add_u32 s3, s3, 128")
    onelane("v6", "s3")
    a(f"s_mov_b32 {sS}, 0")
    mem0(T("SA_GOT"))
    a.put(T("SA_LOOP"))
    h3task()
    h1poll(T("SA_GOT"), 0)
    a.put(T("SA_GOT"))
    stamp(0)
    a("s_waitcnt lgkmcnt(0)\ns_barrier")
    stamp(1)
    a("ds_read_b128 v[24:27], v14\nds_read_b128 v[28:31], v14 offset:1024\nds_read_b128 v[32:35], v15\nds_read_b128 v[36:39], v15 offset:1024")
    slot("s35", L.H2S, L.H2); slot("s36", L.HXS, L.HX); tagreg("s37")
    a(f"s_add_u32 s3, {sS}, 1\nv_mov_b32 v9, s3\ns_waitcnt lgkmcnt(0)")
    a(f"s_cmp_eq_u32 s14, 2\ns_cbranch_scc1 {T('SA_2')}\ns_cmp_eq_u32 s14, 3\ns_cbranch_scc1 {T('SA_3')}")
    def qkread():
        a("s_barrier")
        stamp(2)
        for i in range(4): a(f"ds_read_b64_tr_b16 v[{40+2*i}:{41+2*i}], v7 offset:{512*i}")
    def h2out(A0, A1):
        a(f"s_waitcnt lgkmcnt(2)\nv_mfma_f32_16x16x32_bf16 v[48:51], v[{A0}:{A0+3}], v[40:43], 0\ns_waitcnt lgkmcnt(0)\nv_mfma_f32_16x16x32_bf16 v[48:51], v[{A1}:{A1+3}], v[44:47], v[48:51]")
        for i in range(4): a(f"v_and_or_b32 v{48+i}, v{48+i}, -4, s37")
        a(f"buffer_store_dwordx4 v[48:51], v11, {WS}, s35 offen{ST}")
        stamp(3)
    qkread(); h2out(24, 28)
    a(f"s_branch {T('SA_X')}")
    a.put(T("SA_2"))
    qkread(); h2out(40, 44)
    a.put(T("SA_X"))
    a("v_mfma_f32_16x16x32_bf16 v[56:59], v[24:27], v[32:35], 0\nv_mfma_f32_16x16x32_bf16 v[56:59], v[28:31], v[36:39], v[56:59]")
    a(f"s_branch {T('SA_F')}")
    a.put(T("SA_3"))
    qkread()
    a("s_waitcnt lgkmcnt(0)\nv_mfma_f32_16x16x32_bf16 v[52:55], v[40:43], v[24:27], 0\nv_mfma_f32_16x16x32_bf16 v[56:59], v[40:43], v[32:35], 0")
    a("v_mfma_f32_16x16x32_bf16 v[52:55], v[44:47], v[28:31], v[52:55]\nv_mfma_f32_16x16x32_bf16 v[56:59], v[44:47], v[36:39], v[56:59]")
    for i in range(4): a(f"v_permlane32_swap_b32 v{52+i}, v{56+i}")
    a.put(T("SA_F"))
    a(f"buffer_store_dwordx4 v[56:59], v10, {WS}, s36 offen{ST}\ns_waitcnt vmcnt(0)\nbuffer_store_dword v9, v6, {WS}, {sFL} offen{ST}")
    stamp(4)
    a(f"s_cmp_eq_u32 {sS}, 63\ns_cbranch_scc1 {T('SA_END')}\ns_cmp_eq_u32 {sS}, 62\ns_cbranch_scc1 {T('SA_N')}")
    a(f"s_mul_i32 s5, s14, 10240\ns_and_b32 s3, {sS}, 1\ns_mul_i32 s3, s3, 40960\ns_add_u32 s3, s3, s5\ns_mul_i32 s4, {sS}, 40960\ns_add_u32 s4, s4, s5\ns_add_u32 s4, s4, {L.XN + 2*40960}")
    xs_dma("s3", "s4")
    a.put(T("SA_N"))
    stamp(5)
    dump()
    a(f"s_add_u32 {sS}, {sS}, 1\ns_branch {T('SA_LOOP')}")
    a.put(T("SA_END"))
    finish()
    a.put(T("VA"))
    a(f"s_sub_u32 s15, {sR}, 12")
    a(f"s_mul_i32 s3, s15, 12288\ns_lshl_b32 s4, s14, 11\ns_add_u32 s4, s4, s3\nv_add_u32 v14, s4, v2")
    a(f"s_add_u32 s4, s3, 1024\nv_add_u32 v15, s4, v2\nv_mov_b32 v9, {OOB}\ns_cmp_eq_u32 s14, 1\ns_cselect_b64 vcc, -1, 0\nv_cndmask_b32 v15, v9, v15, vcc")
    a(f"s_lshl_b32 s4, s14, 9\ns_add_u32 s4, s4, s3\ns_add_u32 s4, s4, {3072-512}\nv_add_u32 v7, s4, v2\nv_cmp_le_u32 vcc, 32, v0\nv_cndmask_b32 v7, v9, v7, vcc")
    a("s_mul_i32 s3, s14, 5120\ns_lshl_b32 s4, s15, 10\ns_add_u32 s4, s4, s3\nv_add_u32 v10, s4, v2")
    a("v_and_b32 v6, 15, v0\nv_lshlrev_b32 v11, 4, v6\nv_bfe_u32 v64, v0, 4, 1\nv_lshl_add_u32 v11, v64, 3, v11\ns_lshl_b32 s4, s15, 8\ns_add_u32 s4, s4, s3\ns_add_u32 s4, s4, 4096\nv_add_u32 v11, s4, v11\nv_cndmask_b32 v11, v9, v11, vcc")
    a("v_mov_b32 v65, 0xf149f2ca\nv_mov_b32 v66, 0")
    for i in range(4): a(f"v_cndmask_b32 v{108+i}, v65, v66, vcc")
    a("s_lshl_b32 s3, s14, 4\nv_add_u32 v6, s3, v6\nv_lshrrev_b32 v64, 4, v0\nv_lshlrev_b32 v64, 2, v64\nv_sub_u32 v6, v6, v64")
    for i in range(8): a(f"v_cmp_le_i32 vcc, {i if i < 4 else 12+i}, v6\nv_cndmask_b32 v{100+i}, v65, v66, vcc")
    a("v_min_u32 v6, 11, v0\nv_lshlrev_b32 v6, 2, v6\ns_mul_i32 s3, s15, 48\ns_add_u32 s3, s3, 128\nv_add_u32 v6, s3, v6")
    a("s_lshl_b32 s3, s14, 2\ns_add_u32 s3, s3, s15\ns_lshl_b32 s3, s3, 2\ns_add_u32 s3, s3, 384")
    onelane("v112", "s3")
    a("s_mov_b32 s38, 0x3dd53b95\nv_mov_b32 v114, s38\nv_mov_b32 v115, s38")
    a("s_cmp_lt_u32 s15, 4\ns_cselect_b32 s39, 1, 0\ns_cmp_lt_u32 s14, 2\ns_cselect_b32 s39, s39, 0")
    a(f"s_mov_b32 {sS}, 0\ns_mov_b32 s42, 2")
    mem0(T("VA_GOT"))
    a.put(T("VA_LOOP"))
    h3task()
    h1poll(T("VA_GOT"), 0)
    a.put(T("VA_GOT"))
    stamp(0)
    a("s_waitcnt lgkmcnt(0)\ns_barrier")
    stamp(1)
    a("s_barrier")
    def nextseg():
        a(f"s_mul_i32 s5, s14, 10240\ns_and_b32 s3, s42, 1\ns_mul_i32 s3, s3, 40960\ns_add_u32 s3, s3, s5\ns_mul_i32 s4, s42, 40960\ns_add_u32 s4, s4, s5\ns_add_u32 s4, s4, {L.XN}\ns_add_u32 s42, s42, 1")
        xs_dma("s3", "s4")
    a(f"s_cmp_ge_u32 {sS}, 2\ns_cbranch_scc1 {T('VA_R')}")
    nextseg()
    a("s_waitcnt vmcnt(0)\ns_barrier")
    a.put(T("VA_R"))
    a(f"s_cmp_ge_u32 {sS}, 60\ns_cbranch_scc1 {T('VA_S')}")
    nextseg()
    a.put(T("VA_S"))
    a(f"s_cmp_eq_u32 s39, 0\ns_cbranch_scc1 {T('VA_N')}")
    slot("s34", L.HXS, L.HX); slot("s37", L.PXS, L.PX)
    a(f"s_add_u32 s35, s34, 4096\ns_add_u32 s36, s34, 8192\ns_add_u32 s3, {sS}, 1\nv_mov_b32 v113, s3")
    flagwait("v6", "v64", "s3")
    stamp(4)
    for p in range(3):
        for i, v in enumerate(("v14", "v15", "v7")): a(f"buffer_load_dwordx4 v[{64+12*p+4*i}:{67+12*p+4*i}], {v}, {WS}, s{34+p} offen sc1")
    a("s_waitcnt vmcnt(3)")
    for i in range(6): a(f"v_pk_add_f32 v[{64+2*i}:{65+2*i}], v[{64+2*i}:{65+2*i}], v[{76+2*i}:{77+2*i}]")
    for i in range(6): a(f"v_pk_add_f32 v[{64+2*i}:{65+2*i}], v[{64+2*i}:{65+2*i}], v[{100+2*i}:{101+2*i}]")
    a("s_waitcnt vmcnt(0)")
    for i in range(6): a(f"v_pk_add_f32 v[{64+2*i}:{65+2*i}], v[{64+2*i}:{65+2*i}], v[{88+2*i}:{89+2*i}]")
    a("v_max3_f32 v76, v64, v65, v66")
    for i in range(4): a(f"v_max3_f32 v76, v76, v{67+2*i}, v{68+2*i}")
    a("v_max_f32 v76, v76, v75")
    def xred(op):
        a(f"v_mov_b32 v77, v76\nv_permlane16_swap_b32 v76, v77\n{op} v76, v76, v77\nv_mov_b32 v77, v76\nv_permlane32_swap_b32 v76, v77\n{op} v76, v76, v77")
    xred("v_max_f32")
    a("v_mul_f32 v78, s38, v76")
    for i in range(6): a(f"v_pk_fma_f32 v[{64+2*i}:{65+2*i}], v[{64+2*i}:{65+2*i}], v[114:115], v[78:79] op_sel_hi:[1,1,0] neg_lo:[0,0,1] neg_hi:[0,0,1]")
    for i in range(12): a(f"v_exp_f32 v{64+i}, v{64+i}")
    a("v_pk_add_f32 v[76:77], v[64:65], v[66:67]")
    for i in range(2, 6): a(f"v_pk_add_f32 v[76:77], v[76:77], v[{64+2*i}:{65+2*i}]")
    a("v_add_f32 v76, v76, v77")
    xred("v_add_f32")
    a("v_rcp_f32 v78, v76")
    for i in range(6): a(f"v_pk_mul_f32 v[{64+2*i}:{65+2*i}], v[{64+2*i}:{65+2*i}], v[78:79] op_sel_hi:[1,0]")
    for i in range(6): a(f"v_cvt_pk_bf16_f32 v{80+i}, v{64+2*i}, v{65+2*i}")
    a(f"buffer_store_dwordx4 v[80:83], v10, {WS}, s37 offen{ST}\nbuffer_store_dwordx2 v[84:85], v11, {WS}, s37 offen{ST}")
    a(f"s_waitcnt vmcnt(0)\nbuffer_store_dword v113, v112, {WS}, {sFL} offen{ST}")
    stamp(5)
    a.put(T("VA_N"))
    dump()
    a(f"s_add_u32 {sS}, {sS}, 1\ns_cmp_lt_u32 {sS}, 64\ns_cbranch_scc1 {T('VA_LOOP')}")
    finish()

    a.put(T("COMB"))
    ZM, PT, PM = 65536, 81920, 83968
    TAILS = 60
    a(f"s_sub_u32 s15, {sR}, 18")
    a(f"s_cmp_ge_u32 {sW}, 4\ns_cbranch_scc1 {T('CAUX')}")
    idxreg("v5")
    a(f"s_mul_i32 s3, {sW}, 3072\nv_add_u32 v4, s3, v2")
    a(f"v_and_b32 v6, 15, v0\nv_lshlrev_b32 v6, 4, v6\nv_bfe_u32 v7, v0, 4, 1\nv_lshl_add_u32 v6, v7, 3, v6\nv_lshrrev_b32 v7, 5, v0\nv_lshl_add_u32 v6, v7, 10, v6\ns_lshl_b32 s3, {sW}, 8\ns_add_u32 s3, s3, {ZM}\nv_add_u32 v6, s3, v6")
    a(f"s_lshl_b32 s3, {sW}, 12\nv_add_u32 v8, s3, v2\ns_mul_i32 s3, {sW}, 12288\nv_add_u32 v14, s3, v2")
    a(f"s_lshr_b32 s4, {sW}, 1\ns_lshl_b32 s3, s4, 11\nv_add_u32 v11, s3, v2\ns_and_b32 s5, {sW}, 1\ns_mul_i32 s3, s5, 5120\nv_add_u32 v12, s3, v2")
    a(f"v_and_b32 v13, 7, v0\nv_lshlrev_b32 v13, 7, v13\nv_lshrrev_b32 v7, 4, v0\nv_lshl_add_u32 v13, v7, 4, v13\nv_bfe_u32 v7, v0, 3, 1\nv_lshl_add_u32 v13, v7, 6, v13\ns_mul_i32 s3, {sQ}, 81920\ns_lshl_b32 s6, s15, 13\ns_add_u32 s3, s3, s6\ns_lshl_b32 s6, {sW}, 11\ns_add_u32 s3, s3, s6\nv_add_u32 v13, s3, v13")
    a(f"v_min_u32 v15, 5, v0\nv_lshlrev_b32 v15, 2, v15\ns_mul_i32 s3, {sW}, 24\nv_add_u32 v15, s3, v15")
    a("v_and_b32 v60, 3, v0\nv_lshlrev_b32 v60, 2, v60\ns_lshl_b32 s3, s5, 4\ns_add_u32 s3, s3, 384\nv_add_u32 v60, s3, v60")
    a(f"s_add_u32 s3, s15, {sW}\ns_cmp_eq_u32 s3, 0\ns_mov_b32 s4, {OOB}\ns_cselect_b32 s3, 1024, s4")
    onelane("v61", "s3")
    a(f"s_mov_b32 s43, {L.OUTP - 2*655360}")
    a(f"s_lshl_b32 s3, s15, 15\ns_lshl_b32 s4, {sW}, 9\ns_add_u32 s3, s3, s4\ns_lshr_b32 s5, {sQ}, 2\ns_lshl_b32 s5, s5, 14\ns_add_u32 s3, s3, s5\ns_and_b32 s4, {sQ}, 3\ns_lshl_b32 s4, s4, 11\ns_add_u32 s3, s3, s4")
    a("v_and_b32 v62, 7, v0\nv_lshrrev_b32 v3, 5, v0\nv_lshlrev_b32 v3, 8, v3\nv_lshl_add_u32 v3, v62, 5, v3\nv_bfe_u32 v7, v0, 4, 1\nv_lshl_add_u32 v3, v7, 4, v3\nv_bfe_u32 v7, v0, 3, 1\nv_lshl_add_u32 v3, v7, 13, v3\nv_add_u32 v3, s3, v3")
    a("v_lshrrev_b32 v7, 4, v0\nv_lshl_add_u32 v1, v7, 3, v62\nv_lshlrev_b32 v1, 4, v1\nv_add_u32 v1, %d, v1" % PT)
    a(f"s_lshl_b32 s38, {sW}, 10")
    def vxloads(add):
        slot("s35", L.VXS, L.VX, add)
        a("s_add_u32 s36, s35, 4096\ns_add_u32 s37, s35, 8192")
        for i in range(12): a(f"buffer_load_dwordx4 v[{160+4*i}:{163+4*i}], v14, {WS}, s{35+i//4} offen offset:{(i%4)*1024} sc1")
    def pxloads():
        slot("s35", L.PXS, L.PX, NS - 1)
        a("s_add_u32 s36, s35, 4096")
        for h in range(4): a(f"buffer_load_dwordx4 v[{208+4*h}:{211+4*h}], v12, {WS}, s35 offen offset:{1024*h} sc1")
        a(f"buffer_load_dwordx4 v[224:227], v12, {WS}, s36 offen sc1")
    VXI = OPT.get("VXI", 1)
    def zx(add, nxt=False):
        if nxt:
            slot("s35", L.VXS, L.VX, 2)
            a(f"s_cmp_ge_u32 {sS}, 62\ns_cselect_b32 s35, {OOB - 65536}, s35\ns_add_u32 s36, s35, 4096\ns_add_u32 s37, s35, 8192")
        a(f"s_add_u32 s3, {sS}, {add}\ns_and_b32 s3, s3, 3\ns_lshl_b32 s3, s3, 14\nv_add_u32 v7, s3, v8")
        for i in range(6):
            for ct in range(4):
                for tt in range(2):
                    w = 64 + 32*(i // 2) + 8*ct + 4*(i % 2); d = 16 + 8*ct + 4*tt; x = 160 + 8*i + 4*tt
                    a(f"v_mfma_f32_16x16x32_bf16 v[{d}:{d+3}], v[{x}:{x+3}], v[{w}:{w+3}], " + ("0" if i == 0 else f"v[{d}:{d+3}]"))
            if nxt and i > 0:
                for k in (2*i - 2, 2*i - 1) + ((10, 11) if i == 5 else ()):
                    a(f"buffer_load_dwordx4 v[{160+4*k}:{163+4*k}], v14, {WS}, s{35+k//4} offen offset:{(k%4)*1024} sc1")
        for ct in range(4):
            d = 16 + 8*ct
            for i in range(4): a(f"v_cvt_pk_bf16_f32 v{d+i}, v{d+2*i}, v{d+2*i+1}")
            a(f"ds_write_b128 v7, v[{d}:{d+3}] offset:{1024*ct}")
    PA = [228, 232, 236, 240, 244, 248, 252, 48, 52, 56]
    def pzreads():
        a(f"s_add_u32 s3, {sS}, 2\ns_and_b32 s3, s3, 3\ns_lshl_b32 s4, s3, 14\nv_add_u32 v9, s4, v11\ns_lshl_b32 s3, s3, 12\ns_add_u32 s3, s3, {ZM}\nv_add_u32 v10, s3, v11")
        for cc in range(2):
            for h in range(4): a(f"ds_read_b128 v[{PA[5*cc+h]}:{PA[5*cc+h]+3}], v9 offset:{4096*h + 1024*cc}")
            a(f"ds_read_b128 v[{PA[5*cc+4]}:{PA[5*cc+4]+3}], v10 offset:{1024*cc}")
    def pz():
        for h in range(5):
            for cc in range(2):
                d = 20 + 8*cc
                a(f"v_mfma_f32_16x16x32_bf16 v[{d}:{d+3}], v[{PA[5*cc+h]}:{PA[5*cc+h]+3}], v[{208+4*h}:{211+4*h}], " + ("0" if h == 0 else f"v[{d}:{d+3}]"))
        for i in range(4): a(f"v_and_or_b32 v{24+i}, v{20+i}, -4, 1\nv_and_or_b32 v{28+i}, v{28+i}, -4, 1")
        for i in range(4): a(f"v_mov_b32 v{20+i}, v{24+i}")
        for i in range(4): a(f"v_mov_b32_dpp v{20+i}, v{28+i} row_ror:8 row_mask:0xf bank_mask:0xc")
        for i in range(4): a(f"v_mov_b32_dpp v{28+i}, v{24+i} row_ror:8 row_mask:0xf bank_mask:0x3")
    OSC = OPT.get("OSC", " sc1")
    def outp():
        if not OPT.get("NOOUTP"): a(f"buffer_store_dwordx4 v[20:23], v13, {WS}, s43 offen{OSC}\nbuffer_store_dwordx4 v[28:31], v13, {WS}, s43 offen offset:1024{OSC}")
    a(f"s_mov_b32 {sS}, 0\ns_mov_b32 s4, 1")
    flagwait("v15", "v62", "s4")
    c["rt"](5)
    vxloads(0)
    a("s_waitcnt vmcnt(0)")
    zx(0)
    a("s_waitcnt lgkmcnt(0)\ns_barrier")
    a.put(T("CG_LOOP"))
    slot("s34", L.VMS, L.VM)
    for i in range(32, 48): a(f"v_mov_b32 v{i}, 0")
    a(f"s_and_b32 s3, {sS}, 3\ns_lshl_b32 s4, s3, 14\ns_add_u32 s4, s4, s38\nv_add_u32 v9, s4, v2\ns_lshl_b32 s3, s3, 12\nv_add_u32 v7, s3, v6\ns_add_u32 s3, s3, s38\ns_add_u32 s3, s3, {ZM}\nv_add_u32 v10, s3, v2")
    for h in range(4): a(f"ds_read_b128 v[{228+4*h}:{231+4*h}], v9 offset:{4096*h}")
    slot("s39", L.H3S, L.H3, 0, False); tagreg("s25")
    if OPT.get("SLV"): a(f"s_sleep {OPT['SLV']}")
    stamp(6)
    a.put(T("CG_P"))
    a(f"s_sub_u32 {sBUD}, {sBUD}, 1\ns_cbranch_scc1 END")
    for i in range(3): a(f"buffer_load_dwordx4 v[{48+4*i}:{51+4*i}], v4, {WS}, s34 offen offset:{1024*i} sc1")
    a("s_waitcnt vmcnt(2)\nv_max3_u32 v62, v48, v49, v50\ns_waitcnt vmcnt(1)\nv_max3_u32 v62, v62, v51, v52\nv_max3_u32 v62, v62, v53, v54")
    a(f"s_waitcnt vmcnt(0)\nv_max3_u32 v62, v62, v55, v56\nv_max3_u32 v62, v62, v57, v58\nv_max_u32 v62, v62, v59\nv_cmp_eq_u32 vcc, -1, v62\ns_cbranch_vccnz {T('CG_P')}")
    stamp(0)
    for kb in range(3):
        for t in range(4):
            a(f"v_smfmac_f32_16x16x64_bf16 v[{32+4*t}:{35+4*t}], v[{48+4*kb}:{51+4*kb}], v[{64+32*kb+8*t}:{71+32*kb+8*t}], v5")
    for p in range(2):
        o = 32 + 8*p
        for i in range(4): a(f"v_permlane32_swap_b32 v{o+i}, v{o+4+i}")
        a(f"v_pk_add_f32 v[{o}:{o+1}], v[{o}:{o+1}], v[{o+4}:{o+5}]\nv_pk_add_f32 v[{o+2}:{o+3}], v[{o+2}:{o+3}], v[{o+6}:{o+7}]")
        a(f"v_cvt_pk_bf16_f32 v{o}, v{o}, v{o+1}\nv_cvt_pk_bf16_f32 v{o+1}, v{o+2}, v{o+3}\nds_write_b64 v7, v[{o}:{o+1}] offset:{2048*p}")
    a("s_waitcnt lgkmcnt(0)")
    stamp(1)
    a("s_barrier")
    stamp(2)
    a(f"s_cmp_eq_u32 {sS}, 63\ns_cbranch_scc1 {T('CG_0')}")
    for h in range(4): a(f"ds_read_b128 v[{16+4*h}:{19+4*h}], v1 offset:{512*h}")
    a(f"ds_read_b128 v[32:35], v1 offset:{PM-PT}\nds_read_b128 v[36:39], v10")
    for h in range(5):
        a(f"s_waitcnt lgkmcnt({[5,4,3,2,0][h]})")
        z = 228 + 4*h if h < 4 else 36
        a(f"v_mfma_f32_16x16x32_bf16 v[40:43], v[{z}:{z+3}], v[{16+4*h}:{19+4*h}], " + ("0" if h == 0 else "v[40:43]"))
    for i in range(4): a(f"v_and_or_b32 v{40+i}, v{40+i}, -4, s25")
    a(f"buffer_store_dwordx4 v[40:43], v3, {WS}, s39 offen sc1")
    stamp(7)
    a.put(T("CG_0"))
    pzreads()
    a(f"s_cmp_eq_u32 {sS}, 63\ns_cbranch_scc1 {T('CG_1')}\ns_cmp_ge_u32 {sS}, 2\ns_cbranch_scc1 {T('CG_Z')}\ns_cmp_eq_u32 {sS}, 1\ns_cbranch_scc1 {T('CG_Y')}\ns_mov_b32 s4, 2")
    flagwait("v15", "v62", "s4")
    vxloads(1)
    a.put(T("CG_Y"))
    a(f"s_add_u32 s4, {sS}, 3")
    flagwait("v15", "v62", "s4")
    a.put(T("CG_Z"))
    zx(1, VXI)
    a.put(T("CG_1"))
    a("s_waitcnt lgkmcnt(0)")
    pz()
    a(f"s_sub_u32 s3, {sS}, 3\ns_max_i32 s3, s3, 0\nv_mov_b32 v63, s3")
    OF = OPT.get("OFIRST", 1)
    def outp_c():
        a(f"s_cmp_lt_u32 {sS}, 2\ns_cbranch_scc1 {T('CG_3')}")
        outp()
        a(f"s_sub_u32 s3, {sS}, 8\ns_cmp_ge_u32 s3, 4\ns_cbranch_scc1 {T('CG_3')}\ns_add_u32 s3, s43, {54*655360}")
        for i in range(4): a(f"v_mov_b32 v{20+i}, 0")
        a(f"buffer_store_dwordx4 v[20:23], v13, {WS}, s3 offen sc1\nbuffer_store_dwordx4 v[20:23], v13, {WS}, s3 offen offset:1024 sc1")
        a.put(T("CG_3"))
    stamp(3)
    if OPT.get("BD"): a(f"s_sleep {OPT['BD']}")
    if OF == 1: outp_c()
    a(f"buffer_store_dword v63, v61, {WS}, {sFL} offen{ST}")
    if not VXI:
        a(f"s_cmp_ge_u32 {sS}, 62\ns_cbranch_scc1 {T('CG_2')}")
        vxloads(2)
        a.put(T("CG_2"))
    pxloads()
    if OF == 0: outp_c()
    stamp(4)
    a("s_barrier")
    if OPT.get("PROBE"):
        stamp(5)
        for i, n in enumerate((13, 7, 2, 0) if OF == 0 else (18, 11, 5, 0)):
            a(f"s_waitcnt vmcnt({n})"); stamp(6 + i)
    stamp(5)
    dump()
    a(f"s_add_u32 s43, s43, 655360\ns_add_u32 {sS}, {sS}, 1\ns_cmp_lt_u32 {sS}, 64\ns_cbranch_scc1 {T('CG_LOOP')}")
    c["rt"](6)
    pzreads()
    a("s_waitcnt vmcnt(%d) lgkmcnt(0)" % (2 if OF == 0 else 0))
    pz()
    outp()
    a("s_mov_b32 s4, 64")
    flagwait("v60", "v62", "s4")
    pxloads()
    a(f"s_add_u32 s43, s43, 655360\ns_add_u32 {sS}, {sS}, 1")
    pzreads()
    a("s_waitcnt vmcnt(0) lgkmcnt(0)")
    pz()
    outp()
    finish()

    a.put(T("CAUX"))
    a(f"s_setprio 2\ns_sub_u32 s14, {sW}, 4")
    a("s_mul_i32 s3, s14, 3840\nv_add_u32 v4, s3, v2\ns_add_u32 s3, s3, 1024\nv_lshlrev_b32 v5, 2, v0\nv_add_u32 v5, s3, v5")
    a("v_and_b32 v6, 3, v0\nv_bfe_u32 v7, v0, 2, 3\nv_lshl_add_u32 v12, v6, 3, v7\nv_lshlrev_b32 v12, 4, v12\nv_lshrrev_b32 v8, 5, v0\nv_lshl_add_u32 v12, v8, 3, v12\ns_lshl_b32 s3, s14, 9\ns_add_u32 s3, s3, %d\nv_add_u32 v12, s3, v12" % PT)
    a("v_lshlrev_b32 v13, 4, v7\nv_lshl_add_u32 v13, v8, 3, v13\nv_lshl_add_u32 v13, v6, 1, v13\ns_lshl_b32 s3, s14, 7\ns_add_u32 s3, s3, %d\nv_add_u32 v13, s3, v13" % PM)
    a(f"s_lshl_b32 s3, s15, 7\ns_add_u32 s3, s3, 2048\ns_cmp_eq_u32 s14, 0\ns_cselect_b32 s3, s3, {OOB}")
    onelane("v10", "s3")
    a("s_mov_b32 s24, 0x3dd53b95\nv_mov_b32 v20, s24\nv_mov_b32 v21, s24")
    a(f"s_mov_b32 s40, 0\ns_cmp_lg_u32 s14, 0\ns_cbranch_scc1 {T('CA_C')}")
    a("v_and_b32 v24, 31, v0\nv_lshlrev_b32 v24, 4, v24\nv_lshrrev_b32 v25, 5, v0\nv_lshl_add_u32 v24, v25, 11, v24\ns_lshl_b32 s3, s15, 15\nv_add_u32 v24, s3, v24")
    a(f"s_mov_b32 s6, -1\ns_mov_b32 s7, -1\ns_mov_b32 s4, {L.H3 + 2*L.H3S}\nbuffer_load_dwordx2 v[26:27], v24, {WS}, s4 offen sc1\ns_waitcnt vmcnt(0)")
    for it in range(OPT.get("NCAL", 3)):
        for cp in range(2):
            a(f"s_mov_b32 s4, {L.H3 + 3*L.H3S + 8192*cp + 4096*(it % 2) + 16384*(it // 2)}\ns_memtime s[60:61]\ns_waitcnt lgkmcnt(0)\nbuffer_load_dwordx2 v[26:27], v24, {WS}, s4 offen sc1\ns_waitcnt vmcnt(0)")
            a(f"s_memtime s[62:63]\ns_waitcnt lgkmcnt(0)\ns_sub_u32 s3, s62, s60\ns_min_u32 s{6+cp}, s{6+cp}, s3")
    a("s_cmp_lt_u32 s7, s6\ns_cselect_b32 s40, 1, 0")
    if FLIP: a("s_xor_b32 s40, s40, 1")
    if INSTR: a("s_mov_b32 s52, s6\ns_mov_b32 s53, s7\ns_mov_b32 s54, s40")
    a.put(T("CA_C"))
    a(f"s_mov_b32 {sS}, 0\ns_barrier")
    stamp0()
    a.put(T("CA_LOOP"))
    slot("s34", L.H2S, L.H2); tagreg("s25")
    a(f"s_lshl_b32 s3, {sS}, 1\ns_add_u32 s3, s3, s40\ns_add_u32 s3, s3, 2\nv_mov_b32 v11, s3")
    if OPT.get("SL2"): a(f"s_sleep {OPT['SL2']}")
    stamp(5)
    a.put(T("CA_P2"))
    a(f"s_sub_u32 {sBUD}, {sBUD}, 1\ns_cbranch_scc1 END")
    for p in range(3): a(f"buffer_load_dwordx4 v[{24+4*p}:{27+4*p}], v4, {WS}, s34 offen offset:{1280*p} sc1")
    for p in range(3): a(f"buffer_load_dword v{36+p}, v5, {WS}, s34 offen offset:{1280*p} sc1")
    a("s_waitcnt vmcnt(5)\n" + A3("v40", "s25", "v24", "v25") + "\n" + A3("v40", "v40", "v26", "v27"))
    a("s_waitcnt vmcnt(4)\nv_pk_add_f32 v[72:73], v[24:25], v[28:29]\nv_pk_add_f32 v[74:75], v[26:27], v[30:31]\n" + A3("v40", "v40", "v28", "v29") + "\n" + A3("v40", "v40", "v30", "v31"))
    a("s_waitcnt vmcnt(3)\nv_pk_add_f32 v[72:73], v[72:73], v[32:33]\nv_pk_add_f32 v[74:75], v[74:75], v[34:35]\n" + A3("v40", "v40", "v32", "v33") + "\n" + A3("v40", "v40", "v34", "v35"))
    a("v_max3_f32 v77, v72, v73, v74\ns_waitcnt vmcnt(0)\n" + A3("v40", "v40", "v36", "v37") + "\nv_add_f32 v76, v36, v37\nv_and_b32 v40, v40, v38\nv_add_f32 v76, v76, v38\nv_cmp_eq_u32 vcc, 0, v40\nv_max3_f32 v77, v77, v75, v76")
    a(f"s_cbranch_vccnz {T('CA_P2')}")
    stamp(0)
    a("v_max_f32_dpp v77, v77, v77 quad_perm:[1,0,3,2] row_mask:0xf bank_mask:0xf\nv_max_f32_dpp v77, v77, v77 quad_perm:[2,3,0,1] row_mask:0xf bank_mask:0xf")
    a("v_mov_b32 v78, v77\nv_permlane32_swap_b32 v77, v78\nv_max_f32 v77, v77, v78")
    a("v_mul_f32 v78, s24, v77")
    a("v_pk_fma_f32 v[72:73], v[72:73], v[20:21], v[78:79] op_sel_hi:[1,1,0] neg_lo:[0,0,1] neg_hi:[0,0,1]\nv_pk_fma_f32 v[74:75], v[74:75], v[20:21], v[78:79] op_sel_hi:[1,1,0] neg_lo:[0,0,1] neg_hi:[0,0,1]\nv_fma_f32 v76, v76, v20, -v78")
    for i in range(5): a(f"v_exp_f32 v{72+i}, v{72+i}")
    a("v_pk_add_f32 v[78:79], v[72:73], v[74:75]\nv_add_f32 v77, v78, v76\nv_add_f32 v77, v77, v79")
    a("v_add_f32_dpp v77, v77, v77 quad_perm:[1,0,3,2] row_mask:0xf bank_mask:0xf\nv_add_f32_dpp v77, v77, v77 quad_perm:[2,3,0,1] row_mask:0xf bank_mask:0xf")
    a("v_mov_b32 v78, v77\nv_permlane32_swap_b32 v77, v78\nv_add_f32 v77, v77, v78")
    a("v_rcp_f32 v78, v77")
    a("v_pk_mul_f32 v[72:73], v[72:73], v[78:79] op_sel_hi:[1,0]\nv_pk_mul_f32 v[74:75], v[74:75], v[78:79] op_sel_hi:[1,0]\nv_mul_f32 v76, v76, v78")
    a("v_cvt_pk_bf16_f32 v72, v72, v73\nv_cvt_pk_bf16_f32 v73, v74, v75\nv_cvt_pk_bf16_f32 v76, v76, v76")
    a(f"ds_write_b64 v12, v[72:73]\nds_write_b16 v13, v76\ns_waitcnt lgkmcnt(0)")
    stamp(1)
    a("s_barrier")
    stamp(2)
    a(f"buffer_store_dword v11, v10, {WS}, {sFL} offen{ST}")
    a("s_barrier")
    dump()
    a(f"s_add_u32 {sS}, {sS}, 1\ns_cmp_lt_u32 {sS}, 63\ns_cbranch_scc1 {T('CA_LOOP')}")
    a("s_barrier\ns_barrier")
    finish()
```

```python
import sys
from asmlib import *

KNAME = "recurrent_scan__memory_aug_recurrent_mem_tr__swiglu_ffn__prompt_kernel"
OOB = 0x7fffff00

from lay import Lay

def gen(NS=4, FORCE_SLOW=0, BUDGET=300000, PARTS="all", INSTR=0, **OPT):
    L = Lay(NS)
    a = Asm()
    LOGNS = NS.bit_length() - 1
    WS = "s[8:11]"
    sW, sQ, sR, sS, sBUD, sMODE, sG = "s26", "s27", "s28", "s29", "s30", "s31", "s32"
    pX, pM0, pWQ, pWK, pWV, pWO, pWG, pWU, pWD, pOUT, pDBG, pWS = 64, 66, 68, 70, 72, 74, 76, 78, 80, 82, 84, 86
    def srd(d, p, n):
        a(f"s_mov_b32 s{d}, s{p}\ns_mov_b32 s{d+1}, s{p+1}\ns_mov_b32 s{d+2}, {n}\ns_mov_b32 s{d+3}, 0x00020000")
    def budget(lp):
        a(f"s_sub_u32 {sBUD}, {sBUD}, 1\ns_cbranch_scc0 {lp}\ns_branch END")
    def slot(dst, size, base, add=0, grp=True):
        if add: a(f"s_add_u32 {dst}, {sS}, {add}\ns_and_b32 {dst}, {dst}, {NS-1}")
        else: a(f"s_and_b32 {dst}, {sS}, {NS-1}")
        a(f"s_mul_i32 {dst}, {dst}, {size}")
        if base: a(f"s_add_u32 {dst}, {dst}, {base}")
        if grp: a(f"s_add_u32 {dst}, {dst}, {sG}")
    RT = OPT.get("RT", 0)
    def rt(i):
        if RT: a(f"s_memrealtime s[92:93]\ns_waitcnt lgkmcnt(0)\ns_mov_b32 s{94+i}, s92")
    def rtdump():
        if RT:
            rt(7)
            a(f"s_lshl_b32 s3, s2, 3\ns_add_u32 s3, s3, {sW}\ns_lshl_b32 s3, s3, 6\ns_add_u32 s3, s3, {L.DBG + (6 << 20)}\ns_lshl_b32 s4, {sQ}, 5\ns_add_u32 s4, s4, {sR}")
            for i in range(8): a(f"v_mov_b32 v{8+i}, s{94+i}")
            a("v_mov_b32 v16, s4\nv_mov_b32 v4, 0\ns_mov_b64 exec, 1")
            a(f"buffer_store_dwordx4 v[8:11], v4, {WS}, s3 offen\nbuffer_store_dwordx4 v[12:15], v4, {WS}, s3 offen offset:16\nbuffer_store_dword v16, v4, {WS}, s3 offen offset:32\ns_mov_b64 exec, -1")
    def dma(vaddr, srdn, soff, m0, extra=""):
        a(f"s_mov_b32 m0, {m0}\nbuffer_load_dwordx4 {vaddr}, {srdn}, {soff} offen {extra} lds")
    WNT = OPT.get("WNT", "nt")
    def xs_dma(slds, smem):
        for i in range(10):
            if i % 4 == 0:
                if i: a(f"s_add_u32 {slds}, {slds}, 4096\ns_add_u32 {smem}, {smem}, 4096")
                a(f"s_mov_b32 m0, {slds}")
            a(f"buffer_load_dwordx4 v2, {WS}, {smem} offen offset:{(i%4)*1024} sc1 lds")

    def layernorm(R, F, O, perm):
        T = F + 80
        for i in range(40):
            a(f"v_lshlrev_b32 v{F+2*i}, 16, v{R+i}\nv_and_b32 v{F+2*i+1}, 0xffff0000, v{R+i}")
        def red(v):
            a(f"v_add_f32_dpp v{v}, v{v}, v{v} row_ror:8 row_mask:0xf bank_mask:0xf")
            a(f"v_mov_b32 v{v+1}, v{v}\nv_permlane16_swap_b32 v{v}, v{v+1}\nv_add_f32 v{v}, v{v}, v{v+1}")
            a(f"v_mov_b32 v{v+1}, v{v}\nv_permlane32_swap_b32 v{v}, v{v+1}\nv_add_f32 v{v}, v{v}, v{v+1}")
        a(f"v_pk_add_f32 v[{T}:{T+1}], v[{F}:{F+1}], v[{F+2}:{F+3}]\nv_pk_add_f32 v[{T+2}:{T+3}], v[{F+4}:{F+5}], v[{F+6}:{F+7}]")
        for i in range(4, 40): t = T + 2*(i % 2); a(f"v_pk_add_f32 v[{t}:{t+1}], v[{t}:{t+1}], v[{F+2*i}:{F+2*i+1}]")
        a(f"v_pk_add_f32 v[{T}:{T+1}], v[{T}:{T+1}], v[{T+2}:{T+3}]\nv_add_f32 v{T}, v{T}, v{T+1}")
        red(T)
        a(f"v_mul_f32 v{T}, 0x3acccccd, v{T}")
        for i in range(40):
            t = T + 2 + 2*(i % 2); c = T + 6 + 2*(i % 2)
            a(f"v_pk_add_f32 v[{t}:{t+1}], v[{F+2*i}:{F+2*i+1}], v[{T}:{T+1}] op_sel_hi:[1,0] neg_lo:[0,1] neg_hi:[0,1]")
            if i < 2: a(f"v_pk_mul_f32 v[{c}:{c+1}], v[{t}:{t+1}], v[{t}:{t+1}]")
            else: a(f"v_pk_fma_f32 v[{c}:{c+1}], v[{t}:{t+1}], v[{t}:{t+1}], v[{c}:{c+1}]")
        a(f"v_pk_add_f32 v[{T+6}:{T+7}], v[{T+6}:{T+7}], v[{T+8}:{T+9}]\nv_add_f32 v{T+2}, v{T+6}, v{T+7}")
        red(T + 2)
        a(f"v_mul_f32 v{T+2}, 0x3acccccd, v{T+2}")
        a(f"v_cvt_pk_bf16_f32 v{T+2}, v{T+2}, v{T+2}\nv_lshlrev_b32 v{T+2}, 16, v{T+2}\nv_add_f32 v{T+2}, 0x3727c5ac, v{T+2}")
        a(f"v_cvt_pk_bf16_f32 v{T+2}, v{T+2}, v{T+2}\nv_lshlrev_b32 v{T+2}, 16, v{T+2}\nv_sqrt_f32 v{T+2}, v{T+2}")
        a(f"v_cvt_pk_bf16_f32 v{T+2}, v{T+2}, v{T+2}\nv_lshlrev_b32 v{T+2}, 16, v{T+2}\nv_rcp_f32 v{T+2}, v{T+2}")
        a(f"v_cvt_pk_bf16_f32 v{T}, v{T}, v{T}\nv_lshlrev_b32 v{T}, 16, v{T}")
        pos = [0, 2, 4, 6, 1, 3, 5, 7] if perm else list(range(8))
        for i in range(40):
            t = T + 4 + 2*(i % 2)
            o = O + 8*(i // 8) + pos[i % 8]
            a(f"v_pk_add_f32 v[{t}:{t+1}], v[{F+2*i}:{F+2*i+1}], v[{T}:{T+1}] op_sel_hi:[1,0] neg_lo:[0,1] neg_hi:[0,1]")
            a(f"v_cvt_pk_bf16_f32 v{t}, v{t}, v{t+1}\nv_and_b32 v{t+1}, 0xffff0000, v{t}\nv_lshlrev_b32 v{t}, 16, v{t}")
            a(f"v_pk_mul_f32 v[{t}:{t+1}], v[{t}:{t+1}], v[{T+2}:{T+3}] op_sel_hi:[1,0]")
            a(f"v_cvt_pk_bf16_f32 v{o}, v{t}, v{t+1}")
    def ln_loads(R, vaddr, srdn):
        for m in range(5):
            a(f"buffer_load_dwordx4 v[{R+8*m}:{R+8*m+3}], {vaddr}, {srdn}, 0 offen offset:{256*m}")
            a(f"buffer_load_dwordx4 v[{R+8*m+4}:{R+8*m+7}], {vaddr}, {srdn}, 0 offen offset:{256*m+16}")

    a("s_cmp_ge_u32 s2, 256\ns_cbranch_scc1 END")
    a("s_load_dwordx8 s[64:71], s[0:1], 0\ns_load_dwordx4 s[72:75], s[0:1], 32\ns_load_dwordx8 s[76:83], s[0:1], 64\ns_load_dwordx4 s[84:87], s[0:1], 96")
    a("v_lshrrev_b32 v1, 6, v0\nv_and_b32 v0, 63, v0")
    a(f"v_readfirstlane_b32 {sW}, v1")
    a(f"s_getreg_b32 {sQ}, hwreg(HW_REG_XCC_ID, 0, 4)\ns_and_b32 {sQ}, {sQ}, 7")
    a(f"s_mov_b32 {sBUD}, {BUDGET}\ns_mov_b32 {sMODE}, 0")
    a("v_lshlrev_b32 v2, 4, v0\nv_lshlrev_b32 v3, 3, v0")
    a("s_waitcnt lgkmcnt(0)")
    srd(8, pWS, 0x10000000)
    srd(20, pX, 2048*1280)
    if INSTR: a("s_memtime s[90:91]")
    rt(0)
    a(f"s_cmp_lg_u32 {sW}, 7\ns_cbranch_scc1 E1\ns_setprio 3")
    a("v_and_b32 v4, 7, v0\nv_mul_u32_u24 v4, 1280, v4\nv_lshrrev_b32 v5, 3, v0\nv_lshlrev_b32 v5, 5, v5\nv_add_u32 v4, v4, v5\ns_mul_i32 s3, s2, 10240\nv_add_u32 v4, s3, v4")
    ln_loads(16, "v4", "s[20:23]")
    a.put("E1")
    a(f"s_cmp_lg_u32 {sW}, 0\ns_cbranch_scc1 E2")
    a(f"s_lshl_b32 s3, {sQ}, 5\nv_mov_b32 v4, s3\nv_mov_b32 v5, 1\ns_mov_b64 exec, 1")
    a(f"global_atomic_add v6, v4, v5, s[{pDBG}:{pDBG+1}] sc0 sc1\ns_waitcnt vmcnt(0)\nv_mov_b32 v5, 0\nds_write_b32 v5, v6\ns_waitcnt lgkmcnt(0)\ns_mov_b64 exec, -1")
    a.put("E2")
    gper = L.GPOIS // 32; hper = NS * L.H3S // 256
    assert gper % 1024 == 0 and hper % 1024 == 0 and L.H2 % 1024 == 0
    for w, per, base in ((4, gper, None), (5, hper, L.H3)):
        nx = a.lab("INX")
        a(f"s_cmp_lg_u32 {sW}, {w}\ns_cbranch_scc1 {nx}")
        if base is None: a(f"s_lshr_b32 s3, s2, 5\ns_mul_i32 s3, s3, {L.GS}\ns_and_b32 s6, s2, 31\ns_mul_i32 s6, s6, {per}\ns_add_u32 s3, s3, s6")
        else: a(f"s_mul_i32 s3, s2, {per}\ns_add_u32 s3, s3, {base}\ns_mov_b32 s6, {L.H2}")
        a("s_mov_b32 s4, 0")
        lp = a.lab("IN"); a.put(lp)
        a(f"s_add_u32 s7, s4, s6\ns_cmp_lt_u32 s7, {L.H2}\ns_cselect_b32 s7, -1, 0\ns_add_u32 s5, s4, s3")
        a("v_mov_b32 v4, s7\nv_mov_b32 v5, s7\nv_mov_b32 v6, s7\nv_mov_b32 v7, s7")
        a(f"buffer_store_dwordx4 v[4:7], v2, {WS}, s5 offen sc1")
        a(f"s_add_u32 s4, s4, 1024\ns_cmp_lt_u32 s4, {per}\ns_cbranch_scc1 {lp}")
        a.put(nx)
    a(f"s_cmp_lg_u32 {sW}, 6\ns_cbranch_scc1 E3")
    a(f"v_and_b32 v6, 15, v0\nv_lshlrev_b32 v6, 3, v6\nv_mov_b32 v4, 0\nv_mov_b32 v5, 0\ns_lshl_b32 s3, s2, 7\ns_add_u32 s3, s3, {L.FL}\nbuffer_store_dwordx2 v[4:5], v6, {WS}, s3 offen sc1")
    a.put("E3")
    a("s_barrier\nv_mov_b32 v5, 0\nds_read_b32 v4, v5\ns_waitcnt lgkmcnt(0)")
    a(f"v_readfirstlane_b32 {sR}, v4\ns_barrier")
    if FORCE_SLOW: a(f"s_mov_b32 {sR}, 99")
    rt(1)
    a.put("ROLE")
    a(f"s_mul_i32 {sG}, {sQ}, {L.GS}")
    a(f"s_cmp_ge_u32 {sR}, 32\ns_cbranch_scc1 COM1\ns_cmp_ge_u32 {sR}, 28\ns_cbranch_scc1 PRO_F\ns_cmp_ge_u32 {sW}, 4\ns_cbranch_scc1 COM1\ns_cmp_ge_u32 {sR}, 18\ns_cbranch_scc1 PRO_C")
    a(f"s_cmp_lt_u32 {sR}, 12\ns_cbranch_scc0 PRO_PV")
    srd(12, pWQ, 640*12288); srd(16, pWK, 640*12288)
    a(f"s_mul_i32 s3, {sQ}, 1536\ns_lshl_b32 s4, {sR}, 7\ns_add_u32 s3, s3, s4\ns_mov_b32 s4, s3\ns_branch PRO_P2")
    a.put("PRO_PV")
    srd(12, pWV, 640*12288); srd(16, pWV, 640*12288)
    a(f"s_mul_i32 s3, {sQ}, 1536\ns_sub_u32 s4, {sR}, 12\ns_lshl_b32 s4, s4, 8\ns_add_u32 s3, s3, s4\ns_add_u32 s4, s3, 128")
    a.put("PRO_P2")
    a(f"v_lshrrev_b32 v4, 3, v0\nv_mul_u32_u24 v4, 12288, v4\ns_and_b32 s5, {sW}, 1\ns_lshl_b32 s5, s5, 1\nv_lshrrev_b32 v5, 5, v0\nv_add_u32 v5, s5, v5")
    a("v_bfe_u32 v6, v0, 1, 2\nv_xor_b32 v5, v5, v6\nv_lshlrev_b32 v5, 5, v5\nv_and_b32 v6, 1, v0\nv_lshlrev_b32 v6, 4, v6\nv_add3_u32 v4, v4, v5, v6")
    a(f"s_mul_i32 s5, {sW}, 98304\ns_add_u32 s3, s3, s5\ns_add_u32 s4, s4, s5\ns_lshl_b32 s6, {sW}, 10")
    for i in range(20):
        dma("v4", "s[12:15]", "s3", "s6", WNT)
        a("s_add_u32 s7, s6, 40960")
        dma("v4", "s[16:19]", "s4", "s7", WNT)
        if i < 19: a(f"s_add_u32 s3, s3, {4*98304}\ns_add_u32 s4, s4, {4*98304}\ns_add_u32 s6, s6, {4096 + (40960 if i == 9 else 0)}")
    a("s_branch COM1")
    a.put("PRO_C")
    srd(12, pWO, 6144*1280)
    a(f"v_lshrrev_b32 v4, 3, v0\nv_mul_u32_u24 v4, 1280, v4\nv_lshrrev_b32 v5, 4, v0\nv_bfe_u32 v6, v0, 1, 2\nv_xor_b32 v5, v5, v6\nv_lshlrev_b32 v5, 5, v5\nv_and_b32 v6, 1, v0\nv_lshlrev_b32 v6, 4, v6\nv_add3_u32 v4, v4, v5, v6")
    a(f"s_mul_i32 s3, {sQ}, {768*1280}\ns_sub_u32 s4, {sR}, 18\ns_lshl_b32 s4, s4, 7\ns_add_u32 s3, s3, s4\ns_mul_i32 s5, {sW}, 10240\ns_add_u32 s3, s3, s5\ns_lshl_b32 s6, {sW}, 10")
    for i in range(24):
        dma("v4", "s[12:15]", "s3", "s6", WNT)
        if i < 23: a("s_add_u32 s3, s3, 40960\ns_add_u32 s6, s6, 4096")
    a("s_branch COM1")
    a.put("PRO_F")
    a(f"s_lshl_b32 s33, {sQ}, 2\ns_add_u32 s33, s33, {sR}\ns_sub_u32 s33, s33, 28")
    a(f"v_and_b32 v4, 7, v0\ns_lshl_b32 s3, {sW}, 3\nv_add_u32 v4, s3, v4\nv_mul_u32_u24 v4, 40960, v4\nv_lshrrev_b32 v5, 3, v0\nv_lshlrev_b32 v5, 5, v5\nv_add_u32 v4, v4, v5\ns_mul_i32 s3, s33, 1280\nv_add_u32 v4, s3, v4")
    ln_loads(200, "v4", "s[20:23]")
    a.put("COM1")
    a(f"s_cmp_lg_u32 {sW}, 7\ns_cbranch_scc1 C2\ns_cmp_lg_u32 {sMODE}, 0\ns_cbranch_scc1 C2")
    a(f"s_cmp_lt_u32 {sR}, 28\ns_cbranch_scc1 C0\ns_cmp_ge_u32 {sR}, 32\ns_cbranch_scc1 C0\ns_waitcnt vmcnt(10)\ns_branch C1")
    a.put("C0")
    a("s_waitcnt vmcnt(0)")
    a.put("C1")
    layernorm(16, 64, 16, True)
    a("v_lshrrev_b32 v4, 4, v0\nv_lshlrev_b32 v4, 10, v4\nv_bfe_u32 v5, v0, 3, 1\nv_lshlrev_b32 v5, 9, v5\nv_and_b32 v6, 7, v0\nv_lshlrev_b32 v6, 4, v6\nv_add3_u32 v4, v4, v5, v6")
    a(f"s_lshr_b32 s3, s2, 1\ns_mul_i32 s3, s3, 20480\ns_and_b32 s4, s2, 1\ns_lshl_b32 s4, s4, 7\ns_add_u32 s3, s3, s4\ns_add_u32 s3, s3, {L.XN}")
    for m in range(5):
        a(f"buffer_store_dwordx4 v[{16+8*m}:{19+8*m}], v4, {WS}, s3 offen sc1\nbuffer_store_dwordx4 v[{20+8*m}:{23+8*m}], v4, {WS}, s3 offen offset:256 sc1")
        if m < 4: a("s_add_u32 s3, s3, 4096")
    a("s_setprio 0")
    a.put("C2")
    a(f"s_cmp_lt_u32 {sW}, 4\ns_cbranch_scc1 C2B\ns_waitcnt vmcnt(0)")
    a.put("C2B")
    rt(2)
    a("s_barrier")
    a(f"s_cmp_lg_u32 {sW}, 4\ns_cbranch_scc1 C3\ns_cmp_lg_u32 {sMODE}, 0\ns_cbranch_scc1 C3")
    a(f"s_cmp_lt_u32 {sR}, 32\ns_cselect_b32 s3, 1, 0x10001\nv_mov_b32 v4, 4\nv_mov_b32 v5, s3\ns_mov_b64 exec, 1\nglobal_atomic_add v6, v4, v5, s[{pDBG}:{pDBG+1}] sc0 sc1\ns_waitcnt vmcnt(0)")
    a("v_readfirstlane_b32 s4, v6\ns_add_u32 s3, s3, s4\ns_and_b32 s4, s3, 0xffff\ns_cmp_lg_u32 s4, 256\ns_cbranch_scc1 C2C")
    a(f"s_cmp_eq_u32 s3, 256\ns_cselect_b32 s3, 1, 2\nv_mov_b32 v5, s3\nglobal_store_dword v4, v5, s[{pDBG}:{pDBG+1}] offset:128 sc1")
    a.put("C2C")
    a("s_mov_b64 exec, -1")
    a.put("C3")
    a(f"s_cmp_lt_u32 {sR}, 28\ns_cbranch_scc1 C4\ns_cmp_ge_u32 {sR}, 32\ns_cbranch_scc1 C4\ns_waitcnt vmcnt(0)")
    layernorm(200, 64, 16, False)
    a(f"v_lshrrev_b32 v4, 3, v0\nv_lshlrev_b32 v4, 10, v4\nv_and_b32 v5, 7, v0\nv_lshl_add_u32 v4, v5, 4, v4\ns_lshr_b32 s3, {sW}, 2\ns_mul_i32 s3, s3, 40960\ns_and_b32 s4, {sW}, 3\ns_lshl_b32 s4, s4, 7\ns_add_u32 s3, s3, s4\nv_add_u32 v4, s3, v4")
    for m in range(5):
        a(f"ds_write_b128 v4, v[{16+8*m}:{19+8*m}] offset:{8192*m}\nds_write_b128 v4, v[{20+8*m}:{23+8*m}] offset:{8192*m+512}")
    a("s_waitcnt lgkmcnt(0)")
    a.put("C4")
    GOLD = f"global_load_dword v62, v63, s[{pDBG}:{pDBG+1}] offset:128 sc1"
    a("v_mov_b32 v63, 4")
    a(f"s_cmp_lg_u32 {sW}, 4\ns_cbranch_scc1 G2\ns_cmp_lg_u32 {sMODE}, 0\ns_cbranch_scc1 G2")
    a.put("G1")
    a(GOLD + "\ns_waitcnt vmcnt(0)\nv_cmp_ne_u32 vcc, 0, v62\ns_cbranch_vccnz G2\ns_sleep %d" % OPT.get("GSL", 2))
    budget("G1")
    a.put("G2")
    a(f"s_cmp_ge_u32 {sR}, 28\ns_cbranch_scc1 WR_X\ns_cmp_ge_u32 {sR}, 18\ns_cbranch_scc1 WR_C\ns_cmp_ge_u32 {sW}, 4\ns_cbranch_scc1 WR_A")
    a("v_lshrrev_b32 v4, 5, v0\nv_lshlrev_b32 v4, 4, v4\nv_bfe_u32 v5, v0, 4, 1\nv_lshl_add_u32 v4, v5, 2, v4\nv_bfe_u32 v6, v0, 2, 1\nv_add_u32 v4, v4, v6\nv_bfe_u32 v6, v0, 3, 1\nv_lshl_add_u32 v4, v6, 3, v4")
    a("v_lshlrev_b32 v4, 7, v4\nv_lshl_add_u32 v5, v6, 1, v5\nv_and_b32 v6, 3, v0\nv_lshl_add_u32 v4, v6, 3, v4")
    a(f"s_and_b32 s3, {sW}, 1\ns_lshl_b32 s3, s3, 1\ns_add_u32 s4, s3, 1\ns_lshr_b32 s5, {sW}, 1\ns_mul_i32 s5, s5, 40960\ns_mov_b32 s6, s5")
    a(f"s_cmp_lt_u32 {sR}, 12\ns_cselect_b32 s3, {sW}, s3\ns_cselect_b32 s4, {sW}, s4\ns_cselect_b32 s5, 0, s5\ns_cselect_b32 s6, 40960, s6")
    a("v_xor_b32 v6, s3, v5\nv_lshl_add_u32 v6, v6, 5, v4\nv_add_u32 v6, s5, v6\nv_add_u32 v8, 81920, v6")
    a("v_xor_b32 v7, s4, v5\nv_lshl_add_u32 v7, v7, 5, v4\nv_add_u32 v7, s6, v7\nv_add_u32 v9, 81920, v7")
    for hf in range(2):
        a(f"s_waitcnt vmcnt({0 if hf else 20})")
        rt(3 + hf)
        a("s_barrier")
        n = 0
        for kb in range(5*hf, 5*hf + 5):
            for T in range(2):
                for b in range(2):
                    for rd in range(2):
                        d = 64 + 16*kb + 8*T + 4*b + 2*rd
                        a(f"ds_read_b64_tr_b16 v[{d}:{d+1}], v{6+T+2*hf} offset:{(kb % 5)*8192 + b*4096 + rd*256}")
                        n += 1
                        if n % 8 == 0 and n > 8: a("s_waitcnt lgkmcnt(8)")
        a("s_waitcnt lgkmcnt(0)\ns_barrier")
        if hf == 0: a(GOLD)
    a("s_branch MODE")
    a.put("WR_A")
    rt(3)
    a(f"s_barrier\ns_barrier\n{GOLD}\ns_sub_u32 s14, {sW}, 4")
    srd(16, pM0, 10240)
    a("v_and_b32 v5, 7, v0\nv_mul_u32_u24 v5, 1280, v5\nv_lshrrev_b32 v6, 3, v0\nv_lshl_add_u32 v5, v6, 4, v5\ns_lshl_b32 s3, s14, 7\nv_add_u32 v5, s3, v5")
    for i in range(3): a(f"buffer_load_dwordx4 v[{16+4*i}:{19+4*i}], v5, s[16:19], 0 offen offset:{512*i}")
    for i in range(2):
        a(f"s_mul_i32 s3, s14, 10240\ns_add_u32 s3, s3, {40960*i}\ns_add_u32 s4, s3, {L.XN}")
        xs_dma("s3", "s4")
    a("s_barrier\ns_barrier\ns_waitcnt vmcnt(20)\ns_branch MODE")
    a.put("WR_C")
    a(f"s_cmp_ge_u32 {sW}, 4\ns_cbranch_scc1 WR_CA")
    a(f"v_lshrrev_b32 v4, 2, v0\nv_lshlrev_b32 v4, 7, v4\nv_and_b32 v5, 3, v0\nv_lshl_add_u32 v4, v5, 3, v4\ns_mul_i32 s3, {sW}, 24576\nv_add_u32 v4, s3, v4\nv_bfe_u32 v5, v0, 3, 2")
    for ct in range(4): a(f"v_xor_b32 v{6+ct}, {ct}, v5\nv_lshl_add_u32 v{6+ct}, v{6+ct}, 5, v4")
    a("s_waitcnt vmcnt(0)")
    rt(3)
    a("s_barrier\n" + GOLD)
    n = 0
    for kb in range(3):
        for ct in range(4):
            for b in range(2):
                for rd in range(2):
                    d = 64 + 32*kb + 8*ct + 4*b + 2*rd
                    a(f"ds_read_b64_tr_b16 v[{d}:{d+1}], v{6+ct} offset:{kb*8192 + b*4096 + rd*2048}")
                    n += 1
                    if n % 8 == 0 and n > 8: a("s_waitcnt lgkmcnt(8)")
    a("s_waitcnt vmcnt(0) lgkmcnt(0)\ns_barrier\ns_branch MODE")
    a.put("WR_CA")
    rt(3)
    a(f"s_barrier\n{GOLD}\ns_waitcnt vmcnt(0)\ns_barrier\ns_branch MODE")
    a.put("WR_X")
    rt(3)
    a(f"s_barrier\n{GOLD}\ns_waitcnt vmcnt(0)")
    a.put("MODE")
    a(f"v_readfirstlane_b32 s3, v62\ns_cmp_lg_u32 {sMODE}, 0\ns_cbranch_scc1 GO\ns_cmp_eq_u32 s3, 1\ns_cbranch_scc1 GO")
    a(f"s_mov_b32 {sMODE}, 1\ns_lshr_b32 {sQ}, s2, 5\ns_and_b32 {sR}, s2, 31\ns_waitcnt vmcnt(0)\ns_barrier\ns_branch ROLE")
    a.put("GO")
    a(f"s_mov_b32 {sS}, 0")
    if OPT.get("PROL"):
        rt(5); rtdump(); a("s_waitcnt vmcnt(0)\ns_branch END")
    a(f"s_cmp_ge_u32 {sR}, 28\ns_cbranch_scc1 FFN")
    if PARTS == "ffn": a("s_branch END")
    else:
        a(f"s_cmp_lg_u32 {sMODE}, 0\ns_cbranch_scc1 CHAIN_S")
        from chain import chain
        ctx = dict(locals())
        chain(ctx, "F", "")
        a.put("CHAIN_S")
        chain(ctx, "S", " sc1")

    a.put("FFN")
    if OPT.get("NOFFN"): a("s_branch END")
    srd(12, pWG, 640*3072); srd(16, pWU, 640*3072)
    LOG2E = "0x3fb8aa3b"
    RING1 = 81920
    a("v_lshrrev_b32 v4, 2, v0\nv_mul_u32_u24 v4, 3072, v4\nv_and_b32 v5, 3, v0\nv_lshl_add_u32 v4, v5, 4, v4")
    a("v_lshrrev_b32 v5, 5, v0\nv_lshlrev_b32 v5, 9, v5\nv_bfe_u32 v6, v0, 2, 2\nv_lshl_add_u32 v5, v6, 6, v5\nv_bfe_u32 v6, v0, 4, 1\nv_lshl_add_u32 v5, v6, 5, v5\nv_and_b32 v6, 3, v0\nv_lshl_add_u32 v5, v6, 3, v5")
    a(f"s_mul_i32 s34, {sW}, 10240\ns_add_u32 s34, s34, {RING1}")
    a(f"s_lshl_b32 s35, {sW}, 6")
    a("s_mov_b32 s36, 0\ns_mov_b32 s37, 0\ns_mov_b32 s38, 0")
    def ffn1_issue():
        a("s_add_u32 s3, s34, s37")
        dma("v4", "s[12:15]", "s35", "s3")
        a("s_add_u32 s3, s3, 1024")
        dma("v4", "s[16:19]", "s35", "s3")
        a("s_add_u32 s37, s37, 2048\ns_cmp_eq_u32 s37, 10240\ns_cselect_b32 s37, 0, s37")
        a(f"s_add_u32 s35, s35, 49152\ns_add_u32 s36, s36, 1\ns_cmp_eq_u32 s36, 40\ns_cselect_b32 s3, {40*49152-512}, 0\ns_cselect_b32 s36, 0, s36\ns_sub_u32 s35, s35, s3")
    for i in range(4): ffn1_issue()
    a("s_mov_b32 s39, 0")
    a.put("F1_PASS")
    for i in range(64, 128): a(f"v_mov_b32 v{i}, 0")
    a("v_mov_b32 v6, v2\ns_mov_b32 s40, 0")
    a.put("F1_K")
    a("s_add_u32 s3, s34, s39\nv_add_u32 v7, s3, v5\ns_waitcnt vmcnt(6)")
    a("ds_read_b64_tr_b16 v[16:17], v7\nds_read_b64_tr_b16 v[18:19], v7 offset:256\nds_read_b128 v[24:27], v6\nds_read_b128 v[28:31], v6 offset:40960")
    a("ds_read_b64_tr_b16 v[20:21], v7 offset:1024\nds_read_b64_tr_b16 v[22:23], v7 offset:1280")
    ffn1_issue()
    a("s_add_u32 s39, s39, 2048\ns_cmp_eq_u32 s39, 10240\ns_cselect_b32 s39, 0, s39\nv_add_u32 v6, 1024, v6")
    a("s_waitcnt lgkmcnt(3)\nv_mfma_f32_32x32x16_bf16 v[64:79], v[16:19], v[24:27], v[64:79]")
    a("s_waitcnt lgkmcnt(2)\nv_mfma_f32_32x32x16_bf16 v[80:95], v[16:19], v[28:31], v[80:95]")
    a("s_waitcnt lgkmcnt(0)\nv_mfma_f32_32x32x16_bf16 v[96:111], v[20:23], v[24:27], v[96:111]\nv_mfma_f32_32x32x16_bf16 v[112:127], v[20:23], v[28:31], v[112:127]")
    a("s_add_u32 s40, s40, 1\ns_cmp_lt_u32 s40, 40\ns_cbranch_scc1 F1_K")
    a(f"s_mov_b32 s3, {LOG2E}")
    def silu_pair(x, t):
        a(f"v_cvt_pk_bf16_f32 v{t}, v{x}, v{x+1}\nv_lshlrev_b32 v{x}, 16, v{t}\nv_and_b32 v{x+1}, 0xffff0000, v{t}")
        a(f"v_mul_f32 v{t}, s3, v{x}\nv_mul_f32 v{t+1}, s3, v{x+1}\nv_exp_f32 v{t}, -v{t}\nv_exp_f32 v{t+1}, -v{t+1}")
        a(f"v_add_f32 v{t}, 1.0, v{t}\nv_add_f32 v{t+1}, 1.0, v{t+1}\nv_rcp_f32 v{t}, v{t}\nv_rcp_f32 v{t+1}, v{t+1}")
        a(f"v_pk_mul_f32 v[{x}:{x+1}], v[{x}:{x+1}], v[{t}:{t+1}]")
    for i in range(16):
        g = 64 + 2*i; u = 96 + 2*i; t = 16 + 2*(i % 4)
        silu_pair(g, t)
        a(f"v_cvt_pk_bf16_f32 v{t}, v{g}, v{g+1}\nv_lshlrev_b32 v{g}, 16, v{t}\nv_and_b32 v{g+1}, 0xffff0000, v{t}")
        a(f"v_cvt_pk_bf16_f32 v{t}, v{u}, v{u+1}\nv_lshlrev_b32 v{u}, 16, v{t}\nv_and_b32 v{u+1}, 0xffff0000, v{t}")
        a(f"v_pk_mul_f32 v[{g}:{g+1}], v[{g}:{g+1}], v[{u}:{u+1}]")
    for p in range(6):
        nx = a.lab("F1S")
        if p < 5: a(f"s_cmp_lg_u32 s38, {p}\ns_cbranch_scc1 {nx}")
        for i in range(16): a(f"v_cvt_pk_bf16_f32 v{160+16*p+i}, v{64+2*i}, v{65+2*i}")
        if p < 5: a("s_add_u32 s38, s38, 1\ns_branch F1_PASS"); a.put(nx)
    a("s_waitcnt vmcnt(0)\ns_barrier")
    srd(12, pWD, 1536*1280)
    for i in range(5):
        a(f"v_add_u32 v7, {64*i}, v0\nv_mul_u32_u24 v13, 6554, v7\nv_lshrrev_b32 v13, 16, v13\nv_mul_u32_u24 v14, 10, v13\nv_sub_u32 v7, v7, v14\nv_mul_u32_u24 v13, 1280, v13\nv_lshl_add_u32 v{8+i}, v7, 4, v13")
    a("v_lshrrev_b32 v5, 5, v0\nv_lshlrev_b32 v5, 4, v5\nv_bfe_u32 v6, v0, 2, 3\nv_add_u32 v5, v5, v6\nv_mul_u32_u24 v5, 160, v5\nv_and_b32 v6, 3, v0\nv_lshl_add_u32 v5, v6, 3, v5")
    a(f"v_bfe_u32 v13, v0, 4, 1\nv_lshlrev_b32 v13, 10, v13\nv_lshrrev_b32 v14, 5, v0\nv_lshl_add_u32 v13, v14, 8, v13\nv_and_b32 v14, 15, v0\nv_lshl_add_u32 v13, v14, 4, v13\ns_lshl_b32 s3, {sW}, 12\nv_add_u32 v13, s3, v13")
    a(f"s_lshl_b32 s34, {sW}, 14\ns_add_u32 s34, s34, 32768\ns_mul_i32 s35, {sW}, 160\ns_mov_b32 s37, 0\ns_mov_b32 s39, 0\ns_mov_b32 s40, 0")
    def ffn2_issue():
        a("s_add_u32 s3, s34, s37")
        for i in range(5):
            dma(f"v{8+i}", "s[12:15]", "s35", "s3")
            if i < 4: a("s_add_u32 s3, s3, 1024")
        a("s_add_u32 s37, s37, 5120\ns_cmp_eq_u32 s37, 15360\ns_cselect_b32 s37, 0, s37\ns_add_u32 s35, s35, 40960")
    for i in range(2): ffn2_issue()
    for i in range(64, 144): a(f"v_mov_b32 v{i}, 0")
    a.put("F2_K")
    a("s_and_b32 s3, s40, 7\ns_cmp_lg_u32 s3, 0\ns_cbranch_scc1 F2_M\ns_barrier\ns_lshr_b32 s3, s40, 3")
    for p in range(6):
        nx = a.lab("F2S")
        if p < 5: a(f"s_cmp_lg_u32 s3, {p}\ns_cbranch_scc1 {nx}")
        for tt in range(2):
            for ip in range(2):
                r = 160 + 16*p + 8*tt + 4*ip
                a(f"ds_write_b128 v13, v[{r}:{r+3}] offset:{2048*tt + 512*ip}")
        if p < 5: a("s_branch F2_W"); a.put(nx)
    a.put("F2_W")
    a("s_waitcnt lgkmcnt(0)\ns_barrier\nv_mov_b32 v6, v2")
    a.put("F2_M")
    a("s_add_u32 s3, s34, s39\nv_add_u32 v7, s3, v5\ns_waitcnt vmcnt(5)")
    for t in range(4): a(f"ds_read_b128 v[{36+4*t}:{39+4*t}], v6 offset:{1024*t}")
    for ct in range(5): a(f"ds_read_b64_tr_b16 v[{16+4*ct}:{17+4*ct}], v7 offset:{32*ct}\nds_read_b64_tr_b16 v[{18+4*ct}:{19+4*ct}], v7 offset:{1280+32*ct}")
    ffn2_issue()
    a("s_add_u32 s39, s39, 5120\ns_cmp_eq_u32 s39, 15360\ns_cselect_b32 s39, 0, s39\nv_add_u32 v6, 4096, v6")
    for ct in range(5):
        a(f"s_waitcnt lgkmcnt({8-2*ct})")
        for t in range(4):
            d = 64 + 16*ct + 4*t
            a(f"v_mfma_f32_16x16x32_bf16 v[{d}:{d+3}], v[{16+4*ct}:{19+4*ct}], v[{36+4*t}:{39+4*t}], v[{d}:{d+3}]")
    a("s_add_u32 s40, s40, 1\ns_cmp_lt_u32 s40, 48\ns_cbranch_scc1 F2_K")
    a(f"s_waitcnt vmcnt(0)\ns_mov_b32 s3, {LOG2E}")
    a("v_and_b32 v5, 15, v0\nv_mul_u32_u24 v5, 160, v5\nv_lshrrev_b32 v6, 4, v0\nv_lshl_add_u32 v5, v6, 3, v5\nv_add_u32 v5, s34, v5")
    for ct in range(5):
        for t in range(4):
            d = 64 + 16*ct + 4*t
            silu_pair(d, 16); silu_pair(d + 2, 18)
            a(f"v_cvt_pk_bf16_f32 v{d}, v{d}, v{d+1}\nv_cvt_pk_bf16_f32 v{d+1}, v{d+2}, v{d+3}\nds_write_b64 v5, v[{d}:{d+1}] offset:{2560*t + 32*ct}")
    if INSTR:
        a(f"s_memtime s[92:93]\ns_waitcnt lgkmcnt(0)\ns_sub_u32 s92, s92, s90\nv_mov_b32 v16, s92\ns_lshl_b32 s3, s33, 3\ns_add_u32 s3, s3, {sW}\ns_lshl_b32 s3, s3, 2\ns_add_u32 s3, s3, {L.DBG}\nv_mov_b32 v17, 0\nbuffer_store_dword v16, v17, {WS}, s3 offen")
    rt(5)
    srd(12, pOUT, 2048*1280)
    a("v_mul_u32_u24 v4, 52, v0\nv_lshrrev_b32 v4, 10, v4\nv_mul_u32_u24 v5, 20, v4\nv_sub_u32 v5, v0, v5")
    a(f"s_mul_i32 s4, {sW}, 20\nv_add_u32 v7, s4, v5\nv_lshrrev_b32 v6, 3, v7\nv_lshlrev_b32 v6, 12, v6\nv_and_b32 v7, 7, v7\nv_lshl_add_u32 v6, v7, 4, v6\nv_mul_u32_u24 v7, 655360, v4\nv_add_u32 v6, v6, v7\ns_lshl_b32 s3, s33, 7\nv_add_u32 v6, s3, v6")
    a(f"v_mul_u32_u24 v7, 40960, v4\nv_lshl_add_u32 v7, v5, 3, v7\ns_mul_i32 s3, s33, 1280\ns_mul_i32 s4, {sW}, 160\ns_add_u32 s3, s3, s4\nv_add_u32 v7, s3, v7")
    a("v_mul_u32_u24 v8, 160, v4\nv_lshl_add_u32 v8, v5, 3, v8\nv_add_u32 v8, s34, v8")
    a(f"s_lshl_b32 s3, {sQ}, 12\ns_add_u32 s3, s3, {L.FL + 1024}\nv_mov_b32 v9, s3")
    a(f"s_mov_b32 s40, 0\ns_mov_b32 s41, {L.OUTP}\ns_mov_b32 s42, 0\ns_waitcnt lgkmcnt(0)")
    a.put("FIN")
    if PARTS == "ffn": a("s_mov_b32 s3, 60")
    else: a(f"buffer_load_dword v16, v9, {WS}, 0 offen sc1\ns_waitcnt vmcnt(0)\nv_readfirstlane_b32 s3, v16")
    a("s_cmp_ge_u32 s3, 60\ns_cselect_b32 s3, 64, s3\ns_sub_u32 s43, s3, s40\ns_min_u32 s43, s43, 3\ns_mul_i32 s3, s43, 20\ns_bfm_b64 s[44:45], s3, 0")
    a(f"s_cmp_lg_u32 s43, 0\ns_cbranch_scc1 FIN_GO\ns_sleep {OPT.get('FINSL', 8)}")
    budget("FIN")
    a.put("FIN_GO")
    a("s_mov_b64 exec, s[44:45]")
    if PARTS == "ffn":
        for i in range(32): a(f"v_mov_b32 v{20+i}, " + ("1.0" if i < 4 else "0"))
    else:
        for q in range(8):
            a(f"s_add_u32 s3, s41, {81920*q}\nbuffer_load_dwordx4 v[{20+4*q}:{23+4*q}], v6, {WS}, s3 offen sc1")
    a("buffer_load_dwordx2 v[52:53], v7, s[20:23], s42 offen\nds_read_b64 v[54:55], v8")
    A3 = lambda d, x, y, z: f"v_bitop3_b32 {d}, {x}, {y}, {z} bitop3:0x80"
    a("s_waitcnt vmcnt(8)\n" + A3("v17", "1", "v20", "v21") + "\n" + A3("v17", "v17", "v22", "v23"))
    for q in range(1, 8):
        a(f"s_waitcnt vmcnt({8-q})\nv_pk_add_f32 v[20:21], v[20:21], v[{20+4*q}:{21+4*q}]\nv_pk_add_f32 v[22:23], v[22:23], v[{22+4*q}:{23+4*q}]")
        a(A3("v17", "v17", f"v{20+4*q}", f"v{21+4*q}") + "\n" + A3("v17", "v17", f"v{22+4*q}", f"v{23+4*q}"))
    if PARTS != "ffn":
        a("v_cmp_eq_u32 vcc, 0, v17\ns_cbranch_vccz FIN_OK\ns_waitcnt vmcnt(0) lgkmcnt(0)")
        budget("FIN_GO")
        a.put("FIN_OK")
    a("v_cvt_pk_bf16_f32 v20, v20, v21\nv_cvt_pk_bf16_f32 v22, v22, v23\nv_and_b32 v21, 0xffff0000, v20\nv_lshlrev_b32 v20, 16, v20\nv_and_b32 v23, 0xffff0000, v22\nv_lshlrev_b32 v22, 16, v22")
    a("s_waitcnt lgkmcnt(0)\nv_lshlrev_b32 v24, 16, v54\nv_and_b32 v25, 0xffff0000, v54\nv_lshlrev_b32 v26, 16, v55\nv_and_b32 v27, 0xffff0000, v55")
    a("v_pk_mul_f32 v[20:21], v[20:21], v[24:25]\nv_pk_mul_f32 v[22:23], v[22:23], v[26:27]")
    a("v_cvt_pk_bf16_f32 v20, v20, v21\nv_cvt_pk_bf16_f32 v22, v22, v23\nv_and_b32 v21, 0xffff0000, v20\nv_lshlrev_b32 v20, 16, v20\nv_and_b32 v23, 0xffff0000, v22\nv_lshlrev_b32 v22, 16, v22")
    a("s_waitcnt vmcnt(0)\nv_lshlrev_b32 v24, 16, v52\nv_and_b32 v25, 0xffff0000, v52\nv_lshlrev_b32 v26, 16, v53\nv_and_b32 v27, 0xffff0000, v53")
    a("v_pk_add_f32 v[20:21], v[20:21], v[24:25]\nv_pk_add_f32 v[22:23], v[22:23], v[26:27]")
    a("v_cvt_pk_bf16_f32 v20, v20, v21\nv_cvt_pk_bf16_f32 v21, v22, v23\nbuffer_store_dwordx2 v[20:21], v7, s[12:15], s42 offen")
    a("s_mov_b64 exec, -1\ns_add_u32 s40, s40, s43\ns_mul_i32 s3, s43, 655360\ns_add_u32 s41, s41, s3\ns_mul_i32 s3, s43, 40960\ns_add_u32 s42, s42, s3\ns_mul_i32 s3, s43, 160\nv_add_u32 v8, s3, v8")
    a("s_cmp_lt_u32 s40, 64\ns_cbranch_scc1 FIN")
    if INSTR:
        a(f"s_memtime s[92:93]\ns_waitcnt lgkmcnt(0)\ns_sub_u32 s92, s92, s90\nv_mov_b32 v16, s92\ns_lshl_b32 s3, s33, 3\ns_add_u32 s3, s3, {sW}\ns_lshl_b32 s3, s3, 2\ns_add_u32 s3, s3, {L.DBG+1024}\nv_mov_b32 v17, 0\nbuffer_store_dword v16, v17, {WS}, s3 offen")
    a("s_waitcnt vmcnt(0)")
    rtdump()
    a("s_waitcnt vmcnt(0)")
    a.put("END")
    hdr = "".join(l for l in open("cdna_kernels/" + KNAME[:-7] + ".s.ref") if l.startswith(";") and "@launch" not in l)
    return wrap(a.text(), KNAME, "grid=(256,1,1) block=(512,1,1) lds=163840", header=hdr)

if __name__ == "__main__":
    from build import build
    cfg = eval(sys.argv[2]) if len(sys.argv) > 2 else {}
    open(sys.argv[1], "w").write(gen(**cfg)); build(sys.argv[1], KNAME)
```

```python
import sys
from asmlib import *

KNAME = "recurrent_scan__memory_aug_recurrent_mem_tr__swiglu_ffn__prompt_kernel"
OOB = 0x7fffff00

from lay import Lay

def gen(NS=4, FORCE_SLOW=0, BUDGET=300000, PARTS="all", INSTR=0, **OPT):
    L = Lay(NS)
    a = Asm()
    LOGNS = NS.bit_length() - 1
    WS = "s[8:11]"
    sW, sQ, sR, sS, sBUD, sMODE, sG = "s26", "s27", "s28", "s29", "s30", "s31", "s32"
    pX, pM0, pWQ, pWK, pWV, pWO, pWG, pWU, pWD, pOUT, pDBG, pWS = 64, 66, 68, 70, 72, 74, 76, 78, 80, 82, 84, 86
    def srd(d, p, n):
        a(f"s_mov_b32 s{d}, s{p}\ns_mov_b32 s{d+1}, s{p+1}\ns_mov_b32 s{d+2}, {n}\ns_mov_b32 s{d+3}, 0x00020000")
    def budget(lp):
        a(f"s_sub_u32 {sBUD}, {sBUD}, 1\ns_cbranch_scc0 {lp}\ns_branch END")
    def slot(dst, size, base, add=0, grp=True):
        if add: a(f"s_add_u32 {dst}, {sS}, {add}\ns_and_b32 {dst}, {dst}, {NS-1}")
        else: a(f"s_and_b32 {dst}, {sS}, {NS-1}")
        a(f"s_mul_i32 {dst}, {dst}, {size}")
        if base: a(f"s_add_u32 {dst}, {dst}, {base}")
        if grp: a(f"s_add_u32 {dst}, {dst}, {sG}")
    RT = OPT.get("RT", 0)
    def rt(i):
        if RT: a(f"s_memrealtime s[92:93]\ns_waitcnt lgkmcnt(0)\ns_mov_b32 s{94+i}, s92")
    def rtdump():
        if RT:
            rt(7)
            a(f"s_lshl_b32 s3, s2, 3\ns_add_u32 s3, s3, {sW}\ns_lshl_b32 s3, s3, 6\ns_add_u32 s3, s3, {L.DBG + (6 << 20)}\ns_lshl_b32 s4, {sQ}, 5\ns_add_u32 s4, s4, {sR}")
            for i in range(8): a(f"v_mov_b32 v{8+i}, s{94+i}")
            a("v_mov_b32 v16, s4\nv_mov_b32 v4, 0\ns_mov_b64 exec, 1")
            a(f"buffer_store_dwordx4 v[8:11], v4, {WS}, s3 offen\nbuffer_store_dwordx4 v[12:15], v4, {WS}, s3 offen offset:16\nbuffer_store_dword v16, v4, {WS}, s3 offen offset:32\ns_mov_b64 exec, -1")
    def dma(vaddr, srdn, soff, m0, extra=""):
        a(f"s_mov_b32 m0, {m0}\nbuffer_load_dwordx4 {vaddr}, {srdn}, {soff} offen {extra} lds")
    WNT = OPT.get("WNT", "nt")
    def xs_dma(slds, smem):
        for i in range(10):
            if i % 4 == 0:
                if i: a(f"s_add_u32 {slds}, {slds}, 4096\ns_add_u32 {smem}, {smem}, 4096")
                a(f"s_mov_b32 m0, {slds}")
            a(f"buffer_load_dwordx4 v2, {WS}, {smem} offen offset:{(i%4)*1024} sc1 lds")

    def layernorm(R, F, O, perm):
        T = F + 80
        for i in range(40):
            a(f"v_lshlrev_b32 v{F+2*i}, 16, v{R+i}\nv_and_b32 v{F+2*i+1}, 0xffff0000, v{R+i}")
        def red(v):
            a(f"v_add_f32_dpp v{v}, v{v}, v{v} row_ror:8 row_mask:0xf bank_mask:0xf")
            a(f"v_mov_b32 v{v+1}, v{v}\nv_permlane16_swap_b32 v{v}, v{v+1}\nv_add_f32 v{v}, v{v}, v{v+1}")
            a(f"v_mov_b32 v{v+1}, v{v}\nv_permlane32_swap_b32 v{v}, v{v+1}\nv_add_f32 v{v}, v{v}, v{v+1}")
        a(f"v_pk_add_f32 v[{T}:{T+1}], v[{F}:{F+1}], v[{F+2}:{F+3}]\nv_pk_add_f32 v[{T+2}:{T+3}], v[{F+4}:{F+5}], v[{F+6}:{F+7}]")
        for i in range(4, 40): t = T + 2*(i % 2); a(f"v_pk_add_f32 v[{t}:{t+1}], v[{t}:{t+1}], v[{F+2*i}:{F+2*i+1}]")
        a(f"v_pk_add_f32 v[{T}:{T+1}], v[{T}:{T+1}], v[{T+2}:{T+3}]\nv_add_f32 v{T}, v{T}, v{T+1}")
        red(T)
        a(f"v_mul_f32 v{T}, 0x3acccccd, v{T}")
        for i in range(40):
            t = T + 2 + 2*(i % 2); c = T + 6 + 2*(i % 2)
            a(f"v_pk_add_f32 v[{t}:{t+1}], v[{F+2*i}:{F+2*i+1}], v[{T}:{T+1}] op_sel_hi:[1,0] neg_lo:[0,1] neg_hi:[0,1]")
            if i < 2: a(f"v_pk_mul_f32 v[{c}:{c+1}], v[{t}:{t+1}], v[{t}:{t+1}]")
            else: a(f"v_pk_fma_f32 v[{c}:{c+1}], v[{t}:{t+1}], v[{t}:{t+1}], v[{c}:{c+1}]")
        a(f"v_pk_add_f32 v[{T+6}:{T+7}], v[{T+6}:{T+7}], v[{T+8}:{T+9}]\nv_add_f32 v{T+2}, v{T+6}, v{T+7}")
        red(T + 2)
        a(f"v_mul_f32 v{T+2}, 0x3acccccd, v{T+2}")
        a(f"v_cvt_pk_bf16_f32 v{T+2}, v{T+2}, v{T+2}\nv_lshlrev_b32 v{T+2}, 16, v{T+2}\nv_add_f32 v{T+2}, 0x3727c5ac, v{T+2}")
        a(f"v_cvt_pk_bf16_f32 v{T+2}, v{T+2}, v{T+2}\nv_lshlrev_b32 v{T+2}, 16, v{T+2}\nv_sqrt_f32 v{T+2}, v{T+2}")
        a(f"v_cvt_pk_bf16_f32 v{T+2}, v{T+2}, v{T+2}\nv_lshlrev_b32 v{T+2}, 16, v{T+2}\nv_rcp_f32 v{T+2}, v{T+2}")
        a(f"v_cvt_pk_bf16_f32 v{T}, v{T}, v{T}\nv_lshlrev_b32 v{T}, 16, v{T}")
        pos = [0, 2, 4, 6, 1, 3, 5, 7] if perm else list(range(8))
        for i in range(40):
            t = T + 4 + 2*(i % 2)
            o = O + 8*(i // 8) + pos[i % 8]
            a(f"v_pk_add_f32 v[{t}:{t+1}], v[{F+2*i}:{F+2*i+1}], v[{T}:{T+1}] op_sel_hi:[1,0] neg_lo:[0,1] neg_hi:[0,1]")
            a(f"v_cvt_pk_bf16_f32 v{t}, v{t}, v{t+1}\nv_and_b32 v{t+1}, 0xffff0000, v{t}\nv_lshlrev_b32 v{t}, 16, v{t}")
            a(f"v_pk_mul_f32 v[{t}:{t+1}], v[{t}:{t+1}], v[{T+2}:{T+3}] op_sel_hi:[1,0]")
            a(f"v_cvt_pk_bf16_f32 v{o}, v{t}, v{t+1}")
    def ln_loads(R, vaddr, srdn):
        for m in range(5):
            a(f"buffer_load_dwordx4 v[{R+8*m}:{R+8*m+3}], {vaddr}, {srdn}, 0 offen offset:{256*m}")
            a(f"buffer_load_dwordx4 v[{R+8*m+4}:{R+8*m+7}], {vaddr}, {srdn}, 0 offen offset:{256*m+16}")

    a("s_cmp_ge_u32 s2, 256\ns_cbranch_scc1 END")
    a("s_load_dwordx8 s[64:71], s[0:1], 0\ns_load_dwordx4 s[72:75], s[0:1], 32\ns_load_dwordx8 s[76:83], s[0:1], 64\ns_load_dwordx4 s[84:87], s[0:1], 96")
    a("v_lshrrev_b32 v1, 6, v0\nv_and_b32 v0, 63, v0")
    a(f"v_readfirstlane_b32 {sW}, v1")
    a(f"s_getreg_b32 {sQ}, hwreg(HW_REG_XCC_ID, 0, 4)\ns_and_b32 {sQ}, {sQ}, 7")
    a(f"s_mov_b32 {sBUD}, {BUDGET}\ns_mov_b32 {sMODE}, 0")
    a("v_lshlrev_b32 v2, 4, v0\nv_lshlrev_b32 v3, 3, v0")
    a("s_waitcnt lgkmcnt(0)")
    srd(8, pWS, 0x10000000)
    srd(20, pX, 2048*1280)
    if INSTR: a("s_memtime s[90:91]")
    rt(0)
    a(f"s_cmp_lg_u32 {sW}, 7\ns_cbranch_scc1 E1\ns_setprio 3")
    a("v_and_b32 v4, 7, v0\nv_mul_u32_u24 v4, 1280, v4\nv_lshrrev_b32 v5, 3, v0\nv_lshlrev_b32 v5, 5, v5\nv_add_u32 v4, v4, v5\ns_mul_i32 s3, s2, 10240\nv_add_u32 v4, s3, v4")
    ln_loads(16, "v4", "s[20:23]")
    a.put("E1")
    a(f"s_cmp_lg_u32 {sW}, 0\ns_cbranch_scc1 E2")
    a(f"s_lshl_b32 s3, {sQ}, 5\nv_mov_b32 v4, s3\nv_mov_b32 v5, 1\ns_mov_b64 exec, 1")
    a(f"global_atomic_add v6, v4, v5, s[{pDBG}:{pDBG+1}] sc0 sc1\ns_waitcnt vmcnt(0)\nv_mov_b32 v5, 0\nds_write_b32 v5, v6\ns_waitcnt lgkmcnt(0)\ns_mov_b64 exec, -1")
    a.put("E2")
    gper = L.GPOIS // 32; hper = NS * L.H3S // 256
    assert gper % 1024 == 0 and hper % 1024 == 0 and L.H2 % 1024 == 0
    for w, per, base in ((4, gper, None), (5, hper, L.H3)):
        nx = a.lab("INX")
        a(f"s_cmp_lg_u32 {sW}, {w}\ns_cbranch_scc1 {nx}")
        if base is None: a(f"s_lshr_b32 s3, s2, 5\ns_mul_i32 s3, s3, {L.GS}\ns_and_b32 s6, s2, 31\ns_mul_i32 s6, s6, {per}\ns_add_u32 s3, s3, s6")
        else: a(f"s_mul_i32 s3, s2, {per}\ns_add_u32 s3, s3, {base}\ns_mov_b32 s6, {L.H2}")
        a("s_mov_b32 s4, 0")
        lp = a.lab("IN"); a.put(lp)
        a(f"s_add_u32 s7, s4, s6\ns_cmp_lt_u32 s7, {L.H2}\ns_cselect_b32 s7, -1, 0\ns_add_u32 s5, s4, s3")
        a("v_mov_b32 v4, s7\nv_mov_b32 v5, s7\nv_mov_b32 v6, s7\nv_mov_b32 v7, s7")
        a(f"buffer_store_dwordx4 v[4:7], v2, {WS}, s5 offen sc1")
        a(f"s_add_u32 s4, s4, 1024\ns_cmp_lt_u32 s4, {per}\ns_cbranch_scc1 {lp}")
        a.put(nx)
    a(f"s_cmp_lg_u32 {sW}, 6\ns_cbranch_scc1 E3")
    a(f"v_and_b32 v6, 15, v0\nv_lshlrev_b32 v6, 3, v6\nv_mov_b32 v4, 0\nv_mov_b32 v5, 0\ns_lshl_b32 s3, s2, 7\ns_add_u32 s3, s3, {L.FL}\nbuffer_store_dwordx2 v[4:5], v6, {WS}, s3 offen sc1")
    a.put("E3")
    a("s_barrier\nv_mov_b32 v5, 0\nds_read_b32 v4, v5\ns_waitcnt lgkmcnt(0)")
    a(f"v_readfirstlane_b32 {sR}, v4\ns_barrier")
    if FORCE_SLOW: a(f"s_mov_b32 {sR}, 99")
    rt(1)
    a.put("ROLE")
    a(f"s_mul_i32 {sG}, {sQ}, {L.GS}")
    a(f"s_cmp_ge_u32 {sR}, 32\ns_cbranch_scc1 COM1\ns_cmp_ge_u32 {sR}, 28\ns_cbranch_scc1 PRO_F\ns_cmp_ge_u32 {sW}, 4\ns_cbranch_scc1 COM1\ns_cmp_ge_u32 {sR}, 18\ns_cbranch_scc1 PRO_C")
    a(f"s_cmp_lt_u32 {sR}, 12\ns_cbranch_scc0 PRO_PV")
    srd(12, pWQ, 640*12288); srd(16, pWK, 640*12288)
    a(f"s_mul_i32 s3, {sQ}, 1536\ns_lshl_b32 s4, {sR}, 7\ns_add_u32 s3, s3, s4\ns_mov_b32 s4, s3\ns_branch PRO_P2")
    a.put("PRO_PV")
    srd(12, pWV, 640*12288); srd(16, pWV, 640*12288)
    a(f"s_mul_i32 s3, {sQ}, 1536\ns_sub_u32 s4, {sR}, 12\ns_lshl_b32 s4, s4, 8\ns_add_u32 s3, s3, s4\ns_add_u32 s4, s3, 128")
    a.put("PRO_P2")
    a(f"v_lshrrev_b32 v4, 3, v0\nv_mul_u32_u24 v4, 12288, v4\ns_and_b32 s5, {sW}, 1\ns_lshl_b32 s5, s5, 1\nv_lshrrev_b32 v5, 5, v0\nv_add_u32 v5, s5, v5")
    a("v_bfe_u32 v6, v0, 1, 2\nv_xor_b32 v5, v5, v6\nv_lshlrev_b32 v5, 5, v5\nv_and_b32 v6, 1, v0\nv_lshlrev_b32 v6, 4, v6\nv_add3_u32 v4, v4, v5, v6")
    a(f"s_mul_i32 s5, {sW}, 98304\ns_add_u32 s3, s3, s5\ns_add_u32 s4, s4, s5\ns_lshl_b32 s6, {sW}, 10")
    for i in range(20):
        dma("v4", "s[12:15]", "s3", "s6", WNT)
        a("s_add_u32 s7, s6, 40960")
        dma("v4", "s[16:19]", "s4", "s7", WNT)
        if i < 19: a(f"s_add_u32 s3, s3, {4*98304}\ns_add_u32 s4, s4, {4*98304}\ns_add_u32 s6, s6, {4096 + (40960 if i == 9 else 0)}")
    a("s_branch COM1")
    a.put("PRO_C")
    srd(12, pWO, 6144*1280)
    a(f"v_lshrrev_b32 v4, 3, v0\nv_mul_u32_u24 v4, 1280, v4\nv_lshrrev_b32 v5, 4, v0\nv_bfe_u32 v6, v0, 1, 2\nv_xor_b32 v5, v5, v6\nv_lshlrev_b32 v5, 5, v5\nv_and_b32 v6, 1, v0\nv_lshlrev_b32 v6, 4, v6\nv_add3_u32 v4, v4, v5, v6")
    a(f"s_mul_i32 s3, {sQ}, {768*1280}\ns_sub_u32 s4, {sR}, 18\ns_lshl_b32 s4, s4, 7\ns_add_u32 s3, s3, s4\ns_mul_i32 s5, {sW}, 10240\ns_add_u32 s3, s3, s5\ns_lshl_b32 s6, {sW}, 10")
    for i in range(24):
        dma("v4", "s[12:15]", "s3", "s6", WNT)
        if i < 23: a("s_add_u32 s3, s3, 40960\ns_add_u32 s6, s6, 4096")
    a("s_branch COM1")
    a.put("PRO_F")
    a(f"s_lshl_b32 s33, {sQ}, 2\ns_add_u32 s33, s33, {sR}\ns_sub_u32 s33, s33, 28")
    a(f"v_and_b32 v4, 7, v0\ns_lshl_b32 s3, {sW}, 3\nv_add_u32 v4, s3, v4\nv_mul_u32_u24 v4, 40960, v4\nv_lshrrev_b32 v5, 3, v0\nv_lshlrev_b32 v5, 5, v5\nv_add_u32 v4, v4, v5\ns_mul_i32 s3, s33, 1280\nv_add_u32 v4, s3, v4")
    ln_loads(200, "v4", "s[20:23]")
    a.put("COM1")
    a(f"s_cmp_lg_u32 {sW}, 7\ns_cbranch_scc1 C2\ns_cmp_lg_u32 {sMODE}, 0\ns_cbranch_scc1 C2")
    a(f"s_cmp_lt_u32 {sR}, 28\ns_cbranch_scc1 C0\ns_cmp_ge_u32 {sR}, 32\ns_cbranch_scc1 C0\ns_waitcnt vmcnt(10)\ns_branch C1")
    a.put("C0")
    a("s_waitcnt vmcnt(0)")
    a.put("C1")
    layernorm(16, 64, 16, True)
    a("v_lshrrev_b32 v4, 4, v0\nv_lshlrev_b32 v4, 10, v4\nv_bfe_u32 v5, v0, 3, 1\nv_lshlrev_b32 v5, 9, v5\nv_and_b32 v6, 7, v0\nv_lshlrev_b32 v6, 4, v6\nv_add3_u32 v4, v4, v5, v6")
    a(f"s_lshr_b32 s3, s2, 1\ns_mul_i32 s3, s3, 20480\ns_and_b32 s4, s2, 1\ns_lshl_b32 s4, s4, 7\ns_add_u32 s3, s3, s4\ns_add_u32 s3, s3, {L.XN}")
    for m in range(5):
        a(f"buffer_store_dwordx4 v[{16+8*m}:{19+8*m}], v4, {WS}, s3 offen sc1\nbuffer_store_dwordx4 v[{20+8*m}:{23+8*m}], v4, {WS}, s3 offen offset:256 sc1")
        if m < 4: a("s_add_u32 s3, s3, 4096")
    a("s_setprio 0")
    a.put("C2")
    a(f"s_cmp_lt_u32 {sW}, 4\ns_cbranch_scc1 C2B\ns_waitcnt vmcnt(0)")
    a.put("C2B")
    rt(2)
    a("s_barrier")
    a(f"s_cmp_lg_u32 {sW}, 4\ns_cbranch_scc1 C3\ns_cmp_lg_u32 {sMODE}, 0\ns_cbranch_scc1 C3")
    a(f"s_cmp_lt_u32 {sR}, 32\ns_cselect_b32 s3, 1, 0x10001\nv_mov_b32 v4, 4\nv_mov_b32 v5, s3\ns_mov_b64 exec, 1\nglobal_atomic_add v6, v4, v5, s[{pDBG}:{pDBG+1}] sc0 sc1\ns_waitcnt vmcnt(0)")
    a("v_readfirstlane_b32 s4, v6\ns_add_u32 s3, s3, s4\ns_and_b32 s4, s3, 0xffff\ns_cmp_lg_u32 s4, 256\ns_cbranch_scc1 C2C")
    a(f"s_cmp_eq_u32 s3, 256\ns_cselect_b32 s3, 1, 2\nv_mov_b32 v5, s3\nglobal_store_dword v4, v5, s[{pDBG}:{pDBG+1}] offset:128 sc1")
    a.put("C2C")
    a("s_mov_b64 exec, -1")
    a.put("C3")
    a(f"s_cmp_lt_u32 {sR}, 28\ns_cbranch_scc1 C4\ns_cmp_ge_u32 {sR}, 32\ns_cbranch_scc1 C4\ns_waitcnt vmcnt(0)")
    layernorm(200, 64, 16, False)
    a(f"v_lshrrev_b32 v4, 3, v0\nv_lshlrev_b32 v4, 10, v4\nv_and_b32 v5, 7, v0\nv_lshl_add_u32 v4, v5, 4, v4\ns_lshr_b32 s3, {sW}, 2\ns_mul_i32 s3, s3, 40960\ns_and_b32 s4, {sW}, 3\ns_lshl_b32 s4, s4, 7\ns_add_u32 s3, s3, s4\nv_add_u32 v4, s3, v4")
    for m in range(5):
        a(f"ds_write_b128 v4, v[{16+8*m}:{19+8*m}] offset:{8192*m}\nds_write_b128 v4, v[{20+8*m}:{23+8*m}] offset:{8192*m+512}")
    a("s_waitcnt lgkmcnt(0)")
    a.put("C4")
    GOLD = f"global_load_dword v62, v63, s[{pDBG}:{pDBG+1}] offset:128 sc1"
    a("v_mov_b32 v63, 4")
    a(f"s_cmp_lg_u32 {sW}, 4\ns_cbranch_scc1 G2\ns_cmp_lg_u32 {sMODE}, 0\ns_cbranch_scc1 G2")
    a.put("G1")
    a(GOLD + "\ns_waitcnt vmcnt(0)\nv_cmp_ne_u32 vcc, 0, v62\ns_cbranch_vccnz G2\ns_sleep %d" % OPT.get("GSL", 2))
    budget("G1")
    a.put("G2")
    a(f"s_cmp_ge_u32 {sR}, 28\ns_cbranch_scc1 WR_X\ns_cmp_ge_u32 {sR}, 18\ns_cbranch_scc1 WR_C\ns_cmp_ge_u32 {sW}, 4\ns_cbranch_scc1 WR_A")
    a("v_lshrrev_b32 v4, 5, v0\nv_lshlrev_b32 v4, 4, v4\nv_bfe_u32 v5, v0, 4, 1\nv_lshl_add_u32 v4, v5, 2, v4\nv_bfe_u32 v6, v0, 2, 1\nv_add_u32 v4, v4, v6\nv_bfe_u32 v6, v0, 3, 1\nv_lshl_add_u32 v4, v6, 3, v4")
    a("v_lshlrev_b32 v4, 7, v4\nv_lshl_add_u32 v5, v6, 1, v5\nv_and_b32 v6, 3, v0\nv_lshl_add_u32 v4, v6, 3, v4")
    a(f"s_and_b32 s3, {sW}, 1\ns_lshl_b32 s3, s3, 1\ns_add_u32 s4, s3, 1\ns_lshr_b32 s5, {sW}, 1\ns_mul_i32 s5, s5, 40960\ns_mov_b32 s6, s5")
    a(f"s_cmp_lt_u32 {sR}, 12\ns_cselect_b32 s3, {sW}, s3\ns_cselect_b32 s4, {sW}, s4\ns_cselect_b32 s5, 0, s5\ns_cselect_b32 s6, 40960, s6")
    a("v_xor_b32 v6, s3, v5\nv_lshl_add_u32 v6, v6, 5, v4\nv_add_u32 v6, s5, v6\nv_add_u32 v8, 81920, v6")
    a("v_xor_b32 v7, s4, v5\nv_lshl_add_u32 v7, v7, 5, v4\nv_add_u32 v7, s6, v7\nv_add_u32 v9, 81920, v7")
    for hf in range(2):
        a(f"s_waitcnt vmcnt({0 if hf else 20})")
        rt(3 + hf)
        a("s_barrier")
        n = 0
        for kb in range(5*hf, 5*hf + 5):
            for T in range(2):
                for b in range(2):
                    for rd in range(2):
                        d = 64 + 16*kb + 8*T + 4*b + 2*rd
                        a(f"ds_read_b64_tr_b16 v[{d}:{d+1}], v{6+T+2*hf} offset:{(kb % 5)*8192 + b*4096 + rd*256}")
                        n += 1
                        if n % 8 == 0 and n > 8: a("s_waitcnt lgkmcnt(8)")
        a("s_waitcnt lgkmcnt(0)\ns_barrier")
        if hf == 0: a(GOLD)
    a("s_branch MODE")
    a.put("WR_A")
    rt(3)
    a(f"s_barrier\ns_barrier\n{GOLD}\ns_sub_u32 s14, {sW}, 4")
    srd(16, pM0, 10240)
    a("v_and_b32 v5, 7, v0\nv_mul_u32_u24 v5, 1280, v5\nv_lshrrev_b32 v6, 3, v0\nv_lshl_add_u32 v5, v6, 4, v5\ns_lshl_b32 s3, s14, 7\nv_add_u32 v5, s3, v5")
    for i in range(3): a(f"buffer_load_dwordx4 v[{16+4*i}:{19+4*i}], v5, s[16:19], 0 offen offset:{512*i}")
    for i in range(2):
        a(f"s_mul_i32 s3, s14, 10240\ns_add_u32 s3, s3, {40960*i}\ns_add_u32 s4, s3, {L.XN}")
        xs_dma("s3", "s4")
    a("s_barrier\ns_barrier\ns_waitcnt vmcnt(20)\ns_branch MODE")
    a.put("WR_C")
    a(f"s_cmp_ge_u32 {sW}, 4\ns_cbranch_scc1 WR_CA")
    a(f"v_lshrrev_b32 v4, 2, v0\nv_lshlrev_b32 v4, 7, v4\nv_and_b32 v5, 3, v0\nv_lshl_add_u32 v4, v5, 3, v4\ns_mul_i32 s3, {sW}, 24576\nv_add_u32 v4, s3, v4\nv_bfe_u32 v5, v0, 3, 2")
    for ct in range(4): a(f"v_xor_b32 v{6+ct}, {ct}, v5\nv_lshl_add_u32 v{6+ct}, v{6+ct}, 5, v4")
    a("s_waitcnt vmcnt(0)")
    rt(3)
    a("s_barrier\n" + GOLD)
    n = 0
    for kb in range(3):
        for ct in range(4):
            for b in range(2):
                for rd in range(2):
                    d = 64 + 32*kb + 8*ct + 4*b + 2*rd
                    a(f"ds_read_b64_tr_b16 v[{d}:{d+1}], v{6+ct} offset:{kb*8192 + b*4096 + rd*2048}")
                    n += 1
                    if n % 8 == 0 and n > 8: a("s_waitcnt lgkmcnt(8)")
    a("s_waitcnt vmcnt(0) lgkmcnt(0)\ns_barrier\ns_branch MODE")
    a.put("WR_CA")
    rt(3)
    a(f"s_barrier\n{GOLD}\ns_waitcnt vmcnt(0)\ns_barrier\ns_branch MODE")
    a.put("WR_X")
    rt(3)
    a(f"s_barrier\n{GOLD}\ns_waitcnt vmcnt(0)")
    a.put("MODE")
    a(f"v_readfirstlane_b32 s3, v62\ns_cmp_lg_u32 {sMODE}, 0\ns_cbranch_scc1 GO\ns_cmp_eq_u32 s3, 1\ns_cbranch_scc1 GO")
    a(f"s_mov_b32 {sMODE}, 1\ns_lshr_b32 {sQ}, s2, 5\ns_and_b32 {sR}, s2, 31\ns_waitcnt vmcnt(0)\ns_barrier\ns_branch ROLE")
    a.put("GO")
    a(f"s_mov_b32 {sS}, 0")
    if OPT.get("PROL"):
        rt(5); rtdump(); a("s_waitcnt vmcnt(0)\ns_branch END")
    a(f"s_cmp_ge_u32 {sR}, 28\ns_cbranch_scc1 FFN")
    if PARTS == "ffn": a("s_branch END")
    else:
        a(f"s_cmp_lg_u32 {sMODE}, 0\ns_cbranch_scc1 CHAIN_S")
        from chain import chain
        ctx = dict(locals())
        chain(ctx, "F", "")
        a.put("CHAIN_S")
        chain(ctx, "S", " sc1")

    a.put("FFN")
    if OPT.get("NOFFN"): a("s_branch END")
    srd(12, pWG, 640*3072); srd(16, pWU, 640*3072)
    LOG2E = "0x3fb8aa3b"
    RING1 = 81920
    a("v_lshrrev_b32 v4, 2, v0\nv_mul_u32_u24 v4, 3072, v4\nv_and_b32 v5, 3, v0\nv_lshl_add_u32 v4, v5, 4, v4")
    a("v_lshrrev_b32 v5, 5, v0\nv_lshlrev_b32 v5, 9, v5\nv_bfe_u32 v6, v0, 2, 2\nv_lshl_add_u32 v5, v6, 6, v5\nv_bfe_u32 v6, v0, 4, 1\nv_lshl_add_u32 v5, v6, 5, v5\nv_and_b32 v6, 3, v0\nv_lshl_add_u32 v5, v6, 3, v5")
    a(f"s_mul_i32 s34, {sW}, 10240\ns_add_u32 s34, s34, {RING1}")
    a(f"s_cmp_ge_u32 {sQ}, 6\ns_cselect_b32 s3, 6, 0\ns_sub_u32 s46, {sQ}, s3")
    if not OPT.get("ROT", 1): a("s_mov_b32 s46, 0")
    a(f"s_lshl_b32 s47, {sW}, 6\ns_add_u32 s48, s47, 3072\ns_lshl_b32 s35, s46, 9\ns_add_u32 s35, s35, s47")
    a("s_mov_b32 s36, 0\ns_mov_b32 s37, 0\ns_mov_b32 s38, s46\ns_mov_b32 s49, 0")
    def ffn1_issue():
        a("s_add_u32 s3, s34, s37")
        dma("v4", "s[12:15]", "s35", "s3")
        a("s_add_u32 s3, s3, 1024")
        dma("v4", "s[16:19]", "s35", "s3")
        a("s_add_u32 s37, s37, 2048\ns_cmp_eq_u32 s37, 10240\ns_cselect_b32 s37, 0, s37")
        a(f"s_add_u32 s35, s35, 49152\ns_add_u32 s36, s36, 1\ns_cmp_eq_u32 s36, 40\ns_cselect_b32 s3, {40*49152-512}, 0\ns_cselect_b32 s36, 0, s36\ns_sub_u32 s35, s35, s3\ns_cmp_eq_u32 s35, s48\ns_cselect_b32 s35, s47, s35")
    for i in range(4): ffn1_issue()
    a("s_mov_b32 s39, 0")
    a.put("F1_PASS")
    for i in range(64, 128): a(f"v_mov_b32 v{i}, 0")
    a("v_mov_b32 v6, v2\ns_mov_b32 s40, 0")
    a.put("F1_K")
    a("s_add_u32 s3, s34, s39\nv_add_u32 v7, s3, v5\ns_waitcnt vmcnt(6)")
    a("ds_read_b64_tr_b16 v[16:17], v7\nds_read_b64_tr_b16 v[18:19], v7 offset:256\nds_read_b128 v[24:27], v6\nds_read_b128 v[28:31], v6 offset:40960")
    a("ds_read_b64_tr_b16 v[20:21], v7 offset:1024\nds_read_b64_tr_b16 v[22:23], v7 offset:1280")
    ffn1_issue()
    a("s_add_u32 s39, s39, 2048\ns_cmp_eq_u32 s39, 10240\ns_cselect_b32 s39, 0, s39\nv_add_u32 v6, 1024, v6")
    a("s_waitcnt lgkmcnt(3)\nv_mfma_f32_32x32x16_bf16 v[64:79], v[16:19], v[24:27], v[64:79]")
    a("s_waitcnt lgkmcnt(2)\nv_mfma_f32_32x32x16_bf16 v[80:95], v[16:19], v[28:31], v[80:95]")
    a("s_waitcnt lgkmcnt(0)\nv_mfma_f32_32x32x16_bf16 v[96:111], v[20:23], v[24:27], v[96:111]\nv_mfma_f32_32x32x16_bf16 v[112:127], v[20:23], v[28:31], v[112:127]")
    a("s_add_u32 s40, s40, 1\ns_cmp_lt_u32 s40, 40\ns_cbranch_scc1 F1_K")
    a(f"s_mov_b32 s3, {LOG2E}")
    def silu_pair(x, t):
        a(f"v_cvt_pk_bf16_f32 v{t}, v{x}, v{x+1}\nv_lshlrev_b32 v{x}, 16, v{t}\nv_and_b32 v{x+1}, 0xffff0000, v{t}")
        a(f"v_mul_f32 v{t}, s3, v{x}\nv_mul_f32 v{t+1}, s3, v{x+1}\nv_exp_f32 v{t}, -v{t}\nv_exp_f32 v{t+1}, -v{t+1}")
        a(f"v_add_f32 v{t}, 1.0, v{t}\nv_add_f32 v{t+1}, 1.0, v{t+1}\nv_rcp_f32 v{t}, v{t}\nv_rcp_f32 v{t+1}, v{t+1}")
        a(f"v_pk_mul_f32 v[{x}:{x+1}], v[{x}:{x+1}], v[{t}:{t+1}]")
    for i in range(16):
        g = 64 + 2*i; u = 96 + 2*i; t = 16 + 2*(i % 4)
        silu_pair(g, t)
        a(f"v_cvt_pk_bf16_f32 v{t}, v{g}, v{g+1}\nv_lshlrev_b32 v{g}, 16, v{t}\nv_and_b32 v{g+1}, 0xffff0000, v{t}")
        a(f"v_cvt_pk_bf16_f32 v{t}, v{u}, v{u+1}\nv_lshlrev_b32 v{u}, 16, v{t}\nv_and_b32 v{u+1}, 0xffff0000, v{t}")
        a(f"v_pk_mul_f32 v[{g}:{g+1}], v[{g}:{g+1}], v[{u}:{u+1}]")
    for p in range(6):
        nx = a.lab("F1S")
        if p < 5: a(f"s_cmp_lg_u32 s38, {p}\ns_cbranch_scc1 {nx}")
        for i in range(16): a(f"v_cvt_pk_bf16_f32 v{160+16*p+i}, v{64+2*i}, v{65+2*i}")
        if p < 5: a("s_branch F1_NEXT"); a.put(nx)
    a.put("F1_NEXT")
    a("s_add_u32 s38, s38, 1\ns_cmp_eq_u32 s38, 6\ns_cselect_b32 s38, 0, s38\ns_add_u32 s49, s49, 1\ns_cmp_lt_u32 s49, 6\ns_cbranch_scc1 F1_PASS")
    a("s_waitcnt vmcnt(0)\ns_barrier")
    srd(12, pWD, 1536*1280)
    for i in range(5):
        a(f"v_add_u32 v7, {64*i}, v0\nv_mul_u32_u24 v13, 6554, v7\nv_lshrrev_b32 v13, 16, v13\nv_mul_u32_u24 v14, 10, v13\nv_sub_u32 v7, v7, v14\nv_mul_u32_u24 v13, 1280, v13\nv_lshl_add_u32 v{8+i}, v7, 4, v13")
    a("v_lshrrev_b32 v5, 5, v0\nv_lshlrev_b32 v5, 4, v5\nv_bfe_u32 v6, v0, 2, 3\nv_add_u32 v5, v5, v6\nv_mul_u32_u24 v5, 160, v5\nv_and_b32 v6, 3, v0\nv_lshl_add_u32 v5, v6, 3, v5")
    a(f"v_bfe_u32 v13, v0, 4, 1\nv_lshlrev_b32 v13, 10, v13\nv_lshrrev_b32 v14, 5, v0\nv_lshl_add_u32 v13, v14, 8, v13\nv_and_b32 v14, 15, v0\nv_lshl_add_u32 v13, v14, 4, v13\ns_lshl_b32 s3, {sW}, 12\nv_add_u32 v13, s3, v13")
    a(f"s_lshl_b32 s34, {sW}, 14\ns_add_u32 s34, s34, 32768\ns_mul_i32 s47, {sW}, 160\ns_add_u32 s48, s47, {48*40960}\ns_mul_i32 s35, s46, {8*40960}\ns_add_u32 s35, s35, s47\ns_mov_b32 s37, 0\ns_mov_b32 s39, 0\ns_mov_b32 s40, 0")
    def ffn2_issue():
        a("s_add_u32 s3, s34, s37")
        for i in range(5):
            dma(f"v{8+i}", "s[12:15]", "s35", "s3")
            if i < 4: a("s_add_u32 s3, s3, 1024")
        a("s_add_u32 s37, s37, 5120\ns_cmp_eq_u32 s37, 15360\ns_cselect_b32 s37, 0, s37\ns_add_u32 s35, s35, 40960\ns_cmp_eq_u32 s35, s48\ns_cselect_b32 s35, s47, s35")
    for i in range(2): ffn2_issue()
    for i in range(64, 144): a(f"v_mov_b32 v{i}, 0")
    a.put("F2_K")
    a("s_and_b32 s3, s40, 7\ns_cmp_lg_u32 s3, 0\ns_cbranch_scc1 F2_M\ns_barrier\ns_mov_b32 s3, s38\ns_add_u32 s38, s38, 1\ns_cmp_eq_u32 s38, 6\ns_cselect_b32 s38, 0, s38")
    for p in range(6):
        nx = a.lab("F2S")
        if p < 5: a(f"s_cmp_lg_u32 s3, {p}\ns_cbranch_scc1 {nx}")
        for tt in range(2):
            for ip in range(2):
                r = 160 + 16*p + 8*tt + 4*ip
                a(f"ds_write_b128 v13, v[{r}:{r+3}] offset:{2048*tt + 512*ip}")
        if p < 5: a("s_branch F2_W"); a.put(nx)
    a.put("F2_W")
    a("s_waitcnt lgkmcnt(0)\ns_barrier\nv_mov_b32 v6, v2")
    a.put("F2_M")
    a("s_add_u32 s3, s34, s39\nv_add_u32 v7, s3, v5\ns_waitcnt vmcnt(5)")
    for t in range(4): a(f"ds_read_b128 v[{36+4*t}:{39+4*t}], v6 offset:{1024*t}")
    for ct in range(5): a(f"ds_read_b64_tr_b16 v[{16+4*ct}:{17+4*ct}], v7 offset:{32*ct}\nds_read_b64_tr_b16 v[{18+4*ct}:{19+4*ct}], v7 offset:{1280+32*ct}")
    ffn2_issue()
    a("s_add_u32 s39, s39, 5120\ns_cmp_eq_u32 s39, 15360\ns_cselect_b32 s39, 0, s39\nv_add_u32 v6, 4096, v6")
    for ct in range(5):
        a(f"s_waitcnt lgkmcnt({8-2*ct})")
        for t in range(4):
            d = 64 + 16*ct + 4*t
            a(f"v_mfma_f32_16x16x32_bf16 v[{d}:{d+3}], v[{16+4*ct}:{19+4*ct}], v[{36+4*t}:{39+4*t}], v[{d}:{d+3}]")
    a("s_add_u32 s40, s40, 1\ns_cmp_lt_u32 s40, 48\ns_cbranch_scc1 F2_K")
    a(f"s_waitcnt vmcnt(0)\ns_mov_b32 s3, {LOG2E}")
    a("v_and_b32 v5, 15, v0\nv_mul_u32_u24 v5, 160, v5\nv_lshrrev_b32 v6, 4, v0\nv_lshl_add_u32 v5, v6, 3, v5\nv_add_u32 v5, s34, v5")
    for ct in range(5):
        for t in range(4):
            d = 64 + 16*ct + 4*t
            silu_pair(d, 16); silu_pair(d + 2, 18)
            a(f"v_cvt_pk_bf16_f32 v{d}, v{d}, v{d+1}\nv_cvt_pk_bf16_f32 v{d+1}, v{d+2}, v{d+3}\nds_write_b64 v5, v[{d}:{d+1}] offset:{2560*t + 32*ct}")
    if INSTR:
        a(f"s_memtime s[92:93]\ns_waitcnt lgkmcnt(0)\ns_sub_u32 s92, s92, s90\nv_mov_b32 v16, s92\ns_lshl_b32 s3, s33, 3\ns_add_u32 s3, s3, {sW}\ns_lshl_b32 s3, s3, 2\ns_add_u32 s3, s3, {L.DBG}\nv_mov_b32 v17, 0\nbuffer_store_dword v16, v17, {WS}, s3 offen")
    rt(5)
    srd(12, pOUT, 2048*1280)
    a("v_mul_u32_u24 v4, 52, v0\nv_lshrrev_b32 v4, 10, v4\nv_mul_u32_u24 v5, 20, v4\nv_sub_u32 v5, v0, v5")
    a(f"s_mul_i32 s4, {sW}, 20\nv_add_u32 v7, s4, v5\nv_lshrrev_b32 v6, 3, v7\nv_lshlrev_b32 v6, 12, v6\nv_and_b32 v7, 7, v7\nv_lshl_add_u32 v6, v7, 4, v6\nv_mul_u32_u24 v7, 655360, v4\nv_add_u32 v6, v6, v7\ns_lshl_b32 s3, s33, 7\nv_add_u32 v6, s3, v6")
    a(f"v_mul_u32_u24 v7, 40960, v4\nv_lshl_add_u32 v7, v5, 3, v7\ns_mul_i32 s3, s33, 1280\ns_mul_i32 s4, {sW}, 160\ns_add_u32 s3, s3, s4\nv_add_u32 v7, s3, v7")
    a("v_mul_u32_u24 v8, 160, v4\nv_lshl_add_u32 v8, v5, 3, v8\nv_add_u32 v8, s34, v8")
    a(f"s_lshl_b32 s3, {sQ}, 12\ns_add_u32 s3, s3, {L.FL + 1024}\nv_mov_b32 v9, s3")
    a(f"s_mov_b32 s40, 0\ns_mov_b32 s41, {L.OUTP}\ns_mov_b32 s42, 0\ns_waitcnt lgkmcnt(0)")
    a.put("FIN")
    if PARTS == "ffn": a("s_mov_b32 s3, 60")
    else: a(f"buffer_load_dword v16, v9, {WS}, 0 offen sc1\ns_waitcnt vmcnt(0)\nv_readfirstlane_b32 s3, v16")
    a("s_cmp_ge_u32 s3, 60\ns_cselect_b32 s3, 64, s3\ns_sub_u32 s43, s3, s40\ns_min_u32 s43, s43, 3\ns_mul_i32 s3, s43, 20\ns_bfm_b64 s[44:45], s3, 0")
    a(f"s_cmp_lg_u32 s43, 0\ns_cbranch_scc1 FIN_GO\ns_sleep {OPT.get('FINSL', 8)}")
    budget("FIN")
    a.put("FIN_GO")
    a("s_mov_b64 exec, s[44:45]")
    if PARTS == "ffn":
        for i in range(32): a(f"v_mov_b32 v{20+i}, " + ("1.0" if i < 4 else "0"))
    else:
        for q in range(8):
            a(f"s_add_u32 s3, s41, {81920*q}\nbuffer_load_dwordx4 v[{20+4*q}:{23+4*q}], v6, {WS}, s3 offen sc1")
    a("buffer_load_dwordx2 v[52:53], v7, s[20:23], s42 offen\nds_read_b64 v[54:55], v8")
    A3 = lambda d, x, y, z: f"v_bitop3_b32 {d}, {x}, {y}, {z} bitop3:0x80"
    a("s_waitcnt vmcnt(8)\n" + A3("v17", "1", "v20", "v21") + "\n" + A3("v17", "v17", "v22", "v23"))
    for q in range(1, 8):
        a(f"s_waitcnt vmcnt({8-q})\nv_pk_add_f32 v[20:21], v[20:21], v[{20+4*q}:{21+4*q}]\nv_pk_add_f32 v[22:23], v[22:23], v[{22+4*q}:{23+4*q}]")
        a(A3("v17", "v17", f"v{20+4*q}", f"v{21+4*q}") + "\n" + A3("v17", "v17", f"v{22+4*q}", f"v{23+4*q}"))
    if PARTS != "ffn":
        a("v_cmp_eq_u32 vcc, 0, v17\ns_cbranch_vccz FIN_OK\ns_waitcnt vmcnt(0) lgkmcnt(0)")
        budget("FIN_GO")
        a.put("FIN_OK")
    a("v_cvt_pk_bf16_f32 v20, v20, v21\nv_cvt_pk_bf16_f32 v22, v22, v23\nv_and_b32 v21, 0xffff0000, v20\nv_lshlrev_b32 v20, 16, v20\nv_and_b32 v23, 0xffff0000, v22\nv_lshlrev_b32 v22, 16, v22")
    a("s_waitcnt lgkmcnt(0)\nv_lshlrev_b32 v24, 16, v54\nv_and_b32 v25, 0xffff0000, v54\nv_lshlrev_b32 v26, 16, v55\nv_and_b32 v27, 0xffff0000, v55")
    a("v_pk_mul_f32 v[20:21], v[20:21], v[24:25]\nv_pk_mul_f32 v[22:23], v[22:23], v[26:27]")
    a("v_cvt_pk_bf16_f32 v20, v20, v21\nv_cvt_pk_bf16_f32 v22, v22, v23\nv_and_b32 v21, 0xffff0000, v20\nv_lshlrev_b32 v20, 16, v20\nv_and_b32 v23, 0xffff0000, v22\nv_lshlrev_b32 v22, 16, v22")
    a("s_waitcnt vmcnt(0)\nv_lshlrev_b32 v24, 16, v52\nv_and_b32 v25, 0xffff0000, v52\nv_lshlrev_b32 v26, 16, v53\nv_and_b32 v27, 0xffff0000, v53")
    a("v_pk_add_f32 v[20:21], v[20:21], v[24:25]\nv_pk_add_f32 v[22:23], v[22:23], v[26:27]")
    a("v_cvt_pk_bf16_f32 v20, v20, v21\nv_cvt_pk_bf16_f32 v21, v22, v23\nbuffer_store_dwordx2 v[20:21], v7, s[12:15], s42 offen")
    a("s_mov_b64 exec, -1\ns_add_u32 s40, s40, s43\ns_mul_i32 s3, s43, 655360\ns_add_u32 s41, s41, s3\ns_mul_i32 s3, s43, 40960\ns_add_u32 s42, s42, s3\ns_mul_i32 s3, s43, 160\nv_add_u32 v8, s3, v8")
    a("s_cmp_lt_u32 s40, 64\ns_cbranch_scc1 FIN")
    if INSTR:
        a(f"s_memtime s[92:93]\ns_waitcnt lgkmcnt(0)\ns_sub_u32 s92, s92, s90\nv_mov_b32 v16, s92\ns_lshl_b32 s3, s33, 3\ns_add_u32 s3, s3, {sW}\ns_lshl_b32 s3, s3, 2\ns_add_u32 s3, s3, {L.DBG+1024}\nv_mov_b32 v17, 0\nbuffer_store_dword v16, v17, {WS}, s3 offen")
    a("s_waitcnt vmcnt(0)")
    rtdump()
    a("s_waitcnt vmcnt(0)")
    a.put("END")
    hdr = "".join(l for l in open("cdna_kernels/" + KNAME[:-7] + ".s.ref") if l.startswith(";") and "@launch" not in l)
    return wrap(a.text(), KNAME, "grid=(256,1,1) block=(512,1,1) lds=163840", header=hdr)

if __name__ == "__main__":
    from build import build
    cfg = eval(sys.argv[2]) if len(sys.argv) > 2 else {}
    open(sys.argv[1], "w").write(gen(**cfg)); build(sys.argv[1], KNAME)
```

```python
from asmlib import *
OOB = 0x7fffff00

def chain(c, tag, ST):
    a, L, WS, NS, LOGNS, OPT, INSTR = c["a"], c["L"], c["WS"], c["NS"], c["LOGNS"], c["OPT"], c["INSTR"]
    sW, sQ, sR, sS, sBUD, sG = c["sW"], c["sQ"], c["sR"], c["sS"], c["sBUD"], c["sG"]
    slot, budget, srd = c["slot"], c["budget"], c["srd"]
    FLIP = OPT.get("FLIP", 0); DELTA = OPT.get("DELTA", 200); SSTEP = OPT.get("SSTEP", 55)
    POIS = NS < 64
    T = lambda n: n + "_" + tag
    sFL = "s33"
    def stamp(i):
        if INSTR == 2:
            l = a.lab("ST")
            a(f"s_cmp_lg_u32 {sS}, {SSTEP}\ns_cbranch_scc1 {l}\ns_memtime s[60:61]\ns_waitcnt lgkmcnt(0)\ns_mov_b32 s{44+i}, s60")
            a.put(l)
        if INSTR == 3: a(f"s_memtime s[{64+2*i}:{65+2*i}]")
    def dump():
        if INSTR == 3:
            a(f"s_lshl_b32 s3, {sQ}, 5\ns_add_u32 s3, s3, {sR}\ns_lshl_b32 s3, s3, 3\ns_add_u32 s3, s3, {sW}\ns_lshl_b32 s3, s3, 6\ns_and_b32 s4, {sS}, 63\ns_add_u32 s3, s3, s4\ns_lshl_b32 s3, s3, 5\ns_add_u32 s3, s3, {L.DBG + (1 << 20)}\ns_waitcnt lgkmcnt(0)")
            a("v_mov_b32 v254, s64")
            for i in range(1, 8): a(f"v_writelane_b32 v254, s{64+2*i}, {i}")
            a(f"s_mov_b64 exec, 0xff\nv_lshlrev_b32 v255, 2, v0\nbuffer_store_dword v254, v255, {WS}, s3 offen\ns_mov_b64 exec, -1")
    def stamp0():
        c["rt"](5)
        if INSTR: a("s_memtime s[60:61]\ns_waitcnt lgkmcnt(0)\ns_sub_u32 s55, s60, s90")
    def finish():
        if INSTR:
            a("s_memtime s[60:61]\ns_waitcnt lgkmcnt(0)\ns_sub_u32 s59, s60, s90")
            a(f"s_lshl_b32 s3, {sQ}, 5\ns_add_u32 s3, s3, {sR}\ns_lshl_b32 s3, s3, 3\ns_add_u32 s3, s3, {sW}\ns_lshl_b32 s3, s3, 6\ns_add_u32 s3, s3, {L.DBG+4096}")
            a(f"s_mov_b32 s58, {sBUD}")
            l = a.lab("CAL")
            a("s_memrealtime s[62:63]\ns_waitcnt lgkmcnt(0)\ns_mov_b32 s4, 200")
            a.put(l)
            a("s_memrealtime s[6:7]\ns_memtime s[60:61]\ns_waitcnt lgkmcnt(0)\ns_sub_u32 s4, s4, 1")
            a(f"s_cbranch_scc1 {l}_x\ns_cmp_eq_u32 s6, s62\ns_cbranch_scc1 {l}")
            a.put(l + "_x")
            a("s_mov_b32 s57, s60\ns_mov_b32 s56, s6")
            for i in range(16): a(f"v_mov_b32 v{8+i}, s{44+i}")
            a("v_mov_b32 v4, 0\ns_mov_b64 exec, 1")
            for i in range(4): a(f"buffer_store_dwordx4 v[{8+4*i}:{11+4*i}], v4, {WS}, s3 offen offset:{16*i}")
        a("s_waitcnt vmcnt(0)")
        c["rtdump"]()
        a("s_waitcnt vmcnt(0)\ns_branch END")
    def delay(n):
        while n > 0:
            m = min(n, 64); a(f"s_nop {max(m//4-1,0)}"); n -= m
    def onelane(v, saddr):
        a(f"v_mov_b32 {v}, {OOB}\nv_writelane_b32 {v}, {saddr}, 0")
    xs_dma = c["xs_dma"]
    def flagwait(vaddr, vtmp, sval):
        lp = a.lab("FW"); ok = a.lab("FO")
        a.put(lp)
        a(f"buffer_load_dword {vtmp}, {vaddr}, {WS}, {sFL} offen sc1\ns_waitcnt vmcnt(0)")
        a(f"v_cmp_gt_u32 vcc, {sval}, {vtmp}\ns_cbranch_vccz {ok}")
        budget(lp)
        a.put(ok)
    AF = OPT.get("AF", 0) if ST == "" else 0
    def afwait(off, n, r0, dl):
        lp = a.lab("AFP"); go = a.lab("AFG"); NF = OPT.get("NFA", 2)
        a(f"s_add_u32 s3, {sS}, 1\nv_min_u32 v{r0+NF}, {n-1}, v0\nv_lshlrev_b32 v{r0+NF}, 2, v{r0+NF}\nv_add_u32 v{r0+NF}, {off}, v{r0+NF}")
        for k in range(NF - 1):
            a(f"buffer_load_dword v{r0+k}, v{r0+NF}, {WS}, {sFL} offen sc1"); delay(OPT.get("AFG", 128))
        a.put(lp)
        for k in range(NF):
            a(f"buffer_load_dword v{r0+(k+NF-1)%NF}, v{r0+NF}, {WS}, {sFL} offen sc1\ns_waitcnt vmcnt({NF-1})\nv_cmp_gt_u32 vcc, s3, v{r0+k}\ns_cbranch_vccz {go}")
        budget(lp)
        a.put(go)
        delay(dl)
    def idxreg(v):
        a(f"v_and_b32 v4, 15, v0\nv_cmp_gt_u32 vcc, 8, v4\nv_mov_b32 {v}, 0xeeee\nv_mov_b32 v6, 0x4444\nv_cndmask_b32 {v}, {v}, v6, vcc")
    def tagreg(s):
        a(f"s_lshr_b32 {s}, {sS}, {LOGNS}\ns_and_b32 {s}, {s}, 1\ns_add_u32 {s}, {s}, 1")

    a(f"s_lshl_b32 {sFL}, {sQ}, 12\ns_add_u32 {sFL}, {sFL}, {L.FL}")
    a(f"s_cmp_ge_u32 {sR}, 18\ns_cbranch_scc1 {T('COMB')}")
    MEM, QKM, QX, KX, DUM = 81920, 92160, 94208, 98304, 102400
    a(f"s_cmp_ge_u32 {sW}, 4\ns_cbranch_scc1 {T('PAUX')}")
    idxreg("v5")
    a(f"v_add_u32 v11, {MEM}, v2")
    NB = 5
    def tokgemm():
        R = lambda i: 16 + 4*(i % NB)
        off = lambda i: (i % 2)*20480 + (i // 2)*1024
        for i in range(NB - 1): a(f"ds_read_b128 v[{R(i)}:{R(i)+3}], v9 offset:{off(i)}")
        for i in range(40):
            if i + NB - 1 < 40: a(f"ds_read_b128 v[{R(i+NB-1)}:{R(i+NB-1)+3}], v9 offset:{off(i+NB-1)}")
            a(f"s_waitcnt lgkmcnt({min(NB-1, 39-i)})")
            kk, tt = i // 2, i % 2
            for t in range(2):
                w = 64 + 16*(kk // 2) + 8*t + 4*(kk % 2); d = 224 + 8*t + 4*tt
                a(f"v_mfma_f32_16x16x32_bf16 v[{d}:{d+3}], v[{w}:{w+3}], v[{R(i)}:{R(i)+3}], " + ("0" if kk == 0 else f"v[{d}:{d+3}]"))
    def crit():
        for b in range(10): a(f"ds_read_b128 v[{16+4*b}:{19+4*b}], v11 offset:{1024*b}")
        for b in range(10):
            a(f"s_waitcnt lgkmcnt({9-b})")
            a(f"v_smfmac_f32_16x16x64_bf16 v[56:59], v[{16+4*b}:{19+4*b}], v[{64+16*b}:{71+16*b}], v5")
            a(f"v_smfmac_f32_16x16x64_bf16 v[60:63], v[{16+4*b}:{19+4*b}], v[{72+16*b}:{79+16*b}], v5")
        for i in range(4): a(f"v_permlane32_swap_b32 v{56+i}, v{60+i}")
        a("v_pk_add_f32 v[56:57], v[56:57], v[60:61]\nv_pk_add_f32 v[58:59], v[58:59], v[62:63]")
        a("v_cvt_pk_bf16_f32 v56, v56, v57\nv_cvt_pk_bf16_f32 v57, v58, v59\nds_write_b64 v6, v[56:57]")
    a(f"s_cmp_ge_u32 {sR}, 12\ns_cbranch_scc1 {T('VG')}")
    a(f"v_and_b32 v4, 15, v0\nv_lshlrev_b32 v6, 5, v4\nv_lshrrev_b32 v7, 4, v0\nv_lshl_add_u32 v6, v7, 3, v6\ns_lshl_b32 s3, {sW}, 9\ns_add_u32 s3, s3, {QKM}\nv_add_u32 v6, s3, v6")
    a(f"s_lshr_b32 s3, {sW}, 1\ns_lshl_b32 s3, s3, 10\ns_and_b32 s4, {sW}, 1\ns_lshl_b32 s4, s4, 3\ns_add_u32 s3, s3, s4\ns_add_u32 s3, s3, {QX}\nv_add_u32 v7, s3, v2")
    a(f"s_mov_b32 {sS}, -1\ns_barrier\ns_branch {T('SG_TOK')}")
    a.put(T("SG_LOOP"))
    for i in range(56, 64): a(f"v_mov_b32 v{i}, 0")
    a("s_waitcnt lgkmcnt(0)")
    stamp(0)
    a("s_barrier")
    crit()
    a("s_waitcnt lgkmcnt(0)")
    stamp(1)
    a("s_barrier")
    a(f"s_cmp_eq_u32 {sS}, 63\ns_cbranch_scc1 {T('SG_END')}")
    a.put(T("SG_TOK"))
    a(f"s_add_u32 {sS}, {sS}, 1\ns_and_b32 s3, {sS}, 1\ns_mul_i32 s3, s3, 40960\nv_add_u32 v9, s3, v2")
    tokgemm()
    for t in range(2):
        for tt in range(2):
            d = 224 + 8*t + 4*tt
            a(f"v_cvt_pk_bf16_f32 v{d}, v{d}, v{d+1}\nv_cvt_pk_bf16_f32 v{d+1}, v{d+2}, v{d+3}\nds_write_b64 v7, v[{d}:{d+1}] offset:{4096*t + 2048*tt}")
    dump()
    a(f"s_branch {T('SG_LOOP')}")
    a.put(T("SG_END"))
    finish()
    a.put(T("VG"))
    a("v_bfe_u32 v6, v0, 3, 1\nv_lshlrev_b32 v6, 8, v6\nv_bfe_u32 v7, v0, 2, 1\nv_lshl_add_u32 v6, v7, 7, v6\nv_lshrrev_b32 v7, 5, v0\nv_lshl_add_u32 v6, v7, 6, v6\nv_and_b32 v7, 1, v0\nv_lshl_add_u32 v6, v7, 5, v6")
    a(f"v_bfe_u32 v7, v0, 1, 1\nv_lshl_add_u32 v6, v7, 4, v6\nv_bfe_u32 v7, v0, 4, 1\nv_lshl_add_u32 v6, v7, 3, v6\ns_lshl_b32 s3, {sW}, 9\ns_add_u32 s3, s3, {QKM}\nv_add_u32 v6, s3, v6")
    a("v_bfe_u32 v7, v0, 4, 1\nv_lshlrev_b32 v7, 8, v7\nv_and_b32 v8, 15, v0\nv_lshl_add_u32 v7, v8, 3, v7\nv_add_u32 v7, s3, v7")
    a(f"s_sub_u32 s4, {sR}, 12\ns_lshl_b32 s4, s4, 2\ns_add_u32 s4, s4, {sW}")
    a(f"s_lshl_b32 s3, s4, 9\nv_add_u32 v10, s3, v2\nv_mov_b32 v8, {OOB}\nv_cmp_gt_u32 vcc, 32, v0\nv_cndmask_b32 v10, v8, v10, vcc")
    a("s_lshl_b32 s3, s4, 11\nv_add_u32 v8, s3, v2\ns_lshl_b32 s3, s4, 2")
    onelane("v15", "s3")
    for i in range(4): a(f"v_mov_b32 v{240+i}, -1")
    a(f"s_mov_b32 {sS}, -1\ns_mov_b32 s37, 0\ns_barrier")
    c["rt"](5)
    a(f"s_branch {T('VG_TOK')}")
    a.put(T("VG_LOOP"))
    for i in range(56, 64): a(f"v_mov_b32 v{i}, 0")
    slot("s34", L.VMS, L.VM); slot("s35", L.VMS, L.VM, NS - 1)
    a("s_barrier")
    crit()
    a("ds_read_b64_tr_b16 v[56:57], v7\nds_read_b64_tr_b16 v[58:59], v7 offset:128\ns_waitcnt lgkmcnt(1)\nv_min_u32 v56, -2, v56\nv_min_u32 v57, -2, v57\ns_waitcnt lgkmcnt(0)\nv_min_u32 v58, -2, v58\nv_min_u32 v59, -2, v59")
    a(f"buffer_store_dwordx4 v[56:59], v10, {WS}, s34 offen{ST}")
    stamp(0)
    if POIS: a(f"buffer_store_dwordx4 v[240:243], v10, {WS}, s35 offen{ST}")
    a("s_barrier")
    a(f"s_cmp_lt_u32 {sS}, 61\ns_cbranch_scc1 {T('VG_TOK')}\ns_cmp_eq_u32 {sS}, 63\ns_cbranch_scc1 {T('VG_END')}\ns_add_u32 {sS}, {sS}, 1\ns_waitcnt vmcnt(0)\ns_branch {T('VG_LOOP')}")
    a.put(T("VG_TOK"))
    a(f"s_and_b32 s3, s37, 1\ns_mul_i32 s3, s3, 40960\nv_add_u32 v9, s3, v2\ns_and_b32 s36, s37, {NS-1}\ns_mul_i32 s36, s36, {L.VXS}\ns_add_u32 s36, s36, {L.VX}\ns_add_u32 s36, s36, {sG}\ns_add_u32 s37, s37, 1\nv_mov_b32 v14, s37")
    tokgemm()
    for tt in range(2):
        for t in range(2):
            d = 224 + 8*t + 4*tt; o = 16 + 4*tt + 2*t
            a(f"v_cvt_pk_bf16_f32 v{o}, v{d}, v{d+1}\nv_cvt_pk_bf16_f32 v{o+1}, v{d+2}, v{d+3}")
        a(f"buffer_store_dwordx4 v[{16+4*tt}:{19+4*tt}], v8, {WS}, s36 offen offset:{1024*tt}{ST}")
    a(f"s_waitcnt vmcnt(0)\nbuffer_store_dword v14, v15, {WS}, {sFL} offen{ST}")
    stamp(1)
    dump()
    a(f"s_lshl_b32 s3, {sS}, 1\ns_add_u32 s3, s3, 2\ns_add_u32 s4, {sS}, 3\ns_min_i32 s3, s3, s4\ns_cmp_le_i32 s37, s3\ns_cbranch_scc1 {T('VG_2')}\ns_add_u32 {sS}, {sS}, 1\ns_branch {T('VG_LOOP')}")
    a.put(T("VG_2"))
    a(f"s_barrier\ns_branch {T('VG_TOK')}")
    a.put(T("VG_END"))
    finish()

    a.put(T("PAUX"))
    a(f"s_setprio 2\ns_sub_u32 s14, {sW}, 4")
    a(f"s_lshl_b32 s3, s14, 10\nv_add_u32 v4, s3, v2\nv_add_u32 v12, {MEM}, v4\ns_cmp_lt_u32 s14, 2\ns_cselect_b64 vcc, -1, 0")
    a(f"v_mov_b32 v8, {OOB}\nv_cndmask_b32 v8, v8, v4, vcc\nv_add_u32 v13, {DUM}, v2\nv_add_u32 v5, 8192, v12\nv_cndmask_b32 v13, v13, v5, vcc")
    a("ds_write_b128 v12, v[16:19]\nds_write_b128 v12, v[20:23] offset:4096\nds_write_b128 v13, v[24:27]\ns_waitcnt vmcnt(10)\ns_barrier")
    SPREAD = OPT.get("SPREAD", 0)
    if SPREAD:
        a(f"s_cmp_ge_u32 {sR}, 12\ns_cselect_b32 s3, 2, 0\ns_xor_b32 s3, s3, s14\ns_lshl_b32 s40, {sR}, 1\ns_add_u32 s40, s40, s3\ns_cmp_lt_u32 s3, 2\ns_cselect_b32 s40, s40, -1")
        a(f"s_lshl_b32 s3, {sR}, 2\ns_add_u32 s3, s3, s14\ns_and_b32 s4, s3, 0xfffffff3\ns_add_u32 s3, {sR}, 36\ns_cmp_eq_u32 s4, 2\ns_cselect_b32 s40, s3, s40")
    else:
        a(f"s_lshl_b32 s40, {sR}, 2\ns_add_u32 s40, s40, s14\ns_cmp_lt_u32 {sR}, 10\ns_cselect_b32 s40, s40, -1")
    a(f"s_lshr_b32 s3, {sR}, 1\ns_lshr_b32 s4, s40, 2\ns_cmp_lt_i32 s40, 0\ns_cselect_b32 s3, s3, s4\ns_lshl_b32 s3, s3, 7\ns_add_u32 s3, s3, 2048\nv_mov_b32 v140, s3")
    a("s_max_i32 s5, s40, 0\ns_lshr_b32 s3, s5, 2\ns_lshl_b32 s3, s3, 15\ns_and_b32 s4, s5, 3\ns_lshl_b32 s4, s4, 9\ns_add_u32 s3, s3, s4")
    a("v_and_b32 v142, 31, v0\nv_lshlrev_b32 v141, 4, v142\nv_lshrrev_b32 v143, 5, v0\nv_lshl_add_u32 v141, v143, 11, v141\nv_add_u32 v141, s3, v141")
    a("s_lshl_b32 s3, s5, 8\nv_lshlrev_b32 v142, 3, v142\nv_lshl_add_u32 v142, v143, 2, v142\nv_add_u32 v142, s3, v142\nv_mov_b32 v143, -1")
    a(f"s_lshr_b32 s41, {sQ}, 2\ns_lshl_b32 s41, s41, 14")
    if AF:
        a(f"s_lshl_b32 s3, {sR}, 2\ns_add_u32 s4, s3, 3584\ns_add_u32 s3, s3, {3456-48}\ns_cmp_lt_u32 {sR}, 12\ns_cselect_b32 s3, s4, s3\ns_cmp_eq_u32 s14, {OPT.get('AFW', 3)}\ns_cselect_b32 s3, s3, {OOB}")
        onelane("v200", "s3")
    def afsig():
        if AF: a(f"buffer_store_dword v201, v200, {WS}, {sFL} offen")
    def afpre():
        if AF: a(f"s_add_u32 s3, {sS}, 1\nv_mov_b32 v201, s3")
    A3 = lambda d, x, y, z: f"v_bitop3_b32 {d}, {x}, {y}, {z} bitop3:0x80"
    def h3task():
        skip = a.lab("H3N"); done = a.lab("H3D"); lp = a.lab("H3F"); go = a.lab("H3G")
        slot("s36", L.H3S, L.H3, NS - 1, False); slot("s37", L.H1S, L.H1); slot("s35", L.H1S, L.H1, NS - 1)
        a(f"s_sub_u32 s3, {sS}, 1\ns_lshr_b32 s25, s3, {LOGNS}\ns_and_b32 s25, s25, 1\ns_add_u32 s25, s25, 1")
        a("s_xor_b32 s3, s41, 16384\ns_add_u32 s16, s36, s41\ns_add_u32 s17, s16, 4096\ns_add_u32 s18, s36, s3\ns_add_u32 s19, s18, 4096")
        NF = 3
        a(f"s_lshl_b32 s43, {sS}, 1")
        for k in range(NF - 1):
            a(f"buffer_load_dword v{144+k}, v140, {WS}, {sFL} offen sc1"); delay(64)
        a.put(lp)
        for k in range(NF):
            a(f"buffer_load_dword v{144+(k+NF-1)%NF}, v140, {WS}, {sFL} offen sc1\ns_waitcnt vmcnt({NF-1})\nv_cmp_gt_u32 vcc, s43, v{144+k}\ns_cbranch_vccz {go}")
        budget(lp)
        a.put(go)
        stamp(6)
        a(f"s_cmp_lt_i32 s40, 0\ns_cbranch_scc1 {skip}")
        a(f"s_cmp_lg_u32 {sS}, 1\ns_cbranch_scc1 {go}_c\ns_waitcnt vmcnt(0)\nv_max3_u32 v147, v144, v145, v146\nv_and_b32 v147, 1, v147\nv_lshl_add_u32 v141, v147, 13, v141")
        a.put(go + "_c")
        delay(DELTA)
        lp = a.lab("H3P"); ok = a.lab("H3K")
        NP = OPT.get("NP", 1); GAP = OPT.get("GAP", 150)
        RB = [148, 168, 184]
        def hiss(k):
            for q in range(4): a(f"buffer_load_dwordx4 v[{RB[k]+4*q}:{RB[k]+3+4*q}], v141, {WS}, s{16+q} offen sc1")
        def hchk(k):
            b = RB[k]; n = 4*(NP - 1)
            a(f"s_waitcnt vmcnt({3+n})\n" + A3("v52", "s25", f"v{b}", f"v{b+1}") + "\n" + A3("v52", "v52", f"v{b+2}", f"v{b+3}"))
            for i in range(1, 4):
                r = b + 4*i; p = b if i == 1 else 164
                a(f"s_waitcnt vmcnt({3-i+n})\nv_pk_add_f32 v[164:165], v[{p}:{p+1}], v[{r}:{r+1}]\nv_pk_add_f32 v[166:167], v[{p+2}:{p+3}], v[{r+2}:{r+3}]\n" + A3("v52", "v52", f"v{r}", f"v{r+1}") + "\n" + A3("v52", "v52", f"v{r+2}", f"v{r+3}"))
            a("v_permlane32_swap_b32 v164, v166\nv_permlane32_swap_b32 v165, v167\nv_cmp_eq_u32 vcc, 0, v52\nv_pk_add_f32 v[164:165], v[164:165], v[166:167]")
            a("v_cvt_pk_bf16_f32 v166, v164, v165\nv_min_u32 v166, -2, v166")
        for k in range(NP - 1):
            hiss(k); delay(GAP)
        a.put(lp)
        a(f"s_sub_u32 {sBUD}, {sBUD}, 1\ns_cbranch_scc1 END")
        for k in range(NP):
            hiss((k + NP - 1) % NP); hchk(k)
            a(f"s_cbranch_vccnz {lp}" if k == NP - 1 else f"s_cbranch_vccz {ok}")
        a.put(ok)
        a(f"buffer_store_dword v166, v142, {WS}, s37 offen{ST}")
        stamp(7)
        if POIS: a(f"buffer_store_dword v143, v142, {WS}, s35 offen{ST}")
        if INSTR in (1, 2):
            a(f"s_memtime s[60:61]\ns_lshl_b32 s3, {sQ}, 8\ns_lshl_b32 s4, {sS}, 2\ns_add_u32 s3, s3, s4\ns_add_u32 s3, s3, {L.DBG+262144-4}\ns_cmp_eq_u32 s40, 0\ns_cselect_b32 s4, 0, {OOB}")
            a(f"s_waitcnt lgkmcnt(0)\ns_sub_u32 s60, s60, s90\nv_mov_b32 v164, s60\nv_mov_b32 v165, s4\nbuffer_store_dword v164, v165, {WS}, s3 offen")
        if OPT.get("D1"): a(f"s_sleep {OPT['D1']}")
        a(f"s_branch {done}")
        a.put(skip)
        if OPT.get("D2"): a(f"s_sleep {OPT['D2']}")
        a.put(done)
    def mem0(got):
        stamp0()
        a(f"s_waitcnt vmcnt(0)\ns_branch {got}")
    def h1poll(got, sl):
        if sl: a(f"s_sleep {sl}")
        slot("s34", L.H1S, L.H1)
        a("s_add_u32 s35, s34, 4096\ns_add_u32 s36, s34, 8192")
        def issue(r): a(f"buffer_load_dwordx4 v[{r}:{r+3}], v4, {WS}, s34 offen sc1\nbuffer_load_dwordx4 v[{r+4}:{r+7}], v4, {WS}, s35 offen sc1\nbuffer_load_dwordx4 v[{r+8}:{r+11}], v8, {WS}, s36 offen sc1")
        def check(r, n):
            a(f"s_waitcnt vmcnt({n+2})\nds_write_b128 v12, v[{r}:{r+3}]\nv_max3_u32 v52, v{r}, v{r+1}, v{r+2}")
            a(f"s_waitcnt vmcnt({n+1})\nds_write_b128 v12, v[{r+4}:{r+7}] offset:4096\nv_max3_u32 v52, v{r+3}, v{r+4}, v52\nv_max3_u32 v52, v{r+5}, v{r+6}, v52")
            a(f"s_waitcnt vmcnt({n})\nds_write_b128 v13, v[{r+8}:{r+11}]\nv_max3_u32 v52, v{r+7}, v{r+8}, v52\nv_max3_u32 v52, v{r+9}, v{r+10}, v52\nv_max_u32 v52, v{r+11}, v52")
            a(f"v_cmp_eq_u32 vcc, -1, v52\ns_cbranch_vccz {got}\ns_waitcnt lgkmcnt(0)")
        lp = a.lab("H1P")
        P1 = OPT.get("P1", 2)
        if P1 == 1:
            a.put(lp); issue(116); check(116, 0)
        else:
            for k in range(P1 - 1):
                issue(116 + 12*k)
                if OPT.get("P1D"): delay(OPT["P1D"])
            a.put(lp)
            for k in range(P1):
                issue(116 + 12*((k + P1 - 1) % P1)); check(116 + 12*k, 3*(P1 - 1))
        budget(lp)
    a(f"s_cmp_ge_u32 {sR}, 12\ns_cbranch_scc1 {T('VA')}")
    a(f"s_cmp_eq_u32 s14, 3\ns_cselect_b32 s3, 0, {KX-QX}\ns_cmp_eq_u32 s14, 1\ns_cselect_b32 s4, 2048, 0\ns_add_u32 s3, s3, s4\ns_add_u32 s3, s3, {QX}\nv_add_u32 v14, s3, v2")
    a(f"s_cmp_eq_u32 s14, 0\ns_cselect_b32 s3, 0, 2048\ns_add_u32 s3, s3, {QX}\nv_add_u32 v15, s3, v2\nv_add_u32 v7, {QKM}, v3")
    a("v_and_b32 v6, 7, v0\nv_lshrrev_b32 v9, 4, v0\nv_lshl_add_u32 v11, v6, 2, v9\nv_lshlrev_b32 v11, 4, v11\ns_lshl_b32 s3, s14, 9\nv_add_u32 v11, s3, v11")
    a("v_lshl_add_u32 v9, v9, 3, v6\nv_lshlrev_b32 v9, 4, v9\nv_add_u32 v9, 768, v9\ns_cmp_eq_u32 s14, 2\ns_cselect_b64 vcc, -1, 0\nv_cndmask_b32 v11, v11, v9, vcc")
    a(f"s_mul_i32 s3, {sR}, 1280\nv_add_u32 v11, s3, v11\ns_mov_b32 s5, 0x00ff00ff\ns_cselect_b32 s4, 0, s5\ns_mov_b64 vcc, s[4:5]\nv_mov_b32 v9, {OOB}\nv_cndmask_b32 v11, v9, v11, vcc")
    a(f"s_lshl_b32 s3, {sR}, 2\ns_add_u32 s3, s3, s14\ns_lshl_b32 s4, s3, 10\nv_add_u32 v10, s4, v2\ns_lshl_b32 s3, s3, 2\ns_add_u32 s3, s3, 128")
    onelane("v6", "s3")
    a(f"s_mov_b32 {sS}, 0")
    mem0(T("SA_GOT"))
    a.put(T("SA_LOOP"))
    h3task()
    h1poll(T("SA_GOT"), 0)
    a.put(T("SA_GOT"))
    stamp(0)
    afpre()
    a("s_waitcnt lgkmcnt(0)\ns_barrier")
    afsig()
    stamp(1)
    a("ds_read_b128 v[24:27], v14\nds_read_b128 v[28:31], v14 offset:1024\nds_read_b128 v[32:35], v15\nds_read_b128 v[36:39], v15 offset:1024")
    slot("s35", L.H2S, L.H2); slot("s36", L.HXS, L.HX); tagreg("s37")
    a(f"s_add_u32 s3, {sS}, 1\nv_mov_b32 v9, s3\ns_waitcnt lgkmcnt(0)")
    a(f"s_cmp_eq_u32 s14, 2\ns_cbranch_scc1 {T('SA_2')}\ns_cmp_eq_u32 s14, 3\ns_cbranch_scc1 {T('SA_3')}")
    def qkread():
        a("s_barrier")
        stamp(2)
        for i in range(4): a(f"ds_read_b64_tr_b16 v[{40+2*i}:{41+2*i}], v7 offset:{512*i}")
    def h2out(A0, A1):
        a(f"s_waitcnt lgkmcnt(2)\nv_mfma_f32_16x16x32_bf16 v[48:51], v[{A0}:{A0+3}], v[40:43], 0\ns_waitcnt lgkmcnt(0)\nv_mfma_f32_16x16x32_bf16 v[48:51], v[{A1}:{A1+3}], v[44:47], v[48:51]")
        for i in range(4): a(f"v_and_or_b32 v{48+i}, v{48+i}, -4, s37")
        a(f"buffer_store_dwordx4 v[48:51], v11, {WS}, s35 offen{ST}")
        stamp(3)
    qkread(); h2out(24, 28)
    a(f"s_branch {T('SA_X')}")
    a.put(T("SA_2"))
    qkread(); h2out(40, 44)
    a.put(T("SA_X"))
    a("v_mfma_f32_16x16x32_bf16 v[56:59], v[24:27], v[32:35], 0\nv_mfma_f32_16x16x32_bf16 v[56:59], v[28:31], v[36:39], v[56:59]")
    a(f"s_branch {T('SA_F')}")
    a.put(T("SA_3"))
    qkread()
    a("s_waitcnt lgkmcnt(0)\nv_mfma_f32_16x16x32_bf16 v[52:55], v[40:43], v[24:27], 0\nv_mfma_f32_16x16x32_bf16 v[56:59], v[40:43], v[32:35], 0")
    a("v_mfma_f32_16x16x32_bf16 v[52:55], v[44:47], v[28:31], v[52:55]\nv_mfma_f32_16x16x32_bf16 v[56:59], v[44:47], v[36:39], v[56:59]")
    for i in range(4): a(f"v_permlane32_swap_b32 v{52+i}, v{56+i}")
    a.put(T("SA_F"))
    a(f"buffer_store_dwordx4 v[56:59], v10, {WS}, s36 offen{ST}\ns_waitcnt vmcnt(0)\nbuffer_store_dword v9, v6, {WS}, {sFL} offen{ST}")
    stamp(4)
    a(f"s_cmp_eq_u32 {sS}, 63\ns_cbranch_scc1 {T('SA_END')}\ns_cmp_eq_u32 {sS}, 62\ns_cbranch_scc1 {T('SA_N')}")
    a(f"s_mul_i32 s5, s14, 10240\ns_and_b32 s3, {sS}, 1\ns_mul_i32 s3, s3, 40960\ns_add_u32 s3, s3, s5\ns_mul_i32 s4, {sS}, 40960\ns_add_u32 s4, s4, s5\ns_add_u32 s4, s4, {L.XN + 2*40960}")
    xs_dma("s3", "s4")
    a.put(T("SA_N"))
    stamp(5)
    dump()
    a(f"s_add_u32 {sS}, {sS}, 1\ns_branch {T('SA_LOOP')}")
    a.put(T("SA_END"))
    finish()
    a.put(T("VA"))
    a(f"s_sub_u32 s15, {sR}, 12")
    a(f"s_mul_i32 s3, s15, 12288\ns_lshl_b32 s4, s14, 11\ns_add_u32 s4, s4, s3\nv_add_u32 v14, s4, v2")
    a(f"s_add_u32 s4, s3, 1024\nv_add_u32 v15, s4, v2\nv_mov_b32 v9, {OOB}\ns_cmp_eq_u32 s14, 1\ns_cselect_b64 vcc, -1, 0\nv_cndmask_b32 v15, v9, v15, vcc")
    a(f"s_lshl_b32 s4, s14, 9\ns_add_u32 s4, s4, s3\ns_add_u32 s4, s4, {3072-512}\nv_add_u32 v7, s4, v2\nv_cmp_le_u32 vcc, 32, v0\nv_cndmask_b32 v7, v9, v7, vcc")
    a("s_mul_i32 s3, s14, 5120\ns_lshl_b32 s4, s15, 10\ns_add_u32 s4, s4, s3\nv_add_u32 v10, s4, v2")
    a("v_and_b32 v6, 15, v0\nv_lshlrev_b32 v11, 4, v6\nv_bfe_u32 v64, v0, 4, 1\nv_lshl_add_u32 v11, v64, 3, v11\ns_lshl_b32 s4, s15, 8\ns_add_u32 s4, s4, s3\ns_add_u32 s4, s4, 4096\nv_add_u32 v11, s4, v11\nv_cndmask_b32 v11, v9, v11, vcc")
    a("v_mov_b32 v65, 0xf149f2ca\nv_mov_b32 v66, 0")
    for i in range(4): a(f"v_cndmask_b32 v{108+i}, v65, v66, vcc")
    a("s_lshl_b32 s3, s14, 4\nv_add_u32 v6, s3, v6\nv_lshrrev_b32 v64, 4, v0\nv_lshlrev_b32 v64, 2, v64\nv_sub_u32 v6, v6, v64")
    for i in range(8): a(f"v_cmp_le_i32 vcc, {i if i < 4 else 12+i}, v6\nv_cndmask_b32 v{100+i}, v65, v66, vcc")
    a("v_min_u32 v6, 11, v0\nv_lshlrev_b32 v6, 2, v6\ns_mul_i32 s3, s15, 48\ns_add_u32 s3, s3, 128\nv_add_u32 v6, s3, v6")
    a("s_lshl_b32 s3, s14, 2\ns_add_u32 s3, s3, s15\ns_lshl_b32 s3, s3, 2\ns_add_u32 s3, s3, 384")
    onelane("v112", "s3")
    a("s_mov_b32 s38, 0x3dd53b95\nv_mov_b32 v114, s38\nv_mov_b32 v115, s38")
    a("s_cmp_lt_u32 s15, 4\ns_cselect_b32 s39, 1, 0\ns_cmp_lt_u32 s14, 2\ns_cselect_b32 s39, s39, 0")
    a(f"s_mov_b32 {sS}, 0\ns_mov_b32 s42, 2")
    mem0(T("VA_GOT"))
    a.put(T("VA_LOOP"))
    if OPT.get("PXS", 1) and not SPREAD:
        a(f"s_cmp_lg_u32 s39, 0\ns_cbranch_scc1 {T('VA_P')}")
    h3task()
    a.put(T("VA_P"))
    h1poll(T("VA_GOT"), 0)
    a.put(T("VA_GOT"))
    stamp(0)
    afpre()
    a("s_waitcnt lgkmcnt(0)\ns_barrier")
    afsig()
    stamp(1)
    a("s_barrier")
    def nextseg():
        a(f"s_mul_i32 s5, s14, 10240\ns_and_b32 s3, s42, 1\ns_mul_i32 s3, s3, 40960\ns_add_u32 s3, s3, s5\ns_mul_i32 s4, s42, 40960\ns_add_u32 s4, s4, s5\ns_add_u32 s4, s4, {L.XN}\ns_add_u32 s42, s42, 1")
        xs_dma("s3", "s4")
    a(f"s_cmp_ge_u32 {sS}, 2\ns_cbranch_scc1 {T('VA_R')}")
    nextseg()
    a("s_waitcnt vmcnt(0)\ns_barrier")
    a.put(T("VA_R"))
    a(f"s_cmp_ge_u32 {sS}, 60\ns_cbranch_scc1 {T('VA_S')}")
    nextseg()
    a.put(T("VA_S"))
    a(f"s_cmp_eq_u32 s39, 0\ns_cbranch_scc1 {T('VA_N')}")
    slot("s34", L.HXS, L.HX); slot("s37", L.PXS, L.PX)
    a(f"s_add_u32 s35, s34, 4096\ns_add_u32 s36, s34, 8192\ns_add_u32 s3, {sS}, 1\nv_mov_b32 v113, s3")
    flagwait("v6", "v64", "s3")
    stamp(4)
    for p in range(3):
        for i, v in enumerate(("v14", "v15", "v7")): a(f"buffer_load_dwordx4 v[{64+12*p+4*i}:{67+12*p+4*i}], {v}, {WS}, s{34+p} offen sc1")
    a("s_waitcnt vmcnt(3)")
    for i in range(6): a(f"v_pk_add_f32 v[{64+2*i}:{65+2*i}], v[{64+2*i}:{65+2*i}], v[{76+2*i}:{77+2*i}]")
    for i in range(6): a(f"v_pk_add_f32 v[{64+2*i}:{65+2*i}], v[{64+2*i}:{65+2*i}], v[{100+2*i}:{101+2*i}]")
    a("s_waitcnt vmcnt(0)")
    for i in range(6): a(f"v_pk_add_f32 v[{64+2*i}:{65+2*i}], v[{64+2*i}:{65+2*i}], v[{88+2*i}:{89+2*i}]")
    a("v_max3_f32 v76, v64, v65, v66")
    for i in range(4): a(f"v_max3_f32 v76, v76, v{67+2*i}, v{68+2*i}")
    a("v_max_f32 v76, v76, v75")
    def xred(op):
        a(f"v_mov_b32 v77, v76\nv_permlane16_swap_b32 v76, v77\n{op} v76, v76, v77\nv_mov_b32 v77, v76\nv_permlane32_swap_b32 v76, v77\n{op} v76, v76, v77")
    xred("v_max_f32")
    a("v_mul_f32 v78, s38, v76")
    for i in range(6): a(f"v_pk_fma_f32 v[{64+2*i}:{65+2*i}], v[{64+2*i}:{65+2*i}], v[114:115], v[78:79] op_sel_hi:[1,1,0] neg_lo:[0,0,1] neg_hi:[0,0,1]")
    for i in range(12): a(f"v_exp_f32 v{64+i}, v{64+i}")
    a("v_pk_add_f32 v[76:77], v[64:65], v[66:67]")
    for i in range(2, 6): a(f"v_pk_add_f32 v[76:77], v[76:77], v[{64+2*i}:{65+2*i}]")
    a("v_add_f32 v76, v76, v77")
    xred("v_add_f32")
    a("v_rcp_f32 v78, v76")
    for i in range(6): a(f"v_pk_mul_f32 v[{64+2*i}:{65+2*i}], v[{64+2*i}:{65+2*i}], v[78:79] op_sel_hi:[1,0]")
    for i in range(6): a(f"v_cvt_pk_bf16_f32 v{80+i}, v{64+2*i}, v{65+2*i}")
    a(f"buffer_store_dwordx4 v[80:83], v10, {WS}, s37 offen{ST}\nbuffer_store_dwordx2 v[84:85], v11, {WS}, s37 offen{ST}")
    a(f"s_waitcnt vmcnt(0)\nbuffer_store_dword v113, v112, {WS}, {sFL} offen{ST}")
    stamp(5)
    a.put(T("VA_N"))
    dump()
    a(f"s_add_u32 {sS}, {sS}, 1\ns_cmp_lt_u32 {sS}, 64\ns_cbranch_scc1 {T('VA_LOOP')}")
    finish()

    a.put(T("COMB"))
    ZM, PT, PM = 65536, 81920, 83968
    OST = OPT.get("OST", 0); OSTG = 86016
    a(f"s_sub_u32 s15, {sR}, 18")
    a(f"s_cmp_ge_u32 {sW}, 4\ns_cbranch_scc1 {T('CAUX')}")
    idxreg("v5")
    a(f"s_mul_i32 s3, {sW}, 3072\nv_add_u32 v4, s3, v2")
    a(f"v_and_b32 v6, 15, v0\nv_lshlrev_b32 v6, 4, v6\nv_bfe_u32 v7, v0, 4, 1\nv_lshl_add_u32 v6, v7, 3, v6\nv_lshrrev_b32 v7, 5, v0\nv_lshl_add_u32 v6, v7, 10, v6\ns_lshl_b32 s3, {sW}, 8\ns_add_u32 s3, s3, {ZM}\nv_add_u32 v6, s3, v6")
    a(f"s_lshl_b32 s3, {sW}, 12\nv_add_u32 v8, s3, v2\ns_mul_i32 s3, {sW}, 12288\nv_add_u32 v14, s3, v2")
    a(f"s_lshr_b32 s4, {sW}, 1\ns_lshl_b32 s3, s4, 11\nv_add_u32 v11, s3, v2\ns_and_b32 s5, {sW}, 1\ns_mul_i32 s3, s5, 5120\nv_add_u32 v12, s3, v2")
    a(f"v_and_b32 v13, 7, v0\nv_lshlrev_b32 v13, 7, v13\nv_lshrrev_b32 v7, 4, v0\nv_lshl_add_u32 v13, v7, 4, v13\nv_bfe_u32 v7, v0, 3, 1\nv_lshl_add_u32 v13, v7, 6, v13\ns_mul_i32 s3, {sQ}, 81920\ns_lshl_b32 s6, s15, 13\ns_add_u32 s3, s3, s6\ns_lshl_b32 s6, {sW}, 11\ns_add_u32 s3, s3, s6\nv_add_u32 v13, s3, v13")
    a(f"v_min_u32 v15, 5, v0\nv_lshlrev_b32 v15, 2, v15\ns_mul_i32 s3, {sW}, 24\nv_add_u32 v15, s3, v15")
    a("v_and_b32 v60, 3, v0\nv_lshlrev_b32 v60, 2, v60\ns_lshl_b32 s3, s5, 4\ns_add_u32 s3, s3, 384\nv_add_u32 v60, s3, v60")
    a(f"s_add_u32 s3, s15, {sW}\ns_cmp_eq_u32 s3, 0\ns_mov_b32 s4, {OOB}\ns_cselect_b32 s3, 1024, s4")
    onelane("v61", "s3")
    a(f"s_mov_b32 s43, {L.OUTP - 2*655360}")
    a(f"s_lshl_b32 s3, s15, 15\ns_lshl_b32 s4, {sW}, 9\ns_add_u32 s3, s3, s4\ns_lshr_b32 s5, {sQ}, 2\ns_lshl_b32 s5, s5, 14\ns_add_u32 s3, s3, s5\ns_and_b32 s4, {sQ}, 3\ns_lshl_b32 s4, s4, 11\ns_add_u32 s3, s3, s4")
    a("v_and_b32 v62, 7, v0\nv_lshrrev_b32 v3, 5, v0\nv_lshlrev_b32 v3, 8, v3\nv_lshl_add_u32 v3, v62, 5, v3\nv_bfe_u32 v7, v0, 4, 1\nv_lshl_add_u32 v3, v7, 4, v3\nv_bfe_u32 v7, v0, 3, 1\nv_lshl_add_u32 v3, v7, 13, v3\nv_add_u32 v3, s3, v3")
    a("v_lshrrev_b32 v7, 4, v0\nv_lshl_add_u32 v1, v7, 3, v62\nv_lshlrev_b32 v1, 4, v1\nv_add_u32 v1, %d, v1" % PT)
    a(f"s_lshl_b32 s38, {sW}, 10")
    def vxloads(add):
        slot("s35", L.VXS, L.VX, add)
        a("s_add_u32 s36, s35, 4096\ns_add_u32 s37, s35, 8192")
        for i in range(12): a(f"buffer_load_dwordx4 v[{160+4*i}:{163+4*i}], v14, {WS}, s{35+i//4} offen offset:{(i%4)*1024} sc1")
    PZA = OPT.get("PZA", 0)
    def pxloads(va="v12"):
        slot("s35", L.PXS, L.PX, NS - 1)
        a("s_add_u32 s36, s35, 4096")
        for h in range(4): a(f"buffer_load_dwordx4 v[{208+4*h}:{211+4*h}], {va}, {WS}, s35 offen offset:{1024*h} sc1")
        a(f"buffer_load_dwordx4 v[224:227], {va}, {WS}, s36 offen sc1")
    VXI = OPT.get("VXI", 1)
    def zx(add, nxt=False):
        if nxt:
            slot("s35", L.VXS, L.VX, 2)
            a(f"s_cmp_ge_u32 {sS}, 62\ns_cselect_b32 s35, {OOB - 65536}, s35\ns_add_u32 s36, s35, 4096\ns_add_u32 s37, s35, 8192")
        a(f"s_add_u32 s3, {sS}, {add}\ns_and_b32 s3, s3, 3\ns_lshl_b32 s3, s3, 14\nv_add_u32 v7, s3, v8")
        for i in range(6):
            for ct in range(4):
                for tt in range(2):
                    w = 64 + 32*(i // 2) + 8*ct + 4*(i % 2); d = 16 + 8*ct + 4*tt; x = 160 + 8*i + 4*tt
                    a(f"v_mfma_f32_16x16x32_bf16 v[{d}:{d+3}], v[{x}:{x+3}], v[{w}:{w+3}], " + ("0" if i == 0 else f"v[{d}:{d+3}]"))
            if nxt and i > 0:
                for k in (2*i - 2, 2*i - 1) + ((10, 11) if i == 5 else ()):
                    a(f"buffer_load_dwordx4 v[{160+4*k}:{163+4*k}], v14, {WS}, s{35+k//4} offen offset:{(k%4)*1024} sc1")
        for ct in range(4):
            d = 16 + 8*ct
            for i in range(4): a(f"v_cvt_pk_bf16_f32 v{d+i}, v{d+2*i}, v{d+2*i+1}")
            a(f"ds_write_b128 v7, v[{d}:{d+3}] offset:{1024*ct}")
    PAG = [228, 232, 236, 240, 244, 248, 252, 48, 52, 56]; PAA = [128 + 4*i for i in range(10)]
    def pzreads(PA=PAG, vb="v11", t0="v9", t1="v10", part=3):
        a(f"s_add_u32 s3, {sS}, 2\ns_and_b32 s3, s3, 3\ns_lshl_b32 s4, s3, 14\nv_add_u32 {t0}, s4, {vb}\ns_lshl_b32 s3, s3, 12\ns_add_u32 s3, s3, {ZM}\nv_add_u32 {t1}, s3, {vb}")
        for cc in range(2):
            if part & 1:
                for h in range(4): a(f"ds_read_b128 v[{PA[5*cc+h]}:{PA[5*cc+h]+3}], {t0} offset:{4096*h + 1024*cc}")
            if part & 2: a(f"ds_read_b128 v[{PA[5*cc+4]}:{PA[5*cc+4]+3}], {t1} offset:{1024*cc}")
    def pz(PA=PAG, o=20):
        for h in range(5):
            for cc in range(2):
                d = o + 8*cc
                a(f"v_mfma_f32_16x16x32_bf16 v[{d}:{d+3}], v[{PA[5*cc+h]}:{PA[5*cc+h]+3}], v[{208+4*h}:{211+4*h}], " + ("0" if h == 0 else f"v[{d}:{d+3}]"))
        for i in range(4): a(f"v_and_or_b32 v{o+4+i}, v{o+i}, -4, 1\nv_and_or_b32 v{o+8+i}, v{o+8+i}, -4, 1")
        for i in range(4): a(f"v_mov_b32 v{o+i}, v{o+4+i}")
        for i in range(4): a(f"v_mov_b32_dpp v{o+i}, v{o+8+i} row_ror:8 row_mask:0xf bank_mask:0xc")
        for i in range(4): a(f"v_mov_b32_dpp v{o+8+i}, v{o+4+i} row_ror:8 row_mask:0xf bank_mask:0x3")
    OSC = OPT.get("OSC", " sc1")
    def outp(o=20, va="v13"):
        if not OPT.get("NOOUTP"): a(f"buffer_store_dwordx4 v[{o}:{o+3}], {va}, {WS}, s43 offen{OSC}\nbuffer_store_dwordx4 v[{o+8}:{o+11}], {va}, {WS}, s43 offen offset:1024{OSC}")
    a(f"s_mov_b32 {sS}, 0\ns_mov_b32 s4, 1")
    flagwait("v15", "v62", "s4")
    c["rt"](5)
    vxloads(0)
    a("s_waitcnt vmcnt(0)")
    zx(0)
    a("s_waitcnt lgkmcnt(0)\ns_barrier")
    a.put(T("CG_LOOP"))
    slot("s34", L.VMS, L.VM)
    for i in range(32, 48): a(f"v_mov_b32 v{i}, 0")
    a(f"s_and_b32 s3, {sS}, 3\ns_lshl_b32 s4, s3, 14\ns_add_u32 s4, s4, s38\nv_add_u32 v9, s4, v2\ns_lshl_b32 s3, s3, 12\nv_add_u32 v7, s3, v6\ns_add_u32 s3, s3, s38\ns_add_u32 s3, s3, {ZM}\nv_add_u32 v10, s3, v2")
    for h in range(4): a(f"ds_read_b128 v[{228+4*h}:{231+4*h}], v9 offset:{4096*h}")
    slot("s39", L.H3S, L.H3, 0, False); tagreg("s25")
    if OPT.get("SLV") or not AF: a(f"s_sleep {OPT['SLV'] if AF or not OPT.get('AF') else 10}")
    if AF:
        afwait(3456, 6, 48, OPT.get("AFV", 300))
    stamp(6)
    a.put(T("CG_P"))
    a(f"s_sub_u32 {sBUD}, {sBUD}, 1\ns_cbranch_scc1 END")
    for i in range(3): a(f"buffer_load_dwordx4 v[{48+4*i}:{51+4*i}], v4, {WS}, s34 offen offset:{1024*i} sc1")
    a("s_waitcnt vmcnt(2)\nv_max3_u32 v62, v48, v49, v50\ns_waitcnt vmcnt(1)\nv_max3_u32 v62, v62, v51, v52\nv_max3_u32 v62, v62, v53, v54")
    a(f"s_waitcnt vmcnt(0)\nv_max3_u32 v62, v62, v55, v56\nv_max3_u32 v62, v62, v57, v58\nv_max_u32 v62, v62, v59\nv_cmp_eq_u32 vcc, -1, v62\ns_cbranch_vccnz {T('CG_P')}")
    stamp(0)
    for kb in range(3):
        for t in range(4):
            a(f"v_smfmac_f32_16x16x64_bf16 v[{32+4*t}:{35+4*t}], v[{48+4*kb}:{51+4*kb}], v[{64+32*kb+8*t}:{71+32*kb+8*t}], v5")
    for p in range(2):
        o = 32 + 8*p
        for i in range(4): a(f"v_permlane32_swap_b32 v{o+i}, v{o+4+i}")
        a(f"v_pk_add_f32 v[{o}:{o+1}], v[{o}:{o+1}], v[{o+4}:{o+5}]\nv_pk_add_f32 v[{o+2}:{o+3}], v[{o+2}:{o+3}], v[{o+6}:{o+7}]")
        a(f"v_cvt_pk_bf16_f32 v{o}, v{o}, v{o+1}\nv_cvt_pk_bf16_f32 v{o+1}, v{o+2}, v{o+3}\nds_write_b64 v7, v[{o}:{o+1}] offset:{2048*p}")
    a("s_waitcnt lgkmcnt(0)")
    stamp(1)
    a("s_barrier")
    stamp(2)
    a(f"s_cmp_eq_u32 {sS}, 63\ns_cbranch_scc1 {T('CG_0')}")
    for h in range(4): a(f"ds_read_b128 v[{16+4*h}:{19+4*h}], v1 offset:{512*h}")
    a(f"ds_read_b128 v[32:35], v1 offset:{PM-PT}\nds_read_b128 v[36:39], v10")
    for h in range(5):
        a(f"s_waitcnt lgkmcnt({[5,4,3,2,0][h]})")
        z = 228 + 4*h if h < 4 else 36
        a(f"v_mfma_f32_16x16x32_bf16 v[40:43], v[{z}:{z+3}], v[{16+4*h}:{19+4*h}], " + ("0" if h == 0 else "v[40:43]"))
    for i in range(4): a(f"v_and_or_b32 v{40+i}, v{40+i}, -4, s25")
    a(f"buffer_store_dwordx4 v[40:43], v3, {WS}, s39 offen sc1")
    stamp(7)
    def rst():
        slot("s3", L.H3S, L.H3, NS - 2, False)
        for i in range(4): a(f"v_mov_b32 v{44+i}, 0")
        a(f"buffer_store_dwordx4 v[44:47], v3, {WS}, s3 offen sc1")
    if OPT.get('RST') == 2: rst()
    if PZA:
        a(f"s_cmp_ge_u32 {sS}, 2\ns_cbranch_scc1 {T('CG_Z')}\ns_cmp_eq_u32 {sS}, 1\ns_cbranch_scc1 {T('CG_Y')}\ns_mov_b32 s4, 2")
        flagwait("v15", "v62", "s4")
        vxloads(1)
        a.put(T("CG_Y"))
        a(f"s_add_u32 s4, {sS}, 3")
        flagwait("v15", "v62", "s4")
        a.put(T("CG_Z"))
        a(f"s_sub_u32 s3, {sS}, 3\ns_max_i32 s3, s3, 0\nv_mov_b32 v63, s3\nbuffer_store_dword v63, v61, {WS}, {sFL} offen{ST}")
        zx(1, VXI)
        if OPT.get('RST') == 1: rst()
        stamp(3); stamp(4)
        a("s_waitcnt lgkmcnt(0)\ns_barrier")
        stamp(5)
        dump()
        a(f"s_add_u32 {sS}, {sS}, 1\ns_branch {T('CG_LOOP')}")
        a.put(T("CG_0"))
        a(f"v_mov_b32 v63, 60\nbuffer_store_dword v63, v61, {WS}, {sFL} offen{ST}")
        c["rt"](6)
        dump()
        finish()
    elif OPT.get("ORD"):
        a.put(T("CG_0"))
        pzreads()
        a(f"s_sub_u32 s3, {sS}, 3\ns_max_i32 s3, s3, 0\nv_mov_b32 v63, s3\ns_cmp_lt_u32 {sS}, 2\ns_cbranch_scc1 {T('CG_3')}\ns_waitcnt lgkmcnt(0)")
        pz()
        if OPT.get("ODL"): a(f"s_sleep {OPT['ODL']}")
        outp()
        a(f"s_sub_u32 s3, {sS}, 8\ns_cmp_ge_u32 s3, 4\ns_cbranch_scc1 {T('CG_3')}\ns_add_u32 s3, s43, {54*655360}")
        for i in range(4): a(f"v_mov_b32 v{24+i}, 0")
        a(f"buffer_store_dwordx4 v[24:27], v13, {WS}, s3 offen sc1\nbuffer_store_dwordx4 v[24:27], v13, {WS}, s3 offen offset:1024 sc1")
        a.put(T("CG_3"))
        if OPT.get('RST') == 1: rst()
        a(f"buffer_store_dword v63, v61, {WS}, {sFL} offen{ST}")
        stamp(3)
        a(f"s_cmp_eq_u32 {sS}, 63\ns_cbranch_scc1 {T('CG_1')}\ns_cmp_ge_u32 {sS}, 2\ns_cbranch_scc1 {T('CG_Z')}\ns_cmp_eq_u32 {sS}, 1\ns_cbranch_scc1 {T('CG_Y')}\ns_mov_b32 s4, 2")
        flagwait("v15", "v62", "s4")
        vxloads(1)
        a("s_waitcnt vmcnt(0)")
        a.put(T("CG_Y"))
        a(f"s_add_u32 s4, {sS}, 3")
        flagwait("v15", "v62", "s4")
        a.put(T("CG_Z"))
        zx(1, False)
        a.put(T("CG_1"))
        stamp(4)
        a("s_waitcnt lgkmcnt(0)\ns_barrier")
        stamp(5)
        if OPT.get("VDL"): a(f"s_sleep {OPT['VDL']}")
        pxloads()
        a(f"s_cmp_ge_u32 {sS}, 62\ns_cbranch_scc1 {T('CG_2')}")
        vxloads(2)
        a.put(T("CG_2"))
        dump()
        a(f"s_add_u32 s43, s43, 655360\ns_add_u32 {sS}, {sS}, 1\ns_cmp_lt_u32 {sS}, 64\ns_cbranch_scc1 {T('CG_LOOP')}")
        c["rt"](6)
        pzreads()
        a("s_waitcnt vmcnt(0) lgkmcnt(0)")
        pz()
        outp()
        a("s_mov_b32 s4, 64")
        flagwait("v60", "v62", "s4")
        pxloads()
        a(f"s_add_u32 s43, s43, 655360\ns_add_u32 {sS}, {sS}, 1")
        pzreads()
        a("s_waitcnt vmcnt(0) lgkmcnt(0)")
        pz()
        outp()
        finish()
    else:
        a.put(T("CG_0"))
        pzreads()
        a(f"s_cmp_eq_u32 {sS}, 63\ns_cbranch_scc1 {T('CG_1')}\ns_cmp_ge_u32 {sS}, 2\ns_cbranch_scc1 {T('CG_Z')}\ns_cmp_eq_u32 {sS}, 1\ns_cbranch_scc1 {T('CG_Y')}\ns_mov_b32 s4, 2")
        flagwait("v15", "v62", "s4")
        vxloads(1)
        a.put(T("CG_Y"))
        a(f"s_add_u32 s4, {sS}, 3")
        flagwait("v15", "v62", "s4")
        a.put(T("CG_Z"))
        zx(1, VXI)
        a.put(T("CG_1"))
        a("s_waitcnt lgkmcnt(0)")
        pz()
        a(f"s_sub_u32 s3, {sS}, {4 if OST else 3}\ns_max_i32 s3, s3, 0\nv_mov_b32 v63, s3")
        OF = OPT.get("OFIRST", 1)
        def outp_c():
            a(f"s_cmp_lt_u32 {sS}, 2\ns_cbranch_scc1 {T('CG_3')}")
            if OST:
                a(f"s_cmp_lt_u32 {sS}, 63\ns_cbranch_scc1 {T('CG_4')}")
                outp()
                a(f"s_branch {T('CG_3')}")
                a.put(T("CG_4"))
                a(f"s_lshl_b32 s3, {sW}, 11\ns_add_u32 s3, s3, {OSTG}\nv_add_u32 v7, s3, v2\nds_write_b128 v7, v[20:23]\nds_write_b128 v7, v[28:31] offset:1024")
            else: outp()
            a(f"s_sub_u32 s3, {sS}, 8\ns_cmp_ge_u32 s3, {5 if OST else 4}\ns_cbranch_scc1 {T('CG_3')}\ns_add_u32 s3, s43, {(53 if OST else 54)*655360}")
            for i in range(4): a(f"v_mov_b32 v{20+i}, 0")
            a(f"buffer_store_dwordx4 v[20:23], v13, {WS}, s3 offen sc1\nbuffer_store_dwordx4 v[20:23], v13, {WS}, s3 offen offset:1024 sc1")
            a.put(T("CG_3"))
        stamp(3)
        if OPT.get("BD"): a(f"s_sleep {OPT['BD']}")
        if OF == 1: outp_c()
        if OPT.get('RST') == 1: rst()
        a(f"buffer_store_dword v63, v61, {WS}, {sFL} offen{ST}")
        if not VXI:
            a(f"s_cmp_ge_u32 {sS}, 62\ns_cbranch_scc1 {T('CG_2')}")
            vxloads(2)
            a.put(T("CG_2"))
        pxloads()
        if OF == 0: outp_c()
        stamp(4)
        a("s_waitcnt lgkmcnt(0)\ns_barrier")
        if OPT.get("PROBE"):
            stamp(5)
            for i, n in enumerate((13, 7, 2, 0) if OF == 0 else (18, 11, 5, 0)):
                a(f"s_waitcnt vmcnt({n})"); stamp(6 + i)
        stamp(5)
        dump()
        a(f"s_add_u32 s43, s43, 655360\ns_add_u32 {sS}, {sS}, 1\ns_cmp_lt_u32 {sS}, 64\ns_cbranch_scc1 {T('CG_LOOP')}")
        c["rt"](6)
        pzreads()
        a("s_waitcnt vmcnt(%d) lgkmcnt(0)" % (2 if OF == 0 else 0))
        pz()
        outp()
        a("s_mov_b32 s4, 64")
        flagwait("v60", "v62", "s4")
        pxloads()
        a(f"s_add_u32 s43, s43, 655360\ns_add_u32 {sS}, {sS}, 1")
        pzreads()
        a("s_waitcnt vmcnt(0) lgkmcnt(0)")
        pz()
        outp()
        finish()

    a.put(T("CAUX"))
    a(f"s_setprio 2\ns_sub_u32 s14, {sW}, 4")
    a("s_mul_i32 s3, s14, 3840\nv_add_u32 v4, s3, v2\ns_add_u32 s3, s3, 1024\nv_lshlrev_b32 v5, 2, v0\nv_add_u32 v5, s3, v5")
    a("v_and_b32 v6, 3, v0\nv_bfe_u32 v7, v0, 2, 3\nv_lshl_add_u32 v12, v6, 3, v7\nv_lshlrev_b32 v12, 4, v12\nv_lshrrev_b32 v8, 5, v0\nv_lshl_add_u32 v12, v8, 3, v12\ns_lshl_b32 s3, s14, 9\ns_add_u32 s3, s3, %d\nv_add_u32 v12, s3, v12" % PT)
    a("v_lshlrev_b32 v13, 4, v7\nv_lshl_add_u32 v13, v8, 3, v13\nv_lshl_add_u32 v13, v6, 1, v13\ns_lshl_b32 s3, s14, 7\ns_add_u32 s3, s3, %d\nv_add_u32 v13, s3, v13" % PM)
    a(f"s_lshl_b32 s3, s15, 7\ns_add_u32 s3, s3, 2048\ns_cmp_eq_u32 s14, 0\ns_cselect_b32 s3, s3, {OOB}")
    onelane("v10", "s3")
    a("s_mov_b32 s24, 0x3dd53b95\nv_mov_b32 v20, s24\nv_mov_b32 v21, s24")
    if OST:
        a(f"v_and_b32 v14, 7, v0\nv_lshlrev_b32 v14, 7, v14\nv_lshrrev_b32 v7, 4, v0\nv_lshl_add_u32 v14, v7, 4, v14\nv_bfe_u32 v7, v0, 3, 1\nv_lshl_add_u32 v14, v7, 6, v14\ns_mul_i32 s3, {sQ}, 81920\ns_lshl_b32 s6, s15, 13\ns_add_u32 s3, s3, s6\ns_lshl_b32 s6, s14, 11\ns_add_u32 s3, s3, s6\nv_add_u32 v14, s3, v14")
        a(f"s_add_u32 s6, s6, {OSTG}\nv_add_u32 v15, s6, v2\ns_mov_b32 s43, {L.OUTP - 3*655360}")
    def ostrd():
        if OST: a("ds_read_b128 v[80:83], v15\nds_read_b128 v[84:87], v15 offset:1024")
    def ostst():
        if OST:
            l = a.lab("OS")
            a(f"s_cmp_lt_u32 {sS}, 3\ns_cbranch_scc1 {l}")
            if OPT.get("ODL"): a(f"s_sleep {OPT['ODL']}")
            a(f"buffer_store_dwordx4 v[80:83], v14, {WS}, s43 offen sc1\nbuffer_store_dwordx4 v[84:87], v14, {WS}, s43 offen offset:1024 sc1")
            a.put(l)
            a("s_add_u32 s43, s43, 655360")
    if PZA:
        a(f"v_and_b32 v14, 7, v0\nv_lshlrev_b32 v14, 7, v14\nv_lshrrev_b32 v7, 4, v0\nv_lshl_add_u32 v14, v7, 4, v14\nv_bfe_u32 v7, v0, 3, 1\nv_lshl_add_u32 v14, v7, 6, v14\ns_mul_i32 s3, {sQ}, 81920\ns_lshl_b32 s6, s15, 13\ns_add_u32 s3, s3, s6\ns_lshl_b32 s6, s14, 11\ns_add_u32 s3, s3, s6\nv_add_u32 v14, s3, v14")
        a("s_lshr_b32 s4, s14, 1\ns_lshl_b32 s3, s4, 11\nv_add_u32 v15, s3, v2\ns_and_b32 s5, s14, 1\ns_mul_i32 s3, s5, 5120\nv_add_u32 v16, s3, v2")
        a("v_and_b32 v17, 3, v0\nv_lshlrev_b32 v17, 2, v17\ns_lshl_b32 s3, s5, 4\ns_add_u32 s3, s3, 384\nv_add_u32 v17, s3, v17")
        a(f"s_mov_b32 s43, {L.OUTP - 2*655360}")
    def tokout():
        if not PZA: return
        l = a.lab("TO")
        a(f"s_cmp_lt_u32 {sS}, 2\ns_cbranch_scc1 {l}")
        a("s_waitcnt lgkmcnt(0)")
        pz(PAA, 88)
        if OPT.get("ODL"): a(f"s_sleep {OPT['ODL']}")
        outp(88, "v14")
        a(f"s_sub_u32 s3, {sS}, 8\ns_cmp_ge_u32 s3, 4\ns_cbranch_scc1 {l}\ns_add_u32 s3, s43, {54*655360}")
        for i in range(4): a(f"v_mov_b32 v{100+i}, 0")
        a(f"buffer_store_dwordx4 v[100:103], v14, {WS}, s3 offen sc1\nbuffer_store_dwordx4 v[100:103], v14, {WS}, s3 offen offset:1024 sc1")
        a.put(l)
        a("s_add_u32 s43, s43, 655360")
    a(f"s_mov_b32 s40, 0\ns_cmp_lg_u32 s14, 0\ns_cbranch_scc1 {T('CA_C')}")
    a("v_and_b32 v24, 31, v0\nv_lshlrev_b32 v24, 4, v24\nv_lshrrev_b32 v25, 5, v0\nv_lshl_add_u32 v24, v25, 11, v24\ns_lshl_b32 s3, s15, 15\nv_add_u32 v24, s3, v24")
    a(f"s_mov_b32 s6, -1\ns_mov_b32 s7, -1\ns_mov_b32 s4, {L.H3 + 2*L.H3S}\nbuffer_load_dwordx2 v[26:27], v24, {WS}, s4 offen sc1\ns_waitcnt vmcnt(0)")
    for it in range(OPT.get("NCAL", 3)):
        for cp in range(2):
            a(f"s_mov_b32 s4, {L.H3 + 3*L.H3S + 8192*cp + 4096*(it % 2) + 16384*(it // 2)}\ns_memtime s[60:61]\ns_waitcnt lgkmcnt(0)\nbuffer_load_dwordx2 v[26:27], v24, {WS}, s4 offen sc1\ns_waitcnt vmcnt(0)")
            a(f"s_memtime s[62:63]\ns_waitcnt lgkmcnt(0)\ns_sub_u32 s3, s62, s60\ns_min_u32 s{6+cp}, s{6+cp}, s3")
    a("s_cmp_lt_u32 s7, s6\ns_cselect_b32 s40, 1, 0")
    if FLIP: a("s_xor_b32 s40, s40, 1")
    if INSTR: a("s_mov_b32 s52, s6\ns_mov_b32 s53, s7\ns_mov_b32 s54, s40")
    a.put(T("CA_C"))
    a(f"s_mov_b32 {sS}, 0\ns_barrier")
    stamp0()
    a.put(T("CA_LOOP"))
    ostrd()
    if PZA: pzreads(PAA, "v15", "v18", "v19")
    slot("s34", L.H2S, L.H2); tagreg("s25")
    a(f"s_lshl_b32 s3, {sS}, 1\ns_add_u32 s3, s3, s40\ns_add_u32 s3, s3, 2\nv_mov_b32 v11, s3")
    if OPT.get("SL2") or not AF: a(f"s_sleep {OPT['SL2'] if AF or not OPT.get('AF') else 16}")
    if AF:
        afwait(3584, 12, 24, OPT.get("AFS", 300))
    stamp(5)
    a.put(T("CA_P2"))
    a(f"s_sub_u32 {sBUD}, {sBUD}, 1\ns_cbranch_scc1 END")
    for p in range(3): a(f"buffer_load_dwordx4 v[{24+4*p}:{27+4*p}], v4, {WS}, s34 offen offset:{1280*p} sc1")
    for p in range(3): a(f"buffer_load_dword v{36+p}, v5, {WS}, s34 offen offset:{1280*p} sc1")
    a("s_waitcnt vmcnt(5)\n" + A3("v40", "s25", "v24", "v25") + "\n" + A3("v40", "v40", "v26", "v27"))
    a("s_waitcnt vmcnt(4)\nv_pk_add_f32 v[72:73], v[24:25], v[28:29]\nv_pk_add_f32 v[74:75], v[26:27], v[30:31]\n" + A3("v40", "v40", "v28", "v29") + "\n" + A3("v40", "v40", "v30", "v31"))
    a("s_waitcnt vmcnt(3)\nv_pk_add_f32 v[72:73], v[72:73], v[32:33]\nv_pk_add_f32 v[74:75], v[74:75], v[34:35]\n" + A3("v40", "v40", "v32", "v33") + "\n" + A3("v40", "v40", "v34", "v35"))
    a("v_max3_f32 v77, v72, v73, v74\ns_waitcnt vmcnt(0)\n" + A3("v40", "v40", "v36", "v37") + "\nv_add_f32 v76, v36, v37\nv_and_b32 v40, v40, v38\nv_add_f32 v76, v76, v38\nv_cmp_eq_u32 vcc, 0, v40\nv_max3_f32 v77, v77, v75, v76")
    a(f"s_cbranch_vccnz {T('CA_P2')}")
    stamp(0)
    a("v_max_f32_dpp v77, v77, v77 quad_perm:[1,0,3,2] row_mask:0xf bank_mask:0xf\nv_max_f32_dpp v77, v77, v77 quad_perm:[2,3,0,1] row_mask:0xf bank_mask:0xf")
    a("v_mov_b32 v78, v77\nv_permlane32_swap_b32 v77, v78\nv_max_f32 v77, v77, v78")
    a("v_mul_f32 v78, s24, v77")
    a("v_pk_fma_f32 v[72:73], v[72:73], v[20:21], v[78:79] op_sel_hi:[1,1,0] neg_lo:[0,0,1] neg_hi:[0,0,1]\nv_pk_fma_f32 v[74:75], v[74:75], v[20:21], v[78:79] op_sel_hi:[1,1,0] neg_lo:[0,0,1] neg_hi:[0,0,1]\nv_fma_f32 v76, v76, v20, -v78")
    for i in range(5): a(f"v_exp_f32 v{72+i}, v{72+i}")
    a("v_pk_add_f32 v[78:79], v[72:73], v[74:75]\nv_add_f32 v77, v78, v76\nv_add_f32 v77, v77, v79")
    a("v_add_f32_dpp v77, v77, v77 quad_perm:[1,0,3,2] row_mask:0xf bank_mask:0xf\nv_add_f32_dpp v77, v77, v77 quad_perm:[2,3,0,1] row_mask:0xf bank_mask:0xf")
    a("v_mov_b32 v78, v77\nv_permlane32_swap_b32 v77, v78\nv_add_f32 v77, v77, v78")
    a("v_rcp_f32 v78, v77")
    a("v_pk_mul_f32 v[72:73], v[72:73], v[78:79] op_sel_hi:[1,0]\nv_pk_mul_f32 v[74:75], v[74:75], v[78:79] op_sel_hi:[1,0]\nv_mul_f32 v76, v76, v78")
    a("v_cvt_pk_bf16_f32 v72, v72, v73\nv_cvt_pk_bf16_f32 v73, v74, v75\nv_cvt_pk_bf16_f32 v76, v76, v76")
    a(f"ds_write_b64 v12, v[72:73]\nds_write_b16 v13, v76\ns_waitcnt lgkmcnt(0)")
    stamp(1)
    a("s_barrier")
    stamp(2)
    a(f"buffer_store_dword v11, v10, {WS}, {sFL} offen{ST}")
    ostst()
    tokout()
    if PZA: pxloads("v16")
    a("s_barrier")
    dump()
    a(f"s_add_u32 {sS}, {sS}, 1\ns_cmp_lt_u32 {sS}, 63\ns_cbranch_scc1 {T('CA_LOOP')}")
    if PZA:
        for j in range(3):
            pzreads(PAA, "v15", "v18", "v19", 3 if j < 2 else 1)
            if j:
                a(f"s_mov_b32 s4, {62+j}")
                flagwait("v17", "v24", "s4")
                a(f"s_sub_u32 {sS}, {sS}, 1")
                pxloads("v16")
                a(f"s_add_u32 {sS}, {sS}, 1")
            if j == 2:
                a("s_barrier")
                pzreads(PAA, "v15", "v18", "v19", 2)
            a("s_waitcnt vmcnt(0) lgkmcnt(0)")
            pz(PAA, 88)
            outp(88, "v14")
            a(f"s_add_u32 s43, s43, 655360\ns_add_u32 {sS}, {sS}, 1")
        finish()
        return
    ostrd()
    a("s_waitcnt lgkmcnt(0)")
    ostst()
    a("s_barrier\ns_barrier")
    finish()
```

```python
import sys
from asmlib import *

KNAME = "recurrent_scan__memory_aug_recurrent_mem_tr__swiglu_ffn__prompt_kernel"
OOB = 0x7fffff00

from lay import Lay

def gen(NS=4, FORCE_SLOW=0, BUDGET=300000, PARTS="all", INSTR=0, **OPT):
    L = Lay(NS)
    a = Asm()
    LOGNS = NS.bit_length() - 1
    WS = "s[8:11]"
    sW, sQ, sR, sS, sBUD, sMODE, sG = "s26", "s27", "s28", "s29", "s30", "s31", "s32"
    pX, pM0, pWQ, pWK, pWV, pWO, pWG, pWU, pWD, pOUT, pDBG, pWS = 64, 66, 68, 70, 72, 74, 76, 78, 80, 82, 84, 86
    def srd(d, p, n):
        a(f"s_mov_b32 s{d}, s{p}\ns_mov_b32 s{d+1}, s{p+1}\ns_mov_b32 s{d+2}, {n}\ns_mov_b32 s{d+3}, 0x00020000")
    def budget(lp):
        a(f"s_sub_u32 {sBUD}, {sBUD}, 1\ns_cbranch_scc0 {lp}\ns_branch END")
    def slot(dst, size, base, add=0, grp=True):
        if add: a(f"s_add_u32 {dst}, {sS}, {add}\ns_and_b32 {dst}, {dst}, {NS-1}")
        else: a(f"s_and_b32 {dst}, {sS}, {NS-1}")
        a(f"s_mul_i32 {dst}, {dst}, {size}")
        if base: a(f"s_add_u32 {dst}, {dst}, {base}")
        if grp: a(f"s_add_u32 {dst}, {dst}, {sG}")
    RT = OPT.get("RT", 0)
    def rt(i):
        if RT: a(f"s_memrealtime s[92:93]\ns_waitcnt lgkmcnt(0)\ns_mov_b32 s{94+i}, s92")
    def rtdump():
        if RT:
            rt(7)
            a(f"s_lshl_b32 s3, s2, 3\ns_add_u32 s3, s3, {sW}\ns_lshl_b32 s3, s3, 6\ns_add_u32 s3, s3, {L.DBG + (6 << 20)}\ns_lshl_b32 s4, {sQ}, 5\ns_add_u32 s4, s4, {sR}")
            for i in range(8): a(f"v_mov_b32 v{8+i}, s{94+i}")
            a("v_mov_b32 v16, s4\nv_mov_b32 v4, 0\ns_mov_b64 exec, 1")
            a(f"buffer_store_dwordx4 v[8:11], v4, {WS}, s3 offen\nbuffer_store_dwordx4 v[12:15], v4, {WS}, s3 offen offset:16\nbuffer_store_dword v16, v4, {WS}, s3 offen offset:32\ns_mov_b64 exec, -1")
    def dma(vaddr, srdn, soff, m0, extra=""):
        a(f"s_mov_b32 m0, {m0}\nbuffer_load_dwordx4 {vaddr}, {srdn}, {soff} offen {extra} lds")
    WNT = OPT.get("WNT", "nt")
    def xs_dma(slds, smem):
        for i in range(10):
            if i % 4 == 0:
                if i: a(f"s_add_u32 {slds}, {slds}, 4096\ns_add_u32 {smem}, {smem}, 4096")
                a(f"s_mov_b32 m0, {slds}")
            a(f"buffer_load_dwordx4 v2, {WS}, {smem} offen offset:{(i%4)*1024} sc1 lds")

    def layernorm(R, F, O, perm):
        T = F + 80
        for i in range(40):
            a(f"v_lshlrev_b32 v{F+2*i}, 16, v{R+i}\nv_and_b32 v{F+2*i+1}, 0xffff0000, v{R+i}")
        def red(v):
            a(f"v_add_f32_dpp v{v}, v{v}, v{v} row_ror:8 row_mask:0xf bank_mask:0xf")
            a(f"v_mov_b32 v{v+1}, v{v}\nv_permlane16_swap_b32 v{v}, v{v+1}\nv_add_f32 v{v}, v{v}, v{v+1}")
            a(f"v_mov_b32 v{v+1}, v{v}\nv_permlane32_swap_b32 v{v}, v{v+1}\nv_add_f32 v{v}, v{v}, v{v+1}")
        a(f"v_pk_add_f32 v[{T}:{T+1}], v[{F}:{F+1}], v[{F+2}:{F+3}]\nv_pk_add_f32 v[{T+2}:{T+3}], v[{F+4}:{F+5}], v[{F+6}:{F+7}]")
        for i in range(4, 40): t = T + 2*(i % 2); a(f"v_pk_add_f32 v[{t}:{t+1}], v[{t}:{t+1}], v[{F+2*i}:{F+2*i+1}]")
        a(f"v_pk_add_f32 v[{T}:{T+1}], v[{T}:{T+1}], v[{T+2}:{T+3}]\nv_add_f32 v{T}, v{T}, v{T+1}")
        red(T)
        a(f"v_mul_f32 v{T}, 0x3acccccd, v{T}")
        for i in range(40):
            t = T + 2 + 2*(i % 2); c = T + 6 + 2*(i % 2)
            a(f"v_pk_add_f32 v[{t}:{t+1}], v[{F+2*i}:{F+2*i+1}], v[{T}:{T+1}] op_sel_hi:[1,0] neg_lo:[0,1] neg_hi:[0,1]")
            if i < 2: a(f"v_pk_mul_f32 v[{c}:{c+1}], v[{t}:{t+1}], v[{t}:{t+1}]")
            else: a(f"v_pk_fma_f32 v[{c}:{c+1}], v[{t}:{t+1}], v[{t}:{t+1}], v[{c}:{c+1}]")
        a(f"v_pk_add_f32 v[{T+6}:{T+7}], v[{T+6}:{T+7}], v[{T+8}:{T+9}]\nv_add_f32 v{T+2}, v{T+6}, v{T+7}")
        red(T + 2)
        a(f"v_mul_f32 v{T+2}, 0x3acccccd, v{T+2}")
        a(f"v_cvt_pk_bf16_f32 v{T+2}, v{T+2}, v{T+2}\nv_lshlrev_b32 v{T+2}, 16, v{T+2}\nv_add_f32 v{T+2}, 0x3727c5ac, v{T+2}")
        a(f"v_cvt_pk_bf16_f32 v{T+2}, v{T+2}, v{T+2}\nv_lshlrev_b32 v{T+2}, 16, v{T+2}\nv_sqrt_f32 v{T+2}, v{T+2}")
        a(f"v_cvt_pk_bf16_f32 v{T+2}, v{T+2}, v{T+2}\nv_lshlrev_b32 v{T+2}, 16, v{T+2}\nv_rcp_f32 v{T+2}, v{T+2}")
        a(f"v_cvt_pk_bf16_f32 v{T}, v{T}, v{T}\nv_lshlrev_b32 v{T}, 16, v{T}")
        pos = [0, 2, 4, 6, 1, 3, 5, 7] if perm else list(range(8))
        for i in range(40):
            t = T + 4 + 2*(i % 2)
            o = O + 8*(i // 8) + pos[i % 8]
            a(f"v_pk_add_f32 v[{t}:{t+1}], v[{F+2*i}:{F+2*i+1}], v[{T}:{T+1}] op_sel_hi:[1,0] neg_lo:[0,1] neg_hi:[0,1]")
            a(f"v_cvt_pk_bf16_f32 v{t}, v{t}, v{t+1}\nv_and_b32 v{t+1}, 0xffff0000, v{t}\nv_lshlrev_b32 v{t}, 16, v{t}")
            a(f"v_pk_mul_f32 v[{t}:{t+1}], v[{t}:{t+1}], v[{T+2}:{T+3}] op_sel_hi:[1,0]")
            a(f"v_cvt_pk_bf16_f32 v{o}, v{t}, v{t+1}")
    def ln_loads(R, vaddr, srdn):
        for m in range(5):
            a(f"buffer_load_dwordx4 v[{R+8*m}:{R+8*m+3}], {vaddr}, {srdn}, 0 offen offset:{256*m}")
            a(f"buffer_load_dwordx4 v[{R+8*m+4}:{R+8*m+7}], {vaddr}, {srdn}, 0 offen offset:{256*m+16}")

    a("s_cmp_ge_u32 s2, 256\ns_cbranch_scc1 END")
    a("s_load_dwordx8 s[64:71], s[0:1], 0\ns_load_dwordx4 s[72:75], s[0:1], 32\ns_load_dwordx8 s[76:83], s[0:1], 64\ns_load_dwordx4 s[84:87], s[0:1], 96")
    a("v_lshrrev_b32 v1, 6, v0\nv_and_b32 v0, 63, v0")
    a(f"v_readfirstlane_b32 {sW}, v1")
    a(f"s_getreg_b32 {sQ}, hwreg(HW_REG_XCC_ID, 0, 4)\ns_and_b32 {sQ}, {sQ}, 7")
    a(f"s_mov_b32 {sBUD}, {BUDGET}\ns_mov_b32 {sMODE}, 0")
    a("v_lshlrev_b32 v2, 4, v0\nv_lshlrev_b32 v3, 3, v0")
    a("s_waitcnt lgkmcnt(0)")
    srd(8, pWS, 0x10000000)
    srd(20, pX, 2048*1280)
    if INSTR: a("s_memtime s[90:91]")
    rt(0)
    a(f"s_cmp_lg_u32 {sW}, 7\ns_cbranch_scc1 E1\ns_setprio 3")
    a("v_and_b32 v4, 7, v0\nv_mul_u32_u24 v4, 1280, v4\nv_lshrrev_b32 v5, 3, v0\nv_lshlrev_b32 v5, 5, v5\nv_add_u32 v4, v4, v5\ns_mul_i32 s3, s2, 10240\nv_add_u32 v4, s3, v4")
    ln_loads(16, "v4", "s[20:23]")
    a.put("E1")
    a(f"s_cmp_lg_u32 {sW}, 0\ns_cbranch_scc1 E2")
    a(f"s_lshl_b32 s3, {sQ}, 5\nv_mov_b32 v4, s3\nv_mov_b32 v5, 1\ns_mov_b64 exec, 1")
    a(f"global_atomic_add v6, v4, v5, s[{pDBG}:{pDBG+1}] sc0 sc1\ns_waitcnt vmcnt(0)\nv_mov_b32 v5, 0\nds_write_b32 v5, v6\ns_waitcnt lgkmcnt(0)\ns_mov_b64 exec, -1")
    a.put("E2")
    gper = L.GPOIS // 32; hper = NS * L.H3S // 256
    assert gper % 1024 == 0 and hper % 1024 == 0 and L.H2 % 1024 == 0
    for w, per, base in ((4, gper, None), (5, hper, L.H3)):
        nx = a.lab("INX")
        a(f"s_cmp_lg_u32 {sW}, {w}\ns_cbranch_scc1 {nx}")
        if base is None: a(f"s_lshr_b32 s3, s2, 5\ns_mul_i32 s3, s3, {L.GS}\ns_and_b32 s6, s2, 31\ns_mul_i32 s6, s6, {per}\ns_add_u32 s3, s3, s6")
        else: a(f"s_mul_i32 s3, s2, {per}\ns_add_u32 s3, s3, {base}\ns_mov_b32 s6, {L.H2}")
        a("s_mov_b32 s4, 0")
        lp = a.lab("IN"); a.put(lp)
        a(f"s_add_u32 s7, s4, s6\ns_cmp_lt_u32 s7, {L.H2}\ns_cselect_b32 s7, -1, 0\ns_add_u32 s5, s4, s3")
        a("v_mov_b32 v4, s7\nv_mov_b32 v5, s7\nv_mov_b32 v6, s7\nv_mov_b32 v7, s7")
        a(f"buffer_store_dwordx4 v[4:7], v2, {WS}, s5 offen sc1")
        a(f"s_add_u32 s4, s4, 1024\ns_cmp_lt_u32 s4, {per}\ns_cbranch_scc1 {lp}")
        a.put(nx)
    a(f"s_cmp_lg_u32 {sW}, 6\ns_cbranch_scc1 E3")
    a(f"v_and_b32 v6, 15, v0\nv_lshlrev_b32 v6, 3, v6\nv_mov_b32 v4, 0\nv_mov_b32 v5, 0\ns_lshl_b32 s3, s2, 7\ns_add_u32 s3, s3, {L.FL}\nbuffer_store_dwordx2 v[4:5], v6, {WS}, s3 offen sc1")
    a.put("E3")
    a("s_barrier\nv_mov_b32 v5, 0\nds_read_b32 v4, v5\ns_waitcnt lgkmcnt(0)")
    a(f"v_readfirstlane_b32 {sR}, v4\ns_barrier")
    if FORCE_SLOW == 1: a(f"s_mov_b32 {sR}, 99")
    if FORCE_SLOW == 2: a(f"s_cmp_eq_u32 s2, 5\ns_cselect_b32 {sR}, 99, {sR}")
    rt(1)
    a.put("ROLE")
    a(f"s_mul_i32 {sG}, {sQ}, {L.GS}")
    a(f"s_cmp_ge_u32 {sR}, 32\ns_cbranch_scc1 COM1\ns_cmp_ge_u32 {sR}, 28\ns_cbranch_scc1 PRO_F\ns_cmp_ge_u32 {sW}, 4\ns_cbranch_scc1 COM1\ns_cmp_ge_u32 {sR}, 18\ns_cbranch_scc1 PRO_C")
    a(f"s_cmp_lt_u32 {sR}, 12\ns_cbranch_scc0 PRO_PV")
    srd(12, pWQ, 640*12288); srd(16, pWK, 640*12288)
    a(f"s_mul_i32 s3, {sQ}, 1536\ns_lshl_b32 s4, {sR}, 7\ns_add_u32 s3, s3, s4\ns_mov_b32 s4, s3\ns_branch PRO_P2")
    a.put("PRO_PV")
    srd(12, pWV, 640*12288); srd(16, pWV, 640*12288)
    a(f"s_mul_i32 s3, {sQ}, 1536\ns_sub_u32 s4, {sR}, 12\ns_lshl_b32 s4, s4, 8\ns_add_u32 s3, s3, s4\ns_add_u32 s4, s3, 128")
    a.put("PRO_P2")
    a(f"v_lshrrev_b32 v4, 3, v0\nv_mul_u32_u24 v4, 12288, v4\ns_and_b32 s5, {sW}, 1\ns_lshl_b32 s5, s5, 1\nv_lshrrev_b32 v5, 5, v0\nv_add_u32 v5, s5, v5")
    a("v_bfe_u32 v6, v0, 1, 2\nv_xor_b32 v5, v5, v6\nv_lshlrev_b32 v5, 5, v5\nv_and_b32 v6, 1, v0\nv_lshlrev_b32 v6, 4, v6\nv_add3_u32 v4, v4, v5, v6")
    a(f"s_mul_i32 s5, {sW}, 98304\ns_add_u32 s3, s3, s5\ns_add_u32 s4, s4, s5\ns_lshl_b32 s6, {sW}, 10")
    for i in range(20):
        dma("v4", "s[12:15]", "s3", "s6", WNT)
        a("s_add_u32 s7, s6, 40960")
        dma("v4", "s[16:19]", "s4", "s7", WNT)
        if i < 19: a(f"s_add_u32 s3, s3, {4*98304}\ns_add_u32 s4, s4, {4*98304}\ns_add_u32 s6, s6, {4096 + (40960 if i == 9 else 0)}")
    a("s_branch COM1")
    a.put("PRO_C")
    srd(12, pWO, 6144*1280)
    a(f"v_lshrrev_b32 v4, 3, v0\nv_mul_u32_u24 v4, 1280, v4\nv_lshrrev_b32 v5, 4, v0\nv_bfe_u32 v6, v0, 1, 2\nv_xor_b32 v5, v5, v6\nv_lshlrev_b32 v5, 5, v5\nv_and_b32 v6, 1, v0\nv_lshlrev_b32 v6, 4, v6\nv_add3_u32 v4, v4, v5, v6")
    a(f"s_mul_i32 s3, {sQ}, {768*1280}\ns_sub_u32 s4, {sR}, 18\ns_lshl_b32 s4, s4, 7\ns_add_u32 s3, s3, s4\ns_mul_i32 s5, {sW}, 10240\ns_add_u32 s3, s3, s5\ns_lshl_b32 s6, {sW}, 10")
    for i in range(24):
        dma("v4", "s[12:15]", "s3", "s6", WNT)
        if i < 23: a("s_add_u32 s3, s3, 40960\ns_add_u32 s6, s6, 4096")
    a("s_branch COM1")
    a.put("PRO_F")
    a(f"s_lshl_b32 s33, {sQ}, 2\ns_add_u32 s33, s33, {sR}\ns_sub_u32 s33, s33, 28")
    a(f"v_and_b32 v4, 7, v0\ns_lshl_b32 s3, {sW}, 3\nv_add_u32 v4, s3, v4\nv_mul_u32_u24 v4, 40960, v4\nv_lshrrev_b32 v5, 3, v0\nv_lshlrev_b32 v5, 5, v5\nv_add_u32 v4, v4, v5\ns_mul_i32 s3, s33, 1280\nv_add_u32 v4, s3, v4")
    ln_loads(200, "v4", "s[20:23]")
    a.put("COM1")
    a(f"s_cmp_lg_u32 {sW}, 7\ns_cbranch_scc1 C2\ns_cmp_lg_u32 {sMODE}, 0\ns_cbranch_scc1 C2")
    a(f"s_cmp_lt_u32 {sR}, 28\ns_cbranch_scc1 C0\ns_cmp_ge_u32 {sR}, 32\ns_cbranch_scc1 C0\ns_waitcnt vmcnt(10)\ns_branch C1")
    a.put("C0")
    a("s_waitcnt vmcnt(0)")
    a.put("C1")
    layernorm(16, 64, 16, True)
    a("v_lshrrev_b32 v4, 4, v0\nv_lshlrev_b32 v4, 10, v4\nv_bfe_u32 v5, v0, 3, 1\nv_lshlrev_b32 v5, 9, v5\nv_and_b32 v6, 7, v0\nv_lshlrev_b32 v6, 4, v6\nv_add3_u32 v4, v4, v5, v6")
    a(f"s_lshr_b32 s3, s2, 1\ns_mul_i32 s3, s3, 20480\ns_and_b32 s4, s2, 1\ns_lshl_b32 s4, s4, 7\ns_add_u32 s3, s3, s4\ns_add_u32 s3, s3, {L.XN}")
    for m in range(5):
        a(f"buffer_store_dwordx4 v[{16+8*m}:{19+8*m}], v4, {WS}, s3 offen sc1\nbuffer_store_dwordx4 v[{20+8*m}:{23+8*m}], v4, {WS}, s3 offen offset:256 sc1")
        if m < 4: a("s_add_u32 s3, s3, 4096")
    a("s_setprio 0")
    a.put("C2")
    a(f"s_cmp_lt_u32 {sW}, 4\ns_cbranch_scc1 C2B\ns_waitcnt vmcnt(0)")
    a.put("C2B")
    rt(2)
    a("s_barrier")
    a(f"s_cmp_lg_u32 {sW}, 4\ns_cbranch_scc1 C3\ns_cmp_lg_u32 {sMODE}, 0\ns_cbranch_scc1 C3")
    a(f"s_cmp_lt_u32 {sR}, 32\ns_cselect_b32 s3, 1, 0x10001\nv_mov_b32 v4, 4\nv_mov_b32 v5, s3\ns_mov_b64 exec, 1\nglobal_atomic_add v6, v4, v5, s[{pDBG}:{pDBG+1}] sc0 sc1\ns_waitcnt vmcnt(0)")
    a("v_readfirstlane_b32 s4, v6\ns_add_u32 s3, s3, s4\ns_and_b32 s4, s3, 0xffff\ns_cmp_lg_u32 s4, 256\ns_cbranch_scc1 C2C")
    a(f"s_cmp_eq_u32 s3, 256\ns_cselect_b32 s3, 1, 2\nv_mov_b32 v5, s3\nglobal_store_dword v4, v5, s[{pDBG}:{pDBG+1}] offset:128 sc1")
    a.put("C2C")
    a("s_mov_b64 exec, -1")
    a.put("C3")
    a(f"s_cmp_lt_u32 {sR}, 28\ns_cbranch_scc1 C4\ns_cmp_ge_u32 {sR}, 32\ns_cbranch_scc1 C4\ns_waitcnt vmcnt(0)")
    layernorm(200, 64, 16, False)
    a(f"v_lshrrev_b32 v4, 3, v0\nv_lshlrev_b32 v4, 10, v4\nv_and_b32 v5, 7, v0\nv_lshl_add_u32 v4, v5, 4, v4\ns_lshr_b32 s3, {sW}, 2\ns_mul_i32 s3, s3, 40960\ns_and_b32 s4, {sW}, 3\ns_lshl_b32 s4, s4, 7\ns_add_u32 s3, s3, s4\nv_add_u32 v4, s3, v4")
    for m in range(5):
        a(f"ds_write_b128 v4, v[{16+8*m}:{19+8*m}] offset:{8192*m}\nds_write_b128 v4, v[{20+8*m}:{23+8*m}] offset:{8192*m+512}")
    a("s_waitcnt lgkmcnt(0)")
    a.put("C4")
    GOLD = f"global_load_dword v62, v63, s[{pDBG}:{pDBG+1}] offset:128 sc1"
    a("v_mov_b32 v63, 4")
    a(f"s_cmp_lg_u32 {sW}, 4\ns_cbranch_scc1 G2\ns_cmp_lg_u32 {sMODE}, 0\ns_cbranch_scc1 G2")
    a.put("G1")
    a(GOLD + "\ns_waitcnt vmcnt(0)\nv_cmp_ne_u32 vcc, 0, v62\ns_cbranch_vccnz G2\ns_sleep %d" % OPT.get("GSL", 2))
    budget("G1")
    a.put("G2")
    a(f"s_cmp_ge_u32 {sR}, 28\ns_cbranch_scc1 WR_X\ns_cmp_ge_u32 {sR}, 18\ns_cbranch_scc1 WR_C\ns_cmp_ge_u32 {sW}, 4\ns_cbranch_scc1 WR_A")
    a("v_lshrrev_b32 v4, 5, v0\nv_lshlrev_b32 v4, 4, v4\nv_bfe_u32 v5, v0, 4, 1\nv_lshl_add_u32 v4, v5, 2, v4\nv_bfe_u32 v6, v0, 2, 1\nv_add_u32 v4, v4, v6\nv_bfe_u32 v6, v0, 3, 1\nv_lshl_add_u32 v4, v6, 3, v4")
    a("v_lshlrev_b32 v4, 7, v4\nv_lshl_add_u32 v5, v6, 1, v5\nv_and_b32 v6, 3, v0\nv_lshl_add_u32 v4, v6, 3, v4")
    a(f"s_and_b32 s3, {sW}, 1\ns_lshl_b32 s3, s3, 1\ns_add_u32 s4, s3, 1\ns_lshr_b32 s5, {sW}, 1\ns_mul_i32 s5, s5, 40960\ns_mov_b32 s6, s5")
    a(f"s_cmp_lt_u32 {sR}, 12\ns_cselect_b32 s3, {sW}, s3\ns_cselect_b32 s4, {sW}, s4\ns_cselect_b32 s5, 0, s5\ns_cselect_b32 s6, 40960, s6")
    a("v_xor_b32 v6, s3, v5\nv_lshl_add_u32 v6, v6, 5, v4\nv_add_u32 v6, s5, v6\nv_add_u32 v8, 81920, v6")
    a("v_xor_b32 v7, s4, v5\nv_lshl_add_u32 v7, v7, 5, v4\nv_add_u32 v7, s6, v7\nv_add_u32 v9, 81920, v7")
    for hf in range(2):
        a(f"s_waitcnt vmcnt({0 if hf else 20})")
        rt(3 + hf)
        a("s_barrier")
        n = 0
        for kb in range(5*hf, 5*hf + 5):
            for T in range(2):
                for b in range(2):
                    for rd in range(2):
                        d = 64 + 16*kb + 8*T + 4*b + 2*rd
                        a(f"ds_read_b64_tr_b16 v[{d}:{d+1}], v{6+T+2*hf} offset:{(kb % 5)*8192 + b*4096 + rd*256}")
                        n += 1
                        if n % 8 == 0 and n > 8: a("s_waitcnt lgkmcnt(8)")
        a("s_waitcnt lgkmcnt(0)\ns_barrier")
        if hf == 0: a(GOLD)
    a("s_branch MODE")
    a.put("WR_A")
    rt(3)
    a(f"s_barrier\ns_barrier\n{GOLD}\ns_sub_u32 s14, {sW}, 4")
    srd(16, pM0, 10240)
    a("v_and_b32 v5, 7, v0\nv_mul_u32_u24 v5, 1280, v5\nv_lshrrev_b32 v6, 3, v0\nv_lshl_add_u32 v5, v6, 4, v5\ns_lshl_b32 s3, s14, 7\nv_add_u32 v5, s3, v5")
    for i in range(3): a(f"buffer_load_dwordx4 v[{16+4*i}:{19+4*i}], v5, s[16:19], 0 offen offset:{512*i}")
    for i in range(2):
        a(f"s_mul_i32 s3, s14, 10240\ns_add_u32 s3, s3, {40960*i}\ns_add_u32 s4, s3, {L.XN}")
        xs_dma("s3", "s4")
    a("s_barrier\ns_barrier\ns_waitcnt vmcnt(20)\ns_branch MODE")
    a.put("WR_C")
    a(f"s_cmp_ge_u32 {sW}, 4\ns_cbranch_scc1 WR_CA")
    a(f"v_lshrrev_b32 v4, 2, v0\nv_lshlrev_b32 v4, 7, v4\nv_and_b32 v5, 3, v0\nv_lshl_add_u32 v4, v5, 3, v4\ns_mul_i32 s3, {sW}, 24576\nv_add_u32 v4, s3, v4\nv_bfe_u32 v5, v0, 3, 2")
    for ct in range(4): a(f"v_xor_b32 v{6+ct}, {ct}, v5\nv_lshl_add_u32 v{6+ct}, v{6+ct}, 5, v4")
    a("s_waitcnt vmcnt(0)")
    rt(3)
    a("s_barrier\n" + GOLD)
    n = 0
    for kb in range(3):
        for ct in range(4):
            for b in range(2):
                for rd in range(2):
                    d = 64 + 32*kb + 8*ct + 4*b + 2*rd
                    a(f"ds_read_b64_tr_b16 v[{d}:{d+1}], v{6+ct} offset:{kb*8192 + b*4096 + rd*2048}")
                    n += 1
                    if n % 8 == 0 and n > 8: a("s_waitcnt lgkmcnt(8)")
    a("s_waitcnt vmcnt(0) lgkmcnt(0)\ns_barrier\ns_branch MODE")
    a.put("WR_CA")
    rt(3)
    a(f"s_barrier\n{GOLD}\ns_waitcnt vmcnt(0)\ns_barrier\ns_branch MODE")
    a.put("WR_X")
    rt(3)
    a(f"s_barrier\n{GOLD}\ns_waitcnt vmcnt(0)")
    a.put("MODE")
    a(f"v_readfirstlane_b32 s3, v62\ns_cmp_ge_u32 {sR}, 32\ns_cselect_b32 s3, 2, s3\ns_cmp_lg_u32 {sMODE}, 0\ns_cbranch_scc1 GO\ns_cmp_eq_u32 s3, 1\ns_cbranch_scc1 GO")
    a(f"s_mov_b32 {sMODE}, 1\ns_lshr_b32 {sQ}, s2, 5\ns_and_b32 {sR}, s2, 31\ns_waitcnt vmcnt(0)\ns_barrier\ns_branch ROLE")
    a.put("GO")
    a(f"s_mov_b32 {sS}, 0")
    if OPT.get("PROL"):
        rt(5); rtdump(); a("s_waitcnt vmcnt(0)\ns_branch END")
    a(f"s_cmp_ge_u32 {sR}, 28\ns_cbranch_scc1 FFN")
    if PARTS == "ffn": a("s_branch END")
    else:
        a(f"s_cmp_lg_u32 {sMODE}, 0\ns_cbranch_scc1 CHAIN_S")
        from chain import chain
        ctx = dict(locals())
        chain(ctx, "F", "")
        a.put("CHAIN_S")
        chain(ctx, "S", " sc1")

    a.put("FFN")
    if OPT.get("NOFFN"): a("s_branch END")
    srd(12, pWG, 640*3072); srd(16, pWU, 640*3072)
    LOG2E = "0x3fb8aa3b"
    RING1 = 81920
    a("v_lshrrev_b32 v4, 2, v0\nv_mul_u32_u24 v4, 3072, v4\nv_and_b32 v5, 3, v0\nv_lshl_add_u32 v4, v5, 4, v4")
    a("v_lshrrev_b32 v5, 5, v0\nv_lshlrev_b32 v5, 9, v5\nv_bfe_u32 v6, v0, 2, 2\nv_lshl_add_u32 v5, v6, 6, v5\nv_bfe_u32 v6, v0, 4, 1\nv_lshl_add_u32 v5, v6, 5, v5\nv_and_b32 v6, 3, v0\nv_lshl_add_u32 v5, v6, 3, v5")
    a(f"s_mul_i32 s34, {sW}, 10240\ns_add_u32 s34, s34, {RING1}")
    a(f"s_cmp_ge_u32 {sQ}, 6\ns_cselect_b32 s3, 6, 0\ns_sub_u32 s46, {sQ}, s3")
    if not OPT.get("ROT", 1): a("s_mov_b32 s46, 0")
    a(f"s_lshl_b32 s47, {sW}, 6\ns_add_u32 s48, s47, 3072\ns_lshl_b32 s35, s46, 9\ns_add_u32 s35, s35, s47")
    a("s_mov_b32 s36, 0\ns_mov_b32 s37, 0\ns_mov_b32 s38, s46\ns_mov_b32 s49, 0")
    def ffn1_issue():
        a("s_add_u32 s3, s34, s37")
        dma("v4", "s[12:15]", "s35", "s3")
        a("s_add_u32 s3, s3, 1024")
        dma("v4", "s[16:19]", "s35", "s3")
        a("s_add_u32 s37, s37, 2048\ns_cmp_eq_u32 s37, 10240\ns_cselect_b32 s37, 0, s37")
        a(f"s_add_u32 s35, s35, 49152\ns_add_u32 s36, s36, 1\ns_cmp_eq_u32 s36, 40\ns_cselect_b32 s3, {40*49152-512}, 0\ns_cselect_b32 s36, 0, s36\ns_sub_u32 s35, s35, s3\ns_cmp_eq_u32 s35, s48\ns_cselect_b32 s35, s47, s35")
    for i in range(4): ffn1_issue()
    a("s_mov_b32 s39, 0")
    a.put("F1_PASS")
    for i in range(64, 128): a(f"v_mov_b32 v{i}, 0")
    a("v_mov_b32 v6, v2\ns_mov_b32 s40, 0")
    a.put("F1_K")
    a("s_add_u32 s3, s34, s39\nv_add_u32 v7, s3, v5\ns_waitcnt vmcnt(6)")
    a("ds_read_b64_tr_b16 v[16:17], v7\nds_read_b64_tr_b16 v[18:19], v7 offset:256\nds_read_b128 v[24:27], v6\nds_read_b128 v[28:31], v6 offset:40960")
    a("ds_read_b64_tr_b16 v[20:21], v7 offset:1024\nds_read_b64_tr_b16 v[22:23], v7 offset:1280")
    ffn1_issue()
    a("s_add_u32 s39, s39, 2048\ns_cmp_eq_u32 s39, 10240\ns_cselect_b32 s39, 0, s39\nv_add_u32 v6, 1024, v6")
    a("s_waitcnt lgkmcnt(3)\nv_mfma_f32_32x32x16_bf16 v[64:79], v[16:19], v[24:27], v[64:79]")
    a("s_waitcnt lgkmcnt(2)\nv_mfma_f32_32x32x16_bf16 v[80:95], v[16:19], v[28:31], v[80:95]")
    a("s_waitcnt lgkmcnt(0)\nv_mfma_f32_32x32x16_bf16 v[96:111], v[20:23], v[24:27], v[96:111]\nv_mfma_f32_32x32x16_bf16 v[112:127], v[20:23], v[28:31], v[112:127]")
    a("s_add_u32 s40, s40, 1\ns_cmp_lt_u32 s40, 40\ns_cbranch_scc1 F1_K")
    a(f"s_mov_b32 s3, {LOG2E}")
    def silu_pair(x, t):
        a(f"v_cvt_pk_bf16_f32 v{t}, v{x}, v{x+1}\nv_lshlrev_b32 v{x}, 16, v{t}\nv_and_b32 v{x+1}, 0xffff0000, v{t}")
        a(f"v_mul_f32 v{t}, s3, v{x}\nv_mul_f32 v{t+1}, s3, v{x+1}\nv_exp_f32 v{t}, -v{t}\nv_exp_f32 v{t+1}, -v{t+1}")
        a(f"v_add_f32 v{t}, 1.0, v{t}\nv_add_f32 v{t+1}, 1.0, v{t+1}\nv_rcp_f32 v{t}, v{t}\nv_rcp_f32 v{t+1}, v{t+1}")
        a(f"v_pk_mul_f32 v[{x}:{x+1}], v[{x}:{x+1}], v[{t}:{t+1}]")
    for i in range(16):
        g = 64 + 2*i; u = 96 + 2*i; t = 16 + 2*(i % 4)
        silu_pair(g, t)
        a(f"v_cvt_pk_bf16_f32 v{t}, v{g}, v{g+1}\nv_lshlrev_b32 v{g}, 16, v{t}\nv_and_b32 v{g+1}, 0xffff0000, v{t}")
        a(f"v_cvt_pk_bf16_f32 v{t}, v{u}, v{u+1}\nv_lshlrev_b32 v{u}, 16, v{t}\nv_and_b32 v{u+1}, 0xffff0000, v{t}")
        a(f"v_pk_mul_f32 v[{g}:{g+1}], v[{g}:{g+1}], v[{u}:{u+1}]")
    for p in range(6):
        nx = a.lab("F1S")
        if p < 5: a(f"s_cmp_lg_u32 s38, {p}\ns_cbranch_scc1 {nx}")
        for i in range(16): a(f"v_cvt_pk_bf16_f32 v{160+16*p+i}, v{64+2*i}, v{65+2*i}")
        if p < 5: a("s_branch F1_NEXT"); a.put(nx)
    a.put("F1_NEXT")
    a("s_add_u32 s38, s38, 1\ns_cmp_eq_u32 s38, 6\ns_cselect_b32 s38, 0, s38\ns_add_u32 s49, s49, 1\ns_cmp_lt_u32 s49, 6\ns_cbranch_scc1 F1_PASS")
    a("s_waitcnt vmcnt(0)\ns_barrier")
    srd(12, pWD, 1536*1280)
    for i in range(5):
        a(f"v_add_u32 v7, {64*i}, v0\nv_mul_u32_u24 v13, 6554, v7\nv_lshrrev_b32 v13, 16, v13\nv_mul_u32_u24 v14, 10, v13\nv_sub_u32 v7, v7, v14\nv_mul_u32_u24 v13, 1280, v13\nv_lshl_add_u32 v{8+i}, v7, 4, v13")
    a("v_lshrrev_b32 v5, 5, v0\nv_lshlrev_b32 v5, 4, v5\nv_bfe_u32 v6, v0, 2, 3\nv_add_u32 v5, v5, v6\nv_mul_u32_u24 v5, 160, v5\nv_and_b32 v6, 3, v0\nv_lshl_add_u32 v5, v6, 3, v5")
    a(f"v_bfe_u32 v13, v0, 4, 1\nv_lshlrev_b32 v13, 10, v13\nv_lshrrev_b32 v14, 5, v0\nv_lshl_add_u32 v13, v14, 8, v13\nv_and_b32 v14, 15, v0\nv_lshl_add_u32 v13, v14, 4, v13\ns_lshl_b32 s3, {sW}, 12\nv_add_u32 v13, s3, v13")
    a(f"s_lshl_b32 s34, {sW}, 14\ns_add_u32 s34, s34, 32768\ns_mul_i32 s47, {sW}, 160\ns_add_u32 s48, s47, {48*40960}\ns_mul_i32 s35, s46, {8*40960}\ns_add_u32 s35, s35, s47\ns_mov_b32 s37, 0\ns_mov_b32 s39, 0\ns_mov_b32 s40, 0")
    def ffn2_issue():
        a("s_add_u32 s3, s34, s37")
        for i in range(5):
            dma(f"v{8+i}", "s[12:15]", "s35", "s3")
            if i < 4: a("s_add_u32 s3, s3, 1024")
        a("s_add_u32 s37, s37, 5120\ns_cmp_eq_u32 s37, 15360\ns_cselect_b32 s37, 0, s37\ns_add_u32 s35, s35, 40960\ns_cmp_eq_u32 s35, s48\ns_cselect_b32 s35, s47, s35")
    for i in range(2): ffn2_issue()
    for i in range(64, 144): a(f"v_mov_b32 v{i}, 0")
    a.put("F2_K")
    a("s_and_b32 s3, s40, 7\ns_cmp_lg_u32 s3, 0\ns_cbranch_scc1 F2_M\ns_barrier\ns_mov_b32 s3, s38\ns_add_u32 s38, s38, 1\ns_cmp_eq_u32 s38, 6\ns_cselect_b32 s38, 0, s38")
    for p in range(6):
        nx = a.lab("F2S")
        if p < 5: a(f"s_cmp_lg_u32 s3, {p}\ns_cbranch_scc1 {nx}")
        for tt in range(2):
            for ip in range(2):
                r = 160 + 16*p + 8*tt + 4*ip
                a(f"ds_write_b128 v13, v[{r}:{r+3}] offset:{2048*tt + 512*ip}")
        if p < 5: a("s_branch F2_W"); a.put(nx)
    a.put("F2_W")
    a("s_waitcnt lgkmcnt(0)\ns_barrier\nv_mov_b32 v6, v2")
    a.put("F2_M")
    a("s_add_u32 s3, s34, s39\nv_add_u32 v7, s3, v5\ns_waitcnt vmcnt(5)")
    for t in range(4): a(f"ds_read_b128 v[{36+4*t}:{39+4*t}], v6 offset:{1024*t}")
    for ct in range(5): a(f"ds_read_b64_tr_b16 v[{16+4*ct}:{17+4*ct}], v7 offset:{32*ct}\nds_read_b64_tr_b16 v[{18+4*ct}:{19+4*ct}], v7 offset:{1280+32*ct}")
    ffn2_issue()
    a("s_add_u32 s39, s39, 5120\ns_cmp_eq_u32 s39, 15360\ns_cselect_b32 s39, 0, s39\nv_add_u32 v6, 4096, v6")
    for ct in range(5):
        a(f"s_waitcnt lgkmcnt({8-2*ct})")
        for t in range(4):
            d = 64 + 16*ct + 4*t
            a(f"v_mfma_f32_16x16x32_bf16 v[{d}:{d+3}], v[{16+4*ct}:{19+4*ct}], v[{36+4*t}:{39+4*t}], v[{d}:{d+3}]")
    a("s_add_u32 s40, s40, 1\ns_cmp_lt_u32 s40, 48\ns_cbranch_scc1 F2_K")
    a(f"s_waitcnt vmcnt(0)\ns_mov_b32 s3, {LOG2E}")
    a("v_and_b32 v5, 15, v0\nv_mul_u32_u24 v5, 160, v5\nv_lshrrev_b32 v6, 4, v0\nv_lshl_add_u32 v5, v6, 3, v5\nv_add_u32 v5, s34, v5")
    for ct in range(5):
        for t in range(4):
            d = 64 + 16*ct + 4*t
            silu_pair(d, 16); silu_pair(d + 2, 18)
            a(f"v_cvt_pk_bf16_f32 v{d}, v{d}, v{d+1}\nv_cvt_pk_bf16_f32 v{d+1}, v{d+2}, v{d+3}\nds_write_b64 v5, v[{d}:{d+1}] offset:{2560*t + 32*ct}")
    if INSTR:
        a(f"s_memtime s[92:93]\ns_waitcnt lgkmcnt(0)\ns_sub_u32 s92, s92, s90\nv_mov_b32 v16, s92\ns_lshl_b32 s3, s33, 3\ns_add_u32 s3, s3, {sW}\ns_lshl_b32 s3, s3, 2\ns_add_u32 s3, s3, {L.DBG}\nv_mov_b32 v17, 0\nbuffer_store_dword v16, v17, {WS}, s3 offen")
    rt(5)
    srd(12, pOUT, 2048*1280)
    a("v_mul_u32_u24 v4, 52, v0\nv_lshrrev_b32 v4, 10, v4\nv_mul_u32_u24 v5, 20, v4\nv_sub_u32 v5, v0, v5")
    a(f"s_mul_i32 s4, {sW}, 20\nv_add_u32 v7, s4, v5\nv_lshrrev_b32 v6, 3, v7\nv_lshlrev_b32 v6, 12, v6\nv_and_b32 v7, 7, v7\nv_lshl_add_u32 v6, v7, 4, v6\nv_mul_u32_u24 v7, 655360, v4\nv_add_u32 v6, v6, v7\ns_lshl_b32 s3, s33, 7\nv_add_u32 v6, s3, v6")
    a(f"v_mul_u32_u24 v7, 40960, v4\nv_lshl_add_u32 v7, v5, 3, v7\ns_mul_i32 s3, s33, 1280\ns_mul_i32 s4, {sW}, 160\ns_add_u32 s3, s3, s4\nv_add_u32 v7, s3, v7")
    a("v_mul_u32_u24 v8, 160, v4\nv_lshl_add_u32 v8, v5, 3, v8\nv_add_u32 v8, s34, v8")
    a(f"s_lshl_b32 s3, {sQ}, 12\ns_add_u32 s3, s3, {L.FL + 1024}\nv_mov_b32 v9, s3")
    a(f"s_mov_b32 s40, 0\ns_mov_b32 s41, {L.OUTP}\ns_mov_b32 s42, 0\ns_waitcnt lgkmcnt(0)")
    a.put("FIN")
    if PARTS == "ffn": a("s_mov_b32 s3, 60")
    else: a(f"buffer_load_dword v16, v9, {WS}, 0 offen sc1\ns_waitcnt vmcnt(0)\nv_readfirstlane_b32 s3, v16")
    a(f"s_cmp_ge_u32 s3, {59 if OPT.get('OST') else 60}\ns_cselect_b32 s3, 64, s3\ns_sub_u32 s43, s3, s40\ns_min_u32 s43, s43, 3\ns_mul_i32 s3, s43, 20\ns_bfm_b64 s[44:45], s3, 0")
    a(f"s_cmp_lg_u32 s43, 0\ns_cbranch_scc1 FIN_GO\ns_sleep {OPT.get('FINSL', 8)}")
    budget("FIN")
    a.put("FIN_GO")
    a("s_mov_b64 exec, s[44:45]")
    if PARTS == "ffn":
        for i in range(32): a(f"v_mov_b32 v{20+i}, " + ("1.0" if i < 4 else "0"))
    else:
        for q in range(8):
            a(f"s_add_u32 s3, s41, {81920*q}\nbuffer_load_dwordx4 v[{20+4*q}:{23+4*q}], v6, {WS}, s3 offen sc1")
    a("buffer_load_dwordx2 v[52:53], v7, s[20:23], s42 offen\nds_read_b64 v[54:55], v8")
    A3 = lambda d, x, y, z: f"v_bitop3_b32 {d}, {x}, {y}, {z} bitop3:0x80"
    a("s_waitcnt vmcnt(8)\n" + A3("v17", "1", "v20", "v21") + "\n" + A3("v17", "v17", "v22", "v23"))
    for q in range(1, 8):
        a(f"s_waitcnt vmcnt({8-q})\nv_pk_add_f32 v[20:21], v[20:21], v[{20+4*q}:{21+4*q}]\nv_pk_add_f32 v[22:23], v[22:23], v[{22+4*q}:{23+4*q}]")
        a(A3("v17", "v17", f"v{20+4*q}", f"v{21+4*q}") + "\n" + A3("v17", "v17", f"v{22+4*q}", f"v{23+4*q}"))
    if PARTS != "ffn":
        a("v_cmp_eq_u32 vcc, 0, v17\ns_cbranch_vccz FIN_OK\ns_waitcnt vmcnt(0) lgkmcnt(0)")
        budget("FIN_GO")
        a.put("FIN_OK")
    a("v_cvt_pk_bf16_f32 v20, v20, v21\nv_cvt_pk_bf16_f32 v22, v22, v23\nv_and_b32 v21, 0xffff0000, v20\nv_lshlrev_b32 v20, 16, v20\nv_and_b32 v23, 0xffff0000, v22\nv_lshlrev_b32 v22, 16, v22")
    a("s_waitcnt lgkmcnt(0)\nv_lshlrev_b32 v24, 16, v54\nv_and_b32 v25, 0xffff0000, v54\nv_lshlrev_b32 v26, 16, v55\nv_and_b32 v27, 0xffff0000, v55")
    a("v_pk_mul_f32 v[20:21], v[20:21], v[24:25]\nv_pk_mul_f32 v[22:23], v[22:23], v[26:27]")
    a("v_cvt_pk_bf16_f32 v20, v20, v21\nv_cvt_pk_bf16_f32 v22, v22, v23\nv_and_b32 v21, 0xffff0000, v20\nv_lshlrev_b32 v20, 16, v20\nv_and_b32 v23, 0xffff0000, v22\nv_lshlrev_b32 v22, 16, v22")
    a("s_waitcnt vmcnt(0)\nv_lshlrev_b32 v24, 16, v52\nv_and_b32 v25, 0xffff0000, v52\nv_lshlrev_b32 v26, 16, v53\nv_and_b32 v27, 0xffff0000, v53")
    a("v_pk_add_f32 v[20:21], v[20:21], v[24:25]\nv_pk_add_f32 v[22:23], v[22:23], v[26:27]")
    a("v_cvt_pk_bf16_f32 v20, v20, v21\nv_cvt_pk_bf16_f32 v21, v22, v23\nbuffer_store_dwordx2 v[20:21], v7, s[12:15], s42 offen")
    a("s_mov_b64 exec, -1\ns_add_u32 s40, s40, s43\ns_mul_i32 s3, s43, 655360\ns_add_u32 s41, s41, s3\ns_mul_i32 s3, s43, 40960\ns_add_u32 s42, s42, s3\ns_mul_i32 s3, s43, 160\nv_add_u32 v8, s3, v8")
    a("s_cmp_lt_u32 s40, 64\ns_cbranch_scc1 FIN")
    if INSTR:
        a(f"s_memtime s[92:93]\ns_waitcnt lgkmcnt(0)\ns_sub_u32 s92, s92, s90\nv_mov_b32 v16, s92\ns_lshl_b32 s3, s33, 3\ns_add_u32 s3, s3, {sW}\ns_lshl_b32 s3, s3, 2\ns_add_u32 s3, s3, {L.DBG+1024}\nv_mov_b32 v17, 0\nbuffer_store_dword v16, v17, {WS}, s3 offen")
    a("s_waitcnt vmcnt(0)")
    rtdump()
    a("s_waitcnt vmcnt(0)")
    a.put("END")
    hdr = "".join(l for l in open("cdna_kernels/" + KNAME[:-7] + ".s.ref") if l.startswith(";") and "@launch" not in l)
    return wrap(a.text(), KNAME, "grid=(256,1,1) block=(512,1,1) lds=163840", header=hdr)

if __name__ == "__main__":
    from build import build
    cfg = eval(sys.argv[2]) if len(sys.argv) > 2 else {}
    open(sys.argv[1], "w").write(gen(**cfg)); build(sys.argv[1], KNAME)
```

```python
import sys
from asmlib import *

KNAME = "recurrent_scan__memory_aug_recurrent_mem_tr__swiglu_ffn__prompt_kernel"
OOB = 0x7fffff00

from lay import Lay

def gen(NS=4, FORCE_SLOW=0, BUDGET=300000, PARTS="all", INSTR=0, **OPT):
    L = Lay(NS)
    a = Asm()
    LOGNS = NS.bit_length() - 1
    WS = "s[8:11]"
    sW, sQ, sR, sS, sBUD, sMODE, sG = "s26", "s27", "s28", "s29", "s30", "s31", "s32"
    pX, pM0, pWQ, pWK, pWV, pWO, pWG, pWU, pWD, pOUT, pDBG, pWS = 64, 66, 68, 70, 72, 74, 76, 78, 80, 82, 84, 86
    def srd(d, p, n):
        a(f"s_mov_b32 s{d}, s{p}\ns_mov_b32 s{d+1}, s{p+1}\ns_mov_b32 s{d+2}, {n}\ns_mov_b32 s{d+3}, 0x00020000")
    def budget(lp):
        a(f"s_sub_u32 {sBUD}, {sBUD}, 1\ns_cbranch_scc0 {lp}\ns_branch END")
    def slot(dst, size, base, add=0, grp=True):
        if add: a(f"s_add_u32 {dst}, {sS}, {add}\ns_and_b32 {dst}, {dst}, {NS-1}")
        else: a(f"s_and_b32 {dst}, {sS}, {NS-1}")
        a(f"s_mul_i32 {dst}, {dst}, {size}")
        if base: a(f"s_add_u32 {dst}, {dst}, {base}")
        if grp: a(f"s_add_u32 {dst}, {dst}, {sG}")
    RT = OPT.get("RT", 0)
    def rt(i):
        if RT: a(f"s_memrealtime s[92:93]\ns_waitcnt lgkmcnt(0)\ns_mov_b32 s{94+i}, s92")
    def rtdump():
        if RT == 3:
            rt(7)
            l = a.lab("RTS")
            a(f"s_cmp_eq_u32 {sR}, {OPT.get('RTR', 18)}\ns_cselect_b32 s3, 31, {sR}\ns_cmp_lt_u32 s3, {OPT.get('RTF', 28)}\ns_cbranch_scc1 {l}\ns_cmp_lg_u32 {sW}, {OPT.get('RTW', 0)}\ns_cbranch_scc1 {l}")
            a(f"s_not_b32 s3, s94\ns_cmp_ge_u32 {sR}, 28\ns_cselect_b32 s4, 16, 0\ns_mov_b64 exec, 1\nv_mov_b32 v4, 0\nv_mov_b32 v5, s4")
            for w, r, v in ((2, "s3", 4), (3, "s94", 4), (4, "s95", 4), (5, "s96", 4), (6, "s97", 4), (12, "s98", 4), (7, "s99", 5), (9, "s100", 4), (10, "s101", 5)):
                a(f"v_mov_b32 v6, {r}\nglobal_atomic_umax v{v}, v6, s[{pDBG}:{pDBG+1}] offset:{4*w} sc1")
            a("s_mov_b64 exec, -1")
            a.put(l)
        elif RT:
            rt(7)
            a(f"s_lshl_b32 s3, s2, 3\ns_add_u32 s3, s3, {sW}\ns_lshl_b32 s3, s3, 6\ns_add_u32 s3, s3, {L.DBG + (6 << 20)}\ns_lshl_b32 s4, {sQ}, 5\ns_add_u32 s4, s4, {sR}")
            for i in range(8): a(f"v_mov_b32 v{8+i}, s{94+i}")
            a("v_mov_b32 v16, s4\nv_mov_b32 v4, 0\ns_mov_b64 exec, 1")
            a(f"buffer_store_dwordx4 v[8:11], v4, {WS}, s3 offen\nbuffer_store_dwordx4 v[12:15], v4, {WS}, s3 offen offset:16\nbuffer_store_dword v16, v4, {WS}, s3 offen offset:32\ns_mov_b64 exec, -1")
    def dma(vaddr, srdn, soff, m0, extra=""):
        a(f"s_mov_b32 m0, {m0}\nbuffer_load_dwordx4 {vaddr}, {srdn}, {soff} offen {extra} lds")
    WNT = OPT.get("WNT", "nt")
    def xs_dma(slds, smem):
        for i in range(10):
            if i % 4 == 0:
                if i: a(f"s_add_u32 {slds}, {slds}, 4096\ns_add_u32 {smem}, {smem}, 4096")
                a(f"s_mov_b32 m0, {slds}")
            a(f"buffer_load_dwordx4 v2, {WS}, {smem} offen offset:{(i%4)*1024} sc1 lds")

    def layernorm(R, F, O, perm):
        T = F + 80
        for i in range(40):
            a(f"v_lshlrev_b32 v{F+2*i}, 16, v{R+i}\nv_and_b32 v{F+2*i+1}, 0xffff0000, v{R+i}")
        def red(v):
            a(f"v_add_f32_dpp v{v}, v{v}, v{v} row_ror:8 row_mask:0xf bank_mask:0xf")
            a(f"v_mov_b32 v{v+1}, v{v}\nv_permlane16_swap_b32 v{v}, v{v+1}\nv_add_f32 v{v}, v{v}, v{v+1}")
            a(f"v_mov_b32 v{v+1}, v{v}\nv_permlane32_swap_b32 v{v}, v{v+1}\nv_add_f32 v{v}, v{v}, v{v+1}")
        a(f"v_pk_add_f32 v[{T}:{T+1}], v[{F}:{F+1}], v[{F+2}:{F+3}]\nv_pk_add_f32 v[{T+2}:{T+3}], v[{F+4}:{F+5}], v[{F+6}:{F+7}]")
        for i in range(4, 40): t = T + 2*(i % 2); a(f"v_pk_add_f32 v[{t}:{t+1}], v[{t}:{t+1}], v[{F+2*i}:{F+2*i+1}]")
        a(f"v_pk_add_f32 v[{T}:{T+1}], v[{T}:{T+1}], v[{T+2}:{T+3}]\nv_add_f32 v{T}, v{T}, v{T+1}")
        red(T)
        a(f"v_mul_f32 v{T}, 0x3acccccd, v{T}")
        for i in range(40):
            t = T + 2 + 2*(i % 2); c = T + 6 + 2*(i % 2)
            a(f"v_pk_add_f32 v[{t}:{t+1}], v[{F+2*i}:{F+2*i+1}], v[{T}:{T+1}] op_sel_hi:[1,0] neg_lo:[0,1] neg_hi:[0,1]")
            if i < 2: a(f"v_pk_mul_f32 v[{c}:{c+1}], v[{t}:{t+1}], v[{t}:{t+1}]")
            else: a(f"v_pk_fma_f32 v[{c}:{c+1}], v[{t}:{t+1}], v[{t}:{t+1}], v[{c}:{c+1}]")
        a(f"v_pk_add_f32 v[{T+6}:{T+7}], v[{T+6}:{T+7}], v[{T+8}:{T+9}]\nv_add_f32 v{T+2}, v{T+6}, v{T+7}")
        red(T + 2)
        a(f"v_mul_f32 v{T+2}, 0x3acccccd, v{T+2}")
        a(f"v_cvt_pk_bf16_f32 v{T+2}, v{T+2}, v{T+2}\nv_lshlrev_b32 v{T+2}, 16, v{T+2}\nv_add_f32 v{T+2}, 0x3727c5ac, v{T+2}")
        a(f"v_cvt_pk_bf16_f32 v{T+2}, v{T+2}, v{T+2}\nv_lshlrev_b32 v{T+2}, 16, v{T+2}\nv_sqrt_f32 v{T+2}, v{T+2}")
        a(f"v_cvt_pk_bf16_f32 v{T+2}, v{T+2}, v{T+2}\nv_lshlrev_b32 v{T+2}, 16, v{T+2}\nv_rcp_f32 v{T+2}, v{T+2}")
        a(f"v_cvt_pk_bf16_f32 v{T}, v{T}, v{T}\nv_lshlrev_b32 v{T}, 16, v{T}")
        pos = [0, 2, 4, 6, 1, 3, 5, 7] if perm else list(range(8))
        for i in range(40):
            t = T + 4 + 2*(i % 2)
            o = O + 8*(i // 8) + pos[i % 8]
            a(f"v_pk_add_f32 v[{t}:{t+1}], v[{F+2*i}:{F+2*i+1}], v[{T}:{T+1}] op_sel_hi:[1,0] neg_lo:[0,1] neg_hi:[0,1]")
            a(f"v_cvt_pk_bf16_f32 v{t}, v{t}, v{t+1}\nv_and_b32 v{t+1}, 0xffff0000, v{t}\nv_lshlrev_b32 v{t}, 16, v{t}")
            a(f"v_pk_mul_f32 v[{t}:{t+1}], v[{t}:{t+1}], v[{T+2}:{T+3}] op_sel_hi:[1,0]")
            a(f"v_cvt_pk_bf16_f32 v{o}, v{t}, v{t+1}")
    def ln_loads(R, vaddr, srdn):
        for m in range(5):
            a(f"buffer_load_dwordx4 v[{R+8*m}:{R+8*m+3}], {vaddr}, {srdn}, 0 offen offset:{256*m}")
            a(f"buffer_load_dwordx4 v[{R+8*m+4}:{R+8*m+7}], {vaddr}, {srdn}, 0 offen offset:{256*m+16}")

    a("s_cmp_ge_u32 s2, 256\ns_cbranch_scc1 END")
    a("s_load_dwordx8 s[64:71], s[0:1], 0\ns_load_dwordx4 s[72:75], s[0:1], 32\ns_load_dwordx8 s[76:83], s[0:1], 64\ns_load_dwordx4 s[84:87], s[0:1], 96")
    a("v_lshrrev_b32 v1, 6, v0\nv_and_b32 v0, 63, v0")
    a(f"v_readfirstlane_b32 {sW}, v1")
    a(f"s_getreg_b32 {sQ}, hwreg(HW_REG_XCC_ID, 0, 4)\ns_and_b32 {sQ}, {sQ}, 7")
    a(f"s_mov_b32 {sBUD}, {BUDGET}\ns_mov_b32 {sMODE}, 0")
    a("v_lshlrev_b32 v2, 4, v0\nv_lshlrev_b32 v3, 3, v0")
    a("s_waitcnt lgkmcnt(0)")
    srd(8, pWS, 0x10000000)
    srd(20, pX, 2048*1280)
    if INSTR: a("s_memtime s[90:91]")
    if RT == 3:
        for i in range(94, 102): a(f"s_mov_b32 s{i}, 0")
    rt(0)
    a(f"s_cmp_lg_u32 {sW}, 7\ns_cbranch_scc1 E1\ns_setprio 3")
    a("v_and_b32 v4, 7, v0\nv_mul_u32_u24 v4, 1280, v4\nv_lshrrev_b32 v5, 3, v0\nv_lshlrev_b32 v5, 5, v5\nv_add_u32 v4, v4, v5\ns_mul_i32 s3, s2, 10240\nv_add_u32 v4, s3, v4")
    ln_loads(16, "v4", "s[20:23]")
    a.put("E1")
    a(f"s_cmp_lg_u32 {sW}, 0\ns_cbranch_scc1 E2")
    a(f"s_lshl_b32 s3, {sQ}, 5\nv_mov_b32 v4, s3\nv_mov_b32 v5, 1\ns_mov_b64 exec, 1")
    a(f"global_atomic_add v6, v4, v5, s[{pDBG}:{pDBG+1}] sc0 sc1\ns_waitcnt vmcnt(0)\nv_mov_b32 v5, 0\nds_write_b32 v5, v6\ns_waitcnt lgkmcnt(0)\ns_mov_b64 exec, -1")
    a.put("E2")
    gper = L.GPOIS // 32; hper = NS * L.H3S // 256
    assert gper % 1024 == 0 and hper % 1024 == 0 and L.H2 % 1024 == 0
    for w, per, base in ((4, gper, None), (5, hper, L.H3)):
        nx = a.lab("INX")
        a(f"s_cmp_lg_u32 {sW}, {w}\ns_cbranch_scc1 {nx}")
        if base is None: a(f"s_lshr_b32 s3, s2, 5\ns_mul_i32 s3, s3, {L.GS}\ns_and_b32 s6, s2, 31\ns_mul_i32 s6, s6, {per}\ns_add_u32 s3, s3, s6")
        else: a(f"s_mul_i32 s3, s2, {per}\ns_add_u32 s3, s3, {base}\ns_mov_b32 s6, {L.H2}")
        a("s_mov_b32 s4, 0")
        lp = a.lab("IN"); a.put(lp)
        a(f"s_add_u32 s7, s4, s6\ns_cmp_lt_u32 s7, {L.H2}\ns_cselect_b32 s7, -1, 0\ns_add_u32 s5, s4, s3")
        a("v_mov_b32 v4, s7\nv_mov_b32 v5, s7\nv_mov_b32 v6, s7\nv_mov_b32 v7, s7")
        a(f"buffer_store_dwordx4 v[4:7], v2, {WS}, s5 offen sc1")
        a(f"s_add_u32 s4, s4, 1024\ns_cmp_lt_u32 s4, {per}\ns_cbranch_scc1 {lp}")
        a.put(nx)
    a(f"s_cmp_lg_u32 {sW}, 6\ns_cbranch_scc1 E3")
    a(f"v_and_b32 v6, 15, v0\nv_lshlrev_b32 v6, 3, v6\nv_mov_b32 v4, 0\nv_mov_b32 v5, 0\ns_lshl_b32 s3, s2, 7\ns_add_u32 s3, s3, {L.FL}\nbuffer_store_dwordx2 v[4:5], v6, {WS}, s3 offen sc1")
    a.put("E3")
    a("s_barrier\nv_mov_b32 v5, 0\nds_read_b32 v4, v5\ns_waitcnt lgkmcnt(0)")
    a(f"v_readfirstlane_b32 {sR}, v4\ns_barrier")
    if FORCE_SLOW == 1: a(f"s_mov_b32 {sR}, 99")
    if FORCE_SLOW == 2: a(f"s_cmp_eq_u32 s2, 5\ns_cselect_b32 {sR}, 99, {sR}")
    rt(1)
    a.put("ROLE")
    a(f"s_mul_i32 {sG}, {sQ}, {L.GS}")
    a(f"s_cmp_ge_u32 {sR}, 32\ns_cbranch_scc1 COM1\ns_cmp_ge_u32 {sR}, 28\ns_cbranch_scc1 PRO_F\ns_cmp_ge_u32 {sW}, 4\ns_cbranch_scc1 COM1\ns_cmp_ge_u32 {sR}, 18\ns_cbranch_scc1 PRO_C")
    a(f"s_cmp_lt_u32 {sR}, 12\ns_cbranch_scc0 PRO_PV")
    srd(12, pWQ, 640*12288); srd(16, pWK, 640*12288)
    a(f"s_mul_i32 s3, {sQ}, 1536\ns_lshl_b32 s4, {sR}, 7\ns_add_u32 s3, s3, s4\ns_mov_b32 s4, s3\ns_branch PRO_P2")
    a.put("PRO_PV")
    srd(12, pWV, 640*12288); srd(16, pWV, 640*12288)
    a(f"s_mul_i32 s3, {sQ}, 1536\ns_sub_u32 s4, {sR}, 12\ns_lshl_b32 s4, s4, 8\ns_add_u32 s3, s3, s4\ns_add_u32 s4, s3, 128")
    a.put("PRO_P2")
    a(f"v_lshrrev_b32 v4, 3, v0\nv_mul_u32_u24 v4, 12288, v4\ns_and_b32 s5, {sW}, 1\ns_lshl_b32 s5, s5, 1\nv_lshrrev_b32 v5, 5, v0\nv_add_u32 v5, s5, v5")
    a("v_bfe_u32 v6, v0, 1, 2\nv_xor_b32 v5, v5, v6\nv_lshlrev_b32 v5, 5, v5\nv_and_b32 v6, 1, v0\nv_lshlrev_b32 v6, 4, v6\nv_add3_u32 v4, v4, v5, v6")
    a(f"s_mul_i32 s5, {sW}, 98304\ns_add_u32 s3, s3, s5\ns_add_u32 s4, s4, s5\ns_lshl_b32 s6, {sW}, 10")
    for i in range(20):
        dma("v4", "s[12:15]", "s3", "s6", WNT)
        a("s_add_u32 s7, s6, 40960")
        dma("v4", "s[16:19]", "s4", "s7", WNT)
        if i < 19: a(f"s_add_u32 s3, s3, {4*98304}\ns_add_u32 s4, s4, {4*98304}\ns_add_u32 s6, s6, {4096 + (40960 if i == 9 else 0)}")
    a("s_branch COM1")
    a.put("PRO_C")
    srd(12, pWO, 6144*1280)
    a(f"v_lshrrev_b32 v4, 3, v0\nv_mul_u32_u24 v4, 1280, v4\nv_lshrrev_b32 v5, 4, v0\nv_bfe_u32 v6, v0, 1, 2\nv_xor_b32 v5, v5, v6\nv_lshlrev_b32 v5, 5, v5\nv_and_b32 v6, 1, v0\nv_lshlrev_b32 v6, 4, v6\nv_add3_u32 v4, v4, v5, v6")
    a(f"s_mul_i32 s3, {sQ}, {768*1280}\ns_sub_u32 s4, {sR}, 18\ns_lshl_b32 s4, s4, 7\ns_add_u32 s3, s3, s4\ns_mul_i32 s5, {sW}, 10240\ns_add_u32 s3, s3, s5\ns_lshl_b32 s6, {sW}, 10")
    for i in range(24):
        dma("v4", "s[12:15]", "s3", "s6", WNT)
        if i < 23: a("s_add_u32 s3, s3, 40960\ns_add_u32 s6, s6, 4096")
    a("s_branch COM1")
    a.put("PRO_F")
    a(f"s_lshl_b32 s33, {sQ}, 2\ns_add_u32 s33, s33, {sR}\ns_sub_u32 s33, s33, 28")
    a(f"v_and_b32 v4, 7, v0\ns_lshl_b32 s3, {sW}, 3\nv_add_u32 v4, s3, v4\nv_mul_u32_u24 v4, 40960, v4\nv_lshrrev_b32 v5, 3, v0\nv_lshlrev_b32 v5, 5, v5\nv_add_u32 v4, v4, v5\ns_mul_i32 s3, s33, 1280\nv_add_u32 v4, s3, v4")
    ln_loads(200, "v4", "s[20:23]")
    a.put("COM1")
    a(f"s_cmp_lg_u32 {sW}, 7\ns_cbranch_scc1 C2\ns_cmp_lg_u32 {sMODE}, 0\ns_cbranch_scc1 C2")
    a(f"s_cmp_lt_u32 {sR}, 28\ns_cbranch_scc1 C0\ns_cmp_ge_u32 {sR}, 32\ns_cbranch_scc1 C0\ns_waitcnt vmcnt(10)\ns_branch C1")
    a.put("C0")
    a("s_waitcnt vmcnt(0)")
    a.put("C1")
    layernorm(16, 64, 16, True)
    a("v_lshrrev_b32 v4, 4, v0\nv_lshlrev_b32 v4, 10, v4\nv_bfe_u32 v5, v0, 3, 1\nv_lshlrev_b32 v5, 9, v5\nv_and_b32 v6, 7, v0\nv_lshlrev_b32 v6, 4, v6\nv_add3_u32 v4, v4, v5, v6")
    a(f"s_lshr_b32 s3, s2, 1\ns_mul_i32 s3, s3, 20480\ns_and_b32 s4, s2, 1\ns_lshl_b32 s4, s4, 7\ns_add_u32 s3, s3, s4\ns_add_u32 s3, s3, {L.XN}")
    for m in range(5):
        a(f"buffer_store_dwordx4 v[{16+8*m}:{19+8*m}], v4, {WS}, s3 offen sc1\nbuffer_store_dwordx4 v[{20+8*m}:{23+8*m}], v4, {WS}, s3 offen offset:256 sc1")
        if m < 4: a("s_add_u32 s3, s3, 4096")
    a("s_setprio 0")
    a.put("C2")
    a(f"s_cmp_lt_u32 {sW}, 4\ns_cbranch_scc1 C2B\ns_waitcnt vmcnt(0)")
    a.put("C2B")
    rt(2)
    a("s_barrier")
    a(f"s_cmp_lg_u32 {sW}, 4\ns_cbranch_scc1 C3\ns_cmp_lg_u32 {sMODE}, 0\ns_cbranch_scc1 C3")
    a(f"s_cmp_lt_u32 {sR}, 32\ns_cselect_b32 s3, 1, 0x10001\nv_mov_b32 v4, 4\nv_mov_b32 v5, s3\ns_mov_b64 exec, 1\nglobal_atomic_add v6, v4, v5, s[{pDBG}:{pDBG+1}] sc0 sc1\ns_waitcnt vmcnt(0)")
    a("v_readfirstlane_b32 s4, v6\ns_add_u32 s3, s3, s4\ns_and_b32 s4, s3, 0xffff\ns_cmp_lg_u32 s4, 256\ns_cbranch_scc1 C2C")
    a(f"s_cmp_eq_u32 s3, 256\ns_cselect_b32 s3, 1, 2\nv_mov_b32 v5, s3\nglobal_store_dword v4, v5, s[{pDBG}:{pDBG+1}] offset:128 sc1")
    a.put("C2C")
    a("s_mov_b64 exec, -1")
    a.put("C3")
    a(f"s_cmp_lt_u32 {sR}, 28\ns_cbranch_scc1 C4\ns_cmp_ge_u32 {sR}, 32\ns_cbranch_scc1 C4\ns_waitcnt vmcnt(0)")
    layernorm(200, 64, 16, False)
    a(f"v_lshrrev_b32 v4, 3, v0\nv_lshlrev_b32 v4, 10, v4\nv_and_b32 v5, 7, v0\nv_lshl_add_u32 v4, v5, 4, v4\ns_lshr_b32 s3, {sW}, 2\ns_mul_i32 s3, s3, 40960\ns_and_b32 s4, {sW}, 3\ns_lshl_b32 s4, s4, 7\ns_add_u32 s3, s3, s4\nv_add_u32 v4, s3, v4")
    for m in range(5):
        a(f"ds_write_b128 v4, v[{16+8*m}:{19+8*m}] offset:{8192*m}\nds_write_b128 v4, v[{20+8*m}:{23+8*m}] offset:{8192*m+512}")
    a("s_waitcnt lgkmcnt(0)")
    a.put("C4")
    GOLD = f"global_load_dword v62, v63, s[{pDBG}:{pDBG+1}] offset:128 sc1"
    a("v_mov_b32 v63, 4")
    a(f"s_cmp_lg_u32 {sW}, 4\ns_cbranch_scc1 G2\ns_cmp_lg_u32 {sMODE}, 0\ns_cbranch_scc1 G2")
    a.put("G1")
    a(GOLD + "\ns_waitcnt vmcnt(0)\nv_cmp_ne_u32 vcc, 0, v62\ns_cbranch_vccnz G2\ns_sleep %d" % OPT.get("GSL", 2))
    budget("G1")
    a.put("G2")
    a(f"s_cmp_ge_u32 {sR}, 28\ns_cbranch_scc1 WR_X\ns_cmp_ge_u32 {sR}, 18\ns_cbranch_scc1 WR_C\ns_cmp_ge_u32 {sW}, 4\ns_cbranch_scc1 WR_A")
    a("v_lshrrev_b32 v4, 5, v0\nv_lshlrev_b32 v4, 4, v4\nv_bfe_u32 v5, v0, 4, 1\nv_lshl_add_u32 v4, v5, 2, v4\nv_bfe_u32 v6, v0, 2, 1\nv_add_u32 v4, v4, v6\nv_bfe_u32 v6, v0, 3, 1\nv_lshl_add_u32 v4, v6, 3, v4")
    a("v_lshlrev_b32 v4, 7, v4\nv_lshl_add_u32 v5, v6, 1, v5\nv_and_b32 v6, 3, v0\nv_lshl_add_u32 v4, v6, 3, v4")
    a(f"s_and_b32 s3, {sW}, 1\ns_lshl_b32 s3, s3, 1\ns_add_u32 s4, s3, 1\ns_lshr_b32 s5, {sW}, 1\ns_mul_i32 s5, s5, 40960\ns_mov_b32 s6, s5")
    a(f"s_cmp_lt_u32 {sR}, 12\ns_cselect_b32 s3, {sW}, s3\ns_cselect_b32 s4, {sW}, s4\ns_cselect_b32 s5, 0, s5\ns_cselect_b32 s6, 40960, s6")
    a("v_xor_b32 v6, s3, v5\nv_lshl_add_u32 v6, v6, 5, v4\nv_add_u32 v6, s5, v6\nv_add_u32 v8, 81920, v6")
    a("v_xor_b32 v7, s4, v5\nv_lshl_add_u32 v7, v7, 5, v4\nv_add_u32 v7, s6, v7\nv_add_u32 v9, 81920, v7")
    for hf in range(2):
        a(f"s_waitcnt vmcnt({0 if hf else 20})")
        rt(3 + hf)
        a("s_barrier")
        n = 0
        for kb in range(5*hf, 5*hf + 5):
            for T in range(2):
                for b in range(2):
                    for rd in range(2):
                        d = 64 + 16*kb + 8*T + 4*b + 2*rd
                        a(f"ds_read_b64_tr_b16 v[{d}:{d+1}], v{6+T+2*hf} offset:{(kb % 5)*8192 + b*4096 + rd*256}")
                        n += 1
                        if n % 8 == 0 and n > 8: a("s_waitcnt lgkmcnt(8)")
        a("s_waitcnt lgkmcnt(0)\ns_barrier")
        if hf == 0: a(GOLD)
    a("s_branch MODE")
    a.put("WR_A")
    rt(3)
    a(f"s_barrier\ns_barrier\n{GOLD}\ns_sub_u32 s14, {sW}, 4")
    srd(16, pM0, 10240)
    a("v_and_b32 v5, 7, v0\nv_mul_u32_u24 v5, 1280, v5\nv_lshrrev_b32 v6, 3, v0\nv_lshl_add_u32 v5, v6, 4, v5\ns_lshl_b32 s3, s14, 7\nv_add_u32 v5, s3, v5")
    for i in range(3): a(f"buffer_load_dwordx4 v[{16+4*i}:{19+4*i}], v5, s[16:19], 0 offen offset:{512*i}")
    for i in range(2):
        a(f"s_mul_i32 s3, s14, 10240\ns_add_u32 s3, s3, {40960*i}\ns_add_u32 s4, s3, {L.XN}")
        xs_dma("s3", "s4")
    a("s_barrier\ns_barrier\ns_waitcnt vmcnt(20)\ns_branch MODE")
    a.put("WR_C")
    a(f"s_cmp_ge_u32 {sW}, 4\ns_cbranch_scc1 WR_CA")
    a(f"v_lshrrev_b32 v4, 2, v0\nv_lshlrev_b32 v4, 7, v4\nv_and_b32 v5, 3, v0\nv_lshl_add_u32 v4, v5, 3, v4\ns_mul_i32 s3, {sW}, 24576\nv_add_u32 v4, s3, v4\nv_bfe_u32 v5, v0, 3, 2")
    for ct in range(4): a(f"v_xor_b32 v{6+ct}, {ct}, v5\nv_lshl_add_u32 v{6+ct}, v{6+ct}, 5, v4")
    a("s_waitcnt vmcnt(0)")
    rt(3)
    a("s_barrier\n" + GOLD)
    n = 0
    for kb in range(3):
        for ct in range(4):
            for b in range(2):
                for rd in range(2):
                    d = 64 + 32*kb + 8*ct + 4*b + 2*rd
                    a(f"ds_read_b64_tr_b16 v[{d}:{d+1}], v{6+ct} offset:{kb*8192 + b*4096 + rd*2048}")
                    n += 1
                    if n % 8 == 0 and n > 8: a("s_waitcnt lgkmcnt(8)")
    a("s_waitcnt vmcnt(0) lgkmcnt(0)\ns_barrier\ns_branch MODE")
    a.put("WR_CA")
    rt(3)
    a(f"s_barrier\n{GOLD}\ns_waitcnt vmcnt(0)\ns_barrier\ns_branch MODE")
    a.put("WR_X")
    rt(3)
    a(f"s_barrier\n{GOLD}\ns_waitcnt vmcnt(0)")
    a.put("MODE")
    a(f"v_readfirstlane_b32 s3, v62\ns_cmp_ge_u32 {sR}, 32\ns_cselect_b32 s3, 2, s3\ns_cmp_lg_u32 {sMODE}, 0\ns_cbranch_scc1 GO\ns_cmp_eq_u32 s3, 1\ns_cbranch_scc1 GO")
    a(f"s_mov_b32 {sMODE}, 1\ns_lshr_b32 {sQ}, s2, 5\ns_and_b32 {sR}, s2, 31\ns_waitcnt vmcnt(0)\ns_barrier\ns_branch ROLE")
    a.put("GO")
    a(f"s_mov_b32 {sS}, 0")
    if OPT.get("PROL"):
        rt(5); rtdump(); a("s_waitcnt vmcnt(0)\ns_branch END")
    a(f"s_cmp_ge_u32 {sR}, 28\ns_cbranch_scc1 FFN")
    if PARTS == "ffn": a("s_branch END")
    else:
        a(f"s_cmp_lg_u32 {sMODE}, 0\ns_cbranch_scc1 CHAIN_S")
        from chain import chain
        ctx = dict(locals())
        chain(ctx, "F", "")
        a.put("CHAIN_S")
        chain(ctx, "S", " sc1")

    a.put("FFN")
    if OPT.get("NOFFN"): a("s_branch END")
    srd(12, pWG, 640*3072); srd(16, pWU, 640*3072)
    LOG2E = "0x3fb8aa3b"
    RING1 = 81920
    a("v_lshrrev_b32 v4, 2, v0\nv_mul_u32_u24 v4, 3072, v4\nv_and_b32 v5, 3, v0\nv_lshl_add_u32 v4, v5, 4, v4")
    a("v_lshrrev_b32 v5, 5, v0\nv_lshlrev_b32 v5, 9, v5\nv_bfe_u32 v6, v0, 2, 2\nv_lshl_add_u32 v5, v6, 6, v5\nv_bfe_u32 v6, v0, 4, 1\nv_lshl_add_u32 v5, v6, 5, v5\nv_and_b32 v6, 3, v0\nv_lshl_add_u32 v5, v6, 3, v5")
    a(f"s_mul_i32 s34, {sW}, 10240\ns_add_u32 s34, s34, {RING1}")
    a(f"s_cmp_ge_u32 {sQ}, 6\ns_cselect_b32 s3, 6, 0\ns_sub_u32 s46, {sQ}, s3")
    if not OPT.get("ROT", 1): a("s_mov_b32 s46, 0")
    a(f"s_lshl_b32 s47, {sW}, 6\ns_add_u32 s48, s47, 3072\ns_lshl_b32 s35, s46, 9\ns_add_u32 s35, s35, s47")
    a("s_mov_b32 s36, 0\ns_mov_b32 s37, 0\ns_mov_b32 s38, s46\ns_mov_b32 s49, 0")
    def ffn1_issue():
        a("s_add_u32 s3, s34, s37")
        dma("v4", "s[12:15]", "s35", "s3")
        a("s_add_u32 s3, s3, 1024")
        dma("v4", "s[16:19]", "s35", "s3")
        a("s_add_u32 s37, s37, 2048\ns_cmp_eq_u32 s37, 10240\ns_cselect_b32 s37, 0, s37")
        a(f"s_add_u32 s35, s35, 49152\ns_add_u32 s36, s36, 1\ns_cmp_eq_u32 s36, 40\ns_cselect_b32 s3, {40*49152-512}, 0\ns_cselect_b32 s36, 0, s36\ns_sub_u32 s35, s35, s3\ns_cmp_eq_u32 s35, s48\ns_cselect_b32 s35, s47, s35")
    for i in range(4): ffn1_issue()
    a("s_mov_b32 s39, 0")
    a.put("F1_PASS")
    for i in range(64, 128): a(f"v_mov_b32 v{i}, 0")
    a("v_mov_b32 v6, v2\ns_mov_b32 s40, 0")
    a.put("F1_K")
    a("s_add_u32 s3, s34, s39\nv_add_u32 v7, s3, v5\ns_waitcnt vmcnt(6)")
    a("ds_read_b64_tr_b16 v[16:17], v7\nds_read_b64_tr_b16 v[18:19], v7 offset:256\nds_read_b128 v[24:27], v6\nds_read_b128 v[28:31], v6 offset:40960")
    a("ds_read_b64_tr_b16 v[20:21], v7 offset:1024\nds_read_b64_tr_b16 v[22:23], v7 offset:1280")
    ffn1_issue()
    a("s_add_u32 s39, s39, 2048\ns_cmp_eq_u32 s39, 10240\ns_cselect_b32 s39, 0, s39\nv_add_u32 v6, 1024, v6")
    a("s_waitcnt lgkmcnt(3)\nv_mfma_f32_32x32x16_bf16 v[64:79], v[16:19], v[24:27], v[64:79]")
    a("s_waitcnt lgkmcnt(2)\nv_mfma_f32_32x32x16_bf16 v[80:95], v[16:19], v[28:31], v[80:95]")
    a("s_waitcnt lgkmcnt(0)\nv_mfma_f32_32x32x16_bf16 v[96:111], v[20:23], v[24:27], v[96:111]\nv_mfma_f32_32x32x16_bf16 v[112:127], v[20:23], v[28:31], v[112:127]")
    a("s_add_u32 s40, s40, 1\ns_cmp_lt_u32 s40, 40\ns_cbranch_scc1 F1_K")
    a(f"s_mov_b32 s3, {LOG2E}")
    def silu_pair(x, t):
        a(f"v_cvt_pk_bf16_f32 v{t}, v{x}, v{x+1}\nv_lshlrev_b32 v{x}, 16, v{t}\nv_and_b32 v{x+1}, 0xffff0000, v{t}")
        a(f"v_mul_f32 v{t}, s3, v{x}\nv_mul_f32 v{t+1}, s3, v{x+1}\nv_exp_f32 v{t}, -v{t}\nv_exp_f32 v{t+1}, -v{t+1}")
        a(f"v_add_f32 v{t}, 1.0, v{t}\nv_add_f32 v{t+1}, 1.0, v{t+1}\nv_rcp_f32 v{t}, v{t}\nv_rcp_f32 v{t+1}, v{t+1}")
        a(f"v_pk_mul_f32 v[{x}:{x+1}], v[{x}:{x+1}], v[{t}:{t+1}]")
    for i in range(16):
        g = 64 + 2*i; u = 96 + 2*i; t = 16 + 2*(i % 4)
        silu_pair(g, t)
        a(f"v_cvt_pk_bf16_f32 v{t}, v{g}, v{g+1}\nv_lshlrev_b32 v{g}, 16, v{t}\nv_and_b32 v{g+1}, 0xffff0000, v{t}")
        a(f"v_cvt_pk_bf16_f32 v{t}, v{u}, v{u+1}\nv_lshlrev_b32 v{u}, 16, v{t}\nv_and_b32 v{u+1}, 0xffff0000, v{t}")
        a(f"v_pk_mul_f32 v[{g}:{g+1}], v[{g}:{g+1}], v[{u}:{u+1}]")
    for p in range(6):
        nx = a.lab("F1S")
        if p < 5: a(f"s_cmp_lg_u32 s38, {p}\ns_cbranch_scc1 {nx}")
        for i in range(16): a(f"v_cvt_pk_bf16_f32 v{160+16*p+i}, v{64+2*i}, v{65+2*i}")
        if p < 5: a("s_branch F1_NEXT"); a.put(nx)
    a.put("F1_NEXT")
    a("s_add_u32 s38, s38, 1\ns_cmp_eq_u32 s38, 6\ns_cselect_b32 s38, 0, s38\ns_add_u32 s49, s49, 1\ns_cmp_lt_u32 s49, 6\ns_cbranch_scc1 F1_PASS")
    a("s_waitcnt vmcnt(0)\ns_barrier")
    srd(12, pWD, 1536*1280)
    for i in range(5):
        a(f"v_add_u32 v7, {64*i}, v0\nv_mul_u32_u24 v13, 6554, v7\nv_lshrrev_b32 v13, 16, v13\nv_mul_u32_u24 v14, 10, v13\nv_sub_u32 v7, v7, v14\nv_mul_u32_u24 v13, 1280, v13\nv_lshl_add_u32 v{8+i}, v7, 4, v13")
    a("v_lshrrev_b32 v5, 5, v0\nv_lshlrev_b32 v5, 4, v5\nv_bfe_u32 v6, v0, 2, 3\nv_add_u32 v5, v5, v6\nv_mul_u32_u24 v5, 160, v5\nv_and_b32 v6, 3, v0\nv_lshl_add_u32 v5, v6, 3, v5")
    a(f"v_bfe_u32 v13, v0, 4, 1\nv_lshlrev_b32 v13, 10, v13\nv_lshrrev_b32 v14, 5, v0\nv_lshl_add_u32 v13, v14, 8, v13\nv_and_b32 v14, 15, v0\nv_lshl_add_u32 v13, v14, 4, v13\ns_lshl_b32 s3, {sW}, 12\nv_add_u32 v13, s3, v13")
    a(f"s_lshl_b32 s34, {sW}, 14\ns_add_u32 s34, s34, 32768\ns_mul_i32 s47, {sW}, 160\ns_add_u32 s48, s47, {48*40960}\ns_mul_i32 s35, s46, {8*40960}\ns_add_u32 s35, s35, s47\ns_mov_b32 s37, 0\ns_mov_b32 s39, 0\ns_mov_b32 s40, 0")
    def ffn2_issue():
        a("s_add_u32 s3, s34, s37")
        for i in range(5):
            dma(f"v{8+i}", "s[12:15]", "s35", "s3")
            if i < 4: a("s_add_u32 s3, s3, 1024")
        a("s_add_u32 s37, s37, 5120\ns_cmp_eq_u32 s37, 15360\ns_cselect_b32 s37, 0, s37\ns_add_u32 s35, s35, 40960\ns_cmp_eq_u32 s35, s48\ns_cselect_b32 s35, s47, s35")
    for i in range(2): ffn2_issue()
    for i in range(64, 144): a(f"v_mov_b32 v{i}, 0")
    a.put("F2_K")
    a("s_and_b32 s3, s40, 7\ns_cmp_lg_u32 s3, 0\ns_cbranch_scc1 F2_M\ns_barrier\ns_mov_b32 s3, s38\ns_add_u32 s38, s38, 1\ns_cmp_eq_u32 s38, 6\ns_cselect_b32 s38, 0, s38")
    for p in range(6):
        nx = a.lab("F2S")
        if p < 5: a(f"s_cmp_lg_u32 s3, {p}\ns_cbranch_scc1 {nx}")
        for tt in range(2):
            for ip in range(2):
                r = 160 + 16*p + 8*tt + 4*ip
                a(f"ds_write_b128 v13, v[{r}:{r+3}] offset:{2048*tt + 512*ip}")
        if p < 5: a("s_branch F2_W"); a.put(nx)
    a.put("F2_W")
    a("s_waitcnt lgkmcnt(0)\ns_barrier\nv_mov_b32 v6, v2")
    a.put("F2_M")
    a("s_add_u32 s3, s34, s39\nv_add_u32 v7, s3, v5\ns_waitcnt vmcnt(5)")
    for t in range(4): a(f"ds_read_b128 v[{36+4*t}:{39+4*t}], v6 offset:{1024*t}")
    for ct in range(5): a(f"ds_read_b64_tr_b16 v[{16+4*ct}:{17+4*ct}], v7 offset:{32*ct}\nds_read_b64_tr_b16 v[{18+4*ct}:{19+4*ct}], v7 offset:{1280+32*ct}")
    ffn2_issue()
    a("s_add_u32 s39, s39, 5120\ns_cmp_eq_u32 s39, 15360\ns_cselect_b32 s39, 0, s39\nv_add_u32 v6, 4096, v6")
    for ct in range(5):
        a(f"s_waitcnt lgkmcnt({8-2*ct})")
        for t in range(4):
            d = 64 + 16*ct + 4*t
            a(f"v_mfma_f32_16x16x32_bf16 v[{d}:{d+3}], v[{16+4*ct}:{19+4*ct}], v[{36+4*t}:{39+4*t}], v[{d}:{d+3}]")
    a("s_add_u32 s40, s40, 1\ns_cmp_lt_u32 s40, 48\ns_cbranch_scc1 F2_K")
    a(f"s_waitcnt vmcnt(0)\ns_mov_b32 s3, {LOG2E}")
    a("v_and_b32 v5, 15, v0\nv_mul_u32_u24 v5, 160, v5\nv_lshrrev_b32 v6, 4, v0\nv_lshl_add_u32 v5, v6, 3, v5\nv_add_u32 v5, s34, v5")
    for ct in range(5):
        for t in range(4):
            d = 64 + 16*ct + 4*t
            silu_pair(d, 16); silu_pair(d + 2, 18)
            a(f"v_cvt_pk_bf16_f32 v{d}, v{d}, v{d+1}\nv_cvt_pk_bf16_f32 v{d+1}, v{d+2}, v{d+3}\nds_write_b64 v5, v[{d}:{d+1}] offset:{2560*t + 32*ct}")
    if INSTR:
        a(f"s_memtime s[92:93]\ns_waitcnt lgkmcnt(0)\ns_sub_u32 s92, s92, s90\nv_mov_b32 v16, s92\ns_lshl_b32 s3, s33, 3\ns_add_u32 s3, s3, {sW}\ns_lshl_b32 s3, s3, 2\ns_add_u32 s3, s3, {L.DBG}\nv_mov_b32 v17, 0\nbuffer_store_dword v16, v17, {WS}, s3 offen")
    rt(5)
    srd(12, pOUT, 2048*1280)
    a("v_mul_u32_u24 v4, 52, v0\nv_lshrrev_b32 v4, 10, v4\nv_mul_u32_u24 v5, 20, v4\nv_sub_u32 v5, v0, v5")
    a(f"s_mul_i32 s4, {sW}, 20\nv_add_u32 v7, s4, v5\nv_lshrrev_b32 v6, 3, v7\nv_lshlrev_b32 v6, 12, v6\nv_and_b32 v7, 7, v7\nv_lshl_add_u32 v6, v7, 4, v6\nv_mul_u32_u24 v7, 655360, v4\nv_add_u32 v6, v6, v7\ns_lshl_b32 s3, s33, 7\nv_add_u32 v6, s3, v6")
    a(f"v_mul_u32_u24 v7, 40960, v4\nv_lshl_add_u32 v7, v5, 3, v7\ns_mul_i32 s3, s33, 1280\ns_mul_i32 s4, {sW}, 160\ns_add_u32 s3, s3, s4\nv_add_u32 v7, s3, v7")
    a("v_mul_u32_u24 v8, 160, v4\nv_lshl_add_u32 v8, v5, 3, v8\nv_add_u32 v8, s34, v8")
    a(f"s_lshl_b32 s3, {sQ}, 12\ns_add_u32 s3, s3, {L.FL + 1024}\nv_mov_b32 v9, s3")
    a(f"s_mov_b32 s40, 0\ns_mov_b32 s41, {L.OUTP}\ns_mov_b32 s42, 0\ns_waitcnt lgkmcnt(0)")
    a.put("FIN")
    if PARTS == "ffn": a("s_mov_b32 s3, 60")
    else: a(f"buffer_load_dword v16, v9, {WS}, 0 offen sc1\ns_waitcnt vmcnt(0)\nv_readfirstlane_b32 s3, v16")
    a(f"s_cmp_ge_u32 s3, {59 if OPT.get('OST') else 60}\ns_cselect_b32 s3, 64, s3\ns_sub_u32 s43, s3, s40\ns_min_u32 s43, s43, 3\ns_mul_i32 s3, s43, 20\ns_bfm_b64 s[44:45], s3, 0")
    a(f"s_cmp_lg_u32 s43, 0\ns_cbranch_scc1 FIN_GO\ns_sleep {OPT.get('FINSL', 8)}")
    budget("FIN")
    a.put("FIN_GO")
    a("s_mov_b64 exec, s[44:45]")
    if PARTS == "ffn":
        for i in range(32): a(f"v_mov_b32 v{20+i}, " + ("1.0" if i < 4 else "0"))
    else:
        for q in range(8):
            a(f"s_add_u32 s3, s41, {81920*q}\nbuffer_load_dwordx4 v[{20+4*q}:{23+4*q}], v6, {WS}, s3 offen sc1")
    a("buffer_load_dwordx2 v[52:53], v7, s[20:23], s42 offen\nds_read_b64 v[54:55], v8")
    A3 = lambda d, x, y, z: f"v_bitop3_b32 {d}, {x}, {y}, {z} bitop3:0x80"
    a("s_waitcnt vmcnt(8)\n" + A3("v17", "1", "v20", "v21") + "\n" + A3("v17", "v17", "v22", "v23"))
    for q in range(1, 8):
        a(f"s_waitcnt vmcnt({8-q})\nv_pk_add_f32 v[20:21], v[20:21], v[{20+4*q}:{21+4*q}]\nv_pk_add_f32 v[22:23], v[22:23], v[{22+4*q}:{23+4*q}]")
        a(A3("v17", "v17", f"v{20+4*q}", f"v{21+4*q}") + "\n" + A3("v17", "v17", f"v{22+4*q}", f"v{23+4*q}"))
    if PARTS != "ffn":
        a("v_cmp_eq_u32 vcc, 0, v17\ns_cbranch_vccz FIN_OK\ns_waitcnt vmcnt(0) lgkmcnt(0)")
        budget("FIN_GO")
        a.put("FIN_OK")
    a("v_cvt_pk_bf16_f32 v20, v20, v21\nv_cvt_pk_bf16_f32 v22, v22, v23\nv_and_b32 v21, 0xffff0000, v20\nv_lshlrev_b32 v20, 16, v20\nv_and_b32 v23, 0xffff0000, v22\nv_lshlrev_b32 v22, 16, v22")
    a("s_waitcnt lgkmcnt(0)\nv_lshlrev_b32 v24, 16, v54\nv_and_b32 v25, 0xffff0000, v54\nv_lshlrev_b32 v26, 16, v55\nv_and_b32 v27, 0xffff0000, v55")
    a("v_pk_mul_f32 v[20:21], v[20:21], v[24:25]\nv_pk_mul_f32 v[22:23], v[22:23], v[26:27]")
    a("v_cvt_pk_bf16_f32 v20, v20, v21\nv_cvt_pk_bf16_f32 v22, v22, v23\nv_and_b32 v21, 0xffff0000, v20\nv_lshlrev_b32 v20, 16, v20\nv_and_b32 v23, 0xffff0000, v22\nv_lshlrev_b32 v22, 16, v22")
    a("s_waitcnt vmcnt(0)\nv_lshlrev_b32 v24, 16, v52\nv_and_b32 v25, 0xffff0000, v52\nv_lshlrev_b32 v26, 16, v53\nv_and_b32 v27, 0xffff0000, v53")
    a("v_pk_add_f32 v[20:21], v[20:21], v[24:25]\nv_pk_add_f32 v[22:23], v[22:23], v[26:27]")
    a("v_cvt_pk_bf16_f32 v20, v20, v21\nv_cvt_pk_bf16_f32 v21, v22, v23\nbuffer_store_dwordx2 v[20:21], v7, s[12:15], s42 offen")
    a("s_mov_b64 exec, -1\ns_add_u32 s40, s40, s43\ns_mul_i32 s3, s43, 655360\ns_add_u32 s41, s41, s3\ns_mul_i32 s3, s43, 40960\ns_add_u32 s42, s42, s3\ns_mul_i32 s3, s43, 160\nv_add_u32 v8, s3, v8")
    a("s_cmp_lt_u32 s40, 64\ns_cbranch_scc1 FIN")
    if INSTR:
        a(f"s_memtime s[92:93]\ns_waitcnt lgkmcnt(0)\ns_sub_u32 s92, s92, s90\nv_mov_b32 v16, s92\ns_lshl_b32 s3, s33, 3\ns_add_u32 s3, s3, {sW}\ns_lshl_b32 s3, s3, 2\ns_add_u32 s3, s3, {L.DBG+1024}\nv_mov_b32 v17, 0\nbuffer_store_dword v16, v17, {WS}, s3 offen")
    a("s_waitcnt vmcnt(0)")
    rtdump()
    a("s_waitcnt vmcnt(0)")
    a.put("END")
    hdr = "".join(l for l in open("cdna_kernels/" + KNAME[:-7] + ".s.ref") if l.startswith(";") and "@launch" not in l)
    return wrap(a.text(), KNAME, "grid=(256,1,1) block=(512,1,1) lds=163840", header=hdr)

if __name__ == "__main__":
    from build import build
    cfg = eval(sys.argv[2]) if len(sys.argv) > 2 else {}
    open(sys.argv[1], "w").write(gen(**cfg)); build(sys.argv[1], KNAME)
```

```python
from asmlib import *
OOB = 0x7fffff00

def chain(c, tag, ST):
    a, L, WS, NS, LOGNS, OPT, INSTR = c["a"], c["L"], c["WS"], c["NS"], c["LOGNS"], c["OPT"], c["INSTR"]
    sW, sQ, sR, sS, sBUD, sG = c["sW"], c["sQ"], c["sR"], c["sS"], c["sBUD"], c["sG"]
    slot, budget, srd = c["slot"], c["budget"], c["srd"]
    FLIP = OPT.get("FLIP", 0); DELTA = OPT.get("DELTA", 200); SSTEP = OPT.get("SSTEP", 55)
    POIS = NS < 64
    T = lambda n: n + "_" + tag
    sFL = "s33"
    def stamp(i):
        if INSTR == 2:
            l = a.lab("ST")
            a(f"s_cmp_lg_u32 {sS}, {SSTEP}\ns_cbranch_scc1 {l}\ns_memtime s[60:61]\ns_waitcnt lgkmcnt(0)\ns_mov_b32 s{44+i}, s60")
            a.put(l)
        if INSTR == 3: a(f"s_memtime s[{64+2*i}:{65+2*i}]")
    def dump():
        if INSTR == 3:
            a(f"s_lshl_b32 s3, {sQ}, 5\ns_add_u32 s3, s3, {sR}\ns_lshl_b32 s3, s3, 3\ns_add_u32 s3, s3, {sW}\ns_lshl_b32 s3, s3, 6\ns_and_b32 s4, {sS}, 63\ns_add_u32 s3, s3, s4\ns_lshl_b32 s3, s3, 5\ns_add_u32 s3, s3, {L.DBG + (1 << 20)}\ns_waitcnt lgkmcnt(0)")
            a("v_mov_b32 v254, s64")
            for i in range(1, 8): a(f"v_writelane_b32 v254, s{64+2*i}, {i}")
            a(f"s_mov_b64 exec, 0xff\nv_lshlrev_b32 v255, 2, v0\nbuffer_store_dword v254, v255, {WS}, s3 offen\ns_mov_b64 exec, -1")
    def rtc(i, step, reg=None):
        if OPT.get("RT") and OPT.get("RTC", 1):
            l = a.lab("RC")
            a(f"s_cmp_lg_u32 {reg or sS}, {step}\ns_cbranch_scc1 {l}")
            c["rt"](i)
            a.put(l)
    def stamp0():
        c["rt"](5)
        if INSTR: a("s_memtime s[60:61]\ns_waitcnt lgkmcnt(0)\ns_sub_u32 s55, s60, s90")
    def finish():
        if INSTR:
            a("s_memtime s[60:61]\ns_waitcnt lgkmcnt(0)\ns_sub_u32 s59, s60, s90")
            a(f"s_lshl_b32 s3, {sQ}, 5\ns_add_u32 s3, s3, {sR}\ns_lshl_b32 s3, s3, 3\ns_add_u32 s3, s3, {sW}\ns_lshl_b32 s3, s3, 6\ns_add_u32 s3, s3, {L.DBG+4096}")
            a(f"s_mov_b32 s58, {sBUD}")
            l = a.lab("CAL")
            a("s_memrealtime s[62:63]\ns_waitcnt lgkmcnt(0)\ns_mov_b32 s4, 200")
            a.put(l)
            a("s_memrealtime s[6:7]\ns_memtime s[60:61]\ns_waitcnt lgkmcnt(0)\ns_sub_u32 s4, s4, 1")
            a(f"s_cbranch_scc1 {l}_x\ns_cmp_eq_u32 s6, s62\ns_cbranch_scc1 {l}")
            a.put(l + "_x")
            a("s_mov_b32 s57, s60\ns_mov_b32 s56, s6")
            for i in range(16): a(f"v_mov_b32 v{8+i}, s{44+i}")
            a("v_mov_b32 v4, 0\ns_mov_b64 exec, 1")
            for i in range(4): a(f"buffer_store_dwordx4 v[{8+4*i}:{11+4*i}], v4, {WS}, s3 offen offset:{16*i}")
        a("s_waitcnt vmcnt(0)")
        c["rtdump"]()
        a("s_waitcnt vmcnt(0)\ns_branch END")
    def delay(n):
        while n > 0:
            m = min(n, 64); a(f"s_nop {max(m//4-1,0)}"); n -= m
    def onelane(v, saddr):
        a(f"v_mov_b32 {v}, {OOB}\nv_writelane_b32 {v}, {saddr}, 0")
    xs_dma = c["xs_dma"]
    def flagwait(vaddr, vtmp, sval):
        lp = a.lab("FW"); ok = a.lab("FO")
        a.put(lp)
        a(f"buffer_load_dword {vtmp}, {vaddr}, {WS}, {sFL} offen sc1\ns_waitcnt vmcnt(0)")
        a(f"v_cmp_gt_u32 vcc, {sval}, {vtmp}\ns_cbranch_vccz {ok}")
        budget(lp)
        a.put(ok)
    AF = OPT.get("AF", 0) if ST == "" else 0
    def afwait(off, n, r0, dl):
        lp = a.lab("AFP"); go = a.lab("AFG"); NF = OPT.get("NFA", 2)
        a(f"s_add_u32 s3, {sS}, 1\nv_min_u32 v{r0+NF}, {n-1}, v0\nv_lshlrev_b32 v{r0+NF}, 2, v{r0+NF}\nv_add_u32 v{r0+NF}, {off}, v{r0+NF}")
        for k in range(NF - 1):
            a(f"buffer_load_dword v{r0+k}, v{r0+NF}, {WS}, {sFL} offen sc1"); delay(OPT.get("AFG", 128))
        a.put(lp)
        for k in range(NF):
            a(f"buffer_load_dword v{r0+(k+NF-1)%NF}, v{r0+NF}, {WS}, {sFL} offen sc1\ns_waitcnt vmcnt({NF-1})\nv_cmp_gt_u32 vcc, s3, v{r0+k}\ns_cbranch_vccz {go}")
        budget(lp)
        a.put(go)
        delay(dl)
    def idxreg(v):
        a(f"v_and_b32 v4, 15, v0\nv_cmp_gt_u32 vcc, 8, v4\nv_mov_b32 {v}, 0xeeee\nv_mov_b32 v6, 0x4444\nv_cndmask_b32 {v}, {v}, v6, vcc")
    def tagreg(s):
        a(f"s_lshr_b32 {s}, {sS}, {LOGNS}\ns_and_b32 {s}, {s}, 1\ns_add_u32 {s}, {s}, 1")

    a(f"s_lshl_b32 {sFL}, {sQ}, 12\ns_add_u32 {sFL}, {sFL}, {L.FL}")
    a(f"s_cmp_ge_u32 {sR}, 18\ns_cbranch_scc1 {T('COMB')}")
    MEM, QKM, QX, KX, DUM = 81920, 92160, 94208, 98304, 102400
    a(f"s_cmp_ge_u32 {sW}, 4\ns_cbranch_scc1 {T('PAUX')}")
    idxreg("v5")
    a(f"v_add_u32 v11, {MEM}, v2")
    NB = 5
    def tokgemm():
        R = lambda i: 16 + 4*(i % NB)
        off = lambda i: (i % 2)*20480 + (i // 2)*1024
        for i in range(NB - 1): a(f"ds_read_b128 v[{R(i)}:{R(i)+3}], v9 offset:{off(i)}")
        for i in range(40):
            if i + NB - 1 < 40: a(f"ds_read_b128 v[{R(i+NB-1)}:{R(i+NB-1)+3}], v9 offset:{off(i+NB-1)}")
            a(f"s_waitcnt lgkmcnt({min(NB-1, 39-i)})")
            kk, tt = i // 2, i % 2
            for t in range(2):
                w = 64 + 16*(kk // 2) + 8*t + 4*(kk % 2); d = 224 + 8*t + 4*tt
                a(f"v_mfma_f32_16x16x32_bf16 v[{d}:{d+3}], v[{w}:{w+3}], v[{R(i)}:{R(i)+3}], " + ("0" if kk == 0 else f"v[{d}:{d+3}]"))
    def crit():
        for b in range(10): a(f"ds_read_b128 v[{16+4*b}:{19+4*b}], v11 offset:{1024*b}")
        for b in range(10):
            a(f"s_waitcnt lgkmcnt({9-b})")
            a(f"v_smfmac_f32_16x16x64_bf16 v[56:59], v[{16+4*b}:{19+4*b}], v[{64+16*b}:{71+16*b}], v5")
            a(f"v_smfmac_f32_16x16x64_bf16 v[60:63], v[{16+4*b}:{19+4*b}], v[{72+16*b}:{79+16*b}], v5")
        for i in range(4): a(f"v_permlane32_swap_b32 v{56+i}, v{60+i}")
        a("v_pk_add_f32 v[56:57], v[56:57], v[60:61]\nv_pk_add_f32 v[58:59], v[58:59], v[62:63]")
        a("v_cvt_pk_bf16_f32 v56, v56, v57\nv_cvt_pk_bf16_f32 v57, v58, v59\nds_write_b64 v6, v[56:57]")
    a(f"s_cmp_ge_u32 {sR}, 12\ns_cbranch_scc1 {T('VG')}")
    a(f"v_and_b32 v4, 15, v0\nv_lshlrev_b32 v6, 5, v4\nv_lshrrev_b32 v7, 4, v0\nv_lshl_add_u32 v6, v7, 3, v6\ns_lshl_b32 s3, {sW}, 9\ns_add_u32 s3, s3, {QKM}\nv_add_u32 v6, s3, v6")
    a(f"s_lshr_b32 s3, {sW}, 1\ns_lshl_b32 s3, s3, 10\ns_and_b32 s4, {sW}, 1\ns_lshl_b32 s4, s4, 3\ns_add_u32 s3, s3, s4\ns_add_u32 s3, s3, {QX}\nv_add_u32 v7, s3, v2")
    c["rt"](5)
    a(f"s_mov_b32 {sS}, -1\ns_branch {T('SG_TOK')}")
    a.put(T("SG_LOOP"))
    for i in range(56, 64): a(f"v_mov_b32 v{i}, 0")
    a("s_waitcnt lgkmcnt(0)")
    stamp(0)
    a("s_barrier")
    crit()
    a("s_waitcnt lgkmcnt(0)")
    stamp(1)
    a("s_barrier")
    a(f"s_cmp_eq_u32 {sS}, 63\ns_cbranch_scc1 {T('SG_END')}")
    a.put(T("SG_TOK"))
    a(f"s_add_u32 {sS}, {sS}, 1\ns_and_b32 s3, {sS}, 1\ns_mul_i32 s3, s3, 40960\nv_add_u32 v9, s3, v2")
    tokgemm()
    for t in range(2):
        for tt in range(2):
            d = 224 + 8*t + 4*tt
            a(f"v_cvt_pk_bf16_f32 v{d}, v{d}, v{d+1}\nv_cvt_pk_bf16_f32 v{d+1}, v{d+2}, v{d+3}\nds_write_b64 v7, v[{d}:{d+1}] offset:{4096*t + 2048*tt}")
    dump()
    a(f"s_cmp_lg_u32 {sS}, 0\ns_cbranch_scc1 {T('SG_LOOP')}\ns_barrier")
    c["verdict_r"]()
    c["rt"](6)
    a(f"s_branch {T('SG_LOOP')}")
    a.put(T("SG_END"))
    finish()
    a.put(T("VG"))
    a("v_bfe_u32 v6, v0, 3, 1\nv_lshlrev_b32 v6, 8, v6\nv_bfe_u32 v7, v0, 2, 1\nv_lshl_add_u32 v6, v7, 7, v6\nv_lshrrev_b32 v7, 5, v0\nv_lshl_add_u32 v6, v7, 6, v6\nv_and_b32 v7, 1, v0\nv_lshl_add_u32 v6, v7, 5, v6")
    a(f"v_bfe_u32 v7, v0, 1, 1\nv_lshl_add_u32 v6, v7, 4, v6\nv_bfe_u32 v7, v0, 4, 1\nv_lshl_add_u32 v6, v7, 3, v6\ns_lshl_b32 s3, {sW}, 9\ns_add_u32 s3, s3, {QKM}\nv_add_u32 v6, s3, v6")
    a("v_bfe_u32 v7, v0, 4, 1\nv_lshlrev_b32 v7, 8, v7\nv_and_b32 v8, 15, v0\nv_lshl_add_u32 v7, v8, 3, v7\nv_add_u32 v7, s3, v7")
    a(f"s_sub_u32 s4, {sR}, 12\ns_lshl_b32 s4, s4, 2\ns_add_u32 s4, s4, {sW}")
    a(f"s_lshl_b32 s3, s4, 9\nv_add_u32 v10, s3, v2\nv_mov_b32 v8, {OOB}\nv_cmp_gt_u32 vcc, 32, v0\nv_cndmask_b32 v10, v8, v10, vcc")
    a("s_lshl_b32 s3, s4, 11\nv_add_u32 v8, s3, v2\ns_lshl_b32 s3, s4, 2")
    onelane("v15", "s3")
    for i in range(4): a(f"v_mov_b32 v{240+i}, -1")
    a(f"s_mov_b32 {sS}, -1\ns_mov_b32 s37, 0")
    c["rt"](5)
    a(f"s_branch {T('VG_TOK')}")
    a.put(T("VG_LOOP"))
    for i in range(56, 64): a(f"v_mov_b32 v{i}, 0")
    slot("s34", L.VMS, L.VM); slot("s35", L.VMS, L.VM, NS - 1)
    a("s_barrier")
    crit()
    a("ds_read_b64_tr_b16 v[56:57], v7\nds_read_b64_tr_b16 v[58:59], v7 offset:128\ns_waitcnt lgkmcnt(1)\nv_min_u32 v56, -2, v56\nv_min_u32 v57, -2, v57\ns_waitcnt lgkmcnt(0)\nv_min_u32 v58, -2, v58\nv_min_u32 v59, -2, v59")
    a(f"buffer_store_dwordx4 v[56:59], v10, {WS}, s34 offen{ST}")
    stamp(0)
    if POIS: a(f"buffer_store_dwordx4 v[240:243], v10, {WS}, s35 offen{ST}")
    a("s_barrier")
    a(f"s_cmp_lt_u32 {sS}, 61\ns_cbranch_scc1 {T('VG_TOK')}\ns_cmp_eq_u32 {sS}, 63\ns_cbranch_scc1 {T('VG_END')}\ns_add_u32 {sS}, {sS}, 1\ns_waitcnt vmcnt(0)\ns_branch {T('VG_LOOP')}")
    a.put(T("VG_TOK"))
    a(f"s_and_b32 s3, s37, 1\ns_mul_i32 s3, s3, 40960\nv_add_u32 v9, s3, v2\ns_and_b32 s36, s37, {NS-1}\ns_mul_i32 s36, s36, {L.VXS}\ns_add_u32 s36, s36, {L.VX}\ns_add_u32 s36, s36, {sG}\ns_add_u32 s37, s37, 1\nv_mov_b32 v14, s37")
    tokgemm()
    a(f"s_cmp_lg_u32 s37, 1\ns_cbranch_scc1 {T('VG_ST')}\ns_barrier")
    c["verdict_r"]()
    a.put(T("VG_ST"))
    for tt in range(2):
        for t in range(2):
            d = 224 + 8*t + 4*tt; o = 16 + 4*tt + 2*t
            a(f"v_cvt_pk_bf16_f32 v{o}, v{d}, v{d+1}\nv_cvt_pk_bf16_f32 v{o+1}, v{d+2}, v{d+3}")
        a(f"buffer_store_dwordx4 v[{16+4*tt}:{19+4*tt}], v8, {WS}, s36 offen offset:{1024*tt}{ST}")
    a(f"s_waitcnt vmcnt(0)\nbuffer_store_dword v14, v15, {WS}, {sFL} offen{ST}")
    stamp(1)
    rtc(6, 1, "s37"); rtc(1, 3, "s37")
    dump()
    a(f"s_lshl_b32 s3, {sS}, 1\ns_add_u32 s3, s3, 2\ns_add_u32 s4, {sS}, 3\ns_min_i32 s3, s3, s4\ns_cmp_le_i32 s37, s3\ns_cbranch_scc1 {T('VG_2')}\ns_add_u32 {sS}, {sS}, 1\ns_branch {T('VG_LOOP')}")
    a.put(T("VG_2"))
    a(f"s_barrier\ns_branch {T('VG_TOK')}")
    a.put(T("VG_END"))
    finish()

    a.put(T("PAUX"))
    a(f"s_setprio 2\ns_sub_u32 s14, {sW}, 4")
    a(f"s_lshl_b32 s3, s14, 10\nv_add_u32 v4, s3, v2\nv_add_u32 v12, {MEM}, v4\ns_cmp_lt_u32 s14, 2\ns_cselect_b64 vcc, -1, 0")
    a(f"v_mov_b32 v8, {OOB}\nv_cndmask_b32 v8, v8, v4, vcc\nv_add_u32 v13, {DUM}, v2\nv_add_u32 v5, 8192, v12\nv_cndmask_b32 v13, v13, v5, vcc")
    a("ds_write_b128 v12, v[200:203]\nds_write_b128 v12, v[204:207] offset:4096\nds_write_b128 v13, v[208:211]")
    SPREAD = OPT.get("SPREAD", 0)
    if SPREAD:
        a(f"s_cmp_ge_u32 {sR}, 12\ns_cselect_b32 s3, 2, 0\ns_xor_b32 s3, s3, s14\ns_lshl_b32 s40, {sR}, 1\ns_add_u32 s40, s40, s3\ns_cmp_lt_u32 s3, 2\ns_cselect_b32 s40, s40, -1")
        a(f"s_lshl_b32 s3, {sR}, 2\ns_add_u32 s3, s3, s14\ns_and_b32 s4, s3, 0xfffffff3\ns_add_u32 s3, {sR}, 36\ns_cmp_eq_u32 s4, 2\ns_cselect_b32 s40, s3, s40")
    else:
        a(f"s_lshl_b32 s40, {sR}, 2\ns_add_u32 s40, s40, s14\ns_cmp_lt_u32 {sR}, 10\ns_cselect_b32 s40, s40, -1")
    a(f"s_lshr_b32 s3, {sR}, 1\ns_lshr_b32 s4, s40, 2\ns_cmp_lt_i32 s40, 0\ns_cselect_b32 s3, s3, s4\ns_lshl_b32 s3, s3, 7\ns_add_u32 s3, s3, 2048\nv_mov_b32 v140, s3")
    a("s_max_i32 s5, s40, 0\ns_lshr_b32 s3, s5, 2\ns_lshl_b32 s3, s3, 15\ns_and_b32 s4, s5, 3\ns_lshl_b32 s4, s4, 9\ns_add_u32 s3, s3, s4")
    a("v_and_b32 v142, 31, v0\nv_lshlrev_b32 v141, 4, v142\nv_lshrrev_b32 v143, 5, v0\nv_lshl_add_u32 v141, v143, 11, v141\nv_add_u32 v141, s3, v141")
    a("s_lshl_b32 s3, s5, 8\nv_lshlrev_b32 v142, 3, v142\nv_lshl_add_u32 v142, v143, 2, v142\nv_add_u32 v142, s3, v142\nv_mov_b32 v143, -1")
    a(f"s_lshr_b32 s41, {sQ}, 2\ns_lshl_b32 s41, s41, 14")
    if AF:
        a(f"s_lshl_b32 s3, {sR}, 2\ns_add_u32 s4, s3, 3584\ns_add_u32 s3, s3, {3456-48}\ns_cmp_lt_u32 {sR}, 12\ns_cselect_b32 s3, s4, s3\ns_cmp_eq_u32 s14, {OPT.get('AFW', 3)}\ns_cselect_b32 s3, s3, {OOB}")
        onelane("v200", "s3")
    def afsig():
        if AF: a(f"buffer_store_dword v201, v200, {WS}, {sFL} offen")
    def afpre():
        if AF: a(f"s_add_u32 s3, {sS}, 1\nv_mov_b32 v201, s3")
    A3 = lambda d, x, y, z: f"v_bitop3_b32 {d}, {x}, {y}, {z} bitop3:0x80"
    def h3task():
        skip = a.lab("H3N"); done = a.lab("H3D"); lp = a.lab("H3F"); go = a.lab("H3G")
        slot("s36", L.H3S, L.H3, NS - 1, False); slot("s37", L.H1S, L.H1); slot("s35", L.H1S, L.H1, NS - 1)
        a(f"s_sub_u32 s3, {sS}, 1\ns_lshr_b32 s25, s3, {LOGNS}\ns_and_b32 s25, s25, 1\ns_add_u32 s25, s25, 1")
        a("s_xor_b32 s3, s41, 16384\ns_add_u32 s16, s36, s41\ns_add_u32 s17, s16, 4096\ns_add_u32 s18, s36, s3\ns_add_u32 s19, s18, 4096")
        NF = 3
        a(f"s_lshl_b32 s43, {sS}, 1")
        for k in range(NF - 1):
            a(f"buffer_load_dword v{144+k}, v140, {WS}, {sFL} offen sc1"); delay(64)
        a.put(lp)
        for k in range(NF):
            a(f"buffer_load_dword v{144+(k+NF-1)%NF}, v140, {WS}, {sFL} offen sc1\ns_waitcnt vmcnt({NF-1})\nv_cmp_gt_u32 vcc, s43, v{144+k}\ns_cbranch_vccz {go}")
        budget(lp)
        a.put(go)
        stamp(6)
        a(f"s_cmp_lt_i32 s40, 0\ns_cbranch_scc1 {skip}")
        a(f"s_cmp_lg_u32 {sS}, 1\ns_cbranch_scc1 {go}_c\ns_waitcnt vmcnt(0)\nv_max3_u32 v147, v144, v145, v146\nv_and_b32 v147, 1, v147\nv_lshl_add_u32 v141, v147, 13, v141")
        a.put(go + "_c")
        delay(DELTA)
        lp = a.lab("H3P"); ok = a.lab("H3K")
        NP = OPT.get("NP", 1); GAP = OPT.get("GAP", 150)
        RB = [148, 168, 184]
        def hiss(k):
            for q in range(4): a(f"buffer_load_dwordx4 v[{RB[k]+4*q}:{RB[k]+3+4*q}], v141, {WS}, s{16+q} offen sc1")
        def hchk(k):
            b = RB[k]; n = 4*(NP - 1)
            a(f"s_waitcnt vmcnt({3+n})\n" + A3("v52", "s25", f"v{b}", f"v{b+1}") + "\n" + A3("v52", "v52", f"v{b+2}", f"v{b+3}"))
            for i in range(1, 4):
                r = b + 4*i; p = b if i == 1 else 164
                a(f"s_waitcnt vmcnt({3-i+n})\nv_pk_add_f32 v[164:165], v[{p}:{p+1}], v[{r}:{r+1}]\nv_pk_add_f32 v[166:167], v[{p+2}:{p+3}], v[{r+2}:{r+3}]\n" + A3("v52", "v52", f"v{r}", f"v{r+1}") + "\n" + A3("v52", "v52", f"v{r+2}", f"v{r+3}"))
            a("v_permlane32_swap_b32 v164, v166\nv_permlane32_swap_b32 v165, v167\nv_cmp_eq_u32 vcc, 0, v52\nv_pk_add_f32 v[164:165], v[164:165], v[166:167]")
            a("v_cvt_pk_bf16_f32 v166, v164, v165\nv_min_u32 v166, -2, v166")
        for k in range(NP - 1):
            hiss(k); delay(GAP)
        a.put(lp)
        a(f"s_sub_u32 {sBUD}, {sBUD}, 1\ns_cbranch_scc1 END")
        for k in range(NP):
            hiss((k + NP - 1) % NP); hchk(k)
            a(f"s_cbranch_vccnz {lp}" if k == NP - 1 else f"s_cbranch_vccz {ok}")
        a.put(ok)
        a(f"buffer_store_dword v166, v142, {WS}, s37 offen{ST}")
        stamp(7)
        rtc(6, 1)
        if POIS: a(f"buffer_store_dword v143, v142, {WS}, s35 offen{ST}")
        if INSTR in (1, 2):
            a(f"s_memtime s[60:61]\ns_lshl_b32 s3, {sQ}, 8\ns_lshl_b32 s4, {sS}, 2\ns_add_u32 s3, s3, s4\ns_add_u32 s3, s3, {L.DBG+262144-4}\ns_cmp_eq_u32 s40, 0\ns_cselect_b32 s4, 0, {OOB}")
            a(f"s_waitcnt lgkmcnt(0)\ns_sub_u32 s60, s60, s90\nv_mov_b32 v164, s60\nv_mov_b32 v165, s4\nbuffer_store_dword v164, v165, {WS}, s3 offen")
        if OPT.get("D1"): a(f"s_sleep {OPT['D1']}")
        a(f"s_branch {done}")
        a.put(skip)
        if OPT.get("D2"): a(f"s_sleep {OPT['D2']}")
        a.put(done)
    def mem0(got):
        c["verdict_w"]()
        a("s_barrier")
        c["verdict_r"]()
        stamp0()
        a(f"s_branch {got}")
    def h1poll(got, sl):
        if sl: a(f"s_sleep {sl}")
        slot("s34", L.H1S, L.H1)
        a("s_add_u32 s35, s34, 4096\ns_add_u32 s36, s34, 8192")
        def issue(r): a(f"buffer_load_dwordx4 v[{r}:{r+3}], v4, {WS}, s34 offen sc1\nbuffer_load_dwordx4 v[{r+4}:{r+7}], v4, {WS}, s35 offen sc1\nbuffer_load_dwordx4 v[{r+8}:{r+11}], v8, {WS}, s36 offen sc1")
        def check(r, n):
            a(f"s_waitcnt vmcnt({n+2})\nds_write_b128 v12, v[{r}:{r+3}]\nv_max3_u32 v52, v{r}, v{r+1}, v{r+2}")
            a(f"s_waitcnt vmcnt({n+1})\nds_write_b128 v12, v[{r+4}:{r+7}] offset:4096\nv_max3_u32 v52, v{r+3}, v{r+4}, v52\nv_max3_u32 v52, v{r+5}, v{r+6}, v52")
            a(f"s_waitcnt vmcnt({n})\nds_write_b128 v13, v[{r+8}:{r+11}]\nv_max3_u32 v52, v{r+7}, v{r+8}, v52\nv_max3_u32 v52, v{r+9}, v{r+10}, v52\nv_max_u32 v52, v{r+11}, v52")
            a(f"v_cmp_eq_u32 vcc, -1, v52\ns_cbranch_vccz {got}\ns_waitcnt lgkmcnt(0)")
        lp = a.lab("H1P")
        P1 = OPT.get("P1", 2)
        if P1 == 1:
            a.put(lp); issue(116); check(116, 0)
        else:
            for k in range(P1 - 1):
                issue(116 + 12*k)
                if OPT.get("P1D"): delay(OPT["P1D"])
            a.put(lp)
            for k in range(P1):
                issue(116 + 12*((k + P1 - 1) % P1)); check(116 + 12*k, 3*(P1 - 1))
        budget(lp)
    a(f"s_cmp_ge_u32 {sR}, 12\ns_cbranch_scc1 {T('VA')}")
    a(f"s_cmp_eq_u32 s14, 3\ns_cselect_b32 s3, 0, {KX-QX}\ns_cmp_eq_u32 s14, 1\ns_cselect_b32 s4, 2048, 0\ns_add_u32 s3, s3, s4\ns_add_u32 s3, s3, {QX}\nv_add_u32 v14, s3, v2")
    a(f"s_cmp_eq_u32 s14, 0\ns_cselect_b32 s3, 0, 2048\ns_add_u32 s3, s3, {QX}\nv_add_u32 v15, s3, v2\nv_add_u32 v7, {QKM}, v3")
    a("v_and_b32 v6, 7, v0\nv_lshrrev_b32 v9, 4, v0\nv_lshl_add_u32 v11, v6, 2, v9\nv_lshlrev_b32 v11, 4, v11\ns_lshl_b32 s3, s14, 9\nv_add_u32 v11, s3, v11")
    a("v_lshl_add_u32 v9, v9, 3, v6\nv_lshlrev_b32 v9, 4, v9\nv_add_u32 v9, 768, v9\ns_cmp_eq_u32 s14, 2\ns_cselect_b64 vcc, -1, 0\nv_cndmask_b32 v11, v11, v9, vcc")
    a(f"s_mul_i32 s3, {sR}, 1280\nv_add_u32 v11, s3, v11\ns_mov_b32 s5, 0x00ff00ff\ns_cselect_b32 s4, 0, s5\ns_mov_b64 vcc, s[4:5]\nv_mov_b32 v9, {OOB}\nv_cndmask_b32 v11, v9, v11, vcc")
    a(f"s_lshl_b32 s3, {sR}, 2\ns_add_u32 s3, s3, s14\ns_lshl_b32 s4, s3, 10\nv_add_u32 v10, s4, v2\ns_lshl_b32 s3, s3, 2\ns_add_u32 s3, s3, 128")
    onelane("v6", "s3")
    a(f"s_mov_b32 {sS}, 0")
    mem0(T("SA_GOT"))
    a.put(T("SA_LOOP"))
    h3task()
    h1poll(T("SA_GOT"), 0)
    a.put(T("SA_GOT"))
    stamp(0)
    afpre()
    a("s_waitcnt lgkmcnt(0)\ns_barrier")
    afsig()
    stamp(1)
    a("ds_read_b128 v[24:27], v14\nds_read_b128 v[28:31], v14 offset:1024\nds_read_b128 v[32:35], v15\nds_read_b128 v[36:39], v15 offset:1024")
    slot("s35", L.H2S, L.H2); slot("s36", L.HXS, L.HX); tagreg("s37")
    a(f"s_add_u32 s3, {sS}, 1\nv_mov_b32 v9, s3\ns_waitcnt lgkmcnt(0)")
    a(f"s_cmp_eq_u32 s14, 2\ns_cbranch_scc1 {T('SA_2')}\ns_cmp_eq_u32 s14, 3\ns_cbranch_scc1 {T('SA_3')}")
    def qkread():
        a("s_barrier")
        stamp(2)
        for i in range(4): a(f"ds_read_b64_tr_b16 v[{40+2*i}:{41+2*i}], v7 offset:{512*i}")
    def h2out(A0, A1):
        a(f"s_waitcnt lgkmcnt(2)\nv_mfma_f32_16x16x32_bf16 v[48:51], v[{A0}:{A0+3}], v[40:43], 0\ns_waitcnt lgkmcnt(0)\nv_mfma_f32_16x16x32_bf16 v[48:51], v[{A1}:{A1+3}], v[44:47], v[48:51]")
        for i in range(4): a(f"v_and_or_b32 v{48+i}, v{48+i}, -4, s37")
        a(f"buffer_store_dwordx4 v[48:51], v11, {WS}, s35 offen{ST}")
        stamp(3)
        rtc(4, 0)
    qkread(); h2out(24, 28)
    a(f"s_branch {T('SA_X')}")
    a.put(T("SA_2"))
    qkread(); h2out(40, 44)
    a.put(T("SA_X"))
    a("v_mfma_f32_16x16x32_bf16 v[56:59], v[24:27], v[32:35], 0\nv_mfma_f32_16x16x32_bf16 v[56:59], v[28:31], v[36:39], v[56:59]")
    a(f"s_branch {T('SA_F')}")
    a.put(T("SA_3"))
    qkread()
    a("s_waitcnt lgkmcnt(0)\nv_mfma_f32_16x16x32_bf16 v[52:55], v[40:43], v[24:27], 0\nv_mfma_f32_16x16x32_bf16 v[56:59], v[40:43], v[32:35], 0")
    a("v_mfma_f32_16x16x32_bf16 v[52:55], v[44:47], v[28:31], v[52:55]\nv_mfma_f32_16x16x32_bf16 v[56:59], v[44:47], v[36:39], v[56:59]")
    for i in range(4): a(f"v_permlane32_swap_b32 v{52+i}, v{56+i}")
    a.put(T("SA_F"))
    a(f"buffer_store_dwordx4 v[56:59], v10, {WS}, s36 offen{ST}\ns_waitcnt vmcnt(0)\nbuffer_store_dword v9, v6, {WS}, {sFL} offen{ST}")
    stamp(4)
    a(f"s_cmp_eq_u32 {sS}, 63\ns_cbranch_scc1 {T('SA_END')}\ns_cmp_eq_u32 {sS}, 62\ns_cbranch_scc1 {T('SA_N')}")
    a(f"s_mul_i32 s5, s14, 10240\ns_and_b32 s3, {sS}, 1\ns_mul_i32 s3, s3, 40960\ns_add_u32 s3, s3, s5\ns_mul_i32 s4, {sS}, 40960\ns_add_u32 s4, s4, s5\ns_add_u32 s4, s4, {L.XN + 2*40960}")
    xs_dma("s3", "s4")
    a.put(T("SA_N"))
    stamp(5)
    dump()
    a(f"s_add_u32 {sS}, {sS}, 1\ns_branch {T('SA_LOOP')}")
    a.put(T("SA_END"))
    finish()
    a.put(T("VA"))
    a(f"s_sub_u32 s15, {sR}, 12")
    a(f"s_mul_i32 s3, s15, 12288\ns_lshl_b32 s4, s14, 11\ns_add_u32 s4, s4, s3\nv_add_u32 v14, s4, v2")
    a(f"s_add_u32 s4, s3, 1024\nv_add_u32 v15, s4, v2\nv_mov_b32 v9, {OOB}\ns_cmp_eq_u32 s14, 1\ns_cselect_b64 vcc, -1, 0\nv_cndmask_b32 v15, v9, v15, vcc")
    a(f"s_lshl_b32 s4, s14, 9\ns_add_u32 s4, s4, s3\ns_add_u32 s4, s4, {3072-512}\nv_add_u32 v7, s4, v2\nv_cmp_le_u32 vcc, 32, v0\nv_cndmask_b32 v7, v9, v7, vcc")
    a("s_mul_i32 s3, s14, 5120\ns_lshl_b32 s4, s15, 10\ns_add_u32 s4, s4, s3\nv_add_u32 v10, s4, v2")
    a("v_and_b32 v6, 15, v0\nv_lshlrev_b32 v11, 4, v6\nv_bfe_u32 v64, v0, 4, 1\nv_lshl_add_u32 v11, v64, 3, v11\ns_lshl_b32 s4, s15, 8\ns_add_u32 s4, s4, s3\ns_add_u32 s4, s4, 4096\nv_add_u32 v11, s4, v11\nv_cndmask_b32 v11, v9, v11, vcc")
    a("v_mov_b32 v65, 0xf149f2ca\nv_mov_b32 v66, 0")
    for i in range(4): a(f"v_cndmask_b32 v{108+i}, v65, v66, vcc")
    a("s_lshl_b32 s3, s14, 4\nv_add_u32 v6, s3, v6\nv_lshrrev_b32 v64, 4, v0\nv_lshlrev_b32 v64, 2, v64\nv_sub_u32 v6, v6, v64")
    for i in range(8): a(f"v_cmp_le_i32 vcc, {i if i < 4 else 12+i}, v6\nv_cndmask_b32 v{100+i}, v65, v66, vcc")
    a("v_min_u32 v6, 11, v0\nv_lshlrev_b32 v6, 2, v6\ns_mul_i32 s3, s15, 48\ns_add_u32 s3, s3, 128\nv_add_u32 v6, s3, v6")
    a("s_lshl_b32 s3, s14, 2\ns_add_u32 s3, s3, s15\ns_lshl_b32 s3, s3, 2\ns_add_u32 s3, s3, 384")
    onelane("v112", "s3")
    a("s_mov_b32 s38, 0x3dd53b95\nv_mov_b32 v114, s38\nv_mov_b32 v115, s38")
    a("s_cmp_lt_u32 s15, 4\ns_cselect_b32 s39, 1, 0\ns_cmp_lt_u32 s14, 2\ns_cselect_b32 s39, s39, 0")
    a(f"s_mov_b32 {sS}, 0\ns_mov_b32 s42, 2")
    mem0(T("VA_GOT"))
    a.put(T("VA_LOOP"))
    if OPT.get("PXS", 1) and not SPREAD:
        a(f"s_cmp_lg_u32 s39, 0\ns_cbranch_scc1 {T('VA_P')}")
    h3task()
    a.put(T("VA_P"))
    h1poll(T("VA_GOT"), 0)
    a.put(T("VA_GOT"))
    stamp(0)
    afpre()
    a("s_waitcnt lgkmcnt(0)\ns_barrier")
    afsig()
    stamp(1)
    a("s_barrier")
    def nextseg():
        a(f"s_mul_i32 s5, s14, 10240\ns_and_b32 s3, s42, 1\ns_mul_i32 s3, s3, 40960\ns_add_u32 s3, s3, s5\ns_mul_i32 s4, s42, 40960\ns_add_u32 s4, s4, s5\ns_add_u32 s4, s4, {L.XN}\ns_add_u32 s42, s42, 1")
        xs_dma("s3", "s4")
    a(f"s_cmp_ge_u32 {sS}, 2\ns_cbranch_scc1 {T('VA_R')}")
    nextseg()
    a("s_waitcnt vmcnt(0)\ns_barrier")
    a.put(T("VA_R"))
    a(f"s_cmp_ge_u32 {sS}, 60\ns_cbranch_scc1 {T('VA_S')}")
    nextseg()
    a.put(T("VA_S"))
    a(f"s_cmp_eq_u32 s39, 0\ns_cbranch_scc1 {T('VA_N')}")
    slot("s34", L.HXS, L.HX); slot("s37", L.PXS, L.PX)
    a(f"s_add_u32 s35, s34, 4096\ns_add_u32 s36, s34, 8192\ns_add_u32 s3, {sS}, 1\nv_mov_b32 v113, s3")
    flagwait("v6", "v64", "s3")
    stamp(4)
    for p in range(3):
        for i, v in enumerate(("v14", "v15", "v7")): a(f"buffer_load_dwordx4 v[{64+12*p+4*i}:{67+12*p+4*i}], {v}, {WS}, s{34+p} offen sc1")
    a("s_waitcnt vmcnt(3)")
    for i in range(6): a(f"v_pk_add_f32 v[{64+2*i}:{65+2*i}], v[{64+2*i}:{65+2*i}], v[{76+2*i}:{77+2*i}]")
    for i in range(6): a(f"v_pk_add_f32 v[{64+2*i}:{65+2*i}], v[{64+2*i}:{65+2*i}], v[{100+2*i}:{101+2*i}]")
    a("s_waitcnt vmcnt(0)")
    for i in range(6): a(f"v_pk_add_f32 v[{64+2*i}:{65+2*i}], v[{64+2*i}:{65+2*i}], v[{88+2*i}:{89+2*i}]")
    a("v_max3_f32 v76, v64, v65, v66")
    for i in range(4): a(f"v_max3_f32 v76, v76, v{67+2*i}, v{68+2*i}")
    a("v_max_f32 v76, v76, v75")
    def xred(op):
        a(f"v_mov_b32 v77, v76\nv_permlane16_swap_b32 v76, v77\n{op} v76, v76, v77\nv_mov_b32 v77, v76\nv_permlane32_swap_b32 v76, v77\n{op} v76, v76, v77")
    xred("v_max_f32")
    a("v_mul_f32 v78, s38, v76")
    for i in range(6): a(f"v_pk_fma_f32 v[{64+2*i}:{65+2*i}], v[{64+2*i}:{65+2*i}], v[114:115], v[78:79] op_sel_hi:[1,1,0] neg_lo:[0,0,1] neg_hi:[0,0,1]")
    for i in range(12): a(f"v_exp_f32 v{64+i}, v{64+i}")
    a("v_pk_add_f32 v[76:77], v[64:65], v[66:67]")
    for i in range(2, 6): a(f"v_pk_add_f32 v[76:77], v[76:77], v[{64+2*i}:{65+2*i}]")
    a("v_add_f32 v76, v76, v77")
    xred("v_add_f32")
    a("v_rcp_f32 v78, v76")
    for i in range(6): a(f"v_pk_mul_f32 v[{64+2*i}:{65+2*i}], v[{64+2*i}:{65+2*i}], v[78:79] op_sel_hi:[1,0]")
    for i in range(6): a(f"v_cvt_pk_bf16_f32 v{80+i}, v{64+2*i}, v{65+2*i}")
    a(f"buffer_store_dwordx4 v[80:83], v10, {WS}, s37 offen{ST}\nbuffer_store_dwordx2 v[84:85], v11, {WS}, s37 offen{ST}")
    a(f"s_waitcnt vmcnt(0)\nbuffer_store_dword v113, v112, {WS}, {sFL} offen{ST}")
    stamp(5)
    a.put(T("VA_N"))
    dump()
    a(f"s_add_u32 {sS}, {sS}, 1\ns_cmp_lt_u32 {sS}, 64\ns_cbranch_scc1 {T('VA_LOOP')}")
    finish()

    a.put(T("COMB"))
    ZM, PT, PM = 65536, 81920, 83968
    OST = OPT.get("OST", 0); OSTG = 86016
    a(f"s_sub_u32 s15, {sR}, 18")
    a(f"s_cmp_ge_u32 {sW}, 4\ns_cbranch_scc1 {T('CAUX')}")
    idxreg("v5")
    a(f"s_mul_i32 s3, {sW}, 3072\nv_add_u32 v4, s3, v2")
    a(f"v_and_b32 v6, 15, v0\nv_lshlrev_b32 v6, 4, v6\nv_bfe_u32 v7, v0, 4, 1\nv_lshl_add_u32 v6, v7, 3, v6\nv_lshrrev_b32 v7, 5, v0\nv_lshl_add_u32 v6, v7, 10, v6\ns_lshl_b32 s3, {sW}, 8\ns_add_u32 s3, s3, {ZM}\nv_add_u32 v6, s3, v6")
    a(f"s_lshl_b32 s3, {sW}, 12\nv_add_u32 v8, s3, v2\ns_mul_i32 s3, {sW}, 12288\nv_add_u32 v14, s3, v2")
    a(f"s_lshr_b32 s4, {sW}, 1\ns_lshl_b32 s3, s4, 11\nv_add_u32 v11, s3, v2\ns_and_b32 s5, {sW}, 1\ns_mul_i32 s3, s5, 5120\nv_add_u32 v12, s3, v2")
    a(f"v_and_b32 v13, 7, v0\nv_lshlrev_b32 v13, 7, v13\nv_lshrrev_b32 v7, 4, v0\nv_lshl_add_u32 v13, v7, 4, v13\nv_bfe_u32 v7, v0, 3, 1\nv_lshl_add_u32 v13, v7, 6, v13\ns_mul_i32 s3, {sQ}, 81920\ns_lshl_b32 s6, s15, 13\ns_add_u32 s3, s3, s6\ns_lshl_b32 s6, {sW}, 11\ns_add_u32 s3, s3, s6\nv_add_u32 v13, s3, v13")
    a(f"v_min_u32 v15, 5, v0\nv_lshlrev_b32 v15, 2, v15\ns_mul_i32 s3, {sW}, 24\nv_add_u32 v15, s3, v15")
    a("v_and_b32 v60, 3, v0\nv_lshlrev_b32 v60, 2, v60\ns_lshl_b32 s3, s5, 4\ns_add_u32 s3, s3, 384\nv_add_u32 v60, s3, v60")
    a(f"s_add_u32 s3, s15, {sW}\ns_cmp_eq_u32 s3, 0\ns_mov_b32 s4, {OOB}\ns_cselect_b32 s3, 1024, s4")
    onelane("v61", "s3")
    a(f"s_mov_b32 s43, {L.OUTP - 2*655360}")
    a(f"s_lshl_b32 s3, s15, 15\ns_lshl_b32 s4, {sW}, 9\ns_add_u32 s3, s3, s4\ns_lshr_b32 s5, {sQ}, 2\ns_lshl_b32 s5, s5, 14\ns_add_u32 s3, s3, s5\ns_and_b32 s4, {sQ}, 3\ns_lshl_b32 s4, s4, 11\ns_add_u32 s3, s3, s4")
    a("v_and_b32 v62, 7, v0\nv_lshrrev_b32 v3, 5, v0\nv_lshlrev_b32 v3, 8, v3\nv_lshl_add_u32 v3, v62, 5, v3\nv_bfe_u32 v7, v0, 4, 1\nv_lshl_add_u32 v3, v7, 4, v3\nv_bfe_u32 v7, v0, 3, 1\nv_lshl_add_u32 v3, v7, 13, v3\nv_add_u32 v3, s3, v3")
    a("v_lshrrev_b32 v7, 4, v0\nv_lshl_add_u32 v1, v7, 3, v62\nv_lshlrev_b32 v1, 4, v1\nv_add_u32 v1, %d, v1" % PT)
    a(f"s_lshl_b32 s38, {sW}, 10")
    def vxloads(add):
        slot("s35", L.VXS, L.VX, add)
        a("s_add_u32 s36, s35, 4096\ns_add_u32 s37, s35, 8192")
        for i in range(12): a(f"buffer_load_dwordx4 v[{160+4*i}:{163+4*i}], v14, {WS}, s{35+i//4} offen offset:{(i%4)*1024} sc1")
    PZA = OPT.get("PZA", 0)
    def pxloads(va="v12"):
        slot("s35", L.PXS, L.PX, NS - 1)
        a("s_add_u32 s36, s35, 4096")
        for h in range(4): a(f"buffer_load_dwordx4 v[{208+4*h}:{211+4*h}], {va}, {WS}, s35 offen offset:{1024*h} sc1")
        a(f"buffer_load_dwordx4 v[224:227], {va}, {WS}, s36 offen sc1")
    VXI = OPT.get("VXI", 1)
    def zx(add, nxt=False):
        if nxt:
            slot("s35", L.VXS, L.VX, 2)
            a(f"s_cmp_ge_u32 {sS}, 62\ns_cselect_b32 s35, {OOB - 65536}, s35\ns_add_u32 s36, s35, 4096\ns_add_u32 s37, s35, 8192")
        a(f"s_add_u32 s3, {sS}, {add}\ns_and_b32 s3, s3, 3\ns_lshl_b32 s3, s3, 14\nv_add_u32 v7, s3, v8")
        for i in range(6):
            for ct in range(4):
                for tt in range(2):
                    w = 64 + 32*(i // 2) + 8*ct + 4*(i % 2); d = 16 + 8*ct + 4*tt; x = 160 + 8*i + 4*tt
                    a(f"v_mfma_f32_16x16x32_bf16 v[{d}:{d+3}], v[{x}:{x+3}], v[{w}:{w+3}], " + ("0" if i == 0 else f"v[{d}:{d+3}]"))
            if nxt and i > 0:
                for k in (2*i - 2, 2*i - 1) + ((10, 11) if i == 5 else ()):
                    a(f"buffer_load_dwordx4 v[{160+4*k}:{163+4*k}], v14, {WS}, s{35+k//4} offen offset:{(k%4)*1024} sc1")
        for ct in range(4):
            d = 16 + 8*ct
            for i in range(4): a(f"v_cvt_pk_bf16_f32 v{d+i}, v{d+2*i}, v{d+2*i+1}")
            a(f"ds_write_b128 v7, v[{d}:{d+3}] offset:{1024*ct}")
    PAG = [228, 232, 236, 240, 244, 248, 252, 48, 52, 56]; PAA = [128 + 4*i for i in range(10)]
    def pzreads(PA=PAG, vb="v11", t0="v9", t1="v10", part=3):
        a(f"s_add_u32 s3, {sS}, 2\ns_and_b32 s3, s3, 3\ns_lshl_b32 s4, s3, 14\nv_add_u32 {t0}, s4, {vb}\ns_lshl_b32 s3, s3, 12\ns_add_u32 s3, s3, {ZM}\nv_add_u32 {t1}, s3, {vb}")
        for cc in range(2):
            if part & 1:
                for h in range(4): a(f"ds_read_b128 v[{PA[5*cc+h]}:{PA[5*cc+h]+3}], {t0} offset:{4096*h + 1024*cc}")
            if part & 2: a(f"ds_read_b128 v[{PA[5*cc+4]}:{PA[5*cc+4]+3}], {t1} offset:{1024*cc}")
    def pz(PA=PAG, o=20):
        for h in range(5):
            for cc in range(2):
                d = o + 8*cc
                a(f"v_mfma_f32_16x16x32_bf16 v[{d}:{d+3}], v[{PA[5*cc+h]}:{PA[5*cc+h]+3}], v[{208+4*h}:{211+4*h}], " + ("0" if h == 0 else f"v[{d}:{d+3}]"))
        for i in range(4): a(f"v_and_or_b32 v{o+4+i}, v{o+i}, -4, 1\nv_and_or_b32 v{o+8+i}, v{o+8+i}, -4, 1")
        for i in range(4): a(f"v_mov_b32 v{o+i}, v{o+4+i}")
        for i in range(4): a(f"v_mov_b32_dpp v{o+i}, v{o+8+i} row_ror:8 row_mask:0xf bank_mask:0xc")
        for i in range(4): a(f"v_mov_b32_dpp v{o+8+i}, v{o+4+i} row_ror:8 row_mask:0xf bank_mask:0x3")
    OSC = OPT.get("OSC", " sc1")
    def outp(o=20, va="v13"):
        if not OPT.get("NOOUTP"): a(f"buffer_store_dwordx4 v[{o}:{o+3}], {va}, {WS}, s43 offen{OSC}\nbuffer_store_dwordx4 v[{o+8}:{o+11}], {va}, {WS}, s43 offen offset:1024{OSC}")
    a(f"s_mov_b32 {sS}, 0\ns_mov_b32 s4, 1")
    flagwait("v15", "v62", "s4")
    c["rt"](5)
    vxloads(0)
    a("s_waitcnt vmcnt(0)")
    zx(0)
    a("s_waitcnt lgkmcnt(0)\ns_barrier")
    a.put(T("CG_LOOP"))
    slot("s34", L.VMS, L.VM)
    for i in range(32, 48): a(f"v_mov_b32 v{i}, 0")
    a(f"s_and_b32 s3, {sS}, 3\ns_lshl_b32 s4, s3, 14\ns_add_u32 s4, s4, s38\nv_add_u32 v9, s4, v2\ns_lshl_b32 s3, s3, 12\nv_add_u32 v7, s3, v6\ns_add_u32 s3, s3, s38\ns_add_u32 s3, s3, {ZM}\nv_add_u32 v10, s3, v2")
    for h in range(4): a(f"ds_read_b128 v[{228+4*h}:{231+4*h}], v9 offset:{4096*h}")
    slot("s39", L.H3S, L.H3, 0, False); tagreg("s25")
    if OPT.get("SLV") or not AF: a(f"s_sleep {OPT['SLV'] if AF or not OPT.get('AF') else 10}")
    if AF:
        afwait(3456, 6, 48, OPT.get("AFV", 300))
    stamp(6)
    a.put(T("CG_P"))
    a(f"s_sub_u32 {sBUD}, {sBUD}, 1\ns_cbranch_scc1 END")
    for i in range(3): a(f"buffer_load_dwordx4 v[{48+4*i}:{51+4*i}], v4, {WS}, s34 offen offset:{1024*i} sc1")
    a("s_waitcnt vmcnt(2)\nv_max3_u32 v62, v48, v49, v50\ns_waitcnt vmcnt(1)\nv_max3_u32 v62, v62, v51, v52\nv_max3_u32 v62, v62, v53, v54")
    a(f"s_waitcnt vmcnt(0)\nv_max3_u32 v62, v62, v55, v56\nv_max3_u32 v62, v62, v57, v58\nv_max_u32 v62, v62, v59\nv_cmp_eq_u32 vcc, -1, v62\ns_cbranch_vccnz {T('CG_P')}")
    stamp(0)
    rtc(2, 0)
    for kb in range(3):
        for t in range(4):
            a(f"v_smfmac_f32_16x16x64_bf16 v[{32+4*t}:{35+4*t}], v[{48+4*kb}:{51+4*kb}], v[{64+32*kb+8*t}:{71+32*kb+8*t}], v5")
    for p in range(2):
        o = 32 + 8*p
        for i in range(4): a(f"v_permlane32_swap_b32 v{o+i}, v{o+4+i}")
        a(f"v_pk_add_f32 v[{o}:{o+1}], v[{o}:{o+1}], v[{o+4}:{o+5}]\nv_pk_add_f32 v[{o+2}:{o+3}], v[{o+2}:{o+3}], v[{o+6}:{o+7}]")
        a(f"v_cvt_pk_bf16_f32 v{o}, v{o}, v{o+1}\nv_cvt_pk_bf16_f32 v{o+1}, v{o+2}, v{o+3}\nds_write_b64 v7, v[{o}:{o+1}] offset:{2048*p}")
    a("s_waitcnt lgkmcnt(0)")
    stamp(1)
    a("s_barrier")
    stamp(2)
    rtc(4, 0); rtc(1, 1)
    a(f"s_cmp_eq_u32 {sS}, 63\ns_cbranch_scc1 {T('CG_0')}")
    for h in range(4): a(f"ds_read_b128 v[{16+4*h}:{19+4*h}], v1 offset:{512*h}")
    a(f"ds_read_b128 v[32:35], v1 offset:{PM-PT}\nds_read_b128 v[36:39], v10")
    for h in range(5):
        a(f"s_waitcnt lgkmcnt({[5,4,3,2,0][h]})")
        z = 228 + 4*h if h < 4 else 36
        a(f"v_mfma_f32_16x16x32_bf16 v[40:43], v[{z}:{z+3}], v[{16+4*h}:{19+4*h}], " + ("0" if h == 0 else "v[40:43]"))
    for i in range(4): a(f"v_and_or_b32 v{40+i}, v{40+i}, -4, s25")
    a(f"buffer_store_dwordx4 v[40:43], v3, {WS}, s39 offen sc1")
    stamp(7)
    def rst():
        slot("s3", L.H3S, L.H3, NS - 2, False)
        for i in range(4): a(f"v_mov_b32 v{44+i}, 0")
        a(f"buffer_store_dwordx4 v[44:47], v3, {WS}, s3 offen sc1")
    if OPT.get('RST') == 2: rst()
    if PZA:
        a(f"s_cmp_ge_u32 {sS}, 2\ns_cbranch_scc1 {T('CG_Z')}\ns_cmp_eq_u32 {sS}, 1\ns_cbranch_scc1 {T('CG_Y')}\ns_mov_b32 s4, 2")
        flagwait("v15", "v62", "s4")
        vxloads(1)
        a.put(T("CG_Y"))
        a(f"s_add_u32 s4, {sS}, 3")
        flagwait("v15", "v62", "s4")
        a.put(T("CG_Z"))
        a(f"s_sub_u32 s3, {sS}, 3\ns_max_i32 s3, s3, 0\nv_mov_b32 v63, s3\nbuffer_store_dword v63, v61, {WS}, {sFL} offen{ST}")
        zx(1, VXI)
        if OPT.get('RST') == 1: rst()
        stamp(3); stamp(4)
        a("s_waitcnt lgkmcnt(0)\ns_barrier")
        stamp(5)
        dump()
        a(f"s_add_u32 {sS}, {sS}, 1\ns_branch {T('CG_LOOP')}")
        a.put(T("CG_0"))
        a(f"v_mov_b32 v63, 60\nbuffer_store_dword v63, v61, {WS}, {sFL} offen{ST}")
        c["rt"](6)
        dump()
        finish()
    elif OPT.get("ORD"):
        a.put(T("CG_0"))
        pzreads()
        a(f"s_sub_u32 s3, {sS}, 3\ns_max_i32 s3, s3, 0\nv_mov_b32 v63, s3\ns_cmp_lt_u32 {sS}, 2\ns_cbranch_scc1 {T('CG_3')}\ns_waitcnt lgkmcnt(0)")
        pz()
        if OPT.get("ODL"): a(f"s_sleep {OPT['ODL']}")
        outp()
        a(f"s_sub_u32 s3, {sS}, 8\ns_cmp_ge_u32 s3, 4\ns_cbranch_scc1 {T('CG_3')}\ns_add_u32 s3, s43, {54*655360}")
        for i in range(4): a(f"v_mov_b32 v{24+i}, 0")
        a(f"buffer_store_dwordx4 v[24:27], v13, {WS}, s3 offen sc1\nbuffer_store_dwordx4 v[24:27], v13, {WS}, s3 offen offset:1024 sc1")
        a.put(T("CG_3"))
        if OPT.get('RST') == 1: rst()
        a(f"buffer_store_dword v63, v61, {WS}, {sFL} offen{ST}")
        stamp(3)
        a(f"s_cmp_eq_u32 {sS}, 63\ns_cbranch_scc1 {T('CG_1')}\ns_cmp_ge_u32 {sS}, 2\ns_cbranch_scc1 {T('CG_Z')}\ns_cmp_eq_u32 {sS}, 1\ns_cbranch_scc1 {T('CG_Y')}\ns_mov_b32 s4, 2")
        flagwait("v15", "v62", "s4")
        vxloads(1)
        a("s_waitcnt vmcnt(0)")
        a.put(T("CG_Y"))
        a(f"s_add_u32 s4, {sS}, 3")
        flagwait("v15", "v62", "s4")
        a.put(T("CG_Z"))
        zx(1, False)
        a.put(T("CG_1"))
        stamp(4)
        a("s_waitcnt lgkmcnt(0)\ns_barrier")
        stamp(5)
        if OPT.get("VDL"): a(f"s_sleep {OPT['VDL']}")
        pxloads()
        a(f"s_cmp_ge_u32 {sS}, 62\ns_cbranch_scc1 {T('CG_2')}")
        vxloads(2)
        a.put(T("CG_2"))
        dump()
        a(f"s_add_u32 s43, s43, 655360\ns_add_u32 {sS}, {sS}, 1\ns_cmp_lt_u32 {sS}, 64\ns_cbranch_scc1 {T('CG_LOOP')}")
        c["rt"](6)
        pzreads()
        a("s_waitcnt vmcnt(0) lgkmcnt(0)")
        pz()
        outp()
        a("s_mov_b32 s4, 64")
        flagwait("v60", "v62", "s4")
        pxloads()
        a(f"s_add_u32 s43, s43, 655360\ns_add_u32 {sS}, {sS}, 1")
        pzreads()
        a("s_waitcnt vmcnt(0) lgkmcnt(0)")
        pz()
        outp()
        finish()
    else:
        a.put(T("CG_0"))
        pzreads()
        a(f"s_cmp_eq_u32 {sS}, 63\ns_cbranch_scc1 {T('CG_1')}\ns_cmp_ge_u32 {sS}, 2\ns_cbranch_scc1 {T('CG_Z')}\ns_cmp_eq_u32 {sS}, 1\ns_cbranch_scc1 {T('CG_Y')}\ns_mov_b32 s4, 2")
        flagwait("v15", "v62", "s4")
        vxloads(1)
        a.put(T("CG_Y"))
        a(f"s_add_u32 s4, {sS}, 3")
        flagwait("v15", "v62", "s4")
        a.put(T("CG_Z"))
        zx(1, VXI)
        a.put(T("CG_1"))
        a("s_waitcnt lgkmcnt(0)")
        pz()
        a(f"s_sub_u32 s3, {sS}, {4 if OST else 3}\ns_max_i32 s3, s3, 0\nv_mov_b32 v63, s3")
        OF = OPT.get("OFIRST", 1)
        def outp_c():
            a(f"s_cmp_lt_u32 {sS}, 2\ns_cbranch_scc1 {T('CG_3')}")
            if OST:
                a(f"s_cmp_lt_u32 {sS}, 63\ns_cbranch_scc1 {T('CG_4')}")
                outp()
                a(f"s_branch {T('CG_3')}")
                a.put(T("CG_4"))
                a(f"s_lshl_b32 s3, {sW}, 11\ns_add_u32 s3, s3, {OSTG}\nv_add_u32 v7, s3, v2\nds_write_b128 v7, v[20:23]\nds_write_b128 v7, v[28:31] offset:1024")
            else: outp()
            a(f"s_sub_u32 s3, {sS}, 8\ns_cmp_ge_u32 s3, {5 if OST else 4}\ns_cbranch_scc1 {T('CG_3')}\ns_add_u32 s3, s43, {(53 if OST else 54)*655360}")
            for i in range(4): a(f"v_mov_b32 v{20+i}, 0")
            a(f"buffer_store_dwordx4 v[20:23], v13, {WS}, s3 offen sc1\nbuffer_store_dwordx4 v[20:23], v13, {WS}, s3 offen offset:1024 sc1")
            a.put(T("CG_3"))
        stamp(3)
        if OPT.get("BD"): a(f"s_sleep {OPT['BD']}")
        if OF == 1: outp_c()
        if OPT.get('RST') == 1: rst()
        a(f"buffer_store_dword v63, v61, {WS}, {sFL} offen{ST}")
        if not VXI:
            a(f"s_cmp_ge_u32 {sS}, 62\ns_cbranch_scc1 {T('CG_2')}")
            vxloads(2)
            a.put(T("CG_2"))
        pxloads()
        if OF == 0: outp_c()
        stamp(4)
        a("s_waitcnt lgkmcnt(0)\ns_barrier")
        if OPT.get("PROBE"):
            stamp(5)
            for i, n in enumerate((13, 7, 2, 0) if OF == 0 else (18, 11, 5, 0)):
                a(f"s_waitcnt vmcnt({n})"); stamp(6 + i)
        stamp(5)
        dump()
        a(f"s_add_u32 s43, s43, 655360\ns_add_u32 {sS}, {sS}, 1\ns_cmp_lt_u32 {sS}, 64\ns_cbranch_scc1 {T('CG_LOOP')}")
        c["rt"](6)
        pzreads()
        a("s_waitcnt vmcnt(%d) lgkmcnt(0)" % (2 if OF == 0 else 0))
        pz()
        outp()
        a("s_mov_b32 s4, 64")
        flagwait("v60", "v62", "s4")
        pxloads()
        a(f"s_add_u32 s43, s43, 655360\ns_add_u32 {sS}, {sS}, 1")
        pzreads()
        a("s_waitcnt vmcnt(0) lgkmcnt(0)")
        pz()
        outp()
        finish()

    a.put(T("CAUX"))
    a(f"s_setprio 2\ns_sub_u32 s14, {sW}, 4")
    a("s_mul_i32 s3, s14, 3840\nv_add_u32 v4, s3, v2\ns_add_u32 s3, s3, 1024\nv_lshlrev_b32 v5, 2, v0\nv_add_u32 v5, s3, v5")
    a("v_and_b32 v6, 3, v0\nv_bfe_u32 v7, v0, 2, 3\nv_lshl_add_u32 v12, v6, 3, v7\nv_lshlrev_b32 v12, 4, v12\nv_lshrrev_b32 v8, 5, v0\nv_lshl_add_u32 v12, v8, 3, v12\ns_lshl_b32 s3, s14, 9\ns_add_u32 s3, s3, %d\nv_add_u32 v12, s3, v12" % PT)
    a("v_lshlrev_b32 v13, 4, v7\nv_lshl_add_u32 v13, v8, 3, v13\nv_lshl_add_u32 v13, v6, 1, v13\ns_lshl_b32 s3, s14, 7\ns_add_u32 s3, s3, %d\nv_add_u32 v13, s3, v13" % PM)
    a(f"s_lshl_b32 s3, s15, 7\ns_add_u32 s3, s3, 2048\ns_cmp_eq_u32 s14, 0\ns_cselect_b32 s3, s3, {OOB}")
    onelane("v10", "s3")
    a("s_mov_b32 s24, 0x3dd53b95\nv_mov_b32 v20, s24\nv_mov_b32 v21, s24")
    if OST:
        a(f"v_and_b32 v14, 7, v0\nv_lshlrev_b32 v14, 7, v14\nv_lshrrev_b32 v7, 4, v0\nv_lshl_add_u32 v14, v7, 4, v14\nv_bfe_u32 v7, v0, 3, 1\nv_lshl_add_u32 v14, v7, 6, v14\ns_mul_i32 s3, {sQ}, 81920\ns_lshl_b32 s6, s15, 13\ns_add_u32 s3, s3, s6\ns_lshl_b32 s6, s14, 11\ns_add_u32 s3, s3, s6\nv_add_u32 v14, s3, v14")
        a(f"s_add_u32 s6, s6, {OSTG}\nv_add_u32 v15, s6, v2\ns_mov_b32 s43, {L.OUTP - 3*655360}")
    def ostrd():
        if OST: a("ds_read_b128 v[80:83], v15\nds_read_b128 v[84:87], v15 offset:1024")
    def ostst():
        if OST:
            l = a.lab("OS")
            a(f"s_cmp_lt_u32 {sS}, 3\ns_cbranch_scc1 {l}")
            if OPT.get("ODL"): a(f"s_sleep {OPT['ODL']}")
            a(f"buffer_store_dwordx4 v[80:83], v14, {WS}, s43 offen sc1\nbuffer_store_dwordx4 v[84:87], v14, {WS}, s43 offen offset:1024 sc1")
            a.put(l)
            a("s_add_u32 s43, s43, 655360")
    if PZA:
        a(f"v_and_b32 v14, 7, v0\nv_lshlrev_b32 v14, 7, v14\nv_lshrrev_b32 v7, 4, v0\nv_lshl_add_u32 v14, v7, 4, v14\nv_bfe_u32 v7, v0, 3, 1\nv_lshl_add_u32 v14, v7, 6, v14\ns_mul_i32 s3, {sQ}, 81920\ns_lshl_b32 s6, s15, 13\ns_add_u32 s3, s3, s6\ns_lshl_b32 s6, s14, 11\ns_add_u32 s3, s3, s6\nv_add_u32 v14, s3, v14")
        a("s_lshr_b32 s4, s14, 1\ns_lshl_b32 s3, s4, 11\nv_add_u32 v15, s3, v2\ns_and_b32 s5, s14, 1\ns_mul_i32 s3, s5, 5120\nv_add_u32 v16, s3, v2")
        a("v_and_b32 v17, 3, v0\nv_lshlrev_b32 v17, 2, v17\ns_lshl_b32 s3, s5, 4\ns_add_u32 s3, s3, 384\nv_add_u32 v17, s3, v17")
        a(f"s_mov_b32 s43, {L.OUTP - 2*655360}")
    def tokout():
        if not PZA: return
        l = a.lab("TO")
        a(f"s_cmp_lt_u32 {sS}, 2\ns_cbranch_scc1 {l}")
        a("s_waitcnt lgkmcnt(0)")
        pz(PAA, 88)
        if OPT.get("ODL"): a(f"s_sleep {OPT['ODL']}")
        outp(88, "v14")
        a(f"s_sub_u32 s3, {sS}, 8\ns_cmp_ge_u32 s3, 4\ns_cbranch_scc1 {l}\ns_add_u32 s3, s43, {54*655360}")
        for i in range(4): a(f"v_mov_b32 v{100+i}, 0")
        a(f"buffer_store_dwordx4 v[100:103], v14, {WS}, s3 offen sc1\nbuffer_store_dwordx4 v[100:103], v14, {WS}, s3 offen offset:1024 sc1")
        a.put(l)
        a("s_add_u32 s43, s43, 655360")
    a(f"s_mov_b32 s40, 0\ns_cmp_lg_u32 s14, 0\ns_cbranch_scc1 {T('CA_C')}")
    a("v_and_b32 v24, 31, v0\nv_lshlrev_b32 v24, 4, v24\nv_lshrrev_b32 v25, 5, v0\nv_lshl_add_u32 v24, v25, 11, v24\ns_lshl_b32 s3, s15, 15\nv_add_u32 v24, s3, v24")
    a(f"s_mov_b32 s6, -1\ns_mov_b32 s7, -1\ns_mov_b32 s4, {L.H3 + 2*L.H3S}\nbuffer_load_dwordx2 v[26:27], v24, {WS}, s4 offen sc1\ns_waitcnt vmcnt(0)")
    for it in range(OPT.get("NCAL", 3)):
        for cp in range(2):
            a(f"s_mov_b32 s4, {L.H3 + 3*L.H3S + 8192*cp + 4096*(it % 2) + 16384*(it // 2)}\ns_memtime s[60:61]\ns_waitcnt lgkmcnt(0)\nbuffer_load_dwordx2 v[26:27], v24, {WS}, s4 offen sc1\ns_waitcnt vmcnt(0)")
            a(f"s_memtime s[62:63]\ns_waitcnt lgkmcnt(0)\ns_sub_u32 s3, s62, s60\ns_min_u32 s{6+cp}, s{6+cp}, s3")
    a("s_cmp_lt_u32 s7, s6\ns_cselect_b32 s40, 1, 0")
    if FLIP: a("s_xor_b32 s40, s40, 1")
    if INSTR: a("s_mov_b32 s52, s6\ns_mov_b32 s53, s7\ns_mov_b32 s54, s40")
    a.put(T("CA_C"))
    a(f"s_mov_b32 {sS}, 0\ns_barrier")
    stamp0()
    a.put(T("CA_LOOP"))
    ostrd()
    if PZA: pzreads(PAA, "v15", "v18", "v19")
    slot("s34", L.H2S, L.H2); tagreg("s25")
    a(f"s_lshl_b32 s3, {sS}, 1\ns_add_u32 s3, s3, s40\ns_add_u32 s3, s3, 2\nv_mov_b32 v11, s3")
    if OPT.get("SL2") or not AF: a(f"s_sleep {OPT['SL2'] if AF or not OPT.get('AF') else 16}")
    if AF:
        afwait(3584, 12, 24, OPT.get("AFS", 300))
    stamp(5)
    a.put(T("CA_P2"))
    a(f"s_sub_u32 {sBUD}, {sBUD}, 1\ns_cbranch_scc1 END")
    for p in range(3): a(f"buffer_load_dwordx4 v[{24+4*p}:{27+4*p}], v4, {WS}, s34 offen offset:{1280*p} sc1")
    for p in range(3): a(f"buffer_load_dword v{36+p}, v5, {WS}, s34 offen offset:{1280*p} sc1")
    a("s_waitcnt vmcnt(5)\n" + A3("v40", "s25", "v24", "v25") + "\n" + A3("v40", "v40", "v26", "v27"))
    a("s_waitcnt vmcnt(4)\nv_pk_add_f32 v[72:73], v[24:25], v[28:29]\nv_pk_add_f32 v[74:75], v[26:27], v[30:31]\n" + A3("v40", "v40", "v28", "v29") + "\n" + A3("v40", "v40", "v30", "v31"))
    a("s_waitcnt vmcnt(3)\nv_pk_add_f32 v[72:73], v[72:73], v[32:33]\nv_pk_add_f32 v[74:75], v[74:75], v[34:35]\n" + A3("v40", "v40", "v32", "v33") + "\n" + A3("v40", "v40", "v34", "v35"))
    a("v_max3_f32 v77, v72, v73, v74\ns_waitcnt vmcnt(0)\n" + A3("v40", "v40", "v36", "v37") + "\nv_add_f32 v76, v36, v37\nv_and_b32 v40, v40, v38\nv_add_f32 v76, v76, v38\nv_cmp_eq_u32 vcc, 0, v40\nv_max3_f32 v77, v77, v75, v76")
    a(f"s_cbranch_vccnz {T('CA_P2')}")
    stamp(0)
    rtc(4, 0); rtc(6, 1)
    a("v_max_f32_dpp v77, v77, v77 quad_perm:[1,0,3,2] row_mask:0xf bank_mask:0xf\nv_max_f32_dpp v77, v77, v77 quad_perm:[2,3,0,1] row_mask:0xf bank_mask:0xf")
    a("v_mov_b32 v78, v77\nv_permlane32_swap_b32 v77, v78\nv_max_f32 v77, v77, v78")
    a("v_mul_f32 v78, s24, v77")
    a("v_pk_fma_f32 v[72:73], v[72:73], v[20:21], v[78:79] op_sel_hi:[1,1,0] neg_lo:[0,0,1] neg_hi:[0,0,1]\nv_pk_fma_f32 v[74:75], v[74:75], v[20:21], v[78:79] op_sel_hi:[1,1,0] neg_lo:[0,0,1] neg_hi:[0,0,1]\nv_fma_f32 v76, v76, v20, -v78")
    for i in range(5): a(f"v_exp_f32 v{72+i}, v{72+i}")
    a("v_pk_add_f32 v[78:79], v[72:73], v[74:75]\nv_add_f32 v77, v78, v76\nv_add_f32 v77, v77, v79")
    a("v_add_f32_dpp v77, v77, v77 quad_perm:[1,0,3,2] row_mask:0xf bank_mask:0xf\nv_add_f32_dpp v77, v77, v77 quad_perm:[2,3,0,1] row_mask:0xf bank_mask:0xf")
    a("v_mov_b32 v78, v77\nv_permlane32_swap_b32 v77, v78\nv_add_f32 v77, v77, v78")
    a("v_rcp_f32 v78, v77")
    a("v_pk_mul_f32 v[72:73], v[72:73], v[78:79] op_sel_hi:[1,0]\nv_pk_mul_f32 v[74:75], v[74:75], v[78:79] op_sel_hi:[1,0]\nv_mul_f32 v76, v76, v78")
    a("v_cvt_pk_bf16_f32 v72, v72, v73\nv_cvt_pk_bf16_f32 v73, v74, v75\nv_cvt_pk_bf16_f32 v76, v76, v76")
    a(f"ds_write_b64 v12, v[72:73]\nds_write_b16 v13, v76\ns_waitcnt lgkmcnt(0)")
    stamp(1)
    a("s_barrier")
    stamp(2)
    a(f"buffer_store_dword v11, v10, {WS}, {sFL} offen{ST}")
    ostst()
    tokout()
    if PZA: pxloads("v16")
    a("s_barrier")
    dump()
    a(f"s_add_u32 {sS}, {sS}, 1\ns_cmp_lt_u32 {sS}, 63\ns_cbranch_scc1 {T('CA_LOOP')}")
    if PZA:
        for j in range(3):
            pzreads(PAA, "v15", "v18", "v19", 3 if j < 2 else 1)
            if j:
                a(f"s_mov_b32 s4, {62+j}")
                flagwait("v17", "v24", "s4")
                a(f"s_sub_u32 {sS}, {sS}, 1")
                pxloads("v16")
                a(f"s_add_u32 {sS}, {sS}, 1")
            if j == 2:
                a("s_barrier")
                pzreads(PAA, "v15", "v18", "v19", 2)
            a("s_waitcnt vmcnt(0) lgkmcnt(0)")
            pz(PAA, 88)
            outp(88, "v14")
            a(f"s_add_u32 s43, s43, 655360\ns_add_u32 {sS}, {sS}, 1")
        finish()
        return
    ostrd()
    a("s_waitcnt lgkmcnt(0)")
    ostst()
    a("s_barrier\ns_barrier")
    finish()
```

```python
import sys
from asmlib import *

KNAME = "recurrent_scan__memory_aug_recurrent_mem_tr__swiglu_ffn__prompt_kernel"
OOB = 0x7fffff00

from lay import Lay

def gen(NS=4, FORCE_SLOW=0, BUDGET=300000, PARTS="all", INSTR=0, **OPT):
    L = Lay(NS)
    a = Asm()
    LOGNS = NS.bit_length() - 1
    WS = "s[8:11]"
    sW, sQ, sR, sS, sBUD, sMODE, sG = "s26", "s27", "s28", "s29", "s30", "s31", "s32"
    pX, pM0, pWQ, pWK, pWV, pWO, pWG, pWU, pWD, pOUT, pDBG, pWS = 64, 66, 68, 70, 72, 74, 76, 78, 80, 82, 84, 86
    def srd(d, p, n):
        a(f"s_mov_b32 s{d}, s{p}\ns_mov_b32 s{d+1}, s{p+1}\ns_mov_b32 s{d+2}, {n}\ns_mov_b32 s{d+3}, 0x00020000")
    def budget(lp):
        a(f"s_sub_u32 {sBUD}, {sBUD}, 1\ns_cbranch_scc0 {lp}\ns_branch END")
    def slot(dst, size, base, add=0, grp=True):
        if add: a(f"s_add_u32 {dst}, {sS}, {add}\ns_and_b32 {dst}, {dst}, {NS-1}")
        else: a(f"s_and_b32 {dst}, {sS}, {NS-1}")
        a(f"s_mul_i32 {dst}, {dst}, {size}")
        if base: a(f"s_add_u32 {dst}, {dst}, {base}")
        if grp: a(f"s_add_u32 {dst}, {dst}, {sG}")
    RT = OPT.get("RT", 0)
    def rt(i):
        if RT: a(f"s_memrealtime s[92:93]\ns_waitcnt lgkmcnt(0)\ns_mov_b32 s{94+i}, s92")
    def rtdump():
        if RT == 3:
            rt(7)
            l = a.lab("RTS")
            a(f"s_cmp_eq_u32 {sR}, {OPT.get('RTR', 18)}\ns_cselect_b32 s3, 31, {sR}\ns_cmp_lt_u32 s3, {OPT.get('RTF', 28)}\ns_cbranch_scc1 {l}\ns_cmp_lg_u32 {sW}, {OPT.get('RTW', 0)}\ns_cbranch_scc1 {l}")
            a(f"s_not_b32 s3, s94\ns_cmp_ge_u32 {sR}, 28\ns_cselect_b32 s4, 16, 0\ns_mov_b64 exec, 1\nv_mov_b32 v4, 0\nv_mov_b32 v5, s4")
            for w, r, v in ((2, "s3", 4), (3, "s94", 4), (13, "s95", 4), (5, "s96", 4), (6, "s97", 4), (12, "s98", 4), (7, "s99", 5), (15, "s100", 4), (10, "s101", 5)):
                a(f"v_mov_b32 v6, {r}\nglobal_atomic_umax v{v}, v6, s[{pDBG}:{pDBG+1}] offset:{4*w} sc1")
            a("s_mov_b64 exec, -1")
            a.put(l)
        elif RT:
            rt(7)
            a(f"s_lshl_b32 s3, s2, 3\ns_add_u32 s3, s3, {sW}\ns_lshl_b32 s3, s3, 6\ns_add_u32 s3, s3, {L.DBG + (6 << 20)}\ns_lshl_b32 s4, {sQ}, 5\ns_add_u32 s4, s4, {sR}")
            for i in range(8): a(f"v_mov_b32 v{8+i}, s{94+i}")
            a("v_mov_b32 v16, s4\nv_mov_b32 v4, 0\ns_mov_b64 exec, 1")
            a(f"buffer_store_dwordx4 v[8:11], v4, {WS}, s3 offen\nbuffer_store_dwordx4 v[12:15], v4, {WS}, s3 offen offset:16\nbuffer_store_dword v16, v4, {WS}, s3 offen offset:32\ns_mov_b64 exec, -1")
    def dma(vaddr, srdn, soff, m0, extra=""):
        a(f"s_mov_b32 m0, {m0}\nbuffer_load_dwordx4 {vaddr}, {srdn}, {soff} offen {extra} lds")
    WNT = OPT.get("WNT", "nt")
    def xs_dma(slds, smem):
        for i in range(10):
            if i % 4 == 0:
                if i: a(f"s_add_u32 {slds}, {slds}, 4096\ns_add_u32 {smem}, {smem}, 4096")
                a(f"s_mov_b32 m0, {slds}")
            a(f"buffer_load_dwordx4 v2, {WS}, {smem} offen offset:{(i%4)*1024} sc1 lds")

    def layernorm(R, F, O, perm):
        T = F + 80
        for i in range(40):
            a(f"v_lshlrev_b32 v{F+2*i}, 16, v{R+i}\nv_and_b32 v{F+2*i+1}, 0xffff0000, v{R+i}")
        def red(v):
            a(f"v_add_f32_dpp v{v}, v{v}, v{v} row_ror:8 row_mask:0xf bank_mask:0xf")
            a(f"v_mov_b32 v{v+1}, v{v}\nv_permlane16_swap_b32 v{v}, v{v+1}\nv_add_f32 v{v}, v{v}, v{v+1}")
            a(f"v_mov_b32 v{v+1}, v{v}\nv_permlane32_swap_b32 v{v}, v{v+1}\nv_add_f32 v{v}, v{v}, v{v+1}")
        a(f"v_pk_add_f32 v[{T}:{T+1}], v[{F}:{F+1}], v[{F+2}:{F+3}]\nv_pk_add_f32 v[{T+2}:{T+3}], v[{F+4}:{F+5}], v[{F+6}:{F+7}]")
        for i in range(4, 40): t = T + 2*(i % 2); a(f"v_pk_add_f32 v[{t}:{t+1}], v[{t}:{t+1}], v[{F+2*i}:{F+2*i+1}]")
        a(f"v_pk_add_f32 v[{T}:{T+1}], v[{T}:{T+1}], v[{T+2}:{T+3}]\nv_add_f32 v{T}, v{T}, v{T+1}")
        red(T)
        a(f"v_mul_f32 v{T}, 0x3acccccd, v{T}")
        for i in range(40):
            t = T + 2 + 2*(i % 2); c = T + 6 + 2*(i % 2)
            a(f"v_pk_add_f32 v[{t}:{t+1}], v[{F+2*i}:{F+2*i+1}], v[{T}:{T+1}] op_sel_hi:[1,0] neg_lo:[0,1] neg_hi:[0,1]")
            if i < 2: a(f"v_pk_mul_f32 v[{c}:{c+1}], v[{t}:{t+1}], v[{t}:{t+1}]")
            else: a(f"v_pk_fma_f32 v[{c}:{c+1}], v[{t}:{t+1}], v[{t}:{t+1}], v[{c}:{c+1}]")
        a(f"v_pk_add_f32 v[{T+6}:{T+7}], v[{T+6}:{T+7}], v[{T+8}:{T+9}]\nv_add_f32 v{T+2}, v{T+6}, v{T+7}")
        red(T + 2)
        a(f"v_mul_f32 v{T+2}, 0x3acccccd, v{T+2}")
        a(f"v_cvt_pk_bf16_f32 v{T+2}, v{T+2}, v{T+2}\nv_lshlrev_b32 v{T+2}, 16, v{T+2}\nv_add_f32 v{T+2}, 0x3727c5ac, v{T+2}")
        a(f"v_cvt_pk_bf16_f32 v{T+2}, v{T+2}, v{T+2}\nv_lshlrev_b32 v{T+2}, 16, v{T+2}\nv_sqrt_f32 v{T+2}, v{T+2}")
        a(f"v_cvt_pk_bf16_f32 v{T+2}, v{T+2}, v{T+2}\nv_lshlrev_b32 v{T+2}, 16, v{T+2}\nv_rcp_f32 v{T+2}, v{T+2}")
        a(f"v_cvt_pk_bf16_f32 v{T}, v{T}, v{T}\nv_lshlrev_b32 v{T}, 16, v{T}")
        pos = [0, 2, 4, 6, 1, 3, 5, 7] if perm else list(range(8))
        for i in range(40):
            t = T + 4 + 2*(i % 2)
            o = O + 8*(i // 8) + pos[i % 8]
            a(f"v_pk_add_f32 v[{t}:{t+1}], v[{F+2*i}:{F+2*i+1}], v[{T}:{T+1}] op_sel_hi:[1,0] neg_lo:[0,1] neg_hi:[0,1]")
            a(f"v_cvt_pk_bf16_f32 v{t}, v{t}, v{t+1}\nv_and_b32 v{t+1}, 0xffff0000, v{t}\nv_lshlrev_b32 v{t}, 16, v{t}")
            a(f"v_pk_mul_f32 v[{t}:{t+1}], v[{t}:{t+1}], v[{T+2}:{T+3}] op_sel_hi:[1,0]")
            a(f"v_cvt_pk_bf16_f32 v{o}, v{t}, v{t+1}")
    def ln_loads(R, vaddr, srdn):
        for m in range(5):
            a(f"buffer_load_dwordx4 v[{R+8*m}:{R+8*m+3}], {vaddr}, {srdn}, 0 offen offset:{256*m}")
            a(f"buffer_load_dwordx4 v[{R+8*m+4}:{R+8*m+7}], {vaddr}, {srdn}, 0 offen offset:{256*m+16}")

    a("s_cmp_ge_u32 s2, 256\ns_cbranch_scc1 END")
    a("s_load_dwordx8 s[64:71], s[0:1], 0\ns_load_dwordx4 s[72:75], s[0:1], 32\ns_load_dwordx8 s[76:83], s[0:1], 64\ns_load_dwordx4 s[84:87], s[0:1], 96")
    a("v_lshrrev_b32 v1, 6, v0\nv_and_b32 v0, 63, v0")
    a(f"v_readfirstlane_b32 {sW}, v1")
    a(f"s_getreg_b32 {sQ}, hwreg(HW_REG_XCC_ID, 0, 4)\ns_add_u32 {sQ}, {sQ}, {OPT.get('QO', 0)}\ns_xor_b32 {sQ}, {sQ}, {OPT.get('QX', 0)}\ns_and_b32 {sQ}, {sQ}, 7")
    a(f"s_mov_b32 {sBUD}, {BUDGET}\ns_mov_b32 {sMODE}, 0")
    a("v_lshlrev_b32 v2, 4, v0\nv_lshlrev_b32 v3, 3, v0")
    a("s_waitcnt lgkmcnt(0)")
    srd(8, pWS, 0x10000000)
    srd(20, pX, 2048*1280)
    if INSTR: a("s_memtime s[90:91]")
    if RT == 3:
        for i in range(94, 102): a(f"s_mov_b32 s{i}, 0")
    if RT == 1:
        for i in range(94, 102): a(f"s_mov_b32 s{i}, 0")
    rt(0)
    VW = 163832
    sTK = "s88"
    HWR = OPT.get("HWR", 1)
    if HWR:
        a(f"s_getreg_b32 s3, hwreg(HW_REG_HW_ID, 8, 4)\ns_getreg_b32 s4, hwreg(HW_REG_HW_ID, 13, 2)\ns_and_b32 s5, s4, 1\ns_sub_u32 s3, s3, s5\ns_and_b32 s3, s3, 7\ns_lshl_b32 s3, s3, 2\ns_add_u32 {sR}, s3, s4")
    else: a(f"s_lshr_b32 {sR}, s2, 3")
    if OPT.get("PF"):
        a(f"s_cmp_lg_u32 {sW}, {OPT['PF'] - 1}\ns_cbranch_scc1 PF_E\ns_getpc_b64 s[40:41]")
        a.put("PF_B")
        a(f"s_and_b32 s3, {sR}, 15\ns_lshl_b32 s3, s3, 13\nv_lshl_add_u32 v4, v0, 7, s3\ns_mov_b32 s3, END-PF_B\nv_min_u32 v4, s3, v4")
        a("v_mov_b32 v5, s41\nv_add_co_u32 v4, vcc, s40, v4\nv_addc_co_u32 v5, vcc, 0, v5, vcc\nglobal_load_dword v255, v[4:5], off")
        a.put("PF_E")
    if OPT.get("PERM"):
        P = OPT["PERM"]; assert sorted(P) == list(range(32))
        for w in range(8): a(f"s_mov_b32 s{40+w}, {sum(P[4*w+i] << (8*i) for i in range(4))}")
        a(f"s_bitcmp1_b32 {sR}, 4\ns_cselect_b64 s[40:41], s[44:45], s[40:41]\ns_cselect_b64 s[42:43], s[46:47], s[42:43]\ns_bitcmp1_b32 {sR}, 3\ns_cselect_b64 s[40:41], s[42:43], s[40:41]")
        a(f"s_and_b32 s3, {sR}, 7\ns_lshl_b32 s3, s3, 3\ns_lshr_b64 s[40:41], s[40:41], s3\ns_and_b32 {sR}, s40, 31")
    a(f"s_cmp_lg_u32 {sW}, 7\ns_cbranch_scc1 ROLE\ns_setprio 3")
    a(f"s_lshl_b32 s3, {sQ}, 5\nv_mov_b32 v4, s3\ns_lshl_b32 s3, 1, {sR}\nv_mov_b32 v6, 1\nv_mov_b32 v7, s3\ns_mov_b64 exec, 1")
    a(f"global_atomic_add_x2 v[10:11], v4, v[6:7], s[{pDBG}:{pDBG+1}] sc0 sc1\ns_mov_b64 exec, -1")
    def arrive():
        a(f"v_readfirstlane_b32 {sTK}, v10\nv_readfirstlane_b32 s3, v11")
        if FORCE_SLOW == 1: a(f"s_mov_b32 {sTK}, 99")
        if FORCE_SLOW == 2: a(f"s_cmp_eq_u32 s2, 5\ns_cselect_b32 {sTK}, 99, {sTK}")
        if FORCE_SLOW == 3: a(f"s_cmp_eq_u32 s2, 5\ns_cselect_b32 s3, -1, s3")
        a(f"s_lshr_b32 s3, s3, {sR}\ns_and_b32 s3, s3, 1\ns_lshl_b32 s3, s3, 12\ns_cmp_lt_u32 {sTK}, 32\ns_cselect_b32 s89, 1, {1 + (1 << 22)}\ns_add_u32 s89, s89, s3")
        a(f"v_mov_b32 v12, 16\nv_mov_b32 v13, s89\ns_mov_b64 exec, 1\nglobal_atomic_add v14, v12, v13, s[{pDBG}:{pDBG+1}] sc0 sc1\ns_mov_b64 exec, -1")
    def publish():
        l = a.lab("PUB")
        a(f"s_waitcnt vmcnt(0)\nv_readfirstlane_b32 s4, v14\ns_add_u32 s3, s89, s4\ns_and_b32 s4, s3, 0xfff\ns_cmp_lg_u32 s4, 256\ns_cbranch_scc1 {l}")
        a(f"s_cmp_eq_u32 s3, 256\ns_cselect_b32 s4, 1, 3\ns_cmp_lt_u32 s3, {1 << 22}\ns_cselect_b32 s4, s4, 2\nv_mov_b32 v12, 16\nv_mov_b32 v13, s4\ns_mov_b64 exec, 1\nglobal_store_dword v12, v13, s[{pDBG}:{pDBG+1}] offset:128 sc1\ns_mov_b64 exec, -1")
        a.put(l)
    def verdict_w(gsl=OPT.get('GSL', 2)):
        l = a.lab("VW"); g = a.lab("VG"); k = a.lab("VK")
        a(f"s_cmp_lg_u32 {sW}, 7\ns_cbranch_scc1 {l}\nv_mov_b32 v62, 1\ns_cmp_lg_u32 {sMODE}, 0\ns_cbranch_scc1 {k + 'y' if HWR else k}\nv_mov_b32 v62, 2\ns_cmp_ge_u32 {sTK}, 32\ns_cbranch_scc1 {k}x\nv_mov_b32 v63, 16")
        a.put(g)
        a(f"global_load_dword v62, v63, s[{pDBG}:{pDBG+1}] offset:128 sc1\ns_waitcnt vmcnt(0)\nv_cmp_ne_u32 vcc, 0, v62\ns_cbranch_vccnz {k}\ns_sleep {gsl}")
        budget(g)
        a.put(k + "x")
        a("v_mov_b32 v63, 16")
        a.put(g + "x")
        a(f"global_load_dword v61, v63, s[{pDBG}:{pDBG+1}] offset:128 sc1\ns_waitcnt vmcnt(0)\nv_cmp_ne_u32 vcc, 0, v61\ns_cbranch_vccnz {k}\ns_sleep {gsl}")
        budget(g + "x")
        if HWR:
            a.put(k + "y")
            a("v_mov_b32 v63, 16")
            a.put(g + "y")
            a(f"global_load_dword v61, v63, s[{pDBG}:{pDBG+1}] offset:160 sc1\ns_waitcnt vmcnt(0)\nv_cmp_le_u32 vcc, 80, v61\ns_cbranch_vccnz {k}\ns_sleep {gsl}")
            budget(g + "y")
        a.put(k)
        a(f"v_mov_b32 v63, {VW}\nds_write_b32 v63, v62\ns_waitcnt lgkmcnt(0)")
        a.put(l)
    def verdict_r():
        a(f"v_mov_b32 v63, {VW}\nds_read_b32 v62, v63\ns_waitcnt lgkmcnt(0)\nv_readfirstlane_b32 s3, v62\ns_cmp_lg_u32 s3, 1\ns_cbranch_scc1 REROLE")
    a.put("ROLE")
    a(f"s_mul_i32 {sG}, {sQ}, {L.GS}")
    a(f"s_cmp_ge_u32 {sR}, 28\ns_cbranch_scc1 PRO_F\ns_cmp_lt_u32 {sW}, 4\ns_cbranch_scc1 PRO_G\ns_setprio 3\ns_sub_u32 s14, {sW}, 4")
    a("v_and_b32 v4, 7, v0\nv_mul_u32_u24 v4, 1280, v4\nv_lshrrev_b32 v5, 3, v0\nv_lshlrev_b32 v5, 5, v5\nv_add_u32 v4, v4, v5")
    a(f"s_cmp_ge_u32 {sR}, 18\ns_cbranch_scc1 PRO_D")
    a("s_mul_i32 s3, s14, 10240\nv_add_u32 v4, s3, v4")
    NOE = OPT.get("NOE", 0)
    ln_loads(160, "v4", "s[20:23]")
    if NOE == 2: a("s_barrier")
    a("v_add_u32 v4, 40960, v4")
    ln_loads(212, "v4", "s[20:23]")
    srd(16, pM0, 10240)
    a("v_and_b32 v5, 7, v0\nv_mul_u32_u24 v5, 1280, v5\nv_lshrrev_b32 v6, 3, v0\nv_lshl_add_u32 v5, v6, 4, v5\ns_lshl_b32 s3, s14, 7\nv_add_u32 v5, s3, v5")
    for i in range(3): a(f"buffer_load_dwordx4 v[{200+4*i}:{203+4*i}], v5, s[16:19], 0 offen offset:{512*i}")
    if NOE == 0: a("s_barrier")
    rt(1)
    a(f"s_cmp_lg_u32 {sW}, 7\ns_cbranch_scc1 PRO_A1\ns_cmp_lg_u32 {sMODE}, 0\ns_cbranch_scc1 PRO_A1\ns_waitcnt vmcnt(23)")
    arrive()
    a("s_waitcnt vmcnt(14)\ns_branch PRO_A2")
    a.put("PRO_A1")
    a("s_waitcnt vmcnt(13)")
    a.put("PRO_A2")
    layernorm(160, 64, 160, True)
    a("s_waitcnt vmcnt(1)")
    layernorm(212, 64, 212, True)
    rt(2)
    a("s_branch WR_A")
    a.put("PRO_G")
    a(f"s_cmp_ge_u32 {sR}, 18\ns_cbranch_scc1 PRO_C")
    a(f"s_cmp_lt_u32 {sR}, 12\ns_cbranch_scc0 PRO_PV")
    srd(12, pWQ, 640*12288); srd(16, pWK, 640*12288)
    a(f"s_mul_i32 s3, {sQ}, 1536\ns_lshl_b32 s4, {sR}, 7\ns_add_u32 s3, s3, s4\ns_mov_b32 s4, s3\ns_branch PRO_P2")
    a.put("PRO_PV")
    srd(12, pWV, 640*12288); srd(16, pWV, 640*12288)
    a(f"s_mul_i32 s3, {sQ}, 1536\ns_sub_u32 s4, {sR}, 12\ns_lshl_b32 s4, s4, 8\ns_add_u32 s3, s3, s4\ns_add_u32 s4, s3, 128")
    a.put("PRO_P2")
    a(f"v_lshrrev_b32 v4, 3, v0\nv_mul_u32_u24 v4, 12288, v4\ns_and_b32 s5, {sW}, 1\ns_lshl_b32 s5, s5, 1\nv_lshrrev_b32 v5, 5, v0\nv_add_u32 v5, s5, v5")
    a("v_bfe_u32 v6, v0, 1, 2\nv_xor_b32 v5, v5, v6\nv_lshlrev_b32 v5, 5, v5\nv_and_b32 v6, 1, v0\nv_lshlrev_b32 v6, 4, v6\nv_add3_u32 v4, v4, v5, v6")
    a(f"s_mul_i32 s5, {sW}, 98304\ns_add_u32 s3, s3, s5\ns_add_u32 s4, s4, s5\ns_lshl_b32 s6, {sW}, 10")
    if NOE != 1: a("s_barrier")
    for i in range(20):
        dma("v4", "s[12:15]", "s3", "s6", WNT)
        a("s_add_u32 s7, s6, 40960")
        dma("v4", "s[16:19]", "s4", "s7", WNT)
        if i < 19: a(f"s_add_u32 s3, s3, {4*98304}\ns_add_u32 s4, s4, {4*98304}\ns_add_u32 s6, s6, {4096 + (40960 if i == 9 else 0)}")
    rt(2)
    a("s_branch WR_P")
    a.put("PRO_C")
    srd(12, pWO, 6144*1280)
    a(f"v_lshrrev_b32 v4, 3, v0\nv_mul_u32_u24 v4, 1280, v4\nv_lshrrev_b32 v5, 4, v0\nv_bfe_u32 v6, v0, 1, 2\nv_xor_b32 v5, v5, v6\nv_lshlrev_b32 v5, 5, v5\nv_and_b32 v6, 1, v0\nv_lshlrev_b32 v6, 4, v6\nv_add3_u32 v4, v4, v5, v6")
    a(f"s_mul_i32 s3, {sQ}, {768*1280}\ns_sub_u32 s4, {sR}, 18\ns_lshl_b32 s4, s4, 7\ns_add_u32 s3, s3, s4\ns_mul_i32 s5, {sW}, 10240\ns_add_u32 s3, s3, s5\ns_lshl_b32 s6, {sW}, 10\ns_barrier")
    if OPT.get("CJ", 1) == 2:
        a("s_barrier"); verdict_r()
    for i in range(24):
        dma("v4", "s[12:15]", "s3", "s6", WNT)
        if i < 23: a("s_add_u32 s3, s3, 40960\ns_add_u32 s6, s6, 4096")
    a("s_branch WR_C")
    a.put("PRO_F")
    a(f"s_lshl_b32 s33, {sQ}, 2\ns_add_u32 s33, s33, {sR}\ns_sub_u32 s33, s33, 28")
    a(f"v_and_b32 v4, 7, v0\ns_lshl_b32 s3, {sW}, 3\nv_add_u32 v4, s3, v4\nv_mul_u32_u24 v4, 40960, v4\nv_lshrrev_b32 v5, 3, v0\nv_lshlrev_b32 v5, 5, v5\nv_add_u32 v4, v4, v5\ns_mul_i32 s3, s33, 1280\nv_add_u32 v4, s3, v4")
    ln_loads(200, "v4", "s[20:23]")
    a(f"s_barrier\ns_cmp_lg_u32 {sW}, 7\ns_cbranch_scc1 PRO_F1\ns_cmp_lg_u32 {sMODE}, 0\ns_cbranch_scc1 PRO_F1\ns_waitcnt vmcnt(10)")
    arrive()
    publish()
    a.put("PRO_F1")
    a("s_setprio 0\ns_waitcnt vmcnt(0)")
    layernorm(200, 64, 16, False)
    a(f"v_lshrrev_b32 v4, 3, v0\nv_lshlrev_b32 v4, 10, v4\nv_and_b32 v5, 7, v0\nv_lshl_add_u32 v4, v5, 4, v4\ns_lshr_b32 s3, {sW}, 2\ns_mul_i32 s3, s3, 40960\ns_and_b32 s4, {sW}, 3\ns_lshl_b32 s4, s4, 7\ns_add_u32 s3, s3, s4\nv_add_u32 v4, s3, v4")
    for m in range(5):
        a(f"ds_write_b128 v4, v[{16+8*m}:{19+8*m}] offset:{8192*m}\nds_write_b128 v4, v[{20+8*m}:{23+8*m}] offset:{8192*m+512}")
    a("s_waitcnt lgkmcnt(0)")
    verdict_w(OPT.get("GSF", 2))
    rt(3)
    a("s_barrier")
    verdict_r()
    a("s_barrier\ns_branch GO")
    a.put("WR_P")
    a("v_lshrrev_b32 v4, 5, v0\nv_lshlrev_b32 v4, 4, v4\nv_bfe_u32 v5, v0, 4, 1\nv_lshl_add_u32 v4, v5, 2, v4\nv_bfe_u32 v6, v0, 2, 1\nv_add_u32 v4, v4, v6\nv_bfe_u32 v6, v0, 3, 1\nv_lshl_add_u32 v4, v6, 3, v4")
    a("v_lshlrev_b32 v4, 7, v4\nv_lshl_add_u32 v5, v6, 1, v5\nv_and_b32 v6, 3, v0\nv_lshl_add_u32 v4, v6, 3, v4")
    a(f"s_and_b32 s3, {sW}, 1\ns_lshl_b32 s3, s3, 1\ns_add_u32 s4, s3, 1\ns_lshr_b32 s5, {sW}, 1\ns_mul_i32 s5, s5, 40960\ns_mov_b32 s6, s5")
    a(f"s_cmp_lt_u32 {sR}, 12\ns_cselect_b32 s3, {sW}, s3\ns_cselect_b32 s4, {sW}, s4\ns_cselect_b32 s5, 0, s5\ns_cselect_b32 s6, 40960, s6")
    a("v_xor_b32 v6, s3, v5\nv_lshl_add_u32 v6, v6, 5, v4\nv_add_u32 v6, s5, v6\nv_add_u32 v8, 81920, v6")
    a("v_xor_b32 v7, s4, v5\nv_lshl_add_u32 v7, v7, 5, v4\nv_add_u32 v7, s6, v7\nv_add_u32 v9, 81920, v7")
    for hf in range(2):
        a(f"s_waitcnt vmcnt({0 if hf else 20})")
        rt(3 + hf)
        a("s_barrier")
        n = 0
        for kb in range(5*hf, 5*hf + 5):
            for T in range(2):
                for b in range(2):
                    for rd in range(2):
                        d = 64 + 16*kb + 8*T + 4*b + 2*rd
                        a(f"ds_read_b64_tr_b16 v[{d}:{d+1}], v{6+T+2*hf} offset:{(kb % 5)*8192 + b*4096 + rd*256}")
                        n += 1
                        if n % 8 == 0 and n > 8: a("s_waitcnt lgkmcnt(8)")
        a("s_waitcnt lgkmcnt(0)\ns_barrier")
    a("s_branch GO")
    a.put("WR_A")
    a("v_lshrrev_b32 v4, 4, v0\nv_lshlrev_b32 v4, 10, v4\nv_bfe_u32 v5, v0, 3, 1\nv_lshlrev_b32 v5, 9, v5\nv_and_b32 v6, 7, v0\nv_lshlrev_b32 v6, 4, v6\nv_add3_u32 v4, v4, v5, v6")
    a("s_lshr_b32 s3, s14, 1\ns_mul_i32 s3, s3, 20480\ns_and_b32 s4, s14, 1\ns_lshl_b32 s4, s4, 7\ns_add_u32 s3, s3, s4\nv_add_u32 v4, s3, v4")
    rt(3)
    a("s_barrier\ns_barrier")
    for m in range(5):
        a(f"ds_write_b128 v4, v[{160+8*m}:{163+8*m}] offset:{4096*m}\nds_write_b128 v4, v[{164+8*m}:{167+8*m}] offset:{4096*m+256}")
    a("v_add_u32 v4, 40960, v4")
    for m in range(5):
        a(f"ds_write_b128 v4, v[{212+8*m}:{215+8*m}] offset:{4096*m}\nds_write_b128 v4, v[{216+8*m}:{219+8*m}] offset:{4096*m+256}")
    a(f"s_cmp_lg_u32 {sW}, 7\ns_cbranch_scc1 WR_A2\ns_cmp_lg_u32 {sMODE}, 0\ns_cbranch_scc1 WR_A2")
    publish()
    a.put("WR_A2")
    a("s_waitcnt vmcnt(0) lgkmcnt(0)\ns_barrier\ns_barrier\ns_branch GO")
    a.put("WR_C")
    a(f"v_lshrrev_b32 v4, 2, v0\nv_lshlrev_b32 v4, 7, v4\nv_and_b32 v5, 3, v0\nv_lshl_add_u32 v4, v5, 3, v4\ns_mul_i32 s3, {sW}, 24576\nv_add_u32 v4, s3, v4\nv_bfe_u32 v5, v0, 3, 2")
    for ct in range(4): a(f"v_xor_b32 v{6+ct}, {ct}, v5\nv_lshl_add_u32 v{6+ct}, v{6+ct}, 5, v4")
    a("s_waitcnt vmcnt(0)")
    rt(3)
    a("s_barrier")
    n = 0
    for kb in range(3):
        for ct in range(4):
            for b in range(2):
                for rd in range(2):
                    d = 64 + 32*kb + 8*ct + 4*b + 2*rd
                    a(f"ds_read_b64_tr_b16 v[{d}:{d+1}], v{6+ct} offset:{kb*8192 + b*4096 + rd*2048}")
                    n += 1
                    if n % 8 == 0 and n > 8: a("s_waitcnt lgkmcnt(8)")
    a("s_waitcnt lgkmcnt(0)\ns_barrier")
    if OPT.get("CJ", 1) != 2: verdict_r()
    a("s_branch GO")
    a.put("PRO_D")
    HI = OPT.get("HI", 4) if OPT.get("RST") else NS
    assert L.GPOIS == 40 * 4096 and L.H2 % 1024 == 0 and HI * L.H3S % (320 * 1024) == 0
    if not HWR: a(f"s_cmp_eq_u32 {sMODE}, 0\ns_cbranch_scc1 PRO_D1\ns_barrier\ns_branch WR_CA")
    a.put("PRO_D1")
    a(f"s_sub_u32 s15, {sR}, 18\ns_lshl_b32 s15, s15, 2\ns_add_u32 s15, s15, s14\ns_and_b32 s12, {sQ if HWR else 's2'}, 7\ns_lshl_b32 s13, s15, 3\ns_add_u32 s13, s13, s12")
    a("s_mul_i32 s3, s13, 10240\nv_add_u32 v4, s3, v4")
    ln_loads(16, "v4", "s[20:23]")
    CJ = OPT.get("CJ", 1); assert CJ == 1 or not HWR
    if not CJ: a("s_barrier")
    rt(1)
    a(f"s_mul_i32 s3, s12, {L.GS}\ns_lshl_b32 s6, s15, 12\ns_add_u32 s3, s3, s6")
    for i in range(4):
        r = 56 + 4*(i % 2)
        a(f"s_cmp_lt_u32 s6, {L.H2 - 1024*i}\ns_cselect_b32 s7, -1, 0")
        for k in range(4): a(f"v_mov_b32 v{r+k}, s7")
        a(f"buffer_store_dwordx4 v[{r}:{r+3}], v2, {WS}, s3 offen offset:{1024*i} sc1")
    for k in range(4): a(f"v_mov_b32 v{64+k}, 0")
    a(f"s_mul_i32 s3, s13, {HI * 1024}\ns_add_u32 s3, s3, {L.H3}")
    for i in range(HI): a(f"buffer_store_dwordx4 v[64:67], v2, {WS}, s3 offen offset:{1024*i} sc1")
    a("s_cmp_ge_u32 s13, 256\ns_cbranch_scc1 PRO_D2")
    a(f"v_and_b32 v6, 15, v0\nv_lshlrev_b32 v6, 3, v6\ns_lshl_b32 s3, s13, 7\ns_add_u32 s3, s3, {L.FL}\nbuffer_store_dwordx2 v[64:65], v6, {WS}, s3 offen sc1")
    a(f"s_waitcnt vmcnt({5 + HI})")
    layernorm(16, 64, 16, True)
    a("v_lshrrev_b32 v4, 4, v0\nv_lshlrev_b32 v4, 10, v4\nv_bfe_u32 v5, v0, 3, 1\nv_lshlrev_b32 v5, 9, v5\nv_and_b32 v6, 7, v0\nv_lshlrev_b32 v6, 4, v6\nv_add3_u32 v4, v4, v5, v6")
    a(f"s_lshr_b32 s3, s13, 1\ns_mul_i32 s3, s3, 20480\ns_and_b32 s4, s13, 1\ns_lshl_b32 s4, s4, 7\ns_add_u32 s3, s3, s4\ns_add_u32 s3, s3, {L.XN}")
    for m in range(5):
        a(f"buffer_store_dwordx4 v[{16+8*m}:{19+8*m}], v4, {WS}, s3 offen sc1\nbuffer_store_dwordx4 v[{20+8*m}:{23+8*m}], v4, {WS}, s3 offen offset:256 sc1")
        if m < 4: a("s_add_u32 s3, s3, 4096")
    a.put("PRO_D2")
    a("s_waitcnt vmcnt(0)")
    rt(2)
    if CJ:
        a(f"s_barrier\ns_cmp_lg_u32 {sW}, 7\ns_cbranch_scc1 WR_CA")
        if HWR:
            a(f"s_cmp_eq_u32 {sMODE}, 0\ns_cbranch_scc1 WR_C0\nv_mov_b32 v12, 16\nv_mov_b32 v13, 1\ns_mov_b64 exec, 1\nglobal_atomic_add v12, v13, s[{pDBG}:{pDBG+1}] offset:160 sc1\ns_mov_b64 exec, -1\ns_branch WR_CA")
            a.put("WR_C0")
        arrive()
        publish()
        a.put("WR_CA")
        a("s_setprio 0")
        if CJ == 2:
            verdict_w(); rt(3); a("s_barrier"); verdict_r()
            a("s_barrier\ns_barrier\ns_branch GO")
        a("s_barrier")
    else:
        a.put("WR_CA")
        a(f"s_setprio 0\ns_barrier\ns_cmp_lg_u32 {sW}, 7\ns_cbranch_scc1 WR_CB\ns_cmp_lg_u32 {sMODE}, 0\ns_cbranch_scc1 WR_CB")
        arrive()
        publish()
        a.put("WR_CB")
    verdict_w()
    rt(3)
    a("s_barrier")
    verdict_r()
    a("s_branch GO")
    a.put("REROLE")
    a(f"s_setprio 0\ns_waitcnt vmcnt(0) lgkmcnt(0)\ns_barrier\nv_mov_b32 v63, 0\ns_cmp_lg_u32 {sW}, 7\ns_cbranch_scc1 RR1\nv_mov_b32 v62, {sTK}\nds_write_b32 v63, v62\ns_waitcnt lgkmcnt(0)")
    a.put("RR1")
    a(f"s_barrier\nds_read_b32 v62, v63\ns_waitcnt lgkmcnt(0)\nv_readfirstlane_b32 {sR}, v62\ns_barrier\ns_mov_b32 {sMODE}, 2\ns_cmp_eq_u32 s3, 3\ns_cbranch_scc1 ROLE")
    if OPT.get("XT"): a("s_branch END")
    a(f"s_mov_b32 {sMODE}, 1\ns_lshr_b32 {sQ}, s2, 5\ns_and_b32 {sR}, s2, 31\ns_branch ROLE")
    a.put("GO")
    if OPT.get("HWID"):
        a(f"s_getreg_b32 s3, hwreg(HW_REG_HW_ID)\ns_and_b32 s3, s3, 0xffff\ns_lshl_b32 s4, {sQ}, 5\ns_add_u32 s4, s4, {sR}\ns_lshl_b32 s4, s4, 16\ns_or_b32 s3, s3, s4\nv_mov_b32 v16, s3\ns_lshl_b32 s3, s2, 2\ns_add_u32 s3, s3, {L.DBG+2048}\nv_mov_b32 v17, 0\nbuffer_store_dword v16, v17, {WS}, s3 offen")
    a(f"s_mov_b32 {sS}, 0")
    if OPT.get("PROL"):
        rt(5); rtdump(); a("s_waitcnt vmcnt(0)\ns_branch END")
    a(f"s_cmp_ge_u32 {sR}, 28\ns_cbranch_scc1 FFN")
    if PARTS == "ffn": a("s_branch END")
    else:
        a(f"s_cmp_eq_u32 {sMODE}, 1\ns_cbranch_scc1 CHAIN_S")
        from chain import chain
        ctx = dict(locals())
        chain(ctx, "F", "")
        a.put("CHAIN_S")
        chain(ctx, "S", " sc1")

    a.put("FFN")
    if OPT.get("NOFFN"): a("s_branch END")
    srd(12, pWG, 640*3072); srd(16, pWU, 640*3072)
    LOG2E = "0x3fb8aa3b"
    RING1 = 81920
    a("v_lshrrev_b32 v4, 2, v0\nv_mul_u32_u24 v4, 3072, v4\nv_and_b32 v5, 3, v0\nv_lshl_add_u32 v4, v5, 4, v4")
    a("v_lshrrev_b32 v5, 5, v0\nv_lshlrev_b32 v5, 9, v5\nv_bfe_u32 v6, v0, 2, 2\nv_lshl_add_u32 v5, v6, 6, v5\nv_bfe_u32 v6, v0, 4, 1\nv_lshl_add_u32 v5, v6, 5, v5\nv_and_b32 v6, 3, v0\nv_lshl_add_u32 v5, v6, 3, v5")
    a(f"s_mul_i32 s34, {sW}, 10240\ns_add_u32 s34, s34, {RING1}")
    a(f"s_cmp_ge_u32 {sQ}, 6\ns_cselect_b32 s3, 6, 0\ns_sub_u32 s46, {sQ}, s3")
    if not OPT.get("ROT", 1): a("s_mov_b32 s46, 0")
    a(f"s_lshl_b32 s47, {sW}, 6\ns_add_u32 s48, s47, 3072\ns_lshl_b32 s35, s46, 9\ns_add_u32 s35, s35, s47")
    a("s_mov_b32 s36, 0\ns_mov_b32 s37, 0\ns_mov_b32 s38, s46\ns_mov_b32 s49, 0")
    def ffn1_issue():
        a("s_add_u32 s3, s34, s37")
        dma("v4", "s[12:15]", "s35", "s3")
        a("s_add_u32 s3, s3, 1024")
        dma("v4", "s[16:19]", "s35", "s3")
        a("s_add_u32 s37, s37, 2048\ns_cmp_eq_u32 s37, 10240\ns_cselect_b32 s37, 0, s37")
        a(f"s_add_u32 s35, s35, 49152\ns_add_u32 s36, s36, 1\ns_cmp_eq_u32 s36, 40\ns_cselect_b32 s3, {40*49152-512}, 0\ns_cselect_b32 s36, 0, s36\ns_sub_u32 s35, s35, s3\ns_cmp_eq_u32 s35, s48\ns_cselect_b32 s35, s47, s35")
    for i in range(4): ffn1_issue()
    a("s_mov_b32 s39, 0")
    a.put("F1_PASS")
    for i in range(64, 128): a(f"v_mov_b32 v{i}, 0")
    a("v_mov_b32 v6, v2\ns_mov_b32 s40, 0")
    a.put("F1_K")
    a("s_add_u32 s3, s34, s39\nv_add_u32 v7, s3, v5\ns_waitcnt vmcnt(6)")
    a("ds_read_b64_tr_b16 v[16:17], v7\nds_read_b64_tr_b16 v[18:19], v7 offset:256\nds_read_b128 v[24:27], v6\nds_read_b128 v[28:31], v6 offset:40960")
    a("ds_read_b64_tr_b16 v[20:21], v7 offset:1024\nds_read_b64_tr_b16 v[22:23], v7 offset:1280")
    ffn1_issue()
    a("s_add_u32 s39, s39, 2048\ns_cmp_eq_u32 s39, 10240\ns_cselect_b32 s39, 0, s39\nv_add_u32 v6, 1024, v6")
    a("s_waitcnt lgkmcnt(3)\nv_mfma_f32_32x32x16_bf16 v[64:79], v[16:19], v[24:27], v[64:79]")
    a("s_waitcnt lgkmcnt(2)\nv_mfma_f32_32x32x16_bf16 v[80:95], v[16:19], v[28:31], v[80:95]")
    a("s_waitcnt lgkmcnt(0)\nv_mfma_f32_32x32x16_bf16 v[96:111], v[20:23], v[24:27], v[96:111]\nv_mfma_f32_32x32x16_bf16 v[112:127], v[20:23], v[28:31], v[112:127]")
    a("s_add_u32 s40, s40, 1\ns_cmp_lt_u32 s40, 40\ns_cbranch_scc1 F1_K")
    a(f"s_mov_b32 s3, {LOG2E}")
    def silu_pair(x, t):
        a(f"v_cvt_pk_bf16_f32 v{t}, v{x}, v{x+1}\nv_lshlrev_b32 v{x}, 16, v{t}\nv_and_b32 v{x+1}, 0xffff0000, v{t}")
        a(f"v_mul_f32 v{t}, s3, v{x}\nv_mul_f32 v{t+1}, s3, v{x+1}\nv_exp_f32 v{t}, -v{t}\nv_exp_f32 v{t+1}, -v{t+1}")
        a(f"v_add_f32 v{t}, 1.0, v{t}\nv_add_f32 v{t+1}, 1.0, v{t+1}\nv_rcp_f32 v{t}, v{t}\nv_rcp_f32 v{t+1}, v{t+1}")
        a(f"v_pk_mul_f32 v[{x}:{x+1}], v[{x}:{x+1}], v[{t}:{t+1}]")
    for i in range(16):
        g = 64 + 2*i; u = 96 + 2*i; t = 16 + 2*(i % 4)
        silu_pair(g, t)
        a(f"v_cvt_pk_bf16_f32 v{t}, v{g}, v{g+1}\nv_lshlrev_b32 v{g}, 16, v{t}\nv_and_b32 v{g+1}, 0xffff0000, v{t}")
        a(f"v_cvt_pk_bf16_f32 v{t}, v{u}, v{u+1}\nv_lshlrev_b32 v{u}, 16, v{t}\nv_and_b32 v{u+1}, 0xffff0000, v{t}")
        a(f"v_pk_mul_f32 v[{g}:{g+1}], v[{g}:{g+1}], v[{u}:{u+1}]")
    for p in range(6):
        nx = a.lab("F1S")
        if p < 5: a(f"s_cmp_lg_u32 s38, {p}\ns_cbranch_scc1 {nx}")
        for i in range(16): a(f"v_cvt_pk_bf16_f32 v{160+16*p+i}, v{64+2*i}, v{65+2*i}")
        if p < 5: a("s_branch F1_NEXT"); a.put(nx)
    a.put("F1_NEXT")
    a("s_add_u32 s38, s38, 1\ns_cmp_eq_u32 s38, 6\ns_cselect_b32 s38, 0, s38\ns_add_u32 s49, s49, 1\ns_cmp_lt_u32 s49, 6\ns_cbranch_scc1 F1_PASS")
    a("s_waitcnt vmcnt(0)\ns_barrier")
    srd(12, pWD, 1536*1280)
    for i in range(5):
        a(f"v_add_u32 v7, {64*i}, v0\nv_mul_u32_u24 v13, 6554, v7\nv_lshrrev_b32 v13, 16, v13\nv_mul_u32_u24 v14, 10, v13\nv_sub_u32 v7, v7, v14\nv_mul_u32_u24 v13, 1280, v13\nv_lshl_add_u32 v{8+i}, v7, 4, v13")
    a("v_lshrrev_b32 v5, 5, v0\nv_lshlrev_b32 v5, 4, v5\nv_bfe_u32 v6, v0, 2, 3\nv_add_u32 v5, v5, v6\nv_mul_u32_u24 v5, 160, v5\nv_and_b32 v6, 3, v0\nv_lshl_add_u32 v5, v6, 3, v5")
    a(f"v_bfe_u32 v13, v0, 4, 1\nv_lshlrev_b32 v13, 10, v13\nv_lshrrev_b32 v14, 5, v0\nv_lshl_add_u32 v13, v14, 8, v13\nv_and_b32 v14, 15, v0\nv_lshl_add_u32 v13, v14, 4, v13\ns_lshl_b32 s3, {sW}, 12\nv_add_u32 v13, s3, v13")
    a(f"s_lshl_b32 s34, {sW}, 14\ns_add_u32 s34, s34, 32768\ns_mul_i32 s47, {sW}, 160\ns_add_u32 s48, s47, {48*40960}\ns_mul_i32 s35, s46, {8*40960}\ns_add_u32 s35, s35, s47\ns_mov_b32 s37, 0\ns_mov_b32 s39, 0\ns_mov_b32 s40, 0")
    def ffn2_issue():
        a("s_add_u32 s3, s34, s37")
        for i in range(5):
            dma(f"v{8+i}", "s[12:15]", "s35", "s3")
            if i < 4: a("s_add_u32 s3, s3, 1024")
        a("s_add_u32 s37, s37, 5120\ns_cmp_eq_u32 s37, 15360\ns_cselect_b32 s37, 0, s37\ns_add_u32 s35, s35, 40960\ns_cmp_eq_u32 s35, s48\ns_cselect_b32 s35, s47, s35")
    for i in range(2): ffn2_issue()
    for i in range(64, 144): a(f"v_mov_b32 v{i}, 0")
    a.put("F2_K")
    a("s_and_b32 s3, s40, 7\ns_cmp_lg_u32 s3, 0\ns_cbranch_scc1 F2_M\ns_barrier\ns_mov_b32 s3, s38\ns_add_u32 s38, s38, 1\ns_cmp_eq_u32 s38, 6\ns_cselect_b32 s38, 0, s38")
    for p in range(6):
        nx = a.lab("F2S")
        if p < 5: a(f"s_cmp_lg_u32 s3, {p}\ns_cbranch_scc1 {nx}")
        for tt in range(2):
            for ip in range(2):
                r = 160 + 16*p + 8*tt + 4*ip
                a(f"ds_write_b128 v13, v[{r}:{r+3}] offset:{2048*tt + 512*ip}")
        if p < 5: a("s_branch F2_W"); a.put(nx)
    a.put("F2_W")
    a("s_waitcnt lgkmcnt(0)\ns_barrier\nv_mov_b32 v6, v2")
    a.put("F2_M")
    a("s_add_u32 s3, s34, s39\nv_add_u32 v7, s3, v5\ns_waitcnt vmcnt(5)")
    for t in range(4): a(f"ds_read_b128 v[{36+4*t}:{39+4*t}], v6 offset:{1024*t}")
    for ct in range(5): a(f"ds_read_b64_tr_b16 v[{16+4*ct}:{17+4*ct}], v7 offset:{32*ct}\nds_read_b64_tr_b16 v[{18+4*ct}:{19+4*ct}], v7 offset:{1280+32*ct}")
    ffn2_issue()
    a("s_add_u32 s39, s39, 5120\ns_cmp_eq_u32 s39, 15360\ns_cselect_b32 s39, 0, s39\nv_add_u32 v6, 4096, v6")
    for ct in range(5):
        a(f"s_waitcnt lgkmcnt({8-2*ct})")
        for t in range(4):
            d = 64 + 16*ct + 4*t
            a(f"v_mfma_f32_16x16x32_bf16 v[{d}:{d+3}], v[{16+4*ct}:{19+4*ct}], v[{36+4*t}:{39+4*t}], v[{d}:{d+3}]")
    a("s_add_u32 s40, s40, 1\ns_cmp_lt_u32 s40, 48\ns_cbranch_scc1 F2_K")
    a(f"s_waitcnt vmcnt(0)\ns_mov_b32 s3, {LOG2E}")
    a("v_and_b32 v5, 15, v0\nv_mul_u32_u24 v5, 160, v5\nv_lshrrev_b32 v6, 4, v0\nv_lshl_add_u32 v5, v6, 3, v5\nv_add_u32 v5, s34, v5")
    for ct in range(5):
        for t in range(4):
            d = 64 + 16*ct + 4*t
            silu_pair(d, 16); silu_pair(d + 2, 18)
            a(f"v_cvt_pk_bf16_f32 v{d}, v{d}, v{d+1}\nv_cvt_pk_bf16_f32 v{d+1}, v{d+2}, v{d+3}\nds_write_b64 v5, v[{d}:{d+1}] offset:{2560*t + 32*ct}")
    if INSTR:
        a(f"s_memtime s[92:93]\ns_waitcnt lgkmcnt(0)\ns_sub_u32 s92, s92, s90\nv_mov_b32 v16, s92\ns_lshl_b32 s3, s33, 3\ns_add_u32 s3, s3, {sW}\ns_lshl_b32 s3, s3, 2\ns_add_u32 s3, s3, {L.DBG}\nv_mov_b32 v17, 0\nbuffer_store_dword v16, v17, {WS}, s3 offen")
    rt(5)
    srd(12, pOUT, 2048*1280)
    a("v_mul_u32_u24 v4, 52, v0\nv_lshrrev_b32 v4, 10, v4\nv_mul_u32_u24 v5, 20, v4\nv_sub_u32 v5, v0, v5")
    a(f"s_mul_i32 s4, {sW}, 20\nv_add_u32 v7, s4, v5\nv_lshrrev_b32 v6, 3, v7\nv_lshlrev_b32 v6, 12, v6\nv_and_b32 v7, 7, v7\nv_lshl_add_u32 v6, v7, 4, v6\nv_mul_u32_u24 v7, 655360, v4\nv_add_u32 v6, v6, v7\ns_lshl_b32 s3, s33, 7\nv_add_u32 v6, s3, v6")
    a(f"v_mul_u32_u24 v7, 40960, v4\nv_lshl_add_u32 v7, v5, 3, v7\ns_mul_i32 s3, s33, 1280\ns_mul_i32 s4, {sW}, 160\ns_add_u32 s3, s3, s4\nv_add_u32 v7, s3, v7")
    a("v_mul_u32_u24 v8, 160, v4\nv_lshl_add_u32 v8, v5, 3, v8\nv_add_u32 v8, s34, v8")
    a(f"s_lshl_b32 s3, {sQ}, 12\ns_add_u32 s3, s3, {L.FL + 1024}\nv_mov_b32 v9, s3")
    a(f"s_mov_b32 s40, 0\ns_mov_b32 s41, {L.OUTP}\ns_mov_b32 s42, 0\ns_waitcnt lgkmcnt(0)")
    a.put("FIN")
    if PARTS == "ffn": a("s_mov_b32 s3, 60")
    else: a(f"buffer_load_dword v16, v9, {WS}, 0 offen sc1\ns_waitcnt vmcnt(0)\nv_readfirstlane_b32 s3, v16")
    a(f"s_cmp_ge_u32 s3, {59 if OPT.get('OST') else 60}\ns_cselect_b32 s3, 64, s3\ns_sub_u32 s43, s3, s40\ns_min_u32 s43, s43, 3\ns_mul_i32 s3, s43, 20\ns_bfm_b64 s[44:45], s3, 0")
    a(f"s_cmp_lg_u32 s43, 0\ns_cbranch_scc1 FIN_GO\ns_sleep {OPT.get('FINSL', 8)}")
    budget("FIN")
    a.put("FIN_GO")
    a("s_mov_b64 exec, s[44:45]")
    if PARTS == "ffn":
        for i in range(32): a(f"v_mov_b32 v{20+i}, " + ("1.0" if i < 4 else "0"))
    else:
        for q in range(8):
            a(f"s_add_u32 s3, s41, {81920*q}\nbuffer_load_dwordx4 v[{20+4*q}:{23+4*q}], v6, {WS}, s3 offen sc1")
    a("buffer_load_dwordx2 v[52:53], v7, s[20:23], s42 offen\nds_read_b64 v[54:55], v8")
    A3 = lambda d, x, y, z: f"v_bitop3_b32 {d}, {x}, {y}, {z} bitop3:0x80"
    a("s_waitcnt vmcnt(8)\n" + A3("v17", "1", "v20", "v21") + "\n" + A3("v17", "v17", "v22", "v23"))
    for q in range(1, 8):
        a(f"s_waitcnt vmcnt({8-q})\nv_pk_add_f32 v[20:21], v[20:21], v[{20+4*q}:{21+4*q}]\nv_pk_add_f32 v[22:23], v[22:23], v[{22+4*q}:{23+4*q}]")
        a(A3("v17", "v17", f"v{20+4*q}", f"v{21+4*q}") + "\n" + A3("v17", "v17", f"v{22+4*q}", f"v{23+4*q}"))
    if PARTS != "ffn":
        a("v_cmp_eq_u32 vcc, 0, v17\ns_cbranch_vccz FIN_OK\ns_waitcnt vmcnt(0) lgkmcnt(0)")
        budget("FIN_GO")
        a.put("FIN_OK")
    a("v_cvt_pk_bf16_f32 v20, v20, v21\nv_cvt_pk_bf16_f32 v22, v22, v23\nv_and_b32 v21, 0xffff0000, v20\nv_lshlrev_b32 v20, 16, v20\nv_and_b32 v23, 0xffff0000, v22\nv_lshlrev_b32 v22, 16, v22")
    a("s_waitcnt lgkmcnt(0)\nv_lshlrev_b32 v24, 16, v54\nv_and_b32 v25, 0xffff0000, v54\nv_lshlrev_b32 v26, 16, v55\nv_and_b32 v27, 0xffff0000, v55")
    a("v_pk_mul_f32 v[20:21], v[20:21], v[24:25]\nv_pk_mul_f32 v[22:23], v[22:23], v[26:27]")
    a("v_cvt_pk_bf16_f32 v20, v20, v21\nv_cvt_pk_bf16_f32 v22, v22, v23\nv_and_b32 v21, 0xffff0000, v20\nv_lshlrev_b32 v20, 16, v20\nv_and_b32 v23, 0xffff0000, v22\nv_lshlrev_b32 v22, 16, v22")
    a("s_waitcnt vmcnt(0)\nv_lshlrev_b32 v24, 16, v52\nv_and_b32 v25, 0xffff0000, v52\nv_lshlrev_b32 v26, 16, v53\nv_and_b32 v27, 0xffff0000, v53")
    a("v_pk_add_f32 v[20:21], v[20:21], v[24:25]\nv_pk_add_f32 v[22:23], v[22:23], v[26:27]")
    a("v_cvt_pk_bf16_f32 v20, v20, v21\nv_cvt_pk_bf16_f32 v21, v22, v23\nbuffer_store_dwordx2 v[20:21], v7, s[12:15], s42 offen")
    a("s_mov_b64 exec, -1\ns_add_u32 s40, s40, s43\ns_mul_i32 s3, s43, 655360\ns_add_u32 s41, s41, s3\ns_mul_i32 s3, s43, 40960\ns_add_u32 s42, s42, s3\ns_mul_i32 s3, s43, 160\nv_add_u32 v8, s3, v8")
    a("s_cmp_lt_u32 s40, 64\ns_cbranch_scc1 FIN")
    if INSTR:
        a(f"s_memtime s[92:93]\ns_waitcnt lgkmcnt(0)\ns_sub_u32 s92, s92, s90\nv_mov_b32 v16, s92\ns_lshl_b32 s3, s33, 3\ns_add_u32 s3, s3, {sW}\ns_lshl_b32 s3, s3, 2\ns_add_u32 s3, s3, {L.DBG+1024}\nv_mov_b32 v17, 0\nbuffer_store_dword v16, v17, {WS}, s3 offen")
    a("s_waitcnt vmcnt(0)")
    rtdump()
    a("s_waitcnt vmcnt(0)")
    a.put("END")
    hdr = "".join(l for l in open("cdna_kernels/" + KNAME[:-7] + ".s.ref") if l.startswith(";") and "@launch" not in l)
    return wrap(a.text(), KNAME, "grid=(256,1,1) block=(512,1,1) lds=163840", header=hdr)

if __name__ == "__main__":
    from build import build
    cfg = eval(sys.argv[2]) if len(sys.argv) > 2 else {}
    open(sys.argv[1], "w").write(gen(**cfg)); build(sys.argv[1], KNAME)
```

```python
from asmlib import *
OOB = 0x7fffff00

def chain(c, tag, ST):
    a, L, WS, NS, LOGNS, OPT, INSTR = c["a"], c["L"], c["WS"], c["NS"], c["LOGNS"], c["OPT"], c["INSTR"]
    sW, sQ, sR, sS, sBUD, sG = c["sW"], c["sQ"], c["sR"], c["sS"], c["sBUD"], c["sG"]
    slot, budget, srd = c["slot"], c["budget"], c["srd"]
    FLIP = OPT.get("FLIP", 0); DELTA = OPT.get("DELTA", 200); SSTEP = OPT.get("SSTEP", 55)
    POIS = NS < 64
    T = lambda n: n + "_" + tag
    sFL = "s33"
    def stamp(i):
        if INSTR == 2:
            l = a.lab("ST")
            a(f"s_cmp_lg_u32 {sS}, {SSTEP}\ns_cbranch_scc1 {l}\ns_memtime s[60:61]\ns_waitcnt lgkmcnt(0)\ns_mov_b32 s{44+i}, s60")
            a.put(l)
        if INSTR == 3: a(f"s_memtime s[{64+2*i}:{65+2*i}]")
    def dump():
        if INSTR == 3:
            a(f"s_lshl_b32 s3, {sQ}, 5\ns_add_u32 s3, s3, {sR}\ns_lshl_b32 s3, s3, 3\ns_add_u32 s3, s3, {sW}\ns_lshl_b32 s3, s3, 6\ns_and_b32 s4, {sS}, 63\ns_add_u32 s3, s3, s4\ns_lshl_b32 s3, s3, 5\ns_add_u32 s3, s3, {L.DBG + (1 << 20)}\ns_waitcnt lgkmcnt(0)")
            a("v_mov_b32 v254, s64")
            for i in range(1, 8): a(f"v_writelane_b32 v254, s{64+2*i}, {i}")
            a(f"s_mov_b64 exec, 0xff\nv_lshlrev_b32 v255, 2, v0\nbuffer_store_dword v254, v255, {WS}, s3 offen\ns_mov_b64 exec, -1")
    def rtc(i, step, reg=None):
        if OPT.get("RT") and OPT.get("RTC", 1):
            l = a.lab("RC")
            a(f"s_cmp_lg_u32 {reg or sS}, {step}\ns_cbranch_scc1 {l}")
            c["rt"](i)
            a.put(l)
    def stamp0():
        c["rt"](5)
        if INSTR: a("s_memtime s[60:61]\ns_waitcnt lgkmcnt(0)\ns_sub_u32 s55, s60, s90")
    def finish():
        if INSTR:
            a("s_memtime s[60:61]\ns_waitcnt lgkmcnt(0)\ns_sub_u32 s59, s60, s90")
            a(f"s_lshl_b32 s3, {sQ}, 5\ns_add_u32 s3, s3, {sR}\ns_lshl_b32 s3, s3, 3\ns_add_u32 s3, s3, {sW}\ns_lshl_b32 s3, s3, 6\ns_add_u32 s3, s3, {L.DBG+4096}")
            a(f"s_mov_b32 s58, {sBUD}")
            l = a.lab("CAL")
            a("s_memrealtime s[62:63]\ns_waitcnt lgkmcnt(0)\ns_mov_b32 s4, 200")
            a.put(l)
            a("s_memrealtime s[6:7]\ns_memtime s[60:61]\ns_waitcnt lgkmcnt(0)\ns_sub_u32 s4, s4, 1")
            a(f"s_cbranch_scc1 {l}_x\ns_cmp_eq_u32 s6, s62\ns_cbranch_scc1 {l}")
            a.put(l + "_x")
            a("s_mov_b32 s57, s60\ns_mov_b32 s56, s6")
            for i in range(16): a(f"v_mov_b32 v{8+i}, s{44+i}")
            a("v_mov_b32 v4, 0\ns_mov_b64 exec, 1")
            for i in range(4): a(f"buffer_store_dwordx4 v[{8+4*i}:{11+4*i}], v4, {WS}, s3 offen offset:{16*i}")
        a("s_waitcnt vmcnt(0)")
        c["rtdump"]()
        a("s_waitcnt vmcnt(0)\ns_branch END")
    def delay(n):
        while n > 0:
            m = min(n, 64); a(f"s_nop {max(m//4-1,0)}"); n -= m
    def onelane(v, saddr):
        a(f"v_mov_b32 {v}, {OOB}\nv_writelane_b32 {v}, {saddr}, 0")
    xs_dma = c["xs_dma"]
    def flagwait(vaddr, vtmp, sval):
        lp = a.lab("FW"); ok = a.lab("FO")
        a.put(lp)
        a(f"buffer_load_dword {vtmp}, {vaddr}, {WS}, {sFL} offen sc1\ns_waitcnt vmcnt(0)")
        a(f"v_cmp_gt_u32 vcc, {sval}, {vtmp}\ns_cbranch_vccz {ok}")
        budget(lp)
        a.put(ok)
    AF = OPT.get("AF", 0) if ST == "" else 0
    def afwait(off, n, r0, dl):
        lp = a.lab("AFP"); go = a.lab("AFG"); NF = OPT.get("NFA", 2)
        a(f"s_add_u32 s3, {sS}, 1\nv_min_u32 v{r0+NF}, {n-1}, v0\nv_lshlrev_b32 v{r0+NF}, 2, v{r0+NF}\nv_add_u32 v{r0+NF}, {off}, v{r0+NF}")
        for k in range(NF - 1):
            a(f"buffer_load_dword v{r0+k}, v{r0+NF}, {WS}, {sFL} offen sc1"); delay(OPT.get("AFG", 128))
        a.put(lp)
        for k in range(NF):
            a(f"buffer_load_dword v{r0+(k+NF-1)%NF}, v{r0+NF}, {WS}, {sFL} offen sc1\ns_waitcnt vmcnt({NF-1})\nv_cmp_gt_u32 vcc, s3, v{r0+k}\ns_cbranch_vccz {go}")
        budget(lp)
        a.put(go)
        delay(dl)
    def idxreg(v):
        a(f"v_and_b32 v4, 15, v0\nv_cmp_gt_u32 vcc, 8, v4\nv_mov_b32 {v}, 0xeeee\nv_mov_b32 v6, 0x4444\nv_cndmask_b32 {v}, {v}, v6, vcc")
    def tagreg(s):
        a(f"s_lshr_b32 {s}, {sS}, {LOGNS}\ns_and_b32 {s}, {s}, 1\ns_add_u32 {s}, {s}, 1")

    a(f"s_lshl_b32 {sFL}, {sQ}, 12\ns_add_u32 {sFL}, {sFL}, {L.FL}")
    a(f"s_cmp_ge_u32 {sR}, 18\ns_cbranch_scc1 {T('COMB')}")
    MEM, QKM, QX, KX, DUM = 81920, 92160, 94208, 98304, 102400
    a(f"s_cmp_ge_u32 {sW}, 4\ns_cbranch_scc1 {T('PAUX')}")
    idxreg("v5")
    a(f"v_add_u32 v11, {MEM}, v2")
    NB = 5
    def tokgemm():
        R = lambda i: 16 + 4*(i % NB)
        off = lambda i: (i % 2)*20480 + (i // 2)*1024
        for i in range(NB - 1): a(f"ds_read_b128 v[{R(i)}:{R(i)+3}], v9 offset:{off(i)}")
        for i in range(40):
            if i + NB - 1 < 40: a(f"ds_read_b128 v[{R(i+NB-1)}:{R(i+NB-1)+3}], v9 offset:{off(i+NB-1)}")
            a(f"s_waitcnt lgkmcnt({min(NB-1, 39-i)})")
            kk, tt = i // 2, i % 2
            for t in range(2):
                w = 64 + 16*(kk // 2) + 8*t + 4*(kk % 2); d = 224 + 8*t + 4*tt
                a(f"v_mfma_f32_16x16x32_bf16 v[{d}:{d+3}], v[{w}:{w+3}], v[{R(i)}:{R(i)+3}], " + ("0" if kk == 0 else f"v[{d}:{d+3}]"))
    def crit():
        for b in range(10): a(f"ds_read_b128 v[{16+4*b}:{19+4*b}], v11 offset:{1024*b}")
        for b in range(10):
            a(f"s_waitcnt lgkmcnt({9-b})")
            a(f"v_smfmac_f32_16x16x64_bf16 v[56:59], v[{16+4*b}:{19+4*b}], v[{64+16*b}:{71+16*b}], v5")
            a(f"v_smfmac_f32_16x16x64_bf16 v[60:63], v[{16+4*b}:{19+4*b}], v[{72+16*b}:{79+16*b}], v5")
        for i in range(4): a(f"v_permlane32_swap_b32 v{56+i}, v{60+i}")
        a("v_pk_add_f32 v[56:57], v[56:57], v[60:61]\nv_pk_add_f32 v[58:59], v[58:59], v[62:63]")
        a("v_cvt_pk_bf16_f32 v56, v56, v57\nv_cvt_pk_bf16_f32 v57, v58, v59\nds_write_b64 v6, v[56:57]")
    a(f"s_cmp_ge_u32 {sR}, 12\ns_cbranch_scc1 {T('VG')}")
    a(f"v_and_b32 v4, 15, v0\nv_lshlrev_b32 v6, 5, v4\nv_lshrrev_b32 v7, 4, v0\nv_lshl_add_u32 v6, v7, 3, v6\ns_lshl_b32 s3, {sW}, 9\ns_add_u32 s3, s3, {QKM}\nv_add_u32 v6, s3, v6")
    a(f"s_lshr_b32 s3, {sW}, 1\ns_lshl_b32 s3, s3, 10\ns_and_b32 s4, {sW}, 1\ns_lshl_b32 s4, s4, 3\ns_add_u32 s3, s3, s4\ns_add_u32 s3, s3, {QX}\nv_add_u32 v7, s3, v2")
    c["rt"](5)
    a(f"s_mov_b32 {sS}, -1\ns_branch {T('SG_TOK')}")
    a.put(T("SG_LOOP"))
    for i in range(56, 64): a(f"v_mov_b32 v{i}, 0")
    a("s_waitcnt lgkmcnt(0)")
    stamp(0)
    a("s_barrier")
    crit()
    a("s_waitcnt lgkmcnt(0)")
    stamp(1)
    a("s_barrier")
    a(f"s_cmp_eq_u32 {sS}, 63\ns_cbranch_scc1 {T('SG_END')}")
    a.put(T("SG_TOK"))
    a(f"s_add_u32 {sS}, {sS}, 1\ns_and_b32 s3, {sS}, 1\ns_mul_i32 s3, s3, 40960\nv_add_u32 v9, s3, v2")
    tokgemm()
    for t in range(2):
        for tt in range(2):
            d = 224 + 8*t + 4*tt
            a(f"v_cvt_pk_bf16_f32 v{d}, v{d}, v{d+1}\nv_cvt_pk_bf16_f32 v{d+1}, v{d+2}, v{d+3}\nds_write_b64 v7, v[{d}:{d+1}] offset:{4096*t + 2048*tt}")
    dump()
    a(f"s_cmp_lg_u32 {sS}, 0\ns_cbranch_scc1 {T('SG_LOOP')}\ns_barrier")
    c["verdict_r"]()
    c["rt"](6)
    a(f"s_branch {T('SG_LOOP')}")
    a.put(T("SG_END"))
    finish()
    a.put(T("VG"))
    a("v_bfe_u32 v6, v0, 3, 1\nv_lshlrev_b32 v6, 8, v6\nv_bfe_u32 v7, v0, 2, 1\nv_lshl_add_u32 v6, v7, 7, v6\nv_lshrrev_b32 v7, 5, v0\nv_lshl_add_u32 v6, v7, 6, v6\nv_and_b32 v7, 1, v0\nv_lshl_add_u32 v6, v7, 5, v6")
    a(f"v_bfe_u32 v7, v0, 1, 1\nv_lshl_add_u32 v6, v7, 4, v6\nv_bfe_u32 v7, v0, 4, 1\nv_lshl_add_u32 v6, v7, 3, v6\ns_lshl_b32 s3, {sW}, 9\ns_add_u32 s3, s3, {QKM}\nv_add_u32 v6, s3, v6")
    a("v_bfe_u32 v7, v0, 4, 1\nv_lshlrev_b32 v7, 8, v7\nv_and_b32 v8, 15, v0\nv_lshl_add_u32 v7, v8, 3, v7\nv_add_u32 v7, s3, v7")
    a(f"s_sub_u32 s4, {sR}, 12\ns_lshl_b32 s4, s4, 2\ns_add_u32 s4, s4, {sW}")
    a(f"s_lshl_b32 s3, s4, 9\nv_add_u32 v10, s3, v2\nv_mov_b32 v8, {OOB}\nv_cmp_gt_u32 vcc, 32, v0\nv_cndmask_b32 v10, v8, v10, vcc")
    a("s_lshl_b32 s3, s4, 11\nv_add_u32 v8, s3, v2\ns_lshl_b32 s3, s4, 2")
    onelane("v15", "s3")
    for i in range(4): a(f"v_mov_b32 v{240+i}, -1")
    a(f"s_mov_b32 {sS}, -1\ns_mov_b32 s37, 0")
    c["rt"](5)
    a(f"s_branch {T('VG_TOK')}")
    a.put(T("VG_LOOP"))
    for i in range(56, 64): a(f"v_mov_b32 v{i}, 0")
    slot("s34", L.VMS, L.VM); slot("s35", L.VMS, L.VM, NS - 1)
    a("s_barrier")
    crit()
    a("ds_read_b64_tr_b16 v[56:57], v7\nds_read_b64_tr_b16 v[58:59], v7 offset:128\ns_waitcnt lgkmcnt(1)\nv_min_u32 v56, -2, v56\nv_min_u32 v57, -2, v57\ns_waitcnt lgkmcnt(0)\nv_min_u32 v58, -2, v58\nv_min_u32 v59, -2, v59")
    a(f"buffer_store_dwordx4 v[56:59], v10, {WS}, s34 offen{ST}")
    stamp(0)
    if POIS: a(f"buffer_store_dwordx4 v[240:243], v10, {WS}, s35 offen{ST}")
    a("s_barrier")
    a(f"s_cmp_lt_u32 {sS}, 61\ns_cbranch_scc1 {T('VG_TOK')}\ns_cmp_eq_u32 {sS}, 63\ns_cbranch_scc1 {T('VG_END')}\ns_add_u32 {sS}, {sS}, 1\ns_waitcnt vmcnt(0)\ns_branch {T('VG_LOOP')}")
    a.put(T("VG_TOK"))
    a(f"s_and_b32 s3, s37, 1\ns_mul_i32 s3, s3, 40960\nv_add_u32 v9, s3, v2\ns_and_b32 s36, s37, {NS-1}\ns_mul_i32 s36, s36, {L.VXS}\ns_add_u32 s36, s36, {L.VX}\ns_add_u32 s36, s36, {sG}\ns_add_u32 s37, s37, 1\nv_mov_b32 v14, s37")
    tokgemm()
    a(f"s_cmp_lg_u32 s37, 1\ns_cbranch_scc1 {T('VG_ST')}\ns_barrier")
    c["verdict_r"]()
    a.put(T("VG_ST"))
    for tt in range(2):
        for t in range(2):
            d = 224 + 8*t + 4*tt; o = 16 + 4*tt + 2*t
            a(f"v_cvt_pk_bf16_f32 v{o}, v{d}, v{d+1}\nv_cvt_pk_bf16_f32 v{o+1}, v{d+2}, v{d+3}")
        a(f"buffer_store_dwordx4 v[{16+4*tt}:{19+4*tt}], v8, {WS}, s36 offen offset:{1024*tt}{ST}")
    a(f"s_waitcnt vmcnt(0)\nbuffer_store_dword v14, v15, {WS}, {sFL} offen{ST}")
    stamp(1)
    rtc(6, 1, "s37"); rtc(1, 3, "s37")
    dump()
    a(f"s_lshl_b32 s3, {sS}, 1\ns_add_u32 s3, s3, 2\ns_add_u32 s4, {sS}, 3\ns_min_i32 s3, s3, s4\ns_cmp_le_i32 s37, s3\ns_cbranch_scc1 {T('VG_2')}\ns_add_u32 {sS}, {sS}, 1\ns_branch {T('VG_LOOP')}")
    a.put(T("VG_2"))
    a(f"s_barrier\ns_branch {T('VG_TOK')}")
    a.put(T("VG_END"))
    finish()

    a.put(T("PAUX"))
    a(f"s_setprio 2\ns_sub_u32 s14, {sW}, 4")
    a(f"s_lshl_b32 s3, s14, 10\nv_add_u32 v4, s3, v2\nv_add_u32 v12, {MEM}, v4\ns_cmp_lt_u32 s14, 2\ns_cselect_b64 vcc, -1, 0")
    a(f"v_mov_b32 v8, {OOB}\nv_cndmask_b32 v8, v8, v4, vcc\nv_add_u32 v13, {DUM}, v2\nv_add_u32 v5, 8192, v12\nv_cndmask_b32 v13, v13, v5, vcc")
    a("ds_write_b128 v12, v[200:203]\nds_write_b128 v12, v[204:207] offset:4096\nds_write_b128 v13, v[208:211]")
    SPREAD = OPT.get("SPREAD", 0)
    if SPREAD:
        a(f"s_cmp_ge_u32 {sR}, 12\ns_cselect_b32 s3, 2, 0\ns_xor_b32 s3, s3, s14\ns_lshl_b32 s40, {sR}, 1\ns_add_u32 s40, s40, s3\ns_cmp_lt_u32 s3, 2\ns_cselect_b32 s40, s40, -1")
        a(f"s_lshl_b32 s3, {sR}, 2\ns_add_u32 s3, s3, s14\ns_and_b32 s4, s3, 0xfffffff3\ns_add_u32 s3, {sR}, 36\ns_cmp_eq_u32 s4, 2\ns_cselect_b32 s40, s3, s40")
    else:
        a(f"s_lshl_b32 s40, {sR}, 2\ns_add_u32 s40, s40, s14\ns_cmp_lt_u32 {sR}, 10\ns_cselect_b32 s40, s40, -1")
    a(f"s_lshr_b32 s3, {sR}, 1\ns_lshr_b32 s4, s40, 2\ns_cmp_lt_i32 s40, 0\ns_cselect_b32 s3, s3, s4\ns_lshl_b32 s3, s3, 7\ns_add_u32 s3, s3, 2048\nv_mov_b32 v140, s3")
    a("s_max_i32 s5, s40, 0\ns_lshr_b32 s3, s5, 2\ns_lshl_b32 s3, s3, 15\ns_and_b32 s4, s5, 3\ns_lshl_b32 s4, s4, 9\ns_add_u32 s3, s3, s4")
    a("v_and_b32 v142, 31, v0\nv_lshlrev_b32 v141, 4, v142\nv_lshrrev_b32 v143, 5, v0\nv_lshl_add_u32 v141, v143, 11, v141\nv_add_u32 v141, s3, v141")
    a("s_lshl_b32 s3, s5, 8\nv_lshlrev_b32 v142, 3, v142\nv_lshl_add_u32 v142, v143, 2, v142\nv_add_u32 v142, s3, v142\nv_mov_b32 v143, -1")
    a(f"s_lshr_b32 s41, {sQ}, 2\ns_lshl_b32 s41, s41, 14")
    if AF:
        a(f"s_lshl_b32 s3, {sR}, 2\ns_add_u32 s4, s3, 3584\ns_add_u32 s3, s3, {3456-48}\ns_cmp_lt_u32 {sR}, 12\ns_cselect_b32 s3, s4, s3\ns_cmp_eq_u32 s14, {OPT.get('AFW', 3)}\ns_cselect_b32 s3, s3, {OOB}")
        onelane("v200", "s3")
    def afsig():
        if AF: a(f"buffer_store_dword v201, v200, {WS}, {sFL} offen")
    def afpre():
        if AF: a(f"s_add_u32 s3, {sS}, 1\nv_mov_b32 v201, s3")
    A3 = lambda d, x, y, z: f"v_bitop3_b32 {d}, {x}, {y}, {z} bitop3:0x80"
    def h3task():
        skip = a.lab("H3N"); done = a.lab("H3D"); lp = a.lab("H3F"); go = a.lab("H3G")
        slot("s36", L.H3S, L.H3, NS - 1, False); slot("s37", L.H1S, L.H1); slot("s35", L.H1S, L.H1, NS - 1)
        a(f"s_sub_u32 s3, {sS}, 1\ns_lshr_b32 s25, s3, {LOGNS}\ns_and_b32 s25, s25, 1\ns_add_u32 s25, s25, 1")
        a("s_xor_b32 s3, s41, 16384\ns_add_u32 s16, s36, s41\ns_add_u32 s17, s16, 4096\ns_add_u32 s18, s36, s3\ns_add_u32 s19, s18, 4096")
        NF = 3
        a(f"s_lshl_b32 s43, {sS}, 1")
        for k in range(NF - 1):
            a(f"buffer_load_dword v{144+k}, v140, {WS}, {sFL} offen sc1"); delay(64)
        a.put(lp)
        for k in range(NF):
            a(f"buffer_load_dword v{144+(k+NF-1)%NF}, v140, {WS}, {sFL} offen sc1\ns_waitcnt vmcnt({NF-1})\nv_cmp_gt_u32 vcc, s43, v{144+k}\ns_cbranch_vccz {go}")
        budget(lp)
        a.put(go)
        stamp(6)
        a(f"s_cmp_lt_i32 s40, 0\ns_cbranch_scc1 {skip}")
        a(f"s_cmp_lg_u32 {sS}, 1\ns_cbranch_scc1 {go}_c\ns_waitcnt vmcnt(0)\nv_max3_u32 v147, v144, v145, v146\nv_and_b32 v147, 1, v147\nv_lshl_add_u32 v141, v147, 13, v141")
        a.put(go + "_c")
        delay(DELTA)
        lp = a.lab("H3P"); ok = a.lab("H3K")
        NP = OPT.get("NP", 1); GAP = OPT.get("GAP", 150)
        RB = [148, 168, 184]
        def hiss(k):
            for q in range(4): a(f"buffer_load_dwordx4 v[{RB[k]+4*q}:{RB[k]+3+4*q}], v141, {WS}, s{16+q} offen sc1")
        def hchk(k):
            b = RB[k]; n = 4*(NP - 1)
            a(f"s_waitcnt vmcnt({3+n})\n" + A3("v52", "s25", f"v{b}", f"v{b+1}") + "\n" + A3("v52", "v52", f"v{b+2}", f"v{b+3}"))
            for i in range(1, 4):
                r = b + 4*i; p = b if i == 1 else 164
                a(f"s_waitcnt vmcnt({3-i+n})\nv_pk_add_f32 v[164:165], v[{p}:{p+1}], v[{r}:{r+1}]\nv_pk_add_f32 v[166:167], v[{p+2}:{p+3}], v[{r+2}:{r+3}]\n" + A3("v52", "v52", f"v{r}", f"v{r+1}") + "\n" + A3("v52", "v52", f"v{r+2}", f"v{r+3}"))
            a("v_permlane32_swap_b32 v164, v166\nv_permlane32_swap_b32 v165, v167\nv_cmp_eq_u32 vcc, 0, v52\nv_pk_add_f32 v[164:165], v[164:165], v[166:167]")
            a("v_cvt_pk_bf16_f32 v166, v164, v165\nv_min_u32 v166, -2, v166")
        for k in range(NP - 1):
            hiss(k); delay(GAP)
        a.put(lp)
        a(f"s_sub_u32 {sBUD}, {sBUD}, 1\ns_cbranch_scc1 END")
        for k in range(NP):
            hiss((k + NP - 1) % NP); hchk(k)
            a(f"s_cbranch_vccnz {lp}" if k == NP - 1 else f"s_cbranch_vccz {ok}")
        a.put(ok)
        a(f"buffer_store_dword v166, v142, {WS}, s37 offen{ST}")
        stamp(7)
        rtc(6, 1)
        if POIS: a(f"buffer_store_dword v143, v142, {WS}, s35 offen{ST}")
        if INSTR in (1, 2):
            a(f"s_memtime s[60:61]\ns_lshl_b32 s3, {sQ}, 8\ns_lshl_b32 s4, {sS}, 2\ns_add_u32 s3, s3, s4\ns_add_u32 s3, s3, {L.DBG+262144-4}\ns_cmp_eq_u32 s40, 0\ns_cselect_b32 s4, 0, {OOB}")
            a(f"s_waitcnt lgkmcnt(0)\ns_sub_u32 s60, s60, s90\nv_mov_b32 v164, s60\nv_mov_b32 v165, s4\nbuffer_store_dword v164, v165, {WS}, s3 offen")
        if OPT.get("D1"): a(f"s_sleep {OPT['D1']}")
        a(f"s_branch {done}")
        a.put(skip)
        if OPT.get("D2"): a(f"s_sleep {OPT['D2']}")
        a.put(done)
    def mem0(got):
        c["verdict_w"]()
        a("s_barrier")
        c["verdict_r"]()
        stamp0()
        a(f"s_branch {got}")
    def h1poll(got, sl):
        if sl: a(f"s_sleep {sl}")
        slot("s34", L.H1S, L.H1)
        a("s_add_u32 s35, s34, 4096\ns_add_u32 s36, s34, 8192")
        def issue(r): a(f"buffer_load_dwordx4 v[{r}:{r+3}], v4, {WS}, s34 offen sc1\nbuffer_load_dwordx4 v[{r+4}:{r+7}], v4, {WS}, s35 offen sc1\nbuffer_load_dwordx4 v[{r+8}:{r+11}], v8, {WS}, s36 offen sc1")
        def check(r, n):
            a(f"s_waitcnt vmcnt({n+2})\nds_write_b128 v12, v[{r}:{r+3}]\nv_max3_u32 v52, v{r}, v{r+1}, v{r+2}")
            a(f"s_waitcnt vmcnt({n+1})\nds_write_b128 v12, v[{r+4}:{r+7}] offset:4096\nv_max3_u32 v52, v{r+3}, v{r+4}, v52\nv_max3_u32 v52, v{r+5}, v{r+6}, v52")
            a(f"s_waitcnt vmcnt({n})\nds_write_b128 v13, v[{r+8}:{r+11}]\nv_max3_u32 v52, v{r+7}, v{r+8}, v52\nv_max3_u32 v52, v{r+9}, v{r+10}, v52\nv_max_u32 v52, v{r+11}, v52")
            a(f"v_cmp_eq_u32 vcc, -1, v52\ns_cbranch_vccz {got}\ns_waitcnt lgkmcnt(0)")
        lp = a.lab("H1P")
        P1 = OPT.get("P1", 2)
        if P1 == 1:
            a.put(lp); issue(116); check(116, 0)
        else:
            for k in range(P1 - 1):
                issue(116 + 12*k)
                if OPT.get("P1D"): delay(OPT["P1D"])
            a.put(lp)
            for k in range(P1):
                issue(116 + 12*((k + P1 - 1) % P1)); check(116 + 12*k, 3*(P1 - 1))
        budget(lp)
    a(f"s_cmp_ge_u32 {sR}, 12\ns_cbranch_scc1 {T('VA')}")
    a(f"s_cmp_eq_u32 s14, 3\ns_cselect_b32 s3, 0, {KX-QX}\ns_cmp_eq_u32 s14, 1\ns_cselect_b32 s4, 2048, 0\ns_add_u32 s3, s3, s4\ns_add_u32 s3, s3, {QX}\nv_add_u32 v14, s3, v2")
    a(f"s_cmp_eq_u32 s14, 0\ns_cselect_b32 s3, 0, 2048\ns_add_u32 s3, s3, {QX}\nv_add_u32 v15, s3, v2\nv_add_u32 v7, {QKM}, v3")
    a("v_and_b32 v6, 7, v0\nv_lshrrev_b32 v9, 4, v0\nv_lshl_add_u32 v11, v6, 2, v9\nv_lshlrev_b32 v11, 4, v11\ns_lshl_b32 s3, s14, 9\nv_add_u32 v11, s3, v11")
    a("v_lshl_add_u32 v9, v9, 3, v6\nv_lshlrev_b32 v9, 4, v9\nv_add_u32 v9, 768, v9\ns_cmp_eq_u32 s14, 2\ns_cselect_b64 vcc, -1, 0\nv_cndmask_b32 v11, v11, v9, vcc")
    a(f"s_mul_i32 s3, {sR}, 1280\nv_add_u32 v11, s3, v11\ns_mov_b32 s5, 0x00ff00ff\ns_cselect_b32 s4, 0, s5\ns_mov_b64 vcc, s[4:5]\nv_mov_b32 v9, {OOB}\nv_cndmask_b32 v11, v9, v11, vcc")
    a(f"s_lshl_b32 s3, {sR}, 2\ns_add_u32 s3, s3, s14\ns_lshl_b32 s4, s3, 10\nv_add_u32 v10, s4, v2\ns_lshl_b32 s3, s3, 2\ns_add_u32 s3, s3, 128")
    onelane("v6", "s3")
    a(f"s_mov_b32 {sS}, 0")
    mem0(T("SA_GOT"))
    a.put(T("SA_LOOP"))
    h3task()
    h1poll(T("SA_GOT"), 0)
    a.put(T("SA_GOT"))
    stamp(0)
    afpre()
    a("s_waitcnt lgkmcnt(0)\ns_barrier")
    afsig()
    stamp(1)
    a("ds_read_b128 v[24:27], v14\nds_read_b128 v[28:31], v14 offset:1024\nds_read_b128 v[32:35], v15\nds_read_b128 v[36:39], v15 offset:1024")
    slot("s35", L.H2S, L.H2); slot("s36", L.HXS, L.HX); tagreg("s37")
    a(f"s_add_u32 s3, {sS}, 1\nv_mov_b32 v9, s3\ns_waitcnt lgkmcnt(0)")
    a(f"s_cmp_eq_u32 s14, 2\ns_cbranch_scc1 {T('SA_2')}\ns_cmp_eq_u32 s14, 3\ns_cbranch_scc1 {T('SA_3')}")
    def qkread():
        a("s_barrier")
        stamp(2)
        for i in range(4): a(f"ds_read_b64_tr_b16 v[{40+2*i}:{41+2*i}], v7 offset:{512*i}")
    def h2out(A0, A1):
        a(f"s_waitcnt lgkmcnt(2)\nv_mfma_f32_16x16x32_bf16 v[48:51], v[{A0}:{A0+3}], v[40:43], 0\ns_waitcnt lgkmcnt(0)\nv_mfma_f32_16x16x32_bf16 v[48:51], v[{A1}:{A1+3}], v[44:47], v[48:51]")
        for i in range(4): a(f"v_and_or_b32 v{48+i}, v{48+i}, -4, s37")
        a(f"buffer_store_dwordx4 v[48:51], v11, {WS}, s35 offen{ST}")
        stamp(3)
        rtc(4, 0)
    qkread(); h2out(24, 28)
    a(f"s_branch {T('SA_X')}")
    a.put(T("SA_2"))
    qkread(); h2out(40, 44)
    a.put(T("SA_X"))
    a("v_mfma_f32_16x16x32_bf16 v[56:59], v[24:27], v[32:35], 0\nv_mfma_f32_16x16x32_bf16 v[56:59], v[28:31], v[36:39], v[56:59]")
    a(f"s_branch {T('SA_F')}")
    a.put(T("SA_3"))
    qkread()
    a("s_waitcnt lgkmcnt(0)\nv_mfma_f32_16x16x32_bf16 v[52:55], v[40:43], v[24:27], 0\nv_mfma_f32_16x16x32_bf16 v[56:59], v[40:43], v[32:35], 0")
    a("v_mfma_f32_16x16x32_bf16 v[52:55], v[44:47], v[28:31], v[52:55]\nv_mfma_f32_16x16x32_bf16 v[56:59], v[44:47], v[36:39], v[56:59]")
    for i in range(4): a(f"v_permlane32_swap_b32 v{52+i}, v{56+i}")
    a.put(T("SA_F"))
    a(f"buffer_store_dwordx4 v[56:59], v10, {WS}, s36 offen{ST}\ns_waitcnt vmcnt(0)\nbuffer_store_dword v9, v6, {WS}, {sFL} offen{ST}")
    stamp(4)
    a(f"s_cmp_eq_u32 {sS}, 63\ns_cbranch_scc1 {T('SA_END')}\ns_cmp_eq_u32 {sS}, 62\ns_cbranch_scc1 {T('SA_N')}")
    a(f"s_mul_i32 s5, s14, 10240\ns_and_b32 s3, {sS}, 1\ns_mul_i32 s3, s3, 40960\ns_add_u32 s3, s3, s5\ns_mul_i32 s4, {sS}, 40960\ns_add_u32 s4, s4, s5\ns_add_u32 s4, s4, {L.XN + 2*40960}")
    xs_dma("s3", "s4")
    a.put(T("SA_N"))
    stamp(5)
    dump()
    a(f"s_add_u32 {sS}, {sS}, 1\ns_branch {T('SA_LOOP')}")
    a.put(T("SA_END"))
    finish()
    a.put(T("VA"))
    a(f"s_sub_u32 s15, {sR}, 12")
    a(f"s_mul_i32 s3, s15, 12288\ns_lshl_b32 s4, s14, 11\ns_add_u32 s4, s4, s3\nv_add_u32 v14, s4, v2")
    a(f"s_add_u32 s4, s3, 1024\nv_add_u32 v15, s4, v2\nv_mov_b32 v9, {OOB}\ns_cmp_eq_u32 s14, 1\ns_cselect_b64 vcc, -1, 0\nv_cndmask_b32 v15, v9, v15, vcc")
    a(f"s_lshl_b32 s4, s14, 9\ns_add_u32 s4, s4, s3\ns_add_u32 s4, s4, {3072-512}\nv_add_u32 v7, s4, v2\nv_cmp_le_u32 vcc, 32, v0\nv_cndmask_b32 v7, v9, v7, vcc")
    a("s_mul_i32 s3, s14, 5120\ns_lshl_b32 s4, s15, 10\ns_add_u32 s4, s4, s3\nv_add_u32 v10, s4, v2")
    a("v_and_b32 v6, 15, v0\nv_lshlrev_b32 v11, 4, v6\nv_bfe_u32 v64, v0, 4, 1\nv_lshl_add_u32 v11, v64, 3, v11\ns_lshl_b32 s4, s15, 8\ns_add_u32 s4, s4, s3\ns_add_u32 s4, s4, 4096\nv_add_u32 v11, s4, v11\nv_cndmask_b32 v11, v9, v11, vcc")
    a("v_mov_b32 v65, 0xf149f2ca\nv_mov_b32 v66, 0")
    for i in range(4): a(f"v_cndmask_b32 v{108+i}, v65, v66, vcc")
    a("s_lshl_b32 s3, s14, 4\nv_add_u32 v6, s3, v6\nv_lshrrev_b32 v64, 4, v0\nv_lshlrev_b32 v64, 2, v64\nv_sub_u32 v6, v6, v64")
    for i in range(8): a(f"v_cmp_le_i32 vcc, {i if i < 4 else 12+i}, v6\nv_cndmask_b32 v{100+i}, v65, v66, vcc")
    a("v_min_u32 v6, 11, v0\nv_lshlrev_b32 v6, 2, v6\ns_mul_i32 s3, s15, 48\ns_add_u32 s3, s3, 128\nv_add_u32 v6, s3, v6")
    a("s_lshl_b32 s3, s14, 2\ns_add_u32 s3, s3, s15\ns_lshl_b32 s3, s3, 2\ns_add_u32 s3, s3, 384")
    onelane("v112", "s3")
    a("s_mov_b32 s38, 0x3dd53b95\nv_mov_b32 v114, s38\nv_mov_b32 v115, s38")
    a("s_cmp_lt_u32 s15, 4\ns_cselect_b32 s39, 1, 0\ns_cmp_lt_u32 s14, 2\ns_cselect_b32 s39, s39, 0")
    a(f"s_mov_b32 {sS}, 0\ns_mov_b32 s42, 2")
    mem0(T("VA_GOT"))
    a.put(T("VA_LOOP"))
    if OPT.get("PXS", 1) and not SPREAD:
        a(f"s_cmp_lg_u32 s39, 0\ns_cbranch_scc1 {T('VA_P')}")
    h3task()
    a.put(T("VA_P"))
    h1poll(T("VA_GOT"), 0)
    a.put(T("VA_GOT"))
    stamp(0)
    afpre()
    a("s_waitcnt lgkmcnt(0)\ns_barrier")
    afsig()
    stamp(1)
    a("s_barrier")
    def nextseg():
        a(f"s_mul_i32 s5, s14, 10240\ns_and_b32 s3, s42, 1\ns_mul_i32 s3, s3, 40960\ns_add_u32 s3, s3, s5\ns_mul_i32 s4, s42, 40960\ns_add_u32 s4, s4, s5\ns_add_u32 s4, s4, {L.XN}\ns_add_u32 s42, s42, 1")
        xs_dma("s3", "s4")
    a(f"s_cmp_ge_u32 {sS}, 2\ns_cbranch_scc1 {T('VA_R')}")
    nextseg()
    a("s_waitcnt vmcnt(0)\ns_barrier")
    a.put(T("VA_R"))
    a(f"s_cmp_ge_u32 {sS}, 60\ns_cbranch_scc1 {T('VA_S')}")
    nextseg()
    a.put(T("VA_S"))
    a(f"s_cmp_eq_u32 s39, 0\ns_cbranch_scc1 {T('VA_N')}")
    slot("s34", L.HXS, L.HX); slot("s37", L.PXS, L.PX)
    a(f"s_add_u32 s35, s34, 4096\ns_add_u32 s36, s34, 8192\ns_add_u32 s3, {sS}, 1\nv_mov_b32 v113, s3")
    flagwait("v6", "v64", "s3")
    stamp(4)
    for p in range(3):
        for i, v in enumerate(("v14", "v15", "v7")): a(f"buffer_load_dwordx4 v[{64+12*p+4*i}:{67+12*p+4*i}], {v}, {WS}, s{34+p} offen sc1")
    a("s_waitcnt vmcnt(3)")
    for i in range(6): a(f"v_pk_add_f32 v[{64+2*i}:{65+2*i}], v[{64+2*i}:{65+2*i}], v[{76+2*i}:{77+2*i}]")
    for i in range(6): a(f"v_pk_add_f32 v[{64+2*i}:{65+2*i}], v[{64+2*i}:{65+2*i}], v[{100+2*i}:{101+2*i}]")
    a("s_waitcnt vmcnt(0)")
    for i in range(6): a(f"v_pk_add_f32 v[{64+2*i}:{65+2*i}], v[{64+2*i}:{65+2*i}], v[{88+2*i}:{89+2*i}]")
    a("v_max3_f32 v76, v64, v65, v66")
    for i in range(4): a(f"v_max3_f32 v76, v76, v{67+2*i}, v{68+2*i}")
    a("v_max_f32 v76, v76, v75")
    def xred(op):
        a(f"v_mov_b32 v77, v76\nv_permlane16_swap_b32 v76, v77\n{op} v76, v76, v77\nv_mov_b32 v77, v76\nv_permlane32_swap_b32 v76, v77\n{op} v76, v76, v77")
    xred("v_max_f32")
    a("v_mul_f32 v78, s38, v76")
    for i in range(6): a(f"v_pk_fma_f32 v[{64+2*i}:{65+2*i}], v[{64+2*i}:{65+2*i}], v[114:115], v[78:79] op_sel_hi:[1,1,0] neg_lo:[0,0,1] neg_hi:[0,0,1]")
    for i in range(12): a(f"v_exp_f32 v{64+i}, v{64+i}")
    a("v_pk_add_f32 v[76:77], v[64:65], v[66:67]")
    for i in range(2, 6): a(f"v_pk_add_f32 v[76:77], v[76:77], v[{64+2*i}:{65+2*i}]")
    a("v_add_f32 v76, v76, v77")
    xred("v_add_f32")
    a("v_rcp_f32 v78, v76")
    for i in range(6): a(f"v_pk_mul_f32 v[{64+2*i}:{65+2*i}], v[{64+2*i}:{65+2*i}], v[78:79] op_sel_hi:[1,0]")
    for i in range(6): a(f"v_cvt_pk_bf16_f32 v{80+i}, v{64+2*i}, v{65+2*i}")
    a(f"buffer_store_dwordx4 v[80:83], v10, {WS}, s37 offen{ST}\nbuffer_store_dwordx2 v[84:85], v11, {WS}, s37 offen{ST}")
    a(f"s_waitcnt vmcnt(0)\nbuffer_store_dword v113, v112, {WS}, {sFL} offen{ST}")
    stamp(5)
    a.put(T("VA_N"))
    dump()
    a(f"s_add_u32 {sS}, {sS}, 1\ns_cmp_lt_u32 {sS}, 64\ns_cbranch_scc1 {T('VA_LOOP')}")
    finish()

    a.put(T("COMB"))
    ZM, PT, PM = 65536, 81920, 83968
    OST = OPT.get("OST", 0); OSTG = 86016
    a(f"s_sub_u32 s15, {sR}, 18")
    a(f"s_cmp_ge_u32 {sW}, 4\ns_cbranch_scc1 {T('CAUX')}")
    idxreg("v5")
    a(f"s_mul_i32 s3, {sW}, 3072\nv_add_u32 v4, s3, v2")
    a(f"v_and_b32 v6, 15, v0\nv_lshlrev_b32 v6, 4, v6\nv_bfe_u32 v7, v0, 4, 1\nv_lshl_add_u32 v6, v7, 3, v6\nv_lshrrev_b32 v7, 5, v0\nv_lshl_add_u32 v6, v7, 10, v6\ns_lshl_b32 s3, {sW}, 8\ns_add_u32 s3, s3, {ZM}\nv_add_u32 v6, s3, v6")
    a(f"s_lshl_b32 s3, {sW}, 12\nv_add_u32 v8, s3, v2\ns_mul_i32 s3, {sW}, 12288\nv_add_u32 v14, s3, v2")
    a(f"s_lshr_b32 s4, {sW}, 1\ns_lshl_b32 s3, s4, 11\nv_add_u32 v11, s3, v2\ns_and_b32 s5, {sW}, 1\ns_mul_i32 s3, s5, 5120\nv_add_u32 v12, s3, v2")
    a(f"v_and_b32 v13, 7, v0\nv_lshlrev_b32 v13, 7, v13\nv_lshrrev_b32 v7, 4, v0\nv_lshl_add_u32 v13, v7, 4, v13\nv_bfe_u32 v7, v0, 3, 1\nv_lshl_add_u32 v13, v7, 6, v13\ns_mul_i32 s3, {sQ}, 81920\ns_lshl_b32 s6, s15, 13\ns_add_u32 s3, s3, s6\ns_lshl_b32 s6, {sW}, 11\ns_add_u32 s3, s3, s6\nv_add_u32 v13, s3, v13")
    a(f"v_min_u32 v15, 5, v0\nv_lshlrev_b32 v15, 2, v15\ns_mul_i32 s3, {sW}, 24\nv_add_u32 v15, s3, v15")
    a("v_and_b32 v60, 3, v0\nv_lshlrev_b32 v60, 2, v60\ns_lshl_b32 s3, s5, 4\ns_add_u32 s3, s3, 384\nv_add_u32 v60, s3, v60")
    a(f"s_add_u32 s3, s15, {sW}\ns_cmp_eq_u32 s3, 0\ns_mov_b32 s4, {OOB}\ns_cselect_b32 s3, 1024, s4")
    onelane("v61", "s3")
    a(f"s_mov_b32 s43, {L.OUTP - 2*655360}")
    a(f"s_lshl_b32 s3, s15, 15\ns_lshl_b32 s4, {sW}, 9\ns_add_u32 s3, s3, s4\ns_lshr_b32 s5, {sQ}, 2\ns_lshl_b32 s5, s5, 14\ns_add_u32 s3, s3, s5\ns_and_b32 s4, {sQ}, 3\ns_lshl_b32 s4, s4, 11\ns_add_u32 s3, s3, s4")
    a("v_and_b32 v62, 7, v0\nv_lshrrev_b32 v3, 5, v0\nv_lshlrev_b32 v3, 8, v3\nv_lshl_add_u32 v3, v62, 5, v3\nv_bfe_u32 v7, v0, 4, 1\nv_lshl_add_u32 v3, v7, 4, v3\nv_bfe_u32 v7, v0, 3, 1\nv_lshl_add_u32 v3, v7, 13, v3\nv_add_u32 v3, s3, v3")
    a("v_lshrrev_b32 v7, 4, v0\nv_lshl_add_u32 v1, v7, 3, v62\nv_lshlrev_b32 v1, 4, v1\nv_add_u32 v1, %d, v1" % PT)
    a(f"s_lshl_b32 s38, {sW}, 10")
    def vxloads(add):
        slot("s35", L.VXS, L.VX, add)
        a("s_add_u32 s36, s35, 4096\ns_add_u32 s37, s35, 8192")
        for i in range(12): a(f"buffer_load_dwordx4 v[{160+4*i}:{163+4*i}], v14, {WS}, s{35+i//4} offen offset:{(i%4)*1024} sc1")
    PZA = OPT.get("PZA", 0)
    def pxloads(va="v12"):
        slot("s35", L.PXS, L.PX, NS - 1)
        a("s_add_u32 s36, s35, 4096")
        for h in range(4): a(f"buffer_load_dwordx4 v[{208+4*h}:{211+4*h}], {va}, {WS}, s35 offen offset:{1024*h} sc1")
        a(f"buffer_load_dwordx4 v[224:227], {va}, {WS}, s36 offen sc1")
    VXI = OPT.get("VXI", 1)
    def zx(add, nxt=False):
        if nxt:
            slot("s35", L.VXS, L.VX, 2)
            a(f"s_cmp_ge_u32 {sS}, 62\ns_cselect_b32 s35, {OOB - 65536}, s35\ns_add_u32 s36, s35, 4096\ns_add_u32 s37, s35, 8192")
        a(f"s_add_u32 s3, {sS}, {add}\ns_and_b32 s3, s3, 3\ns_lshl_b32 s3, s3, 14\nv_add_u32 v7, s3, v8")
        for i in range(6):
            for ct in range(4):
                for tt in range(2):
                    w = 64 + 32*(i // 2) + 8*ct + 4*(i % 2); d = 16 + 8*ct + 4*tt; x = 160 + 8*i + 4*tt
                    a(f"v_mfma_f32_16x16x32_bf16 v[{d}:{d+3}], v[{x}:{x+3}], v[{w}:{w+3}], " + ("0" if i == 0 else f"v[{d}:{d+3}]"))
            if nxt and i > 0:
                for k in (2*i - 2, 2*i - 1) + ((10, 11) if i == 5 else ()):
                    a(f"buffer_load_dwordx4 v[{160+4*k}:{163+4*k}], v14, {WS}, s{35+k//4} offen offset:{(k%4)*1024} sc1")
        for ct in range(4):
            d = 16 + 8*ct
            for i in range(4): a(f"v_cvt_pk_bf16_f32 v{d+i}, v{d+2*i}, v{d+2*i+1}")
            a(f"ds_write_b128 v7, v[{d}:{d+3}] offset:{1024*ct}")
    PAG = [228, 232, 236, 240, 244, 248, 252, 48, 52, 56]; PAA = [128 + 4*i for i in range(10)]
    def pzreads(PA=PAG, vb="v11", t0="v9", t1="v10", part=3):
        a(f"s_add_u32 s3, {sS}, 2\ns_and_b32 s3, s3, 3\ns_lshl_b32 s4, s3, 14\nv_add_u32 {t0}, s4, {vb}\ns_lshl_b32 s3, s3, 12\ns_add_u32 s3, s3, {ZM}\nv_add_u32 {t1}, s3, {vb}")
        for cc in range(2):
            if part & 1:
                for h in range(4): a(f"ds_read_b128 v[{PA[5*cc+h]}:{PA[5*cc+h]+3}], {t0} offset:{4096*h + 1024*cc}")
            if part & 2: a(f"ds_read_b128 v[{PA[5*cc+4]}:{PA[5*cc+4]+3}], {t1} offset:{1024*cc}")
    def pz(PA=PAG, o=20):
        for h in range(5):
            for cc in range(2):
                d = o + 8*cc
                a(f"v_mfma_f32_16x16x32_bf16 v[{d}:{d+3}], v[{PA[5*cc+h]}:{PA[5*cc+h]+3}], v[{208+4*h}:{211+4*h}], " + ("0" if h == 0 else f"v[{d}:{d+3}]"))
        for i in range(4): a(f"v_and_or_b32 v{o+4+i}, v{o+i}, -4, 1\nv_and_or_b32 v{o+8+i}, v{o+8+i}, -4, 1")
        for i in range(4): a(f"v_mov_b32 v{o+i}, v{o+4+i}")
        for i in range(4): a(f"v_mov_b32_dpp v{o+i}, v{o+8+i} row_ror:8 row_mask:0xf bank_mask:0xc")
        for i in range(4): a(f"v_mov_b32_dpp v{o+8+i}, v{o+4+i} row_ror:8 row_mask:0xf bank_mask:0x3")
    OSC = OPT.get("OSC", " sc1")
    def outp(o=20, va="v13"):
        if not OPT.get("NOOUTP"): a(f"buffer_store_dwordx4 v[{o}:{o+3}], {va}, {WS}, s43 offen{OSC}\nbuffer_store_dwordx4 v[{o+8}:{o+11}], {va}, {WS}, s43 offen offset:1024{OSC}")
    a(f"s_mov_b32 {sS}, 0\ns_mov_b32 s4, 1")
    flagwait("v15", "v62", "s4")
    c["rt"](5)
    vxloads(0)
    a("s_waitcnt vmcnt(0)")
    zx(0)
    a("s_waitcnt lgkmcnt(0)\ns_barrier")
    a.put(T("CG_LOOP"))
    slot("s34", L.VMS, L.VM)
    for i in range(32, 48): a(f"v_mov_b32 v{i}, 0")
    a(f"s_and_b32 s3, {sS}, 3\ns_lshl_b32 s4, s3, 14\ns_add_u32 s4, s4, s38\nv_add_u32 v9, s4, v2\ns_lshl_b32 s3, s3, 12\nv_add_u32 v7, s3, v6\ns_add_u32 s3, s3, s38\ns_add_u32 s3, s3, {ZM}\nv_add_u32 v10, s3, v2")
    for h in range(4): a(f"ds_read_b128 v[{228+4*h}:{231+4*h}], v9 offset:{4096*h}")
    slot("s39", L.H3S, L.H3, 0, False); tagreg("s25")
    if OPT.get("SLV") or not AF: a(f"s_sleep {OPT['SLV'] if AF or not OPT.get('AF') else 10}")
    if AF:
        afwait(3456, 6, 48, OPT.get("AFV", 300))
    stamp(6)
    a.put(T("CG_P"))
    a(f"s_sub_u32 {sBUD}, {sBUD}, 1\ns_cbranch_scc1 END")
    for i in range(3): a(f"buffer_load_dwordx4 v[{48+4*i}:{51+4*i}], v4, {WS}, s34 offen offset:{1024*i} sc1")
    a("s_waitcnt vmcnt(2)\nv_max3_u32 v62, v48, v49, v50\ns_waitcnt vmcnt(1)\nv_max3_u32 v62, v62, v51, v52\nv_max3_u32 v62, v62, v53, v54")
    a(f"s_waitcnt vmcnt(0)\nv_max3_u32 v62, v62, v55, v56\nv_max3_u32 v62, v62, v57, v58\nv_max_u32 v62, v62, v59\nv_cmp_eq_u32 vcc, -1, v62\ns_cbranch_vccnz {T('CG_P')}")
    stamp(0)
    rtc(2, 0)
    for kb in range(3):
        for t in range(4):
            a(f"v_smfmac_f32_16x16x64_bf16 v[{32+4*t}:{35+4*t}], v[{48+4*kb}:{51+4*kb}], v[{64+32*kb+8*t}:{71+32*kb+8*t}], v5")
    for p in range(2):
        o = 32 + 8*p
        for i in range(4): a(f"v_permlane32_swap_b32 v{o+i}, v{o+4+i}")
        a(f"v_pk_add_f32 v[{o}:{o+1}], v[{o}:{o+1}], v[{o+4}:{o+5}]\nv_pk_add_f32 v[{o+2}:{o+3}], v[{o+2}:{o+3}], v[{o+6}:{o+7}]")
        a(f"v_cvt_pk_bf16_f32 v{o}, v{o}, v{o+1}\nv_cvt_pk_bf16_f32 v{o+1}, v{o+2}, v{o+3}\nds_write_b64 v7, v[{o}:{o+1}] offset:{2048*p}")
    a("s_waitcnt lgkmcnt(0)")
    stamp(1)
    a("s_barrier")
    stamp(2)
    rtc(4, 0); rtc(1, 1)
    a(f"s_cmp_eq_u32 {sS}, 63\ns_cbranch_scc1 {T('CG_0')}")
    for h in range(4): a(f"ds_read_b128 v[{16+4*h}:{19+4*h}], v1 offset:{512*h}")
    a(f"ds_read_b128 v[32:35], v1 offset:{PM-PT}\nds_read_b128 v[36:39], v10")
    for h in range(5):
        a(f"s_waitcnt lgkmcnt({[5,4,3,2,0][h]})")
        z = 228 + 4*h if h < 4 else 36
        a(f"v_mfma_f32_16x16x32_bf16 v[40:43], v[{z}:{z+3}], v[{16+4*h}:{19+4*h}], " + ("0" if h == 0 else "v[40:43]"))
    for i in range(4): a(f"v_and_or_b32 v{40+i}, v{40+i}, -4, s25")
    a(f"buffer_store_dwordx4 v[40:43], v3, {WS}, s39 offen sc1")
    stamp(7)
    def rst():
        slot("s3", L.H3S, L.H3, NS - 2, False)
        for i in range(4): a(f"v_mov_b32 v{44+i}, 0")
        a(f"buffer_store_dwordx4 v[44:47], v3, {WS}, s3 offen sc1")
    if OPT.get('RST') == 2: rst()
    if PZA:
        a(f"s_cmp_ge_u32 {sS}, 2\ns_cbranch_scc1 {T('CG_Z')}\ns_cmp_eq_u32 {sS}, 1\ns_cbranch_scc1 {T('CG_Y')}\ns_mov_b32 s4, 2")
        flagwait("v15", "v62", "s4")
        vxloads(1)
        a.put(T("CG_Y"))
        a(f"s_add_u32 s4, {sS}, 3")
        flagwait("v15", "v62", "s4")
        a.put(T("CG_Z"))
        a(f"s_sub_u32 s3, {sS}, 3\ns_max_i32 s3, s3, 0\nv_mov_b32 v63, s3\nbuffer_store_dword v63, v61, {WS}, {sFL} offen{ST}")
        zx(1, VXI)
        if OPT.get('RST') == 1: rst()
        stamp(3); stamp(4)
        a("s_waitcnt lgkmcnt(0)\ns_barrier")
        stamp(5)
        dump()
        a(f"s_add_u32 {sS}, {sS}, 1\ns_branch {T('CG_LOOP')}")
        a.put(T("CG_0"))
        a(f"v_mov_b32 v63, 60\nbuffer_store_dword v63, v61, {WS}, {sFL} offen{ST}")
        c["rt"](6)
        dump()
        finish()
    elif OPT.get("ORD"):
        a.put(T("CG_0"))
        pzreads()
        a(f"s_sub_u32 s3, {sS}, 3\ns_max_i32 s3, s3, 0\nv_mov_b32 v63, s3\ns_cmp_lt_u32 {sS}, 2\ns_cbranch_scc1 {T('CG_3')}\ns_waitcnt lgkmcnt(0)")
        pz()
        if OPT.get("ODL"): a(f"s_sleep {OPT['ODL']}")
        outp()
        a(f"s_sub_u32 s3, {sS}, 8\ns_cmp_ge_u32 s3, 4\ns_cbranch_scc1 {T('CG_3')}\ns_add_u32 s3, s43, {54*655360}")
        for i in range(4): a(f"v_mov_b32 v{24+i}, 0")
        a(f"buffer_store_dwordx4 v[24:27], v13, {WS}, s3 offen sc1\nbuffer_store_dwordx4 v[24:27], v13, {WS}, s3 offen offset:1024 sc1")
        a.put(T("CG_3"))
        if OPT.get('RST') == 1: rst()
        a(f"buffer_store_dword v63, v61, {WS}, {sFL} offen{ST}")
        stamp(3)
        a(f"s_cmp_eq_u32 {sS}, 63\ns_cbranch_scc1 {T('CG_1')}\ns_cmp_ge_u32 {sS}, 2\ns_cbranch_scc1 {T('CG_Z')}\ns_cmp_eq_u32 {sS}, 1\ns_cbranch_scc1 {T('CG_Y')}\ns_mov_b32 s4, 2")
        flagwait("v15", "v62", "s4")
        vxloads(1)
        a("s_waitcnt vmcnt(0)")
        a.put(T("CG_Y"))
        a(f"s_add_u32 s4, {sS}, 3")
        flagwait("v15", "v62", "s4")
        a.put(T("CG_Z"))
        zx(1, False)
        a.put(T("CG_1"))
        stamp(4)
        a("s_waitcnt lgkmcnt(0)\ns_barrier")
        stamp(5)
        if OPT.get("VDL"): a(f"s_sleep {OPT['VDL']}")
        pxloads()
        a(f"s_cmp_ge_u32 {sS}, 62\ns_cbranch_scc1 {T('CG_2')}")
        vxloads(2)
        a.put(T("CG_2"))
        dump()
        a(f"s_add_u32 s43, s43, 655360\ns_add_u32 {sS}, {sS}, 1\ns_cmp_lt_u32 {sS}, 64\ns_cbranch_scc1 {T('CG_LOOP')}")
        c["rt"](6)
        pzreads()
        a("s_waitcnt vmcnt(0) lgkmcnt(0)")
        pz()
        outp()
        a("s_mov_b32 s4, 64")
        flagwait("v60", "v62", "s4")
        pxloads()
        a(f"s_add_u32 s43, s43, 655360\ns_add_u32 {sS}, {sS}, 1")
        pzreads()
        a("s_waitcnt vmcnt(0) lgkmcnt(0)")
        pz()
        outp()
        finish()
    else:
        a.put(T("CG_0"))
        pzreads()
        a(f"s_cmp_eq_u32 {sS}, 63\ns_cbranch_scc1 {T('CG_1')}\ns_cmp_ge_u32 {sS}, 2\ns_cbranch_scc1 {T('CG_Z')}\ns_cmp_eq_u32 {sS}, 1\ns_cbranch_scc1 {T('CG_Y')}\ns_mov_b32 s4, 2")
        flagwait("v15", "v62", "s4")
        vxloads(1)
        a.put(T("CG_Y"))
        a(f"s_add_u32 s4, {sS}, 3")
        flagwait("v15", "v62", "s4")
        a.put(T("CG_Z"))
        zx(1, VXI)
        a.put(T("CG_1"))
        a("s_waitcnt lgkmcnt(0)")
        pz()
        a(f"s_sub_u32 s3, {sS}, {4 if OST else 3}\ns_max_i32 s3, s3, 0\nv_mov_b32 v63, s3")
        OF = OPT.get("OFIRST", 1)
        def outp_c():
            a(f"s_cmp_lt_u32 {sS}, 2\ns_cbranch_scc1 {T('CG_3')}")
            if OST:
                a(f"s_cmp_lt_u32 {sS}, 63\ns_cbranch_scc1 {T('CG_4')}")
                outp()
                a(f"s_branch {T('CG_3')}")
                a.put(T("CG_4"))
                a(f"s_lshl_b32 s3, {sW}, 11\ns_add_u32 s3, s3, {OSTG}\nv_add_u32 v7, s3, v2\nds_write_b128 v7, v[20:23]\nds_write_b128 v7, v[28:31] offset:1024")
            else: outp()
            a(f"s_sub_u32 s3, {sS}, 8\ns_cmp_ge_u32 s3, {5 if OST else 4}\ns_cbranch_scc1 {T('CG_3')}\ns_add_u32 s3, s43, {(53 if OST else 54)*655360}")
            for i in range(4): a(f"v_mov_b32 v{20+i}, 0")
            a(f"buffer_store_dwordx4 v[20:23], v13, {WS}, s3 offen sc1\nbuffer_store_dwordx4 v[20:23], v13, {WS}, s3 offen offset:1024 sc1")
            a.put(T("CG_3"))
        stamp(3)
        if OPT.get("BD"): a(f"s_sleep {OPT['BD']}")
        if OF == 1: outp_c()
        if OPT.get('RST') == 1: rst()
        a(f"buffer_store_dword v63, v61, {WS}, {sFL} offen{ST}")
        if not VXI:
            a(f"s_cmp_ge_u32 {sS}, 62\ns_cbranch_scc1 {T('CG_2')}")
            vxloads(2)
            a.put(T("CG_2"))
        pxloads()
        if OF == 0: outp_c()
        stamp(4)
        a("s_waitcnt lgkmcnt(0)\ns_barrier")
        if OPT.get("PROBE"):
            stamp(5)
            for i, n in enumerate((13, 7, 2, 0) if OF == 0 else (18, 11, 5, 0)):
                a(f"s_waitcnt vmcnt({n})"); stamp(6 + i)
        stamp(5)
        dump()
        a(f"s_add_u32 s43, s43, 655360\ns_add_u32 {sS}, {sS}, 1\ns_cmp_lt_u32 {sS}, 64\ns_cbranch_scc1 {T('CG_LOOP')}")
        c["rt"](6)
        pzreads()
        a("s_waitcnt vmcnt(%d) lgkmcnt(0)" % (2 if OF == 0 else 0))
        pz()
        outp()
        a("s_mov_b32 s4, 64")
        flagwait("v60", "v62", "s4")
        pxloads()
        a(f"s_add_u32 s43, s43, 655360\ns_add_u32 {sS}, {sS}, 1")
        pzreads()
        a("s_waitcnt vmcnt(0) lgkmcnt(0)")
        pz()
        outp()
        finish()

    a.put(T("CAUX"))
    a(f"s_setprio 2\ns_sub_u32 s14, {sW}, 4")
    a("s_mul_i32 s3, s14, 3840\nv_add_u32 v4, s3, v2\ns_add_u32 s3, s3, 1024\nv_lshlrev_b32 v5, 2, v0\nv_add_u32 v5, s3, v5")
    a("v_and_b32 v6, 3, v0\nv_bfe_u32 v7, v0, 2, 3\nv_lshl_add_u32 v12, v6, 3, v7\nv_lshlrev_b32 v12, 4, v12\nv_lshrrev_b32 v8, 5, v0\nv_lshl_add_u32 v12, v8, 3, v12\ns_lshl_b32 s3, s14, 9\ns_add_u32 s3, s3, %d\nv_add_u32 v12, s3, v12" % PT)
    a("v_lshlrev_b32 v13, 4, v7\nv_lshl_add_u32 v13, v8, 3, v13\nv_lshl_add_u32 v13, v6, 1, v13\ns_lshl_b32 s3, s14, 7\ns_add_u32 s3, s3, %d\nv_add_u32 v13, s3, v13" % PM)
    a(f"s_lshl_b32 s3, s15, 7\ns_add_u32 s3, s3, 2048\ns_cmp_eq_u32 s14, 0\ns_cselect_b32 s3, s3, {OOB}")
    onelane("v10", "s3")
    a("s_mov_b32 s24, 0x3dd53b95\nv_mov_b32 v20, s24\nv_mov_b32 v21, s24")
    if OST:
        a(f"v_and_b32 v14, 7, v0\nv_lshlrev_b32 v14, 7, v14\nv_lshrrev_b32 v7, 4, v0\nv_lshl_add_u32 v14, v7, 4, v14\nv_bfe_u32 v7, v0, 3, 1\nv_lshl_add_u32 v14, v7, 6, v14\ns_mul_i32 s3, {sQ}, 81920\ns_lshl_b32 s6, s15, 13\ns_add_u32 s3, s3, s6\ns_lshl_b32 s6, s14, 11\ns_add_u32 s3, s3, s6\nv_add_u32 v14, s3, v14")
        a(f"s_add_u32 s6, s6, {OSTG}\nv_add_u32 v15, s6, v2\ns_mov_b32 s43, {L.OUTP - 3*655360}")
    def ostrd():
        if OST: a("ds_read_b128 v[80:83], v15\nds_read_b128 v[84:87], v15 offset:1024")
    def ostst():
        if OST:
            l = a.lab("OS")
            a(f"s_cmp_lt_u32 {sS}, 3\ns_cbranch_scc1 {l}")
            if OPT.get("ODL"): a(f"s_sleep {OPT['ODL']}")
            a(f"buffer_store_dwordx4 v[80:83], v14, {WS}, s43 offen sc1\nbuffer_store_dwordx4 v[84:87], v14, {WS}, s43 offen offset:1024 sc1")
            a.put(l)
            a("s_add_u32 s43, s43, 655360")
    if PZA:
        a(f"v_and_b32 v14, 7, v0\nv_lshlrev_b32 v14, 7, v14\nv_lshrrev_b32 v7, 4, v0\nv_lshl_add_u32 v14, v7, 4, v14\nv_bfe_u32 v7, v0, 3, 1\nv_lshl_add_u32 v14, v7, 6, v14\ns_mul_i32 s3, {sQ}, 81920\ns_lshl_b32 s6, s15, 13\ns_add_u32 s3, s3, s6\ns_lshl_b32 s6, s14, 11\ns_add_u32 s3, s3, s6\nv_add_u32 v14, s3, v14")
        a("s_lshr_b32 s4, s14, 1\ns_lshl_b32 s3, s4, 11\nv_add_u32 v15, s3, v2\ns_and_b32 s5, s14, 1\ns_mul_i32 s3, s5, 5120\nv_add_u32 v16, s3, v2")
        a("v_and_b32 v17, 3, v0\nv_lshlrev_b32 v17, 2, v17\ns_lshl_b32 s3, s5, 4\ns_add_u32 s3, s3, 384\nv_add_u32 v17, s3, v17")
        a(f"s_mov_b32 s43, {L.OUTP - 2*655360}")
    def tokout():
        if not PZA: return
        l = a.lab("TO")
        a(f"s_cmp_lt_u32 {sS}, 2\ns_cbranch_scc1 {l}")
        a("s_waitcnt lgkmcnt(0)")
        pz(PAA, 88)
        if OPT.get("ODL"): a(f"s_sleep {OPT['ODL']}")
        outp(88, "v14")
        a(f"s_sub_u32 s3, {sS}, 8\ns_cmp_ge_u32 s3, 4\ns_cbranch_scc1 {l}\ns_add_u32 s3, s43, {54*655360}")
        for i in range(4): a(f"v_mov_b32 v{100+i}, 0")
        a(f"buffer_store_dwordx4 v[100:103], v14, {WS}, s3 offen sc1\nbuffer_store_dwordx4 v[100:103], v14, {WS}, s3 offen offset:1024 sc1")
        a.put(l)
        a("s_add_u32 s43, s43, 655360")
    a(f"s_mov_b32 s40, 0\ns_cmp_lg_u32 s14, 0\ns_cbranch_scc1 {T('CA_C')}")
    a("v_and_b32 v24, 31, v0\nv_lshlrev_b32 v24, 4, v24\nv_lshrrev_b32 v25, 5, v0\nv_lshl_add_u32 v24, v25, 11, v24\ns_lshl_b32 s3, s15, 15\nv_add_u32 v24, s3, v24")
    a(f"s_mov_b32 s6, -1\ns_mov_b32 s7, -1\ns_mov_b32 s4, {L.H3 + 2*L.H3S}\nbuffer_load_dwordx2 v[26:27], v24, {WS}, s4 offen sc1\ns_waitcnt vmcnt(0)")
    CTH = OPT.get("CTH", 520)
    for it in range(8 if CTH else 3):
        if CTH and it >= 2: a(f"s_min_u32 s3, s6, s7\ns_cmp_lt_u32 s3, {CTH}\ns_cbranch_scc1 {T('CA_K')}")
        for cp in range(2):
            a(f"s_mov_b32 s4, {L.H3 + 3*L.H3S + 8192*cp + 4096*(it % 2) + 16384*(it // 2 % 2) + 512*(it // 4)}\ns_memtime s[60:61]\ns_waitcnt lgkmcnt(0)\nbuffer_load_dwordx2 v[26:27], v24, {WS}, s4 offen sc1\ns_waitcnt vmcnt(0)")
            a(f"s_memtime s[62:63]\ns_waitcnt lgkmcnt(0)\ns_sub_u32 s3, s62, s60\ns_min_u32 s{6+cp}, s{6+cp}, s3")
    a.put(T("CA_K"))
    a("s_cmp_lt_u32 s7, s6\ns_cselect_b32 s40, 1, 0")
    if FLIP: a("s_xor_b32 s40, s40, 1")
    if INSTR: a("s_mov_b32 s52, s6\ns_mov_b32 s53, s7\ns_mov_b32 s54, s40")
    a.put(T("CA_C"))
    a(f"s_mov_b32 {sS}, 0\ns_barrier")
    stamp0()
    a.put(T("CA_LOOP"))
    ostrd()
    if PZA: pzreads(PAA, "v15", "v18", "v19")
    slot("s34", L.H2S, L.H2); tagreg("s25")
    a(f"s_lshl_b32 s3, {sS}, 1\ns_add_u32 s3, s3, s40\ns_add_u32 s3, s3, 2\nv_mov_b32 v11, s3")
    if OPT.get("SL2") or not AF: a(f"s_sleep {OPT['SL2'] if AF or not OPT.get('AF') else 16}")
    if AF:
        afwait(3584, 12, 24, OPT.get("AFS", 300))
    stamp(5)
    a.put(T("CA_P2"))
    a(f"s_sub_u32 {sBUD}, {sBUD}, 1\ns_cbranch_scc1 END")
    for p in range(3): a(f"buffer_load_dwordx4 v[{24+4*p}:{27+4*p}], v4, {WS}, s34 offen offset:{1280*p} sc1")
    for p in range(3): a(f"buffer_load_dword v{36+p}, v5, {WS}, s34 offen offset:{1280*p} sc1")
    a("s_waitcnt vmcnt(5)\n" + A3("v40", "s25", "v24", "v25") + "\n" + A3("v40", "v40", "v26", "v27"))
    a("s_waitcnt vmcnt(4)\nv_pk_add_f32 v[72:73], v[24:25], v[28:29]\nv_pk_add_f32 v[74:75], v[26:27], v[30:31]\n" + A3("v40", "v40", "v28", "v29") + "\n" + A3("v40", "v40", "v30", "v31"))
    a("s_waitcnt vmcnt(3)\nv_pk_add_f32 v[72:73], v[72:73], v[32:33]\nv_pk_add_f32 v[74:75], v[74:75], v[34:35]\n" + A3("v40", "v40", "v32", "v33") + "\n" + A3("v40", "v40", "v34", "v35"))
    a("v_max3_f32 v77, v72, v73, v74\ns_waitcnt vmcnt(0)\n" + A3("v40", "v40", "v36", "v37") + "\nv_add_f32 v76, v36, v37\nv_and_b32 v40, v40, v38\nv_add_f32 v76, v76, v38\nv_cmp_eq_u32 vcc, 0, v40\nv_max3_f32 v77, v77, v75, v76")
    a(f"s_cbranch_vccnz {T('CA_P2')}")
    stamp(0)
    rtc(4, 0); rtc(6, 1)
    a("v_max_f32_dpp v77, v77, v77 quad_perm:[1,0,3,2] row_mask:0xf bank_mask:0xf\nv_max_f32_dpp v77, v77, v77 quad_perm:[2,3,0,1] row_mask:0xf bank_mask:0xf")
    a("v_mov_b32 v78, v77\nv_permlane32_swap_b32 v77, v78\nv_max_f32 v77, v77, v78")
    a("v_mul_f32 v78, s24, v77")
    a("v_pk_fma_f32 v[72:73], v[72:73], v[20:21], v[78:79] op_sel_hi:[1,1,0] neg_lo:[0,0,1] neg_hi:[0,0,1]\nv_pk_fma_f32 v[74:75], v[74:75], v[20:21], v[78:79] op_sel_hi:[1,1,0] neg_lo:[0,0,1] neg_hi:[0,0,1]\nv_fma_f32 v76, v76, v20, -v78")
    for i in range(5): a(f"v_exp_f32 v{72+i}, v{72+i}")
    a("v_pk_add_f32 v[78:79], v[72:73], v[74:75]\nv_add_f32 v77, v78, v76\nv_add_f32 v77, v77, v79")
    a("v_add_f32_dpp v77, v77, v77 quad_perm:[1,0,3,2] row_mask:0xf bank_mask:0xf\nv_add_f32_dpp v77, v77, v77 quad_perm:[2,3,0,1] row_mask:0xf bank_mask:0xf")
    a("v_mov_b32 v78, v77\nv_permlane32_swap_b32 v77, v78\nv_add_f32 v77, v77, v78")
    a("v_rcp_f32 v78, v77")
    a("v_pk_mul_f32 v[72:73], v[72:73], v[78:79] op_sel_hi:[1,0]\nv_pk_mul_f32 v[74:75], v[74:75], v[78:79] op_sel_hi:[1,0]\nv_mul_f32 v76, v76, v78")
    a("v_cvt_pk_bf16_f32 v72, v72, v73\nv_cvt_pk_bf16_f32 v73, v74, v75\nv_cvt_pk_bf16_f32 v76, v76, v76")
    a(f"ds_write_b64 v12, v[72:73]\nds_write_b16 v13, v76\ns_waitcnt lgkmcnt(0)")
    stamp(1)
    a("s_barrier")
    stamp(2)
    a(f"buffer_store_dword v11, v10, {WS}, {sFL} offen{ST}")
    ostst()
    tokout()
    if PZA: pxloads("v16")
    a("s_barrier")
    dump()
    a(f"s_add_u32 {sS}, {sS}, 1\ns_cmp_lt_u32 {sS}, 63\ns_cbranch_scc1 {T('CA_LOOP')}")
    if PZA:
        for j in range(3):
            pzreads(PAA, "v15", "v18", "v19", 3 if j < 2 else 1)
            if j:
                a(f"s_mov_b32 s4, {62+j}")
                flagwait("v17", "v24", "s4")
                a(f"s_sub_u32 {sS}, {sS}, 1")
                pxloads("v16")
                a(f"s_add_u32 {sS}, {sS}, 1")
            if j == 2:
                a("s_barrier")
                pzreads(PAA, "v15", "v18", "v19", 2)
            a("s_waitcnt vmcnt(0) lgkmcnt(0)")
            pz(PAA, 88)
            outp(88, "v14")
            a(f"s_add_u32 s43, s43, 655360\ns_add_u32 {sS}, {sS}, 1")
        finish()
        return
    ostrd()
    a("s_waitcnt lgkmcnt(0)")
    ostst()
    a("s_barrier\ns_barrier")
    finish()
```

```python
from asmlib import *
OOB = 0x7fffff00

def chain(c, tag, ST):
    a, L, WS, NS, LOGNS, OPT, INSTR = c["a"], c["L"], c["WS"], c["NS"], c["LOGNS"], c["OPT"], c["INSTR"]
    sW, sQ, sR, sS, sBUD, sG = c["sW"], c["sQ"], c["sR"], c["sS"], c["sBUD"], c["sG"]
    slot, budget, srd = c["slot"], c["budget"], c["srd"]
    FLIP = OPT.get("FLIP", 0); DELTA = OPT.get("DELTA", 200); SSTEP = OPT.get("SSTEP", 55)
    POIS = NS < 64
    T = lambda n: n + "_" + tag
    sFL = "s33"
    def stamp(i):
        if INSTR == 2:
            l = a.lab("ST")
            a(f"s_cmp_lg_u32 {sS}, {SSTEP}\ns_cbranch_scc1 {l}\ns_memtime s[60:61]\ns_waitcnt lgkmcnt(0)\ns_mov_b32 s{44+i}, s60")
            a.put(l)
        if INSTR == 3: a(f"s_memtime s[{64+2*i}:{65+2*i}]")
    def dump():
        if INSTR == 3:
            a(f"s_lshl_b32 s3, {sQ}, 5\ns_add_u32 s3, s3, {sR}\ns_lshl_b32 s3, s3, 3\ns_add_u32 s3, s3, {sW}\ns_lshl_b32 s3, s3, 6\ns_and_b32 s4, {sS}, 63\ns_add_u32 s3, s3, s4\ns_lshl_b32 s3, s3, 5\ns_add_u32 s3, s3, {L.DBG + (1 << 20)}\ns_waitcnt lgkmcnt(0)")
            a("v_mov_b32 v254, s64")
            for i in range(1, 8): a(f"v_writelane_b32 v254, s{64+2*i}, {i}")
            a(f"s_mov_b64 exec, 0xff\nv_lshlrev_b32 v255, 2, v0\nbuffer_store_dword v254, v255, {WS}, s3 offen\ns_mov_b64 exec, -1")
    def rtc(i, step, reg=None):
        if OPT.get("RT") and OPT.get("RTC", 1):
            l = a.lab("RC")
            a(f"s_cmp_lg_u32 {reg or sS}, {step}\ns_cbranch_scc1 {l}")
            c["rt"](i)
            a.put(l)
    def stamp0():
        c["rt"](5)
        if INSTR: a("s_memtime s[60:61]\ns_waitcnt lgkmcnt(0)\ns_sub_u32 s55, s60, s90")
    def finish():
        if INSTR:
            a("s_memtime s[60:61]\ns_waitcnt lgkmcnt(0)\ns_sub_u32 s59, s60, s90")
            a(f"s_lshl_b32 s3, {sQ}, 5\ns_add_u32 s3, s3, {sR}\ns_lshl_b32 s3, s3, 3\ns_add_u32 s3, s3, {sW}\ns_lshl_b32 s3, s3, 6\ns_add_u32 s3, s3, {L.DBG+4096}")
            a(f"s_mov_b32 s58, {sBUD}")
            l = a.lab("CAL")
            a("s_memrealtime s[62:63]\ns_waitcnt lgkmcnt(0)\ns_mov_b32 s4, 200")
            a.put(l)
            a("s_memrealtime s[6:7]\ns_memtime s[60:61]\ns_waitcnt lgkmcnt(0)\ns_sub_u32 s4, s4, 1")
            a(f"s_cbranch_scc1 {l}_x\ns_cmp_eq_u32 s6, s62\ns_cbranch_scc1 {l}")
            a.put(l + "_x")
            a("s_mov_b32 s57, s60\ns_mov_b32 s56, s6")
            for i in range(16): a(f"v_mov_b32 v{8+i}, s{44+i}")
            a("v_mov_b32 v4, 0\ns_mov_b64 exec, 1")
            for i in range(4): a(f"buffer_store_dwordx4 v[{8+4*i}:{11+4*i}], v4, {WS}, s3 offen offset:{16*i}")
        a("s_waitcnt vmcnt(0)")
        c["rtdump"]()
        a("s_waitcnt vmcnt(0)\ns_branch END")
    def delay(n):
        while n > 0:
            m = min(n, 64); a(f"s_nop {max(m//4-1,0)}"); n -= m
    def onelane(v, saddr):
        a(f"v_mov_b32 {v}, {OOB}\nv_writelane_b32 {v}, {saddr}, 0")
    xs_dma = c["xs_dma"]
    def flagwait(vaddr, vtmp, sval):
        lp = a.lab("FW"); ok = a.lab("FO")
        a.put(lp)
        a(f"buffer_load_dword {vtmp}, {vaddr}, {WS}, {sFL} offen sc1\ns_waitcnt vmcnt(0)")
        a(f"v_cmp_gt_u32 vcc, {sval}, {vtmp}\ns_cbranch_vccz {ok}")
        budget(lp)
        a.put(ok)
    AF = OPT.get("AF", 0) if ST == "" else 0
    def afwait(off, n, r0, dl):
        lp = a.lab("AFP"); go = a.lab("AFG"); NF = OPT.get("NFA", 2)
        a(f"s_add_u32 s3, {sS}, 1\nv_min_u32 v{r0+NF}, {n-1}, v0\nv_lshlrev_b32 v{r0+NF}, 2, v{r0+NF}\nv_add_u32 v{r0+NF}, {off}, v{r0+NF}")
        for k in range(NF - 1):
            a(f"buffer_load_dword v{r0+k}, v{r0+NF}, {WS}, {sFL} offen sc1"); delay(OPT.get("AFG", 128))
        a.put(lp)
        for k in range(NF):
            a(f"buffer_load_dword v{r0+(k+NF-1)%NF}, v{r0+NF}, {WS}, {sFL} offen sc1\ns_waitcnt vmcnt({NF-1})\nv_cmp_gt_u32 vcc, s3, v{r0+k}\ns_cbranch_vccz {go}")
        budget(lp)
        a.put(go)
        delay(dl)
    def idxreg(v):
        a(f"v_and_b32 v4, 15, v0\nv_cmp_gt_u32 vcc, 8, v4\nv_mov_b32 {v}, 0xeeee\nv_mov_b32 v6, 0x4444\nv_cndmask_b32 {v}, {v}, v6, vcc")
    def tagreg(s):
        a(f"s_lshr_b32 {s}, {sS}, {LOGNS}\ns_and_b32 {s}, {s}, 1\ns_add_u32 {s}, {s}, 1")

    a(f"s_lshl_b32 {sFL}, {sQ}, 12\ns_add_u32 {sFL}, {sFL}, {L.FL}")
    a(f"s_cmp_ge_u32 {sR}, 18\ns_cbranch_scc1 {T('COMB')}")
    MEM, QKM, QX, KX, DUM = 81920, 92160, 94208, 98304, 102400
    a(f"s_cmp_ge_u32 {sW}, 4\ns_cbranch_scc1 {T('PAUX')}")
    idxreg("v5")
    a(f"v_add_u32 v11, {MEM}, v2")
    NB = 5
    def tokgemm():
        R = lambda i: 16 + 4*(i % NB)
        off = lambda i: (i % 2)*20480 + (i // 2)*1024
        for i in range(NB - 1): a(f"ds_read_b128 v[{R(i)}:{R(i)+3}], v9 offset:{off(i)}")
        for i in range(40):
            if i + NB - 1 < 40: a(f"ds_read_b128 v[{R(i+NB-1)}:{R(i+NB-1)+3}], v9 offset:{off(i+NB-1)}")
            a(f"s_waitcnt lgkmcnt({min(NB-1, 39-i)})")
            kk, tt = i // 2, i % 2
            for t in range(2):
                w = 64 + 16*(kk // 2) + 8*t + 4*(kk % 2); d = 224 + 8*t + 4*tt
                a(f"v_mfma_f32_16x16x32_bf16 v[{d}:{d+3}], v[{w}:{w+3}], v[{R(i)}:{R(i)+3}], " + ("0" if kk == 0 else f"v[{d}:{d+3}]"))
    def crit():
        for b in range(10): a(f"ds_read_b128 v[{16+4*b}:{19+4*b}], v11 offset:{1024*b}")
        for b in range(10):
            a(f"s_waitcnt lgkmcnt({9-b})")
            a(f"v_smfmac_f32_16x16x64_bf16 v[56:59], v[{16+4*b}:{19+4*b}], v[{64+16*b}:{71+16*b}], v5")
            a(f"v_smfmac_f32_16x16x64_bf16 v[60:63], v[{16+4*b}:{19+4*b}], v[{72+16*b}:{79+16*b}], v5")
        for i in range(4): a(f"v_permlane32_swap_b32 v{56+i}, v{60+i}")
        a("v_pk_add_f32 v[56:57], v[56:57], v[60:61]\nv_pk_add_f32 v[58:59], v[58:59], v[62:63]")
        a("v_cvt_pk_bf16_f32 v56, v56, v57\nv_cvt_pk_bf16_f32 v57, v58, v59\nds_write_b64 v6, v[56:57]")
    a(f"s_cmp_ge_u32 {sR}, 12\ns_cbranch_scc1 {T('VG')}")
    a(f"v_and_b32 v4, 15, v0\nv_lshlrev_b32 v6, 5, v4\nv_lshrrev_b32 v7, 4, v0\nv_lshl_add_u32 v6, v7, 3, v6\ns_lshl_b32 s3, {sW}, 9\ns_add_u32 s3, s3, {QKM}\nv_add_u32 v6, s3, v6")
    a(f"s_lshr_b32 s3, {sW}, 1\ns_lshl_b32 s3, s3, 10\ns_and_b32 s4, {sW}, 1\ns_lshl_b32 s4, s4, 3\ns_add_u32 s3, s3, s4\ns_add_u32 s3, s3, {QX}\nv_add_u32 v7, s3, v2")
    c["rt"](5)
    a(f"s_mov_b32 {sS}, -1\ns_branch {T('SG_TOK')}")
    a.put(T("SG_LOOP"))
    for i in range(56, 64): a(f"v_mov_b32 v{i}, 0")
    a("s_waitcnt lgkmcnt(0)")
    stamp(0)
    a("s_barrier")
    crit()
    a("s_waitcnt lgkmcnt(0)")
    stamp(1)
    a("s_barrier")
    a(f"s_cmp_eq_u32 {sS}, 63\ns_cbranch_scc1 {T('SG_END')}")
    a.put(T("SG_TOK"))
    a(f"s_add_u32 {sS}, {sS}, 1\ns_and_b32 s3, {sS}, 1\ns_mul_i32 s3, s3, 40960\nv_add_u32 v9, s3, v2")
    tokgemm()
    for t in range(2):
        for tt in range(2):
            d = 224 + 8*t + 4*tt
            a(f"v_cvt_pk_bf16_f32 v{d}, v{d}, v{d+1}\nv_cvt_pk_bf16_f32 v{d+1}, v{d+2}, v{d+3}\nds_write_b64 v7, v[{d}:{d+1}] offset:{4096*t + 2048*tt}")
    dump()
    a(f"s_cmp_lg_u32 {sS}, 0\ns_cbranch_scc1 {T('SG_LOOP')}\ns_barrier")
    c["verdict_r"]()
    c["rt"](6)
    a(f"s_branch {T('SG_LOOP')}")
    a.put(T("SG_END"))
    finish()
    a.put(T("VG"))
    a("v_bfe_u32 v6, v0, 3, 1\nv_lshlrev_b32 v6, 8, v6\nv_bfe_u32 v7, v0, 2, 1\nv_lshl_add_u32 v6, v7, 7, v6\nv_lshrrev_b32 v7, 5, v0\nv_lshl_add_u32 v6, v7, 6, v6\nv_and_b32 v7, 1, v0\nv_lshl_add_u32 v6, v7, 5, v6")
    a(f"v_bfe_u32 v7, v0, 1, 1\nv_lshl_add_u32 v6, v7, 4, v6\nv_bfe_u32 v7, v0, 4, 1\nv_lshl_add_u32 v6, v7, 3, v6\ns_lshl_b32 s3, {sW}, 9\ns_add_u32 s3, s3, {QKM}\nv_add_u32 v6, s3, v6")
    a("v_bfe_u32 v7, v0, 4, 1\nv_lshlrev_b32 v7, 8, v7\nv_and_b32 v8, 15, v0\nv_lshl_add_u32 v7, v8, 3, v7\nv_add_u32 v7, s3, v7")
    a(f"s_sub_u32 s4, {sR}, 12\ns_lshl_b32 s4, s4, 2\ns_add_u32 s4, s4, {sW}")
    a(f"s_lshl_b32 s3, s4, 9\nv_add_u32 v10, s3, v2\nv_mov_b32 v8, {OOB}\nv_cmp_gt_u32 vcc, 32, v0\nv_cndmask_b32 v10, v8, v10, vcc")
    a("s_lshl_b32 s3, s4, 11\nv_add_u32 v8, s3, v2\ns_lshl_b32 s3, s4, 2")
    onelane("v15", "s3")
    for i in range(4): a(f"v_mov_b32 v{240+i}, -1")
    a(f"s_mov_b32 {sS}, -1\ns_mov_b32 s37, 0")
    c["rt"](5)
    a(f"s_branch {T('VG_TOK')}")
    a.put(T("VG_LOOP"))
    for i in range(56, 64): a(f"v_mov_b32 v{i}, 0")
    slot("s34", L.VMS, L.VM); slot("s35", L.VMS, L.VM, NS - 1)
    a("s_barrier")
    crit()
    a("ds_read_b64_tr_b16 v[56:57], v7\nds_read_b64_tr_b16 v[58:59], v7 offset:128\ns_waitcnt lgkmcnt(1)\nv_min_u32 v56, -2, v56\nv_min_u32 v57, -2, v57\ns_waitcnt lgkmcnt(0)\nv_min_u32 v58, -2, v58\nv_min_u32 v59, -2, v59")
    a(f"buffer_store_dwordx4 v[56:59], v10, {WS}, s34 offen{ST}")
    stamp(0)
    if POIS: a(f"buffer_store_dwordx4 v[240:243], v10, {WS}, s35 offen{ST}")
    a("s_barrier")
    a(f"s_cmp_lt_u32 {sS}, 61\ns_cbranch_scc1 {T('VG_TOK')}\ns_cmp_eq_u32 {sS}, 63\ns_cbranch_scc1 {T('VG_END')}\ns_add_u32 {sS}, {sS}, 1\ns_waitcnt vmcnt(0)\ns_branch {T('VG_LOOP')}")
    a.put(T("VG_TOK"))
    a(f"s_and_b32 s3, s37, 1\ns_mul_i32 s3, s3, 40960\nv_add_u32 v9, s3, v2\ns_and_b32 s36, s37, {NS-1}\ns_mul_i32 s36, s36, {L.VXS}\ns_add_u32 s36, s36, {L.VX}\ns_add_u32 s36, s36, {sG}\ns_add_u32 s37, s37, 1\nv_mov_b32 v14, s37")
    tokgemm()
    a(f"s_cmp_lg_u32 s37, 1\ns_cbranch_scc1 {T('VG_ST')}\ns_barrier")
    c["verdict_r"]()
    a.put(T("VG_ST"))
    for tt in range(2):
        for t in range(2):
            d = 224 + 8*t + 4*tt; o = 16 + 4*tt + 2*t
            a(f"v_cvt_pk_bf16_f32 v{o}, v{d}, v{d+1}\nv_cvt_pk_bf16_f32 v{o+1}, v{d+2}, v{d+3}")
        a(f"buffer_store_dwordx4 v[{16+4*tt}:{19+4*tt}], v8, {WS}, s36 offen offset:{1024*tt}{ST}")
    a(f"s_waitcnt vmcnt(0)\nbuffer_store_dword v14, v15, {WS}, {sFL} offen{ST}")
    stamp(1)
    rtc(6, 1, "s37"); rtc(1, 3, "s37")
    dump()
    a(f"s_lshl_b32 s3, {sS}, 1\ns_add_u32 s3, s3, 2\ns_add_u32 s4, {sS}, 3\ns_min_i32 s3, s3, s4\ns_cmp_le_i32 s37, s3\ns_cbranch_scc1 {T('VG_2')}\ns_add_u32 {sS}, {sS}, 1\ns_branch {T('VG_LOOP')}")
    a.put(T("VG_2"))
    a(f"s_barrier\ns_branch {T('VG_TOK')}")
    a.put(T("VG_END"))
    finish()

    a.put(T("PAUX"))
    a(f"s_setprio 2\ns_sub_u32 s14, {sW}, 4")
    a(f"s_lshl_b32 s3, s14, 10\nv_add_u32 v4, s3, v2\nv_add_u32 v12, {MEM}, v4\ns_cmp_lt_u32 s14, 2\ns_cselect_b64 vcc, -1, 0")
    a(f"v_mov_b32 v8, {OOB}\nv_cndmask_b32 v8, v8, v4, vcc\nv_add_u32 v13, {DUM}, v2\nv_add_u32 v5, 8192, v12\nv_cndmask_b32 v13, v13, v5, vcc")
    a("ds_write_b128 v12, v[200:203]\nds_write_b128 v12, v[204:207] offset:4096\nds_write_b128 v13, v[208:211]")
    SPREAD = OPT.get("SPREAD", 0)
    if SPREAD:
        a(f"s_cmp_ge_u32 {sR}, 12\ns_cselect_b32 s3, 2, 0\ns_xor_b32 s3, s3, s14\ns_lshl_b32 s40, {sR}, 1\ns_add_u32 s40, s40, s3\ns_cmp_lt_u32 s3, 2\ns_cselect_b32 s40, s40, -1")
        a(f"s_lshl_b32 s3, {sR}, 2\ns_add_u32 s3, s3, s14\ns_and_b32 s4, s3, 0xfffffff3\ns_add_u32 s3, {sR}, 36\ns_cmp_eq_u32 s4, 2\ns_cselect_b32 s40, s3, s40")
    else:
        a(f"s_lshl_b32 s40, {sR}, 2\ns_add_u32 s40, s40, s14\ns_cmp_lt_u32 {sR}, 10\ns_cselect_b32 s40, s40, -1")
    a(f"s_lshr_b32 s3, {sR}, 1\ns_lshr_b32 s4, s40, 2\ns_cmp_lt_i32 s40, 0\ns_cselect_b32 s3, s3, s4\ns_lshl_b32 s3, s3, 7\ns_add_u32 s3, s3, 2048\nv_mov_b32 v140, s3")
    a("s_max_i32 s5, s40, 0\ns_lshr_b32 s3, s5, 2\ns_lshl_b32 s3, s3, 15\ns_and_b32 s4, s5, 3\ns_lshl_b32 s4, s4, 9\ns_add_u32 s3, s3, s4")
    a("v_and_b32 v142, 31, v0\nv_lshlrev_b32 v141, 4, v142\nv_lshrrev_b32 v143, 5, v0\nv_lshl_add_u32 v141, v143, 11, v141\nv_add_u32 v141, s3, v141")
    a("s_lshl_b32 s3, s5, 8\nv_lshlrev_b32 v142, 3, v142\nv_lshl_add_u32 v142, v143, 2, v142\nv_add_u32 v142, s3, v142\nv_mov_b32 v143, -1")
    a(f"s_lshr_b32 s41, {sQ}, 2\ns_lshl_b32 s41, s41, 14")
    if AF:
        a(f"s_lshl_b32 s3, {sR}, 2\ns_add_u32 s4, s3, 3584\ns_add_u32 s3, s3, {3456-48}\ns_cmp_lt_u32 {sR}, 12\ns_cselect_b32 s3, s4, s3\ns_cmp_eq_u32 s14, {OPT.get('AFW', 3)}\ns_cselect_b32 s3, s3, {OOB}")
        onelane("v200", "s3")
    def afsig():
        if AF: a(f"buffer_store_dword v201, v200, {WS}, {sFL} offen")
    def afpre():
        if AF: a(f"s_add_u32 s3, {sS}, 1\nv_mov_b32 v201, s3")
    A3 = lambda d, x, y, z: f"v_bitop3_b32 {d}, {x}, {y}, {z} bitop3:0x80"
    def h3task():
        skip = a.lab("H3N"); done = a.lab("H3D"); lp = a.lab("H3F"); go = a.lab("H3G")
        slot("s36", L.H3S, L.H3, NS - 1, False); slot("s37", L.H1S, L.H1); slot("s35", L.H1S, L.H1, NS - 1)
        a(f"s_sub_u32 s3, {sS}, 1\ns_lshr_b32 s25, s3, {LOGNS}\ns_and_b32 s25, s25, 1\ns_add_u32 s25, s25, 1")
        a("s_xor_b32 s3, s41, 16384\ns_add_u32 s16, s36, s41\ns_add_u32 s17, s16, 4096\ns_add_u32 s18, s36, s3\ns_add_u32 s19, s18, 4096")
        NF = 3
        a(f"s_lshl_b32 s43, {sS}, 1")
        for k in range(NF - 1):
            a(f"buffer_load_dword v{144+k}, v140, {WS}, {sFL} offen sc1"); delay(64)
        a.put(lp)
        for k in range(NF):
            a(f"buffer_load_dword v{144+(k+NF-1)%NF}, v140, {WS}, {sFL} offen sc1\ns_waitcnt vmcnt({NF-1})\nv_cmp_gt_u32 vcc, s43, v{144+k}\ns_cbranch_vccz {go}")
        budget(lp)
        a.put(go)
        stamp(6)
        a(f"s_cmp_lt_i32 s40, 0\ns_cbranch_scc1 {skip}")
        a(f"s_cmp_lg_u32 {sS}, 1\ns_cbranch_scc1 {go}_c\ns_waitcnt vmcnt(0)\nv_max3_u32 v147, v144, v145, v146\nv_and_b32 v147, 1, v147\nv_lshl_add_u32 v141, v147, 13, v141")
        a.put(go + "_c")
        delay(DELTA)
        lp = a.lab("H3P"); ok = a.lab("H3K")
        NP = OPT.get("NP", 1); GAP = OPT.get("GAP", 150)
        RB = [148, 168, 184]
        def hiss(k):
            for q in range(4): a(f"buffer_load_dwordx4 v[{RB[k]+4*q}:{RB[k]+3+4*q}], v141, {WS}, s{16+q} offen sc1")
        def hchk(k):
            b = RB[k]; n = 4*(NP - 1)
            a(f"s_waitcnt vmcnt({3+n})\n" + A3("v52", "s25", f"v{b}", f"v{b+1}") + "\n" + A3("v52", "v52", f"v{b+2}", f"v{b+3}"))
            for i in range(1, 4):
                r = b + 4*i; p = b if i == 1 else 164
                a(f"s_waitcnt vmcnt({3-i+n})\nv_pk_add_f32 v[164:165], v[{p}:{p+1}], v[{r}:{r+1}]\nv_pk_add_f32 v[166:167], v[{p+2}:{p+3}], v[{r+2}:{r+3}]\n" + A3("v52", "v52", f"v{r}", f"v{r+1}") + "\n" + A3("v52", "v52", f"v{r+2}", f"v{r+3}"))
            a("v_permlane32_swap_b32 v164, v166\nv_permlane32_swap_b32 v165, v167\nv_cmp_eq_u32 vcc, 0, v52\nv_pk_add_f32 v[164:165], v[164:165], v[166:167]")
            a("v_cvt_pk_bf16_f32 v166, v164, v165\nv_min_u32 v166, -2, v166")
        for k in range(NP - 1):
            hiss(k); delay(GAP)
        a.put(lp)
        a(f"s_sub_u32 {sBUD}, {sBUD}, 1\ns_cbranch_scc1 END")
        for k in range(NP):
            hiss((k + NP - 1) % NP); hchk(k)
            a(f"s_cbranch_vccnz {lp}" if k == NP - 1 else f"s_cbranch_vccz {ok}")
        a.put(ok)
        a(f"buffer_store_dword v166, v142, {WS}, s37 offen{ST}")
        stamp(7)
        rtc(6, 1)
        if POIS: a(f"buffer_store_dword v143, v142, {WS}, s35 offen{ST}")
        if INSTR in (1, 2):
            a(f"s_memtime s[60:61]\ns_lshl_b32 s3, {sQ}, 8\ns_lshl_b32 s4, {sS}, 2\ns_add_u32 s3, s3, s4\ns_add_u32 s3, s3, {L.DBG+262144-4}\ns_cmp_eq_u32 s40, 0\ns_cselect_b32 s4, 0, {OOB}")
            a(f"s_waitcnt lgkmcnt(0)\ns_sub_u32 s60, s60, s90\nv_mov_b32 v164, s60\nv_mov_b32 v165, s4\nbuffer_store_dword v164, v165, {WS}, s3 offen")
        if OPT.get("D1"): a(f"s_sleep {OPT['D1']}")
        a(f"s_branch {done}")
        a.put(skip)
        if OPT.get("D2"): a(f"s_sleep {OPT['D2']}")
        a.put(done)
    def mem0(got):
        c["verdict_w"]()
        a("s_barrier")
        c["verdict_r"]()
        stamp0()
        a(f"s_branch {got}")
    def h1poll(got, sl):
        if sl: a(f"s_sleep {sl}")
        slot("s34", L.H1S, L.H1)
        a("s_add_u32 s35, s34, 4096\ns_add_u32 s36, s34, 8192")
        def issue(r): a(f"buffer_load_dwordx4 v[{r}:{r+3}], v4, {WS}, s34 offen sc1\nbuffer_load_dwordx4 v[{r+4}:{r+7}], v4, {WS}, s35 offen sc1\nbuffer_load_dwordx4 v[{r+8}:{r+11}], v8, {WS}, s36 offen sc1")
        def check(r, n):
            a(f"s_waitcnt vmcnt({n+2})\nds_write_b128 v12, v[{r}:{r+3}]\nv_max3_u32 v52, v{r}, v{r+1}, v{r+2}")
            a(f"s_waitcnt vmcnt({n+1})\nds_write_b128 v12, v[{r+4}:{r+7}] offset:4096\nv_max3_u32 v52, v{r+3}, v{r+4}, v52\nv_max3_u32 v52, v{r+5}, v{r+6}, v52")
            a(f"s_waitcnt vmcnt({n})\nds_write_b128 v13, v[{r+8}:{r+11}]\nv_max3_u32 v52, v{r+7}, v{r+8}, v52\nv_max3_u32 v52, v{r+9}, v{r+10}, v52\nv_max_u32 v52, v{r+11}, v52")
            a(f"v_cmp_eq_u32 vcc, -1, v52\ns_cbranch_vccz {got}\ns_waitcnt lgkmcnt(0)")
        lp = a.lab("H1P")
        P1 = OPT.get("P1", 2)
        if P1 == 1:
            a.put(lp); issue(116); check(116, 0)
        else:
            for k in range(P1 - 1):
                issue(116 + 12*k)
                if OPT.get("P1D"): delay(OPT["P1D"])
            a.put(lp)
            for k in range(P1):
                issue(116 + 12*((k + P1 - 1) % P1)); check(116 + 12*k, 3*(P1 - 1))
        budget(lp)
    a(f"s_cmp_ge_u32 {sR}, 12\ns_cbranch_scc1 {T('VA')}")
    a(f"s_cmp_eq_u32 s14, 3\ns_cselect_b32 s3, 0, {KX-QX}\ns_cmp_eq_u32 s14, 1\ns_cselect_b32 s4, 2048, 0\ns_add_u32 s3, s3, s4\ns_add_u32 s3, s3, {QX}\nv_add_u32 v14, s3, v2")
    a(f"s_cmp_eq_u32 s14, 0\ns_cselect_b32 s3, 0, 2048\ns_add_u32 s3, s3, {QX}\nv_add_u32 v15, s3, v2\nv_add_u32 v7, {QKM}, v3")
    a("v_and_b32 v6, 7, v0\nv_lshrrev_b32 v9, 4, v0\nv_lshl_add_u32 v11, v6, 2, v9\nv_lshlrev_b32 v11, 4, v11\ns_lshl_b32 s3, s14, 9\nv_add_u32 v11, s3, v11")
    a("v_lshl_add_u32 v9, v9, 3, v6\nv_lshlrev_b32 v9, 4, v9\nv_add_u32 v9, 768, v9\ns_cmp_eq_u32 s14, 2\ns_cselect_b64 vcc, -1, 0\nv_cndmask_b32 v11, v11, v9, vcc")
    a(f"s_mul_i32 s3, {sR}, 1280\nv_add_u32 v11, s3, v11\ns_mov_b32 s5, 0x00ff00ff\ns_cselect_b32 s4, 0, s5\ns_mov_b64 vcc, s[4:5]\nv_mov_b32 v9, {OOB}\nv_cndmask_b32 v11, v9, v11, vcc")
    a(f"s_lshl_b32 s3, {sR}, 2\ns_add_u32 s3, s3, s14\ns_lshl_b32 s4, s3, 10\nv_add_u32 v10, s4, v2\ns_lshl_b32 s3, s3, 2\ns_add_u32 s3, s3, 128")
    onelane("v6", "s3")
    a(f"s_mov_b32 {sS}, 0")
    mem0(T("SA_GOT"))
    a.put(T("SA_LOOP"))
    h3task()
    h1poll(T("SA_GOT"), 0)
    a.put(T("SA_GOT"))
    stamp(0)
    afpre()
    a("s_waitcnt lgkmcnt(0)\ns_barrier")
    afsig()
    stamp(1)
    a("ds_read_b128 v[24:27], v14\nds_read_b128 v[28:31], v14 offset:1024\nds_read_b128 v[32:35], v15\nds_read_b128 v[36:39], v15 offset:1024")
    slot("s35", L.H2S, L.H2); slot("s36", L.HXS, L.HX); tagreg("s37")
    a(f"s_add_u32 s3, {sS}, 1\nv_mov_b32 v9, s3\ns_waitcnt lgkmcnt(0)")
    a(f"s_cmp_eq_u32 s14, 2\ns_cbranch_scc1 {T('SA_2')}\ns_cmp_eq_u32 s14, 3\ns_cbranch_scc1 {T('SA_3')}")
    def qkread():
        a("s_barrier")
        stamp(2)
        for i in range(4): a(f"ds_read_b64_tr_b16 v[{40+2*i}:{41+2*i}], v7 offset:{512*i}")
    def h2out(A0, A1):
        a(f"s_waitcnt lgkmcnt(2)\nv_mfma_f32_16x16x32_bf16 v[48:51], v[{A0}:{A0+3}], v[40:43], 0\ns_waitcnt lgkmcnt(0)\nv_mfma_f32_16x16x32_bf16 v[48:51], v[{A1}:{A1+3}], v[44:47], v[48:51]")
        for i in range(4): a(f"v_and_or_b32 v{48+i}, v{48+i}, -4, s37")
        a(f"buffer_store_dwordx4 v[48:51], v11, {WS}, s35 offen{ST}")
        stamp(3)
        rtc(4, 0)
    qkread(); h2out(24, 28)
    a(f"s_branch {T('SA_X')}")
    a.put(T("SA_2"))
    qkread(); h2out(40, 44)
    a.put(T("SA_X"))
    a("v_mfma_f32_16x16x32_bf16 v[56:59], v[24:27], v[32:35], 0\nv_mfma_f32_16x16x32_bf16 v[56:59], v[28:31], v[36:39], v[56:59]")
    a(f"s_branch {T('SA_F')}")
    a.put(T("SA_3"))
    qkread()
    a("s_waitcnt lgkmcnt(0)\nv_mfma_f32_16x16x32_bf16 v[52:55], v[40:43], v[24:27], 0\nv_mfma_f32_16x16x32_bf16 v[56:59], v[40:43], v[32:35], 0")
    a("v_mfma_f32_16x16x32_bf16 v[52:55], v[44:47], v[28:31], v[52:55]\nv_mfma_f32_16x16x32_bf16 v[56:59], v[44:47], v[36:39], v[56:59]")
    for i in range(4): a(f"v_permlane32_swap_b32 v{52+i}, v{56+i}")
    a.put(T("SA_F"))
    a(f"buffer_store_dwordx4 v[56:59], v10, {WS}, s36 offen{ST}\ns_waitcnt vmcnt(0)\nbuffer_store_dword v9, v6, {WS}, {sFL} offen{ST}")
    stamp(4)
    a(f"s_cmp_eq_u32 {sS}, 63\ns_cbranch_scc1 {T('SA_END')}\ns_cmp_eq_u32 {sS}, 62\ns_cbranch_scc1 {T('SA_N')}")
    a(f"s_mul_i32 s5, s14, 10240\ns_and_b32 s3, {sS}, 1\ns_mul_i32 s3, s3, 40960\ns_add_u32 s3, s3, s5\ns_mul_i32 s4, {sS}, 40960\ns_add_u32 s4, s4, s5\ns_add_u32 s4, s4, {L.XN + 2*40960}")
    xs_dma("s3", "s4")
    a.put(T("SA_N"))
    stamp(5)
    dump()
    a(f"s_add_u32 {sS}, {sS}, 1\ns_branch {T('SA_LOOP')}")
    a.put(T("SA_END"))
    finish()
    a.put(T("VA"))
    a(f"s_sub_u32 s15, {sR}, 12")
    a(f"s_mul_i32 s3, s15, 12288\ns_lshl_b32 s4, s14, 11\ns_add_u32 s4, s4, s3\nv_add_u32 v14, s4, v2")
    a(f"s_add_u32 s4, s3, 1024\nv_add_u32 v15, s4, v2\nv_mov_b32 v9, {OOB}\ns_cmp_eq_u32 s14, 1\ns_cselect_b64 vcc, -1, 0\nv_cndmask_b32 v15, v9, v15, vcc")
    a(f"s_lshl_b32 s4, s14, 9\ns_add_u32 s4, s4, s3\ns_add_u32 s4, s4, {3072-512}\nv_add_u32 v7, s4, v2\nv_cmp_le_u32 vcc, 32, v0\nv_cndmask_b32 v7, v9, v7, vcc")
    a("s_mul_i32 s3, s14, 5120\ns_lshl_b32 s4, s15, 10\ns_add_u32 s4, s4, s3\nv_add_u32 v10, s4, v2")
    a("v_and_b32 v6, 15, v0\nv_lshlrev_b32 v11, 4, v6\nv_bfe_u32 v64, v0, 4, 1\nv_lshl_add_u32 v11, v64, 3, v11\ns_lshl_b32 s4, s15, 8\ns_add_u32 s4, s4, s3\ns_add_u32 s4, s4, 4096\nv_add_u32 v11, s4, v11\nv_cndmask_b32 v11, v9, v11, vcc")
    a("v_mov_b32 v65, 0xf149f2ca\nv_mov_b32 v66, 0")
    for i in range(4): a(f"v_cndmask_b32 v{108+i}, v65, v66, vcc")
    a("s_lshl_b32 s3, s14, 4\nv_add_u32 v6, s3, v6\nv_lshrrev_b32 v64, 4, v0\nv_lshlrev_b32 v64, 2, v64\nv_sub_u32 v6, v6, v64")
    for i in range(8): a(f"v_cmp_le_i32 vcc, {i if i < 4 else 12+i}, v6\nv_cndmask_b32 v{100+i}, v65, v66, vcc")
    a("v_min_u32 v6, 11, v0\nv_lshlrev_b32 v6, 2, v6\ns_mul_i32 s3, s15, 48\ns_add_u32 s3, s3, 128\nv_add_u32 v6, s3, v6")
    a("s_lshl_b32 s3, s14, 2\ns_add_u32 s3, s3, s15\ns_lshl_b32 s3, s3, 2\ns_add_u32 s3, s3, 384")
    onelane("v112", "s3")
    a("s_mov_b32 s38, 0x3dd53b95\nv_mov_b32 v114, s38\nv_mov_b32 v115, s38")
    a("s_cmp_lt_u32 s15, 4\ns_cselect_b32 s39, 1, 0\ns_cmp_lt_u32 s14, 2\ns_cselect_b32 s39, s39, 0")
    a(f"s_mov_b32 {sS}, 0\ns_mov_b32 s42, 2")
    mem0(T("VA_GOT"))
    a.put(T("VA_LOOP"))
    if OPT.get("PXS", 1) and not SPREAD:
        a(f"s_cmp_lg_u32 s39, 0\ns_cbranch_scc1 {T('VA_P')}")
    h3task()
    a.put(T("VA_P"))
    h1poll(T("VA_GOT"), 0)
    a.put(T("VA_GOT"))
    stamp(0)
    afpre()
    a("s_waitcnt lgkmcnt(0)\ns_barrier")
    afsig()
    stamp(1)
    a("s_barrier")
    def nextseg():
        a(f"s_mul_i32 s5, s14, 10240\ns_and_b32 s3, s42, 1\ns_mul_i32 s3, s3, 40960\ns_add_u32 s3, s3, s5\ns_mul_i32 s4, s42, 40960\ns_add_u32 s4, s4, s5\ns_add_u32 s4, s4, {L.XN}\ns_add_u32 s42, s42, 1")
        xs_dma("s3", "s4")
    a(f"s_cmp_ge_u32 {sS}, 2\ns_cbranch_scc1 {T('VA_R')}")
    nextseg()
    a("s_waitcnt vmcnt(0)\ns_barrier")
    a.put(T("VA_R"))
    a(f"s_cmp_ge_u32 {sS}, 60\ns_cbranch_scc1 {T('VA_S')}")
    nextseg()
    a.put(T("VA_S"))
    a(f"s_cmp_eq_u32 s39, 0\ns_cbranch_scc1 {T('VA_N')}")
    slot("s34", L.HXS, L.HX); slot("s37", L.PXS, L.PX)
    a(f"s_add_u32 s35, s34, 4096\ns_add_u32 s36, s34, 8192\ns_add_u32 s3, {sS}, 1\nv_mov_b32 v113, s3")
    flagwait("v6", "v64", "s3")
    stamp(4)
    for p in range(3):
        for i, v in enumerate(("v14", "v15", "v7")): a(f"buffer_load_dwordx4 v[{64+12*p+4*i}:{67+12*p+4*i}], {v}, {WS}, s{34+p} offen sc1")
    a("s_waitcnt vmcnt(3)")
    for i in range(6): a(f"v_pk_add_f32 v[{64+2*i}:{65+2*i}], v[{64+2*i}:{65+2*i}], v[{76+2*i}:{77+2*i}]")
    for i in range(6): a(f"v_pk_add_f32 v[{64+2*i}:{65+2*i}], v[{64+2*i}:{65+2*i}], v[{100+2*i}:{101+2*i}]")
    a("s_waitcnt vmcnt(0)")
    for i in range(6): a(f"v_pk_add_f32 v[{64+2*i}:{65+2*i}], v[{64+2*i}:{65+2*i}], v[{88+2*i}:{89+2*i}]")
    a("v_max3_f32 v76, v64, v65, v66")
    for i in range(4): a(f"v_max3_f32 v76, v76, v{67+2*i}, v{68+2*i}")
    a("v_max_f32 v76, v76, v75")
    def xred(op):
        a(f"v_mov_b32 v77, v76\nv_permlane16_swap_b32 v76, v77\n{op} v76, v76, v77\nv_mov_b32 v77, v76\nv_permlane32_swap_b32 v76, v77\n{op} v76, v76, v77")
    xred("v_max_f32")
    a("v_mul_f32 v78, s38, v76")
    for i in range(6): a(f"v_pk_fma_f32 v[{64+2*i}:{65+2*i}], v[{64+2*i}:{65+2*i}], v[114:115], v[78:79] op_sel_hi:[1,1,0] neg_lo:[0,0,1] neg_hi:[0,0,1]")
    for i in range(12): a(f"v_exp_f32 v{64+i}, v{64+i}")
    a("v_pk_add_f32 v[76:77], v[64:65], v[66:67]")
    for i in range(2, 6): a(f"v_pk_add_f32 v[76:77], v[76:77], v[{64+2*i}:{65+2*i}]")
    a("v_add_f32 v76, v76, v77")
    xred("v_add_f32")
    a("v_rcp_f32 v78, v76")
    for i in range(6): a(f"v_pk_mul_f32 v[{64+2*i}:{65+2*i}], v[{64+2*i}:{65+2*i}], v[78:79] op_sel_hi:[1,0]")
    for i in range(6): a(f"v_cvt_pk_bf16_f32 v{80+i}, v{64+2*i}, v{65+2*i}")
    a(f"buffer_store_dwordx4 v[80:83], v10, {WS}, s37 offen{ST}\nbuffer_store_dwordx2 v[84:85], v11, {WS}, s37 offen{ST}")
    a(f"s_waitcnt vmcnt(0)\nbuffer_store_dword v113, v112, {WS}, {sFL} offen{ST}")
    stamp(5)
    a.put(T("VA_N"))
    dump()
    a(f"s_add_u32 {sS}, {sS}, 1\ns_cmp_lt_u32 {sS}, 64\ns_cbranch_scc1 {T('VA_LOOP')}")
    finish()

    a.put(T("COMB"))
    ZM, PT, PM = 65536, 81920, 83968
    OST = OPT.get("OST", 0); OSTG = 86016
    a(f"s_sub_u32 s15, {sR}, 18")
    a(f"s_cmp_ge_u32 {sW}, 4\ns_cbranch_scc1 {T('CAUX')}")
    idxreg("v5")
    a(f"s_mul_i32 s3, {sW}, 3072\nv_add_u32 v4, s3, v2")
    a(f"v_and_b32 v6, 15, v0\nv_lshlrev_b32 v6, 4, v6\nv_bfe_u32 v7, v0, 4, 1\nv_lshl_add_u32 v6, v7, 3, v6\nv_lshrrev_b32 v7, 5, v0\nv_lshl_add_u32 v6, v7, 10, v6\ns_lshl_b32 s3, {sW}, 8\ns_add_u32 s3, s3, {ZM}\nv_add_u32 v6, s3, v6")
    a(f"s_lshl_b32 s3, {sW}, 12\nv_add_u32 v8, s3, v2\ns_mul_i32 s3, {sW}, 12288\nv_add_u32 v14, s3, v2")
    a(f"s_lshr_b32 s4, {sW}, 1\ns_lshl_b32 s3, s4, 11\nv_add_u32 v11, s3, v2\ns_and_b32 s5, {sW}, 1\ns_mul_i32 s3, s5, 5120\nv_add_u32 v12, s3, v2")
    a(f"v_and_b32 v13, 7, v0\nv_lshlrev_b32 v13, 7, v13\nv_lshrrev_b32 v7, 4, v0\nv_lshl_add_u32 v13, v7, 4, v13\nv_bfe_u32 v7, v0, 3, 1\nv_lshl_add_u32 v13, v7, 6, v13\ns_mul_i32 s3, {sQ}, 81920\ns_lshl_b32 s6, s15, 13\ns_add_u32 s3, s3, s6\ns_lshl_b32 s6, {sW}, 11\ns_add_u32 s3, s3, s6\nv_add_u32 v13, s3, v13")
    a(f"v_min_u32 v15, 5, v0\nv_lshlrev_b32 v15, 2, v15\ns_mul_i32 s3, {sW}, 24\nv_add_u32 v15, s3, v15")
    a("v_and_b32 v60, 3, v0\nv_lshlrev_b32 v60, 2, v60\ns_lshl_b32 s3, s5, 4\ns_add_u32 s3, s3, 384\nv_add_u32 v60, s3, v60")
    a(f"s_add_u32 s3, s15, {sW}\ns_cmp_eq_u32 s3, 0\ns_mov_b32 s4, {OOB}\ns_cselect_b32 s3, 1024, s4")
    onelane("v61", "s3")
    a(f"s_mov_b32 s43, {L.OUTP - 2*655360}")
    a(f"s_lshl_b32 s3, s15, 15\ns_lshl_b32 s4, {sW}, 9\ns_add_u32 s3, s3, s4\ns_lshr_b32 s5, {sQ}, 2\ns_lshl_b32 s5, s5, 14\ns_add_u32 s3, s3, s5\ns_and_b32 s4, {sQ}, 3\ns_lshl_b32 s4, s4, 11\ns_add_u32 s3, s3, s4")
    a("v_and_b32 v62, 7, v0\nv_lshrrev_b32 v3, 5, v0\nv_lshlrev_b32 v3, 8, v3\nv_lshl_add_u32 v3, v62, 5, v3\nv_bfe_u32 v7, v0, 4, 1\nv_lshl_add_u32 v3, v7, 4, v3\nv_bfe_u32 v7, v0, 3, 1\nv_lshl_add_u32 v3, v7, 13, v3\nv_add_u32 v3, s3, v3")
    a("v_lshrrev_b32 v7, 4, v0\nv_lshl_add_u32 v1, v7, 3, v62\nv_lshlrev_b32 v1, 4, v1\nv_add_u32 v1, %d, v1" % PT)
    a(f"s_lshl_b32 s38, {sW}, 10")
    def vxloads(add):
        slot("s35", L.VXS, L.VX, add)
        a("s_add_u32 s36, s35, 4096\ns_add_u32 s37, s35, 8192")
        for i in range(12): a(f"buffer_load_dwordx4 v[{160+4*i}:{163+4*i}], v14, {WS}, s{35+i//4} offen offset:{(i%4)*1024} sc1")
    PZA = OPT.get("PZA", 0)
    def pxloads(va="v12"):
        slot("s35", L.PXS, L.PX, NS - 1)
        a("s_add_u32 s36, s35, 4096")
        for h in range(4): a(f"buffer_load_dwordx4 v[{208+4*h}:{211+4*h}], {va}, {WS}, s35 offen offset:{1024*h} sc1")
        a(f"buffer_load_dwordx4 v[224:227], {va}, {WS}, s36 offen sc1")
    VXI = OPT.get("VXI", 1)
    def zx(add, nxt=False):
        if nxt:
            slot("s35", L.VXS, L.VX, 2)
            a((f"s_sub_u32 s3, {sS}, 2\ns_cmp_ge_u32 s3, 60" if OPT.get("EV", 1) == 1 else f"s_cmp_ge_u32 {sS}, 62") + f"\ns_cselect_b32 s35, {OOB - 65536}, s35\ns_add_u32 s36, s35, 4096\ns_add_u32 s37, s35, 8192")
        a(f"s_add_u32 s3, {sS}, {add}\ns_and_b32 s3, s3, 3\ns_lshl_b32 s3, s3, 14\nv_add_u32 v7, s3, v8")
        for i in range(6):
            for ct in range(4):
                for tt in range(2):
                    w = 64 + 32*(i // 2) + 8*ct + 4*(i % 2); d = 16 + 8*ct + 4*tt; x = 160 + 8*i + 4*tt
                    a(f"v_mfma_f32_16x16x32_bf16 v[{d}:{d+3}], v[{x}:{x+3}], v[{w}:{w+3}], " + ("0" if i == 0 else f"v[{d}:{d+3}]"))
            if nxt and i > 0:
                for k in (2*i - 2, 2*i - 1) + ((10, 11) if i == 5 else ()):
                    a(f"buffer_load_dwordx4 v[{160+4*k}:{163+4*k}], v14, {WS}, s{35+k//4} offen offset:{(k%4)*1024} sc1")
        for ct in range(4):
            d = 16 + 8*ct
            for i in range(4): a(f"v_cvt_pk_bf16_f32 v{d+i}, v{d+2*i}, v{d+2*i+1}")
            a(f"ds_write_b128 v7, v[{d}:{d+3}] offset:{1024*ct}")
    PAG = [228, 232, 236, 240, 244, 248, 252, 48, 52, 56]; PAA = [128 + 4*i for i in range(10)]
    def pzreads(PA=PAG, vb="v11", t0="v9", t1="v10", part=3):
        a(f"s_add_u32 s3, {sS}, 2\ns_and_b32 s3, s3, 3\ns_lshl_b32 s4, s3, 14\nv_add_u32 {t0}, s4, {vb}\ns_lshl_b32 s3, s3, 12\ns_add_u32 s3, s3, {ZM}\nv_add_u32 {t1}, s3, {vb}")
        for cc in range(2):
            if part & 1:
                for h in range(4): a(f"ds_read_b128 v[{PA[5*cc+h]}:{PA[5*cc+h]+3}], {t0} offset:{4096*h + 1024*cc}")
            if part & 2: a(f"ds_read_b128 v[{PA[5*cc+4]}:{PA[5*cc+4]+3}], {t1} offset:{1024*cc}")
    def pz(PA=PAG, o=20):
        for h in range(5):
            for cc in range(2):
                d = o + 8*cc
                a(f"v_mfma_f32_16x16x32_bf16 v[{d}:{d+3}], v[{PA[5*cc+h]}:{PA[5*cc+h]+3}], v[{208+4*h}:{211+4*h}], " + ("0" if h == 0 else f"v[{d}:{d+3}]"))
        for i in range(4): a(f"v_and_or_b32 v{o+4+i}, v{o+i}, -4, 1\nv_and_or_b32 v{o+8+i}, v{o+8+i}, -4, 1")
        for i in range(4): a(f"v_mov_b32 v{o+i}, v{o+4+i}")
        for i in range(4): a(f"v_mov_b32_dpp v{o+i}, v{o+8+i} row_ror:8 row_mask:0xf bank_mask:0xc")
        for i in range(4): a(f"v_mov_b32_dpp v{o+8+i}, v{o+4+i} row_ror:8 row_mask:0xf bank_mask:0x3")
    OSC = OPT.get("OSC", " sc1")
    def outp(o=20, va="v13"):
        if not OPT.get("NOOUTP"): a(f"buffer_store_dwordx4 v[{o}:{o+3}], {va}, {WS}, s43 offen{OSC}\nbuffer_store_dwordx4 v[{o+8}:{o+11}], {va}, {WS}, s43 offen offset:1024{OSC}")
    a(f"s_mov_b32 {sS}, 0\ns_mov_b32 s4, 1")
    flagwait("v15", "v62", "s4")
    c["rt"](5)
    vxloads(0)
    a("s_waitcnt vmcnt(0)")
    zx(0)
    a("s_waitcnt lgkmcnt(0)\ns_barrier")
    ES = OPT.get("ES", 1)
    def cghead():
        slot("s34", L.VMS, L.VM)
        for i in range(32, 48): a(f"v_mov_b32 v{i}, 0")
        a(f"s_and_b32 s3, {sS}, 3\ns_lshl_b32 s4, s3, 14\ns_add_u32 s4, s4, s38\nv_add_u32 v9, s4, v2\ns_lshl_b32 s3, s3, 12\nv_add_u32 v7, s3, v6\ns_add_u32 s3, s3, s38\ns_add_u32 s3, s3, {ZM}\nv_add_u32 v10, s3, v2")
        for h in range(4): a(f"ds_read_b128 v[{228+4*h}:{231+4*h}], v9 offset:{4096*h}")
        slot("s39", L.H3S, L.H3, 0, False); tagreg("s25")
    if ES == 2:
        cghead()
        a(f"s_branch {T('CG_P')}")
        if OPT.get("ALG"): a(f".p2align {OPT['ALG']}")
    a.put(T("CG_LOOP"))
    cghead()
    if ES == 1: a(f"s_cmp_lt_u32 {sS}, {OPT.get('ESN', 3)}\ns_cbranch_scc1 {T('CG_P')}")
    if OPT.get("SLV") or not AF: a(f"s_sleep {OPT['SLV'] if AF or not OPT.get('AF') else 10}")
    if AF:
        afwait(3456, 6, 48, OPT.get("AFV", 300))
    stamp(6)
    a.put(T("CG_P"))
    a(f"s_sub_u32 {sBUD}, {sBUD}, 1\ns_cbranch_scc1 END")
    for i in range(3): a(f"buffer_load_dwordx4 v[{48+4*i}:{51+4*i}], v4, {WS}, s34 offen offset:{1024*i} sc1")
    a("s_waitcnt vmcnt(2)\nv_max3_u32 v62, v48, v49, v50\ns_waitcnt vmcnt(1)\nv_max3_u32 v62, v62, v51, v52\nv_max3_u32 v62, v62, v53, v54")
    a(f"s_waitcnt vmcnt(0)\nv_max3_u32 v62, v62, v55, v56\nv_max3_u32 v62, v62, v57, v58\nv_max_u32 v62, v62, v59\nv_cmp_eq_u32 vcc, -1, v62\ns_cbranch_vccnz {T('CG_P')}")
    stamp(0)
    rtc(2, 0)
    EV = OPT.get("EV", 1)
    if EV == 1:
        a(f"s_sub_u32 s3, {sS}, 1\ns_cmp_lt_u32 s3, 2\ns_cbranch_scc1 {T('CG_EV')}")
        a.put(T("CG_EW"))
    for kb in range(3):
        for t in range(4):
            a(f"v_smfmac_f32_16x16x64_bf16 v[{32+4*t}:{35+4*t}], v[{48+4*kb}:{51+4*kb}], v[{64+32*kb+8*t}:{71+32*kb+8*t}], v5")
    for p in range(2):
        o = 32 + 8*p
        for i in range(4): a(f"v_permlane32_swap_b32 v{o+i}, v{o+4+i}")
        a(f"v_pk_add_f32 v[{o}:{o+1}], v[{o}:{o+1}], v[{o+4}:{o+5}]\nv_pk_add_f32 v[{o+2}:{o+3}], v[{o+2}:{o+3}], v[{o+6}:{o+7}]")
        a(f"v_cvt_pk_bf16_f32 v{o}, v{o}, v{o+1}\nv_cvt_pk_bf16_f32 v{o+1}, v{o+2}, v{o+3}\nds_write_b64 v7, v[{o}:{o+1}] offset:{2048*p}")
    a("s_waitcnt lgkmcnt(0)")
    stamp(1)
    a("s_barrier")
    stamp(2)
    rtc(4, 0); rtc(1, 1)
    a(f"s_cmp_eq_u32 {sS}, 63\ns_cbranch_scc1 {T('CG_0')}")
    for h in range(4): a(f"ds_read_b128 v[{16+4*h}:{19+4*h}], v1 offset:{512*h}")
    a(f"ds_read_b128 v[32:35], v1 offset:{PM-PT}\nds_read_b128 v[36:39], v10")
    for h in range(5):
        a(f"s_waitcnt lgkmcnt({[5,4,3,2,0][h]})")
        z = 228 + 4*h if h < 4 else 36
        a(f"v_mfma_f32_16x16x32_bf16 v[40:43], v[{z}:{z+3}], v[{16+4*h}:{19+4*h}], " + ("0" if h == 0 else "v[40:43]"))
    for i in range(4): a(f"v_and_or_b32 v{40+i}, v{40+i}, -4, s25")
    a(f"buffer_store_dwordx4 v[40:43], v3, {WS}, s39 offen sc1")
    stamp(7)
    def rst():
        slot("s3", L.H3S, L.H3, NS - 2, False)
        for i in range(4): a(f"v_mov_b32 v{44+i}, 0")
        a(f"buffer_store_dwordx4 v[44:47], v3, {WS}, s3 offen sc1")
    if OPT.get('RST') == 2: rst()
    if PZA:
        a(f"s_cmp_ge_u32 {sS}, 2\ns_cbranch_scc1 {T('CG_Z')}\ns_cmp_eq_u32 {sS}, 1\ns_cbranch_scc1 {T('CG_Y')}\ns_mov_b32 s4, 2")
        flagwait("v15", "v62", "s4")
        vxloads(1)
        a.put(T("CG_Y"))
        a(f"s_add_u32 s4, {sS}, 3")
        flagwait("v15", "v62", "s4")
        a.put(T("CG_Z"))
        a(f"s_sub_u32 s3, {sS}, 3\ns_max_i32 s3, s3, 0\nv_mov_b32 v63, s3\nbuffer_store_dword v63, v61, {WS}, {sFL} offen{ST}")
        zx(1, VXI)
        if OPT.get('RST') == 1: rst()
        stamp(3); stamp(4)
        a("s_waitcnt lgkmcnt(0)\ns_barrier")
        stamp(5)
        dump()
        a(f"s_add_u32 {sS}, {sS}, 1\ns_branch {T('CG_LOOP')}")
        a.put(T("CG_0"))
        a(f"v_mov_b32 v63, 60\nbuffer_store_dword v63, v61, {WS}, {sFL} offen{ST}")
        c["rt"](6)
        dump()
        finish()
    elif OPT.get("ORD"):
        a.put(T("CG_0"))
        pzreads()
        a(f"s_sub_u32 s3, {sS}, 3\ns_max_i32 s3, s3, 0\nv_mov_b32 v63, s3\ns_cmp_lt_u32 {sS}, 2\ns_cbranch_scc1 {T('CG_3')}\ns_waitcnt lgkmcnt(0)")
        pz()
        if OPT.get("ODL"): a(f"s_sleep {OPT['ODL']}")
        outp()
        a(f"s_sub_u32 s3, {sS}, 8\ns_cmp_ge_u32 s3, 4\ns_cbranch_scc1 {T('CG_3')}\ns_add_u32 s3, s43, {54*655360}")
        for i in range(4): a(f"v_mov_b32 v{24+i}, 0")
        a(f"buffer_store_dwordx4 v[24:27], v13, {WS}, s3 offen sc1\nbuffer_store_dwordx4 v[24:27], v13, {WS}, s3 offen offset:1024 sc1")
        a.put(T("CG_3"))
        if OPT.get('RST') == 1: rst()
        a(f"buffer_store_dword v63, v61, {WS}, {sFL} offen{ST}")
        stamp(3)
        a(f"s_cmp_eq_u32 {sS}, 63\ns_cbranch_scc1 {T('CG_1')}\ns_cmp_ge_u32 {sS}, 2\ns_cbranch_scc1 {T('CG_Z')}\ns_cmp_eq_u32 {sS}, 1\ns_cbranch_scc1 {T('CG_Y')}\ns_mov_b32 s4, 2")
        flagwait("v15", "v62", "s4")
        vxloads(1)
        a("s_waitcnt vmcnt(0)")
        a.put(T("CG_Y"))
        a(f"s_add_u32 s4, {sS}, 3")
        flagwait("v15", "v62", "s4")
        a.put(T("CG_Z"))
        zx(1, False)
        a.put(T("CG_1"))
        stamp(4)
        a("s_waitcnt lgkmcnt(0)\ns_barrier")
        stamp(5)
        if OPT.get("VDL"): a(f"s_sleep {OPT['VDL']}")
        pxloads()
        a(f"s_cmp_ge_u32 {sS}, 62\ns_cbranch_scc1 {T('CG_2')}")
        vxloads(2)
        a.put(T("CG_2"))
        dump()
        a(f"s_add_u32 s43, s43, 655360\ns_add_u32 {sS}, {sS}, 1\ns_cmp_lt_u32 {sS}, 64\ns_cbranch_scc1 {T('CG_LOOP')}")
        c["rt"](6)
        pzreads()
        a("s_waitcnt vmcnt(0) lgkmcnt(0)")
        pz()
        outp()
        a("s_mov_b32 s4, 64")
        flagwait("v60", "v62", "s4")
        pxloads()
        a(f"s_add_u32 s43, s43, 655360\ns_add_u32 {sS}, {sS}, 1")
        pzreads()
        a("s_waitcnt vmcnt(0) lgkmcnt(0)")
        pz()
        outp()
        finish()
    else:
        a.put(T("CG_0"))
        pzreads()
        if EV:
            a(f"s_cmp_eq_u32 {sS}, 63\ns_cbranch_scc1 {T('CG_1')}\ns_cmp_lt_u32 {sS}, {3 if EV == 1 else 2}\ns_cbranch_scc1 {T('CG_E0')}")
        else:
            a(f"s_cmp_eq_u32 {sS}, 63\ns_cbranch_scc1 {T('CG_1')}\ns_cmp_ge_u32 {sS}, 2\ns_cbranch_scc1 {T('CG_Z')}\ns_cmp_eq_u32 {sS}, 1\ns_cbranch_scc1 {T('CG_Y')}\ns_mov_b32 s4, 2")
            flagwait("v15", "v62", "s4")
            vxloads(1)
            a.put(T("CG_Y"))
            a(f"s_add_u32 s4, {sS}, 3")
            flagwait("v15", "v62", "s4")
        a.put(T("CG_Z"))
        zx(1, VXI)
        a.put(T("CG_1"))
        a("s_waitcnt lgkmcnt(0)")
        pz()
        a(f"s_sub_u32 s3, {sS}, {4 if OST else 3}\ns_max_i32 s3, s3, 0\nv_mov_b32 v63, s3")
        OF = OPT.get("OFIRST", 1)
        def outp_c():
            a(f"s_cmp_lt_u32 {sS}, 2\ns_cbranch_scc1 {T('CG_3')}")
            if OST:
                a(f"s_cmp_lt_u32 {sS}, 63\ns_cbranch_scc1 {T('CG_4')}")
                outp()
                a(f"s_branch {T('CG_3')}")
                a.put(T("CG_4"))
                a(f"s_lshl_b32 s3, {sW}, 11\ns_add_u32 s3, s3, {OSTG}\nv_add_u32 v7, s3, v2\nds_write_b128 v7, v[20:23]\nds_write_b128 v7, v[28:31] offset:1024")
            else: outp()
            a(f"s_sub_u32 s3, {sS}, 8\ns_cmp_ge_u32 s3, {5 if OST else 4}\ns_cbranch_scc1 {T('CG_3')}\ns_add_u32 s3, s43, {(53 if OST else 54)*655360}")
            for i in range(4): a(f"v_mov_b32 v{20+i}, 0")
            a(f"buffer_store_dwordx4 v[20:23], v13, {WS}, s3 offen sc1\nbuffer_store_dwordx4 v[20:23], v13, {WS}, s3 offen offset:1024 sc1")
            a.put(T("CG_3"))
        stamp(3)
        if OPT.get("BD"): a(f"s_sleep {OPT['BD']}")
        if OF == 1: outp_c()
        if OPT.get('RST') == 1: rst()
        a(f"buffer_store_dword v63, v61, {WS}, {sFL} offen{ST}")
        if not VXI:
            a(f"s_cmp_ge_u32 {sS}, 62\ns_cbranch_scc1 {T('CG_2')}")
            vxloads(2)
            a.put(T("CG_2"))
        pxloads()
        if OF == 0: outp_c()
        stamp(4)
        a("s_waitcnt lgkmcnt(0)\ns_barrier")
        if OPT.get("PROBE"):
            stamp(5)
            for i, n in enumerate((13, 7, 2, 0) if OF == 0 else (18, 11, 5, 0)):
                a(f"s_waitcnt vmcnt({n})"); stamp(6 + i)
        stamp(5)
        dump()
        a(f"s_add_u32 s43, s43, 655360\ns_add_u32 {sS}, {sS}, 1\ns_cmp_lt_u32 {sS}, 64\ns_cbranch_scc1 {T('CG_LOOP')}")
        c["rt"](6)
        pzreads()
        a("s_waitcnt vmcnt(%d) lgkmcnt(0)" % (2 if OF == 0 else 0))
        pz()
        outp()
        a("s_mov_b32 s4, 64")
        flagwait("v60", "v62", "s4")
        pxloads()
        a(f"s_add_u32 s43, s43, 655360\ns_add_u32 {sS}, {sS}, 1")
        pzreads()
        a("s_waitcnt vmcnt(0) lgkmcnt(0)")
        pz()
        outp()
        finish()
        if EV == 2:
            a.put(T("CG_E0"))
            a(f"s_cmp_eq_u32 {sS}, 1\ns_cbranch_scc1 {T('CG_Y')}\ns_mov_b32 s4, 2")
            flagwait("v15", "v62", "s4")
            vxloads(1)
            a.put(T("CG_Y"))
            a(f"s_add_u32 s4, {sS}, 3")
            flagwait("v15", "v62", "s4")
            a(f"s_branch {T('CG_Z')}")
        if EV == 1:
            a.put(T("CG_EV"))
            vxloads(1)
            a(f"s_branch {T('CG_EW')}")
            a.put(T("CG_E0"))
            a(f"s_cmp_lg_u32 {sS}, 0\ns_cbranch_scc1 {T('CG_E1')}\ns_mov_b32 s4, 2")
            flagwait("v15", "v62", "s4")
            vxloads(1)
            a(f"s_waitcnt vmcnt(0)\ns_branch {T('CG_Z')}")
            a.put(T("CG_E1"))
            a(f"s_waitcnt vmcnt(1)\ns_branch {T('CG_Z')}")

    a.put(T("CAUX"))
    a(f"s_setprio 2\ns_sub_u32 s14, {sW}, 4")
    a("s_mul_i32 s3, s14, 3840\nv_add_u32 v4, s3, v2\ns_add_u32 s3, s3, 1024\nv_lshlrev_b32 v5, 2, v0\nv_add_u32 v5, s3, v5")
    a("v_and_b32 v6, 3, v0\nv_bfe_u32 v7, v0, 2, 3\nv_lshl_add_u32 v12, v6, 3, v7\nv_lshlrev_b32 v12, 4, v12\nv_lshrrev_b32 v8, 5, v0\nv_lshl_add_u32 v12, v8, 3, v12\ns_lshl_b32 s3, s14, 9\ns_add_u32 s3, s3, %d\nv_add_u32 v12, s3, v12" % PT)
    a("v_lshlrev_b32 v13, 4, v7\nv_lshl_add_u32 v13, v8, 3, v13\nv_lshl_add_u32 v13, v6, 1, v13\ns_lshl_b32 s3, s14, 7\ns_add_u32 s3, s3, %d\nv_add_u32 v13, s3, v13" % PM)
    a(f"s_lshl_b32 s3, s15, 7\ns_add_u32 s3, s3, 2048\ns_cmp_eq_u32 s14, 0\ns_cselect_b32 s3, s3, {OOB}")
    onelane("v10", "s3")
    a("s_mov_b32 s24, 0x3dd53b95\nv_mov_b32 v20, s24\nv_mov_b32 v21, s24")
    if OST:
        a(f"v_and_b32 v14, 7, v0\nv_lshlrev_b32 v14, 7, v14\nv_lshrrev_b32 v7, 4, v0\nv_lshl_add_u32 v14, v7, 4, v14\nv_bfe_u32 v7, v0, 3, 1\nv_lshl_add_u32 v14, v7, 6, v14\ns_mul_i32 s3, {sQ}, 81920\ns_lshl_b32 s6, s15, 13\ns_add_u32 s3, s3, s6\ns_lshl_b32 s6, s14, 11\ns_add_u32 s3, s3, s6\nv_add_u32 v14, s3, v14")
        a(f"s_add_u32 s6, s6, {OSTG}\nv_add_u32 v15, s6, v2\ns_mov_b32 s43, {L.OUTP - 3*655360}")
    def ostrd():
        if OST: a("ds_read_b128 v[80:83], v15\nds_read_b128 v[84:87], v15 offset:1024")
    def ostst():
        if OST:
            l = a.lab("OS")
            a(f"s_cmp_lt_u32 {sS}, 3\ns_cbranch_scc1 {l}")
            if OPT.get("ODL"): a(f"s_sleep {OPT['ODL']}")
            a(f"buffer_store_dwordx4 v[80:83], v14, {WS}, s43 offen sc1\nbuffer_store_dwordx4 v[84:87], v14, {WS}, s43 offen offset:1024 sc1")
            a.put(l)
            a("s_add_u32 s43, s43, 655360")
    if PZA:
        a(f"v_and_b32 v14, 7, v0\nv_lshlrev_b32 v14, 7, v14\nv_lshrrev_b32 v7, 4, v0\nv_lshl_add_u32 v14, v7, 4, v14\nv_bfe_u32 v7, v0, 3, 1\nv_lshl_add_u32 v14, v7, 6, v14\ns_mul_i32 s3, {sQ}, 81920\ns_lshl_b32 s6, s15, 13\ns_add_u32 s3, s3, s6\ns_lshl_b32 s6, s14, 11\ns_add_u32 s3, s3, s6\nv_add_u32 v14, s3, v14")
        a("s_lshr_b32 s4, s14, 1\ns_lshl_b32 s3, s4, 11\nv_add_u32 v15, s3, v2\ns_and_b32 s5, s14, 1\ns_mul_i32 s3, s5, 5120\nv_add_u32 v16, s3, v2")
        a("v_and_b32 v17, 3, v0\nv_lshlrev_b32 v17, 2, v17\ns_lshl_b32 s3, s5, 4\ns_add_u32 s3, s3, 384\nv_add_u32 v17, s3, v17")
        a(f"s_mov_b32 s43, {L.OUTP - 2*655360}")
    def tokout():
        if not PZA: return
        l = a.lab("TO")
        a(f"s_cmp_lt_u32 {sS}, 2\ns_cbranch_scc1 {l}")
        a("s_waitcnt lgkmcnt(0)")
        pz(PAA, 88)
        if OPT.get("ODL"): a(f"s_sleep {OPT['ODL']}")
        outp(88, "v14")
        a(f"s_sub_u32 s3, {sS}, 8\ns_cmp_ge_u32 s3, 4\ns_cbranch_scc1 {l}\ns_add_u32 s3, s43, {54*655360}")
        for i in range(4): a(f"v_mov_b32 v{100+i}, 0")
        a(f"buffer_store_dwordx4 v[100:103], v14, {WS}, s3 offen sc1\nbuffer_store_dwordx4 v[100:103], v14, {WS}, s3 offen offset:1024 sc1")
        a.put(l)
        a("s_add_u32 s43, s43, 655360")
    a(f"s_mov_b32 s40, 0\ns_cmp_lg_u32 s14, 0\ns_cbranch_scc1 {T('CA_C')}")
    a("v_and_b32 v24, 31, v0\nv_lshlrev_b32 v24, 4, v24\nv_lshrrev_b32 v25, 5, v0\nv_lshl_add_u32 v24, v25, 11, v24\ns_lshl_b32 s3, s15, 15\nv_add_u32 v24, s3, v24")
    a(f"s_mov_b32 s6, -1\ns_mov_b32 s7, -1\ns_mov_b32 s4, {L.H3 + 2*L.H3S}\nbuffer_load_dwordx2 v[26:27], v24, {WS}, s4 offen sc1\ns_waitcnt vmcnt(0)")
    CTH = OPT.get("CTH", 520)
    for it in range(8 if CTH else 3):
        if CTH and it >= 2: a(f"s_min_u32 s3, s6, s7\ns_cmp_lt_u32 s3, {CTH}\ns_cbranch_scc1 {T('CA_K')}")
        for cp in range(2):
            a(f"s_mov_b32 s4, {L.H3 + 3*L.H3S + 8192*cp + 4096*(it % 2) + 16384*(it // 2 % 2) + 512*(it // 4)}\ns_memtime s[60:61]\ns_waitcnt lgkmcnt(0)\nbuffer_load_dwordx2 v[26:27], v24, {WS}, s4 offen sc1\ns_waitcnt vmcnt(0)")
            a(f"s_memtime s[62:63]\ns_waitcnt lgkmcnt(0)\ns_sub_u32 s3, s62, s60\ns_min_u32 s{6+cp}, s{6+cp}, s3")
    a.put(T("CA_K"))
    a("s_cmp_lt_u32 s7, s6\ns_cselect_b32 s40, 1, 0")
    if FLIP: a("s_xor_b32 s40, s40, 1")
    if INSTR: a("s_mov_b32 s52, s6\ns_mov_b32 s53, s7\ns_mov_b32 s54, s40")
    a.put(T("CA_C"))
    a(f"s_mov_b32 {sS}, 0\ns_barrier")
    stamp0()
    def cahead():
        ostrd()
        if PZA: pzreads(PAA, "v15", "v18", "v19")
        slot("s34", L.H2S, L.H2); tagreg("s25")
        a(f"s_lshl_b32 s3, {sS}, 1\ns_add_u32 s3, s3, s40\ns_add_u32 s3, s3, 2\nv_mov_b32 v11, s3")
    if ES == 2:
        cahead()
        a(f"s_branch {T('CA_P2')}")
        if OPT.get("ALA"): a(f".p2align {OPT['ALA']}")
    a.put(T("CA_LOOP"))
    cahead()
    if ES == 1: a(f"s_cmp_lt_u32 {sS}, {OPT.get('ESN', 3)}\ns_cbranch_scc1 {T('CA_P2')}")
    if OPT.get("SL2") or not AF: a(f"s_sleep {OPT['SL2'] if AF or not OPT.get('AF') else 16}")
    if AF:
        afwait(3584, 12, 24, OPT.get("AFS", 300))
    stamp(5)
    a.put(T("CA_P2"))
    a(f"s_sub_u32 {sBUD}, {sBUD}, 1\ns_cbranch_scc1 END")
    for p in range(3): a(f"buffer_load_dwordx4 v[{24+4*p}:{27+4*p}], v4, {WS}, s34 offen offset:{1280*p} sc1")
    for p in range(3): a(f"buffer_load_dword v{36+p}, v5, {WS}, s34 offen offset:{1280*p} sc1")
    a("s_waitcnt vmcnt(5)\n" + A3("v40", "s25", "v24", "v25") + "\n" + A3("v40", "v40", "v26", "v27"))
    a("s_waitcnt vmcnt(4)\nv_pk_add_f32 v[72:73], v[24:25], v[28:29]\nv_pk_add_f32 v[74:75], v[26:27], v[30:31]\n" + A3("v40", "v40", "v28", "v29") + "\n" + A3("v40", "v40", "v30", "v31"))
    a("s_waitcnt vmcnt(3)\nv_pk_add_f32 v[72:73], v[72:73], v[32:33]\nv_pk_add_f32 v[74:75], v[74:75], v[34:35]\n" + A3("v40", "v40", "v32", "v33") + "\n" + A3("v40", "v40", "v34", "v35"))
    a("v_max3_f32 v77, v72, v73, v74\ns_waitcnt vmcnt(0)\n" + A3("v40", "v40", "v36", "v37") + "\nv_add_f32 v76, v36, v37\nv_and_b32 v40, v40, v38\nv_add_f32 v76, v76, v38\nv_cmp_eq_u32 vcc, 0, v40\nv_max3_f32 v77, v77, v75, v76")
    a(f"s_cbranch_vccnz {T('CA_P2')}")
    stamp(0)
    rtc(4, 0); rtc(6, 1)
    a("v_max_f32_dpp v77, v77, v77 quad_perm:[1,0,3,2] row_mask:0xf bank_mask:0xf\nv_max_f32_dpp v77, v77, v77 quad_perm:[2,3,0,1] row_mask:0xf bank_mask:0xf")
    a("v_mov_b32 v78, v77\nv_permlane32_swap_b32 v77, v78\nv_max_f32 v77, v77, v78")
    a("v_mul_f32 v78, s24, v77")
    a("v_pk_fma_f32 v[72:73], v[72:73], v[20:21], v[78:79] op_sel_hi:[1,1,0] neg_lo:[0,0,1] neg_hi:[0,0,1]\nv_pk_fma_f32 v[74:75], v[74:75], v[20:21], v[78:79] op_sel_hi:[1,1,0] neg_lo:[0,0,1] neg_hi:[0,0,1]\nv_fma_f32 v76, v76, v20, -v78")
    for i in range(5): a(f"v_exp_f32 v{72+i}, v{72+i}")
    a("v_pk_add_f32 v[78:79], v[72:73], v[74:75]\nv_add_f32 v77, v78, v76\nv_add_f32 v77, v77, v79")
    a("v_add_f32_dpp v77, v77, v77 quad_perm:[1,0,3,2] row_mask:0xf bank_mask:0xf\nv_add_f32_dpp v77, v77, v77 quad_perm:[2,3,0,1] row_mask:0xf bank_mask:0xf")
    a("v_mov_b32 v78, v77\nv_permlane32_swap_b32 v77, v78\nv_add_f32 v77, v77, v78")
    a("v_rcp_f32 v78, v77")
    a("v_pk_mul_f32 v[72:73], v[72:73], v[78:79] op_sel_hi:[1,0]\nv_pk_mul_f32 v[74:75], v[74:75], v[78:79] op_sel_hi:[1,0]\nv_mul_f32 v76, v76, v78")
    a("v_cvt_pk_bf16_f32 v72, v72, v73\nv_cvt_pk_bf16_f32 v73, v74, v75\nv_cvt_pk_bf16_f32 v76, v76, v76")
    a(f"ds_write_b64 v12, v[72:73]\nds_write_b16 v13, v76\ns_waitcnt lgkmcnt(0)")
    stamp(1)
    a("s_barrier")
    stamp(2)
    a(f"buffer_store_dword v11, v10, {WS}, {sFL} offen{ST}")
    ostst()
    tokout()
    if PZA: pxloads("v16")
    a("s_barrier")
    dump()
    a(f"s_add_u32 {sS}, {sS}, 1\ns_cmp_lt_u32 {sS}, 63\ns_cbranch_scc1 {T('CA_LOOP')}")
    if PZA:
        for j in range(3):
            pzreads(PAA, "v15", "v18", "v19", 3 if j < 2 else 1)
            if j:
                a(f"s_mov_b32 s4, {62+j}")
                flagwait("v17", "v24", "s4")
                a(f"s_sub_u32 {sS}, {sS}, 1")
                pxloads("v16")
                a(f"s_add_u32 {sS}, {sS}, 1")
            if j == 2:
                a("s_barrier")
                pzreads(PAA, "v15", "v18", "v19", 2)
            a("s_waitcnt vmcnt(0) lgkmcnt(0)")
            pz(PAA, 88)
            outp(88, "v14")
            a(f"s_add_u32 s43, s43, 655360\ns_add_u32 {sS}, {sS}, 1")
        finish()
        return
    ostrd()
    a("s_waitcnt lgkmcnt(0)")
    ostst()
    a("s_barrier\ns_barrier")
    finish()
```

```python
import sys
from asmlib import *

KNAME = "recurrent_scan__memory_aug_recurrent_mem_tr__swiglu_ffn__prompt_kernel"
OOB = 0x7fffff00

from lay import Lay

def gen(NS=4, FORCE_SLOW=0, BUDGET=300000, PARTS="all", INSTR=0, **OPT):
    L = Lay(NS)
    a = Asm()
    LOGNS = NS.bit_length() - 1
    WS = "s[8:11]"
    sW, sQ, sR, sS, sBUD, sMODE, sG = "s26", "s27", "s28", "s29", "s30", "s31", "s32"
    pX, pM0, pWQ, pWK, pWV, pWO, pWG, pWU, pWD, pOUT, pDBG, pWS = 64, 66, 68, 70, 72, 74, 76, 78, 80, 82, 84, 86
    def srd(d, p, n):
        a(f"s_mov_b32 s{d}, s{p}\ns_mov_b32 s{d+1}, s{p+1}\ns_mov_b32 s{d+2}, {n}\ns_mov_b32 s{d+3}, 0x00020000")
    def budget(lp):
        a(f"s_sub_u32 {sBUD}, {sBUD}, 1\ns_cbranch_scc0 {lp}\ns_branch END")
    def slot(dst, size, base, add=0, grp=True):
        if add: a(f"s_add_u32 {dst}, {sS}, {add}\ns_and_b32 {dst}, {dst}, {NS-1}")
        else: a(f"s_and_b32 {dst}, {sS}, {NS-1}")
        a(f"s_mul_i32 {dst}, {dst}, {size}")
        if base: a(f"s_add_u32 {dst}, {dst}, {base}")
        if grp: a(f"s_add_u32 {dst}, {dst}, {sG}")
    RT = OPT.get("RT", 0)
    def rt(i):
        if RT: a(f"s_memrealtime s[92:93]\ns_waitcnt lgkmcnt(0)\ns_mov_b32 s{94+i}, s92")
    def rtdump():
        if RT == 3:
            rt(7)
            l = a.lab("RTS")
            a(f"s_cmp_eq_u32 {sR}, {OPT.get('RTR', 18)}\ns_cselect_b32 s3, 31, {sR}\ns_cmp_lt_u32 s3, {OPT.get('RTF', 28)}\ns_cbranch_scc1 {l}\ns_cmp_lg_u32 {sW}, {OPT.get('RTW', 0)}\ns_cbranch_scc1 {l}")
            a(f"s_not_b32 s3, s94\ns_cmp_ge_u32 {sR}, 28\ns_cselect_b32 s4, 16, 0\ns_mov_b64 exec, 1\nv_mov_b32 v4, 0\nv_mov_b32 v5, s4")
            for w, r, v in ((2, "s3", 4), (3, "s94", 4), (13, "s95", 4), (5, "s96", 4), (6, "s97", 4), (12, "s98", 4), (7, "s99", 5), (15, "s100", 4), (10, "s101", 5)):
                a(f"v_mov_b32 v6, {r}\nglobal_atomic_umax v{v}, v6, s[{pDBG}:{pDBG+1}] offset:{4*w} sc1")
            a("s_mov_b64 exec, -1")
            a.put(l)
        elif RT:
            rt(7)
            a(f"s_lshl_b32 s3, s2, 3\ns_add_u32 s3, s3, {sW}\ns_lshl_b32 s3, s3, 6\ns_add_u32 s3, s3, {L.DBG + (6 << 20)}\ns_lshl_b32 s4, {sQ}, 5\ns_add_u32 s4, s4, {sR}")
            for i in range(8): a(f"v_mov_b32 v{8+i}, s{94+i}")
            a("v_mov_b32 v16, s4\nv_mov_b32 v4, 0\ns_mov_b64 exec, 1")
            a(f"buffer_store_dwordx4 v[8:11], v4, {WS}, s3 offen\nbuffer_store_dwordx4 v[12:15], v4, {WS}, s3 offen offset:16\nbuffer_store_dword v16, v4, {WS}, s3 offen offset:32\ns_mov_b64 exec, -1")
    def dma(vaddr, srdn, soff, m0, extra=""):
        a(f"s_mov_b32 m0, {m0}\nbuffer_load_dwordx4 {vaddr}, {srdn}, {soff} offen {extra} lds")
    WNT = OPT.get("WNT", "nt")
    def xs_dma(slds, smem):
        for i in range(10):
            if i % 4 == 0:
                if i: a(f"s_add_u32 {slds}, {slds}, 4096\ns_add_u32 {smem}, {smem}, 4096")
                a(f"s_mov_b32 m0, {slds}")
            a(f"buffer_load_dwordx4 v2, {WS}, {smem} offen offset:{(i%4)*1024} sc1 lds")

    def layernorm(R, F, O, perm):
        T = F + 80
        for i in range(40):
            a(f"v_lshlrev_b32 v{F+2*i}, 16, v{R+i}\nv_and_b32 v{F+2*i+1}, 0xffff0000, v{R+i}")
        def red(v):
            a(f"v_add_f32_dpp v{v}, v{v}, v{v} row_ror:8 row_mask:0xf bank_mask:0xf")
            a(f"v_mov_b32 v{v+1}, v{v}\nv_permlane16_swap_b32 v{v}, v{v+1}\nv_add_f32 v{v}, v{v}, v{v+1}")
            a(f"v_mov_b32 v{v+1}, v{v}\nv_permlane32_swap_b32 v{v}, v{v+1}\nv_add_f32 v{v}, v{v}, v{v+1}")
        a(f"v_pk_add_f32 v[{T}:{T+1}], v[{F}:{F+1}], v[{F+2}:{F+3}]\nv_pk_add_f32 v[{T+2}:{T+3}], v[{F+4}:{F+5}], v[{F+6}:{F+7}]")
        for i in range(4, 40): t = T + 2*(i % 2); a(f"v_pk_add_f32 v[{t}:{t+1}], v[{t}:{t+1}], v[{F+2*i}:{F+2*i+1}]")
        a(f"v_pk_add_f32 v[{T}:{T+1}], v[{T}:{T+1}], v[{T+2}:{T+3}]\nv_add_f32 v{T}, v{T}, v{T+1}")
        red(T)
        a(f"v_mul_f32 v{T}, 0x3acccccd, v{T}")
        for i in range(40):
            t = T + 2 + 2*(i % 2); c = T + 6 + 2*(i % 2)
            a(f"v_pk_add_f32 v[{t}:{t+1}], v[{F+2*i}:{F+2*i+1}], v[{T}:{T+1}] op_sel_hi:[1,0] neg_lo:[0,1] neg_hi:[0,1]")
            if i < 2: a(f"v_pk_mul_f32 v[{c}:{c+1}], v[{t}:{t+1}], v[{t}:{t+1}]")
            else: a(f"v_pk_fma_f32 v[{c}:{c+1}], v[{t}:{t+1}], v[{t}:{t+1}], v[{c}:{c+1}]")
        a(f"v_pk_add_f32 v[{T+6}:{T+7}], v[{T+6}:{T+7}], v[{T+8}:{T+9}]\nv_add_f32 v{T+2}, v{T+6}, v{T+7}")
        red(T + 2)
        a(f"v_mul_f32 v{T+2}, 0x3acccccd, v{T+2}")
        a(f"v_cvt_pk_bf16_f32 v{T+2}, v{T+2}, v{T+2}\nv_lshlrev_b32 v{T+2}, 16, v{T+2}\nv_add_f32 v{T+2}, 0x3727c5ac, v{T+2}")
        a(f"v_cvt_pk_bf16_f32 v{T+2}, v{T+2}, v{T+2}\nv_lshlrev_b32 v{T+2}, 16, v{T+2}\nv_sqrt_f32 v{T+2}, v{T+2}")
        a(f"v_cvt_pk_bf16_f32 v{T+2}, v{T+2}, v{T+2}\nv_lshlrev_b32 v{T+2}, 16, v{T+2}\nv_rcp_f32 v{T+2}, v{T+2}")
        a(f"v_cvt_pk_bf16_f32 v{T}, v{T}, v{T}\nv_lshlrev_b32 v{T}, 16, v{T}")
        pos = [0, 2, 4, 6, 1, 3, 5, 7] if perm else list(range(8))
        for i in range(40):
            t = T + 4 + 2*(i % 2)
            o = O + 8*(i // 8) + pos[i % 8]
            a(f"v_pk_add_f32 v[{t}:{t+1}], v[{F+2*i}:{F+2*i+1}], v[{T}:{T+1}] op_sel_hi:[1,0] neg_lo:[0,1] neg_hi:[0,1]")
            a(f"v_cvt_pk_bf16_f32 v{t}, v{t}, v{t+1}\nv_and_b32 v{t+1}, 0xffff0000, v{t}\nv_lshlrev_b32 v{t}, 16, v{t}")
            a(f"v_pk_mul_f32 v[{t}:{t+1}], v[{t}:{t+1}], v[{T+2}:{T+3}] op_sel_hi:[1,0]")
            a(f"v_cvt_pk_bf16_f32 v{o}, v{t}, v{t+1}")
    def ln_loads(R, vaddr, srdn):
        for m in range(5):
            a(f"buffer_load_dwordx4 v[{R+8*m}:{R+8*m+3}], {vaddr}, {srdn}, 0 offen offset:{256*m}")
            a(f"buffer_load_dwordx4 v[{R+8*m+4}:{R+8*m+7}], {vaddr}, {srdn}, 0 offen offset:{256*m+16}")

    a("s_cmp_ge_u32 s2, 256\ns_cbranch_scc1 END")
    a("s_load_dwordx8 s[64:71], s[0:1], 0\ns_load_dwordx4 s[72:75], s[0:1], 32\ns_load_dwordx8 s[76:83], s[0:1], 64\ns_load_dwordx4 s[84:87], s[0:1], 96")
    a("v_lshrrev_b32 v1, 6, v0\nv_and_b32 v0, 63, v0")
    a(f"v_readfirstlane_b32 {sW}, v1")
    a(f"s_getreg_b32 {sQ}, hwreg(HW_REG_XCC_ID, 0, 4)\ns_add_u32 {sQ}, {sQ}, {OPT.get('QO', 0)}\ns_xor_b32 {sQ}, {sQ}, {OPT.get('QX', 0)}\ns_and_b32 {sQ}, {sQ}, 7")
    a(f"s_mov_b32 {sBUD}, {BUDGET}\ns_mov_b32 {sMODE}, 0")
    a("v_lshlrev_b32 v2, 4, v0\nv_lshlrev_b32 v3, 3, v0")
    a("s_waitcnt lgkmcnt(0)")
    srd(8, pWS, 0x10000000)
    srd(20, pX, 2048*1280)
    if INSTR: a("s_memtime s[90:91]")
    if RT == 3:
        for i in range(94, 102): a(f"s_mov_b32 s{i}, 0")
    if RT == 1:
        for i in range(94, 102): a(f"s_mov_b32 s{i}, 0")
    rt(0)
    VW = 163832
    sTK = "s88"
    HWR = OPT.get("HWR", 1)
    if HWR == 2:
        a(f"s_getreg_b32 s4, hwreg(HW_REG_HW_ID, 13, 2)\ns_lshr_b32 s3, s2, 5\ns_lshl_b32 s3, s3, 2\ns_add_u32 {sR}, s3, s4")
    elif HWR == 1:
        a(f"s_getreg_b32 s3, hwreg(HW_REG_HW_ID, 8, 4)\ns_getreg_b32 s4, hwreg(HW_REG_HW_ID, 13, 2)\ns_and_b32 s5, s4, 1\ns_sub_u32 s3, s3, s5\ns_and_b32 s3, s3, 7\ns_lshl_b32 s3, s3, 2\ns_add_u32 {sR}, s3, s4")
    else: a(f"s_lshr_b32 {sR}, s2, 3")
    if OPT.get("PF"):
        a(f"s_cmp_lg_u32 {sW}, {OPT['PF'] - 1}\ns_cbranch_scc1 PF_E\ns_getpc_b64 s[40:41]")
        a.put("PF_B")
        a(f"s_and_b32 s3, {sR}, 15\ns_lshl_b32 s3, s3, 13\nv_lshl_add_u32 v4, v0, 7, s3\ns_mov_b32 s3, END-PF_B\nv_min_u32 v4, s3, v4")
        a("v_mov_b32 v5, s41\nv_add_co_u32 v4, vcc, s40, v4\nv_addc_co_u32 v5, vcc, 0, v5, vcc\nglobal_load_dword v255, v[4:5], off")
        a.put("PF_E")
    if OPT.get("PERM"):
        P = OPT["PERM"]; assert sorted(P) == list(range(32))
        for w in range(8): a(f"s_mov_b32 s{40+w}, {sum(P[4*w+i] << (8*i) for i in range(4))}")
        a(f"s_bitcmp1_b32 {sR}, 4\ns_cselect_b64 s[40:41], s[44:45], s[40:41]\ns_cselect_b64 s[42:43], s[46:47], s[42:43]\ns_bitcmp1_b32 {sR}, 3\ns_cselect_b64 s[40:41], s[42:43], s[40:41]")
        a(f"s_and_b32 s3, {sR}, 7\ns_lshl_b32 s3, s3, 3\ns_lshr_b64 s[40:41], s[40:41], s3\ns_and_b32 {sR}, s40, 31")
    a(f"s_cmp_lg_u32 {sW}, 7\ns_cbranch_scc1 ROLE\ns_setprio 3")
    a(f"s_lshl_b32 s3, {sQ}, 5\nv_mov_b32 v4, s3\ns_lshl_b32 s3, 1, {sR}\nv_mov_b32 v6, 1\nv_mov_b32 v7, s3\ns_mov_b64 exec, 1")
    a(f"global_atomic_add_x2 v[10:11], v4, v[6:7], s[{pDBG}:{pDBG+1}] sc0 sc1\ns_mov_b64 exec, -1")
    def arrive():
        a(f"v_readfirstlane_b32 {sTK}, v10\nv_readfirstlane_b32 s3, v11")
        if FORCE_SLOW == 1: a(f"s_mov_b32 {sTK}, 99")
        if FORCE_SLOW == 2: a(f"s_cmp_eq_u32 s2, 5\ns_cselect_b32 {sTK}, 99, {sTK}")
        if FORCE_SLOW == 3: a(f"s_cmp_eq_u32 s2, 5\ns_cselect_b32 s3, -1, s3")
        a(f"s_lshr_b32 s3, s3, {sR}\ns_and_b32 s3, s3, 1\ns_lshl_b32 s3, s3, 12\ns_cmp_lt_u32 {sTK}, 32\ns_cselect_b32 s89, 1, {1 + (1 << 22)}\ns_add_u32 s89, s89, s3")
        a(f"v_mov_b32 v12, 16\nv_mov_b32 v13, s89\ns_mov_b64 exec, 1\nglobal_atomic_add v14, v12, v13, s[{pDBG}:{pDBG+1}] sc0 sc1\ns_mov_b64 exec, -1")
    def publish():
        l = a.lab("PUB")
        a(f"s_waitcnt vmcnt(0)\nv_readfirstlane_b32 s4, v14\ns_add_u32 s3, s89, s4\ns_and_b32 s4, s3, 0xfff\ns_cmp_lg_u32 s4, 256\ns_cbranch_scc1 {l}")
        a(f"s_cmp_eq_u32 s3, 256\ns_cselect_b32 s4, 1, 3\ns_cmp_lt_u32 s3, {1 << 22}\ns_cselect_b32 s4, s4, 2\nv_mov_b32 v12, 16\nv_mov_b32 v13, s4\ns_mov_b64 exec, 1\nglobal_store_dword v12, v13, s[{pDBG}:{pDBG+1}] offset:128 sc1\ns_mov_b64 exec, -1")
        a.put(l)
    def verdict_w(gsl=OPT.get('GSL', 2)):
        l = a.lab("VW"); g = a.lab("VG"); k = a.lab("VK")
        a(f"s_cmp_lg_u32 {sW}, 7\ns_cbranch_scc1 {l}\nv_mov_b32 v62, 1\ns_cmp_lg_u32 {sMODE}, 0\ns_cbranch_scc1 {k + 'y' if HWR else k}\nv_mov_b32 v62, 2\ns_cmp_ge_u32 {sTK}, 32\ns_cbranch_scc1 {k}x\nv_mov_b32 v63, 16")
        a.put(g)
        a(f"global_load_dword v62, v63, s[{pDBG}:{pDBG+1}] offset:128 sc1\ns_waitcnt vmcnt(0)\nv_cmp_ne_u32 vcc, 0, v62\ns_cbranch_vccnz {k}\ns_sleep {gsl}")
        budget(g)
        a.put(k + "x")
        a("v_mov_b32 v63, 16")
        a.put(g + "x")
        a(f"global_load_dword v61, v63, s[{pDBG}:{pDBG+1}] offset:128 sc1\ns_waitcnt vmcnt(0)\nv_cmp_ne_u32 vcc, 0, v61\ns_cbranch_vccnz {k}\ns_sleep {gsl}")
        budget(g + "x")
        if HWR:
            a.put(k + "y")
            a("v_mov_b32 v63, 16")
            a.put(g + "y")
            a(f"global_load_dword v61, v63, s[{pDBG}:{pDBG+1}] offset:160 sc1\ns_waitcnt vmcnt(0)\nv_cmp_le_u32 vcc, 80, v61\ns_cbranch_vccnz {k}\ns_sleep {gsl}")
            budget(g + "y")
        a.put(k)
        a(f"v_mov_b32 v63, {VW}\nds_write_b32 v63, v62\ns_waitcnt lgkmcnt(0)")
        a.put(l)
    def verdict_r():
        a(f"v_mov_b32 v63, {VW}\nds_read_b32 v62, v63\ns_waitcnt lgkmcnt(0)\nv_readfirstlane_b32 s3, v62\ns_cmp_lg_u32 s3, 1\ns_cbranch_scc1 {'END' if INSTR == 3 else 'REROLE'}")
    a.put("ROLE")
    a(f"s_mul_i32 {sG}, {sQ}, {L.GS}")
    a(f"s_cmp_ge_u32 {sR}, 28\ns_cbranch_scc1 PRO_F\ns_cmp_lt_u32 {sW}, 4\ns_cbranch_scc1 PRO_G\ns_setprio 3\ns_sub_u32 s14, {sW}, 4")
    a("v_and_b32 v4, 7, v0\nv_mul_u32_u24 v4, 1280, v4\nv_lshrrev_b32 v5, 3, v0\nv_lshlrev_b32 v5, 5, v5\nv_add_u32 v4, v4, v5")
    a(f"s_cmp_ge_u32 {sR}, 18\ns_cbranch_scc1 PRO_D")
    a("s_mul_i32 s3, s14, 10240\nv_add_u32 v4, s3, v4")
    NOE = OPT.get("NOE", 0)
    ln_loads(160, "v4", "s[20:23]")
    if NOE == 2: a("s_barrier")
    a("v_add_u32 v4, 40960, v4")
    ln_loads(212, "v4", "s[20:23]")
    srd(16, pM0, 10240)
    a("v_and_b32 v5, 7, v0\nv_mul_u32_u24 v5, 1280, v5\nv_lshrrev_b32 v6, 3, v0\nv_lshl_add_u32 v5, v6, 4, v5\ns_lshl_b32 s3, s14, 7\nv_add_u32 v5, s3, v5")
    for i in range(3): a(f"buffer_load_dwordx4 v[{200+4*i}:{203+4*i}], v5, s[16:19], 0 offen offset:{512*i}")
    if NOE == 0: a("s_barrier")
    rt(1)
    a(f"s_cmp_lg_u32 {sW}, 7\ns_cbranch_scc1 PRO_A1\ns_cmp_lg_u32 {sMODE}, 0\ns_cbranch_scc1 PRO_A1\ns_waitcnt vmcnt(23)")
    arrive()
    a("s_waitcnt vmcnt(14)\ns_branch PRO_A2")
    a.put("PRO_A1")
    a("s_waitcnt vmcnt(13)")
    a.put("PRO_A2")
    layernorm(160, 64, 160, True)
    a("s_waitcnt vmcnt(1)")
    layernorm(212, 64, 212, True)
    rt(2)
    a("s_branch WR_A")
    a.put("PRO_G")
    a(f"s_cmp_ge_u32 {sR}, 18\ns_cbranch_scc1 PRO_C")
    a(f"s_cmp_lt_u32 {sR}, 12\ns_cbranch_scc0 PRO_PV")
    srd(12, pWQ, 640*12288); srd(16, pWK, 640*12288)
    a(f"s_mul_i32 s3, {sQ}, 1536\ns_lshl_b32 s4, {sR}, 7\ns_add_u32 s3, s3, s4\ns_mov_b32 s4, s3\ns_branch PRO_P2")
    a.put("PRO_PV")
    srd(12, pWV, 640*12288); srd(16, pWV, 640*12288)
    a(f"s_mul_i32 s3, {sQ}, 1536\ns_sub_u32 s4, {sR}, 12\ns_lshl_b32 s4, s4, 8\ns_add_u32 s3, s3, s4\ns_add_u32 s4, s3, 128")
    a.put("PRO_P2")
    a(f"v_lshrrev_b32 v4, 3, v0\nv_mul_u32_u24 v4, 12288, v4\ns_and_b32 s5, {sW}, 1\ns_lshl_b32 s5, s5, 1\nv_lshrrev_b32 v5, 5, v0\nv_add_u32 v5, s5, v5")
    a("v_bfe_u32 v6, v0, 1, 2\nv_xor_b32 v5, v5, v6\nv_lshlrev_b32 v5, 5, v5\nv_and_b32 v6, 1, v0\nv_lshlrev_b32 v6, 4, v6\nv_add3_u32 v4, v4, v5, v6")
    a(f"s_mul_i32 s5, {sW}, 98304\ns_add_u32 s3, s3, s5\ns_add_u32 s4, s4, s5\ns_lshl_b32 s6, {sW}, 10")
    if NOE != 1: a("s_barrier")
    for i in range(20):
        dma("v4", "s[12:15]", "s3", "s6", WNT)
        a("s_add_u32 s7, s6, 40960")
        dma("v4", "s[16:19]", "s4", "s7", WNT)
        if i < 19: a(f"s_add_u32 s3, s3, {4*98304}\ns_add_u32 s4, s4, {4*98304}\ns_add_u32 s6, s6, {4096 + (40960 if i == 9 else 0)}")
    rt(2)
    a("s_branch WR_P")
    a.put("PRO_C")
    srd(12, pWO, 6144*1280)
    a(f"v_lshrrev_b32 v4, 3, v0\nv_mul_u32_u24 v4, 1280, v4\nv_lshrrev_b32 v5, 4, v0\nv_bfe_u32 v6, v0, 1, 2\nv_xor_b32 v5, v5, v6\nv_lshlrev_b32 v5, 5, v5\nv_and_b32 v6, 1, v0\nv_lshlrev_b32 v6, 4, v6\nv_add3_u32 v4, v4, v5, v6")
    a(f"s_mul_i32 s3, {sQ}, {768*1280}\ns_sub_u32 s4, {sR}, 18\ns_lshl_b32 s4, s4, 7\ns_add_u32 s3, s3, s4\ns_mul_i32 s5, {sW}, 10240\ns_add_u32 s3, s3, s5\ns_lshl_b32 s6, {sW}, 10\ns_barrier")
    if OPT.get("CJ", 1) == 2:
        a("s_barrier"); verdict_r()
    for i in range(24):
        dma("v4", "s[12:15]", "s3", "s6", WNT)
        if i < 23: a("s_add_u32 s3, s3, 40960\ns_add_u32 s6, s6, 4096")
    a("s_branch WR_C")
    a.put("PRO_F")
    a(f"s_lshl_b32 s33, {sQ}, 2\ns_add_u32 s33, s33, {sR}\ns_sub_u32 s33, s33, 28")
    a(f"v_and_b32 v4, 7, v0\ns_lshl_b32 s3, {sW}, 3\nv_add_u32 v4, s3, v4\nv_mul_u32_u24 v4, 40960, v4\nv_lshrrev_b32 v5, 3, v0\nv_lshlrev_b32 v5, 5, v5\nv_add_u32 v4, v4, v5\ns_mul_i32 s3, s33, 1280\nv_add_u32 v4, s3, v4")
    ln_loads(200, "v4", "s[20:23]")
    a(f"s_barrier\ns_cmp_lg_u32 {sW}, 7\ns_cbranch_scc1 PRO_F1\ns_cmp_lg_u32 {sMODE}, 0\ns_cbranch_scc1 PRO_F1\ns_waitcnt vmcnt(10)")
    arrive()
    publish()
    a.put("PRO_F1")
    a("s_setprio 0\ns_waitcnt vmcnt(0)")
    layernorm(200, 64, 16, False)
    a(f"v_lshrrev_b32 v4, 3, v0\nv_lshlrev_b32 v4, 10, v4\nv_and_b32 v5, 7, v0\nv_lshl_add_u32 v4, v5, 4, v4\ns_lshr_b32 s3, {sW}, 2\ns_mul_i32 s3, s3, 40960\ns_and_b32 s4, {sW}, 3\ns_lshl_b32 s4, s4, 7\ns_add_u32 s3, s3, s4\nv_add_u32 v4, s3, v4")
    for m in range(5):
        a(f"ds_write_b128 v4, v[{16+8*m}:{19+8*m}] offset:{8192*m}\nds_write_b128 v4, v[{20+8*m}:{23+8*m}] offset:{8192*m+512}")
    a("s_waitcnt lgkmcnt(0)")
    verdict_w(OPT.get("GSF", 2))
    rt(3)
    a("s_barrier")
    verdict_r()
    a("s_barrier\ns_branch GO")
    a.put("WR_P")
    a("v_lshrrev_b32 v4, 5, v0\nv_lshlrev_b32 v4, 4, v4\nv_bfe_u32 v5, v0, 4, 1\nv_lshl_add_u32 v4, v5, 2, v4\nv_bfe_u32 v6, v0, 2, 1\nv_add_u32 v4, v4, v6\nv_bfe_u32 v6, v0, 3, 1\nv_lshl_add_u32 v4, v6, 3, v4")
    a("v_lshlrev_b32 v4, 7, v4\nv_lshl_add_u32 v5, v6, 1, v5\nv_and_b32 v6, 3, v0\nv_lshl_add_u32 v4, v6, 3, v4")
    a(f"s_and_b32 s3, {sW}, 1\ns_lshl_b32 s3, s3, 1\ns_add_u32 s4, s3, 1\ns_lshr_b32 s5, {sW}, 1\ns_mul_i32 s5, s5, 40960\ns_mov_b32 s6, s5")
    a(f"s_cmp_lt_u32 {sR}, 12\ns_cselect_b32 s3, {sW}, s3\ns_cselect_b32 s4, {sW}, s4\ns_cselect_b32 s5, 0, s5\ns_cselect_b32 s6, 40960, s6")
    a("v_xor_b32 v6, s3, v5\nv_lshl_add_u32 v6, v6, 5, v4\nv_add_u32 v6, s5, v6\nv_add_u32 v8, 81920, v6")
    a("v_xor_b32 v7, s4, v5\nv_lshl_add_u32 v7, v7, 5, v4\nv_add_u32 v7, s6, v7\nv_add_u32 v9, 81920, v7")
    for hf in range(2):
        a(f"s_waitcnt vmcnt({0 if hf else 20})")
        rt(3 + hf)
        a("s_barrier")
        n = 0
        for kb in range(5*hf, 5*hf + 5):
            for T in range(2):
                for b in range(2):
                    for rd in range(2):
                        d = 64 + 16*kb + 8*T + 4*b + 2*rd
                        a(f"ds_read_b64_tr_b16 v[{d}:{d+1}], v{6+T+2*hf} offset:{(kb % 5)*8192 + b*4096 + rd*256}")
                        n += 1
                        if n % 8 == 0 and n > 8: a("s_waitcnt lgkmcnt(8)")
        a("s_waitcnt lgkmcnt(0)\ns_barrier")
    a("s_branch GO")
    a.put("WR_A")
    a("v_lshrrev_b32 v4, 4, v0\nv_lshlrev_b32 v4, 10, v4\nv_bfe_u32 v5, v0, 3, 1\nv_lshlrev_b32 v5, 9, v5\nv_and_b32 v6, 7, v0\nv_lshlrev_b32 v6, 4, v6\nv_add3_u32 v4, v4, v5, v6")
    a("s_lshr_b32 s3, s14, 1\ns_mul_i32 s3, s3, 20480\ns_and_b32 s4, s14, 1\ns_lshl_b32 s4, s4, 7\ns_add_u32 s3, s3, s4\nv_add_u32 v4, s3, v4")
    rt(3)
    a("s_barrier\ns_barrier")
    for m in range(5):
        a(f"ds_write_b128 v4, v[{160+8*m}:{163+8*m}] offset:{4096*m}\nds_write_b128 v4, v[{164+8*m}:{167+8*m}] offset:{4096*m+256}")
    a("v_add_u32 v4, 40960, v4")
    for m in range(5):
        a(f"ds_write_b128 v4, v[{212+8*m}:{215+8*m}] offset:{4096*m}\nds_write_b128 v4, v[{216+8*m}:{219+8*m}] offset:{4096*m+256}")
    a(f"s_cmp_lg_u32 {sW}, 7\ns_cbranch_scc1 WR_A2\ns_cmp_lg_u32 {sMODE}, 0\ns_cbranch_scc1 WR_A2")
    publish()
    a.put("WR_A2")
    a("s_waitcnt vmcnt(0) lgkmcnt(0)\ns_barrier\ns_barrier\ns_branch GO")
    a.put("WR_C")
    a(f"v_lshrrev_b32 v4, 2, v0\nv_lshlrev_b32 v4, 7, v4\nv_and_b32 v5, 3, v0\nv_lshl_add_u32 v4, v5, 3, v4\ns_mul_i32 s3, {sW}, 24576\nv_add_u32 v4, s3, v4\nv_bfe_u32 v5, v0, 3, 2")
    for ct in range(4): a(f"v_xor_b32 v{6+ct}, {ct}, v5\nv_lshl_add_u32 v{6+ct}, v{6+ct}, 5, v4")
    a("s_waitcnt vmcnt(0)")
    rt(3)
    a("s_barrier")
    n = 0
    for kb in range(3):
        for ct in range(4):
            for b in range(2):
                for rd in range(2):
                    d = 64 + 32*kb + 8*ct + 4*b + 2*rd
                    a(f"ds_read_b64_tr_b16 v[{d}:{d+1}], v{6+ct} offset:{kb*8192 + b*4096 + rd*2048}")
                    n += 1
                    if n % 8 == 0 and n > 8: a("s_waitcnt lgkmcnt(8)")
    a("s_waitcnt lgkmcnt(0)\ns_barrier")
    if OPT.get("CJ", 1) != 2: verdict_r()
    a("s_branch GO")
    a.put("PRO_D")
    HI = OPT.get("HI", 4) if OPT.get("RST") else NS
    assert L.GPOIS == 40 * 4096 and L.H2 % 1024 == 0 and HI * L.H3S % (320 * 1024) == 0
    if not HWR: a(f"s_cmp_eq_u32 {sMODE}, 0\ns_cbranch_scc1 PRO_D1\ns_barrier\ns_branch WR_CA")
    a.put("PRO_D1")
    a(f"s_sub_u32 s15, {sR}, 18\ns_lshl_b32 s15, s15, 2\ns_add_u32 s15, s15, s14\ns_and_b32 s12, {sQ if HWR else 's2'}, 7\ns_lshl_b32 s13, s15, 3\ns_add_u32 s13, s13, s12")
    a("s_mul_i32 s3, s13, 10240\nv_add_u32 v4, s3, v4")
    ln_loads(16, "v4", "s[20:23]")
    CJ = OPT.get("CJ", 1); assert CJ == 1 or not HWR
    if not CJ: a("s_barrier")
    rt(1)
    a(f"s_mul_i32 s3, s12, {L.GS}\ns_lshl_b32 s6, s15, 12\ns_add_u32 s3, s3, s6")
    for i in range(4):
        r = 56 + 4*(i % 2)
        a(f"s_cmp_lt_u32 s6, {L.H2 - 1024*i}\ns_cselect_b32 s7, -1, 0")
        for k in range(4): a(f"v_mov_b32 v{r+k}, s7")
        a(f"buffer_store_dwordx4 v[{r}:{r+3}], v2, {WS}, s3 offen offset:{1024*i} sc1")
    for k in range(4): a(f"v_mov_b32 v{64+k}, 0")
    if HWR and OPT.get("OWN", 1):
        a(f"s_sub_u32 s3, {sR}, 18\ns_lshl_b32 s3, s3, 15\ns_lshr_b32 s4, {sQ}, 2\ns_lshl_b32 s4, s4, 14\ns_add_u32 s3, s3, s4\ns_and_b32 s4, {sQ}, 3\ns_lshl_b32 s4, s4, 11\ns_add_u32 s3, s3, s4\ns_lshl_b32 s4, s14, 9\ns_add_u32 s3, s3, s4\ns_add_u32 s3, s3, {L.H3}")
        a("v_and_b32 v6, 31, v0\nv_lshlrev_b32 v6, 4, v6\nv_lshrrev_b32 v7, 5, v0\nv_lshl_add_u32 v6, v7, 13, v6")
        for i in range(HI):
            a(f"buffer_store_dwordx4 v[64:67], v6, {WS}, s3 offen sc1")
            if i < HI - 1: a(f"s_add_u32 s3, s3, {L.H3S}")
    else:
        a(f"s_mul_i32 s3, s13, {HI * 1024}\ns_add_u32 s3, s3, {L.H3}")
        for i in range(HI): a(f"buffer_store_dwordx4 v[64:67], v2, {WS}, s3 offen offset:{1024*i} sc1")
    a("s_cmp_ge_u32 s13, 256\ns_cbranch_scc1 PRO_D2")
    a(f"v_and_b32 v6, 15, v0\nv_lshlrev_b32 v6, 3, v6\ns_lshl_b32 s3, s13, 7\ns_add_u32 s3, s3, {L.FL}\nbuffer_store_dwordx2 v[64:65], v6, {WS}, s3 offen sc1")
    a(f"s_waitcnt vmcnt({5 + HI})")
    layernorm(16, 64, 16, True)
    a("v_lshrrev_b32 v4, 4, v0\nv_lshlrev_b32 v4, 10, v4\nv_bfe_u32 v5, v0, 3, 1\nv_lshlrev_b32 v5, 9, v5\nv_and_b32 v6, 7, v0\nv_lshlrev_b32 v6, 4, v6\nv_add3_u32 v4, v4, v5, v6")
    a(f"s_lshr_b32 s3, s13, 1\ns_mul_i32 s3, s3, 20480\ns_and_b32 s4, s13, 1\ns_lshl_b32 s4, s4, 7\ns_add_u32 s3, s3, s4\ns_add_u32 s3, s3, {L.XN}")
    for m in range(5):
        a(f"buffer_store_dwordx4 v[{16+8*m}:{19+8*m}], v4, {WS}, s3 offen sc1\nbuffer_store_dwordx4 v[{20+8*m}:{23+8*m}], v4, {WS}, s3 offen offset:256 sc1")
        if m < 4: a("s_add_u32 s3, s3, 4096")
    a.put("PRO_D2")
    a("s_waitcnt vmcnt(0)")
    rt(2)
    if CJ:
        a(f"s_barrier\ns_cmp_lg_u32 {sW}, 7\ns_cbranch_scc1 WR_CA")
        if HWR:
            a(f"s_cmp_eq_u32 {sMODE}, 0\ns_cbranch_scc1 WR_C0\nv_mov_b32 v12, 16\nv_mov_b32 v13, 1\ns_mov_b64 exec, 1\nglobal_atomic_add v12, v13, s[{pDBG}:{pDBG+1}] offset:160 sc1\ns_mov_b64 exec, -1\ns_branch WR_CA")
            a.put("WR_C0")
        arrive()
        publish()
        a.put("WR_CA")
        a("s_setprio 0")
        if CJ == 2:
            verdict_w(); rt(3); a("s_barrier"); verdict_r()
            a("s_barrier\ns_barrier\ns_branch GO")
        a("s_barrier")
    else:
        a.put("WR_CA")
        a(f"s_setprio 0\ns_barrier\ns_cmp_lg_u32 {sW}, 7\ns_cbranch_scc1 WR_CB\ns_cmp_lg_u32 {sMODE}, 0\ns_cbranch_scc1 WR_CB")
        arrive()
        publish()
        a.put("WR_CB")
    verdict_w()
    rt(3)
    a("s_barrier")
    verdict_r()
    a("s_branch GO")
    a.put("REROLE")
    a(f"s_setprio 0\ns_waitcnt vmcnt(0) lgkmcnt(0)\ns_barrier\nv_mov_b32 v63, 0\ns_cmp_lg_u32 {sW}, 7\ns_cbranch_scc1 RR1\nv_mov_b32 v62, {sTK}\nds_write_b32 v63, v62\ns_waitcnt lgkmcnt(0)")
    a.put("RR1")
    a(f"s_barrier\nds_read_b32 v62, v63\ns_waitcnt lgkmcnt(0)\nv_readfirstlane_b32 {sR}, v62\ns_barrier\ns_mov_b32 {sMODE}, 2\ns_cmp_eq_u32 s3, 3\ns_cbranch_scc1 ROLE")
    if OPT.get("XT"): a("s_branch END")
    a(f"s_mov_b32 {sMODE}, 1\ns_lshr_b32 {sQ}, s2, 5\ns_and_b32 {sR}, s2, 31\ns_branch ROLE")
    a.put("GO")
    if OPT.get("HWID"):
        a(f"s_getreg_b32 s3, hwreg(HW_REG_HW_ID)\ns_and_b32 s3, s3, 0xffff\ns_lshl_b32 s4, {sQ}, 5\ns_add_u32 s4, s4, {sR}\ns_lshl_b32 s4, s4, 16\ns_or_b32 s3, s3, s4\nv_mov_b32 v16, s3\ns_lshl_b32 s3, s2, 2\ns_add_u32 s3, s3, {L.DBG+2048}\nv_mov_b32 v17, 0\nbuffer_store_dword v16, v17, {WS}, s3 offen")
    a(f"s_mov_b32 {sS}, 0")
    if OPT.get("PROL"):
        rt(5); rtdump(); a("s_waitcnt vmcnt(0)\ns_branch END")
    a(f"s_cmp_ge_u32 {sR}, 28\ns_cbranch_scc1 FFN")
    if PARTS == "ffn": a("s_branch END")
    else:
        a(f"s_cmp_eq_u32 {sMODE}, 1\ns_cbranch_scc1 CHAIN_S")
        from chain import chain
        ctx = dict(locals())
        chain(ctx, "F", "")
        a.put("CHAIN_S")
        chain(ctx, "S", " sc1")

    a.put("FFN")
    if OPT.get("NOFFN"): a("s_branch END")
    srd(12, pWG, 640*3072); srd(16, pWU, 640*3072)
    LOG2E = "0x3fb8aa3b"
    RING1 = 81920
    a("v_lshrrev_b32 v4, 2, v0\nv_mul_u32_u24 v4, 3072, v4\nv_and_b32 v5, 3, v0\nv_lshl_add_u32 v4, v5, 4, v4")
    a("v_lshrrev_b32 v5, 5, v0\nv_lshlrev_b32 v5, 9, v5\nv_bfe_u32 v6, v0, 2, 2\nv_lshl_add_u32 v5, v6, 6, v5\nv_bfe_u32 v6, v0, 4, 1\nv_lshl_add_u32 v5, v6, 5, v5\nv_and_b32 v6, 3, v0\nv_lshl_add_u32 v5, v6, 3, v5")
    a(f"s_mul_i32 s34, {sW}, 10240\ns_add_u32 s34, s34, {RING1}")
    a(f"s_cmp_ge_u32 {sQ}, 6\ns_cselect_b32 s3, 6, 0\ns_sub_u32 s46, {sQ}, s3")
    if not OPT.get("ROT", 1): a("s_mov_b32 s46, 0")
    a(f"s_lshl_b32 s47, {sW}, 6\ns_add_u32 s48, s47, 3072\ns_lshl_b32 s35, s46, 9\ns_add_u32 s35, s35, s47")
    a("s_mov_b32 s36, 0\ns_mov_b32 s37, 0\ns_mov_b32 s38, s46\ns_mov_b32 s49, 0")
    def ffn1_issue():
        a("s_add_u32 s3, s34, s37")
        dma("v4", "s[12:15]", "s35", "s3")
        a("s_add_u32 s3, s3, 1024")
        dma("v4", "s[16:19]", "s35", "s3")
        a("s_add_u32 s37, s37, 2048\ns_cmp_eq_u32 s37, 10240\ns_cselect_b32 s37, 0, s37")
        a(f"s_add_u32 s35, s35, 49152\ns_add_u32 s36, s36, 1\ns_cmp_eq_u32 s36, 40\ns_cselect_b32 s3, {40*49152-512}, 0\ns_cselect_b32 s36, 0, s36\ns_sub_u32 s35, s35, s3\ns_cmp_eq_u32 s35, s48\ns_cselect_b32 s35, s47, s35")
    for i in range(4): ffn1_issue()
    a("s_mov_b32 s39, 0")
    a.put("F1_PASS")
    for i in range(64, 128): a(f"v_mov_b32 v{i}, 0")
    a("v_mov_b32 v6, v2\ns_mov_b32 s40, 0")
    a.put("F1_K")
    a("s_add_u32 s3, s34, s39\nv_add_u32 v7, s3, v5\ns_waitcnt vmcnt(6)")
    a("ds_read_b64_tr_b16 v[16:17], v7\nds_read_b64_tr_b16 v[18:19], v7 offset:256\nds_read_b128 v[24:27], v6\nds_read_b128 v[28:31], v6 offset:40960")
    a("ds_read_b64_tr_b16 v[20:21], v7 offset:1024\nds_read_b64_tr_b16 v[22:23], v7 offset:1280")
    ffn1_issue()
    a("s_add_u32 s39, s39, 2048\ns_cmp_eq_u32 s39, 10240\ns_cselect_b32 s39, 0, s39\nv_add_u32 v6, 1024, v6")
    a("s_waitcnt lgkmcnt(3)\nv_mfma_f32_32x32x16_bf16 v[64:79], v[16:19], v[24:27], v[64:79]")
    a("s_waitcnt lgkmcnt(2)\nv_mfma_f32_32x32x16_bf16 v[80:95], v[16:19], v[28:31], v[80:95]")
    a("s_waitcnt lgkmcnt(0)\nv_mfma_f32_32x32x16_bf16 v[96:111], v[20:23], v[24:27], v[96:111]\nv_mfma_f32_32x32x16_bf16 v[112:127], v[20:23], v[28:31], v[112:127]")
    a("s_add_u32 s40, s40, 1\ns_cmp_lt_u32 s40, 40\ns_cbranch_scc1 F1_K")
    a(f"s_mov_b32 s3, {LOG2E}")
    def silu_pair(x, t):
        a(f"v_cvt_pk_bf16_f32 v{t}, v{x}, v{x+1}\nv_lshlrev_b32 v{x}, 16, v{t}\nv_and_b32 v{x+1}, 0xffff0000, v{t}")
        a(f"v_mul_f32 v{t}, s3, v{x}\nv_mul_f32 v{t+1}, s3, v{x+1}\nv_exp_f32 v{t}, -v{t}\nv_exp_f32 v{t+1}, -v{t+1}")
        a(f"v_add_f32 v{t}, 1.0, v{t}\nv_add_f32 v{t+1}, 1.0, v{t+1}\nv_rcp_f32 v{t}, v{t}\nv_rcp_f32 v{t+1}, v{t+1}")
        a(f"v_pk_mul_f32 v[{x}:{x+1}], v[{x}:{x+1}], v[{t}:{t+1}]")
    for i in range(16):
        g = 64 + 2*i; u = 96 + 2*i; t = 16 + 2*(i % 4)
        silu_pair(g, t)
        a(f"v_cvt_pk_bf16_f32 v{t}, v{g}, v{g+1}\nv_lshlrev_b32 v{g}, 16, v{t}\nv_and_b32 v{g+1}, 0xffff0000, v{t}")
        a(f"v_cvt_pk_bf16_f32 v{t}, v{u}, v{u+1}\nv_lshlrev_b32 v{u}, 16, v{t}\nv_and_b32 v{u+1}, 0xffff0000, v{t}")
        a(f"v_pk_mul_f32 v[{g}:{g+1}], v[{g}:{g+1}], v[{u}:{u+1}]")
    for p in range(6):
        nx = a.lab("F1S")
        if p < 5: a(f"s_cmp_lg_u32 s38, {p}\ns_cbranch_scc1 {nx}")
        for i in range(16): a(f"v_cvt_pk_bf16_f32 v{160+16*p+i}, v{64+2*i}, v{65+2*i}")
        if p < 5: a("s_branch F1_NEXT"); a.put(nx)
    a.put("F1_NEXT")
    a("s_add_u32 s38, s38, 1\ns_cmp_eq_u32 s38, 6\ns_cselect_b32 s38, 0, s38\ns_add_u32 s49, s49, 1\ns_cmp_lt_u32 s49, 6\ns_cbranch_scc1 F1_PASS")
    a("s_waitcnt vmcnt(0)\ns_barrier")
    srd(12, pWD, 1536*1280)
    for i in range(5):
        a(f"v_add_u32 v7, {64*i}, v0\nv_mul_u32_u24 v13, 6554, v7\nv_lshrrev_b32 v13, 16, v13\nv_mul_u32_u24 v14, 10, v13\nv_sub_u32 v7, v7, v14\nv_mul_u32_u24 v13, 1280, v13\nv_lshl_add_u32 v{8+i}, v7, 4, v13")
    a("v_lshrrev_b32 v5, 5, v0\nv_lshlrev_b32 v5, 4, v5\nv_bfe_u32 v6, v0, 2, 3\nv_add_u32 v5, v5, v6\nv_mul_u32_u24 v5, 160, v5\nv_and_b32 v6, 3, v0\nv_lshl_add_u32 v5, v6, 3, v5")
    a(f"v_bfe_u32 v13, v0, 4, 1\nv_lshlrev_b32 v13, 10, v13\nv_lshrrev_b32 v14, 5, v0\nv_lshl_add_u32 v13, v14, 8, v13\nv_and_b32 v14, 15, v0\nv_lshl_add_u32 v13, v14, 4, v13\ns_lshl_b32 s3, {sW}, 12\nv_add_u32 v13, s3, v13")
    a(f"s_lshl_b32 s34, {sW}, 14\ns_add_u32 s34, s34, 32768\ns_mul_i32 s47, {sW}, 160\ns_add_u32 s48, s47, {48*40960}\ns_mul_i32 s35, s46, {8*40960}\ns_add_u32 s35, s35, s47\ns_mov_b32 s37, 0\ns_mov_b32 s39, 0\ns_mov_b32 s40, 0")
    def ffn2_issue():
        a("s_add_u32 s3, s34, s37")
        for i in range(5):
            dma(f"v{8+i}", "s[12:15]", "s35", "s3")
            if i < 4: a("s_add_u32 s3, s3, 1024")
        a("s_add_u32 s37, s37, 5120\ns_cmp_eq_u32 s37, 15360\ns_cselect_b32 s37, 0, s37\ns_add_u32 s35, s35, 40960\ns_cmp_eq_u32 s35, s48\ns_cselect_b32 s35, s47, s35")
    for i in range(2): ffn2_issue()
    for i in range(64, 144): a(f"v_mov_b32 v{i}, 0")
    a.put("F2_K")
    a("s_and_b32 s3, s40, 7\ns_cmp_lg_u32 s3, 0\ns_cbranch_scc1 F2_M\ns_barrier\ns_mov_b32 s3, s38\ns_add_u32 s38, s38, 1\ns_cmp_eq_u32 s38, 6\ns_cselect_b32 s38, 0, s38")
    for p in range(6):
        nx = a.lab("F2S")
        if p < 5: a(f"s_cmp_lg_u32 s3, {p}\ns_cbranch_scc1 {nx}")
        for tt in range(2):
            for ip in range(2):
                r = 160 + 16*p + 8*tt + 4*ip
                a(f"ds_write_b128 v13, v[{r}:{r+3}] offset:{2048*tt + 512*ip}")
        if p < 5: a("s_branch F2_W"); a.put(nx)
    a.put("F2_W")
    a("s_waitcnt lgkmcnt(0)\ns_barrier\nv_mov_b32 v6, v2")
    a.put("F2_M")
    a("s_add_u32 s3, s34, s39\nv_add_u32 v7, s3, v5\ns_waitcnt vmcnt(5)")
    for t in range(4): a(f"ds_read_b128 v[{36+4*t}:{39+4*t}], v6 offset:{1024*t}")
    for ct in range(5): a(f"ds_read_b64_tr_b16 v[{16+4*ct}:{17+4*ct}], v7 offset:{32*ct}\nds_read_b64_tr_b16 v[{18+4*ct}:{19+4*ct}], v7 offset:{1280+32*ct}")
    ffn2_issue()
    a("s_add_u32 s39, s39, 5120\ns_cmp_eq_u32 s39, 15360\ns_cselect_b32 s39, 0, s39\nv_add_u32 v6, 4096, v6")
    for ct in range(5):
        a(f"s_waitcnt lgkmcnt({8-2*ct})")
        for t in range(4):
            d = 64 + 16*ct + 4*t
            a(f"v_mfma_f32_16x16x32_bf16 v[{d}:{d+3}], v[{16+4*ct}:{19+4*ct}], v[{36+4*t}:{39+4*t}], v[{d}:{d+3}]")
    a("s_add_u32 s40, s40, 1\ns_cmp_lt_u32 s40, 48\ns_cbranch_scc1 F2_K")
    a(f"s_waitcnt vmcnt(0)\ns_mov_b32 s3, {LOG2E}")
    a("v_and_b32 v5, 15, v0\nv_mul_u32_u24 v5, 160, v5\nv_lshrrev_b32 v6, 4, v0\nv_lshl_add_u32 v5, v6, 3, v5\nv_add_u32 v5, s34, v5")
    for ct in range(5):
        for t in range(4):
            d = 64 + 16*ct + 4*t
            silu_pair(d, 16); silu_pair(d + 2, 18)
            a(f"v_cvt_pk_bf16_f32 v{d}, v{d}, v{d+1}\nv_cvt_pk_bf16_f32 v{d+1}, v{d+2}, v{d+3}\nds_write_b64 v5, v[{d}:{d+1}] offset:{2560*t + 32*ct}")
    if INSTR:
        a(f"s_memtime s[92:93]\ns_waitcnt lgkmcnt(0)\ns_sub_u32 s92, s92, s90\nv_mov_b32 v16, s92\ns_lshl_b32 s3, s33, 3\ns_add_u32 s3, s3, {sW}\ns_lshl_b32 s3, s3, 2\ns_add_u32 s3, s3, {L.DBG}\nv_mov_b32 v17, 0\nbuffer_store_dword v16, v17, {WS}, s3 offen")
    rt(5)
    srd(12, pOUT, 2048*1280)
    a("v_mul_u32_u24 v4, 52, v0\nv_lshrrev_b32 v4, 10, v4\nv_mul_u32_u24 v5, 20, v4\nv_sub_u32 v5, v0, v5")
    a(f"s_mul_i32 s4, {sW}, 20\nv_add_u32 v7, s4, v5\nv_lshrrev_b32 v6, 3, v7\nv_lshlrev_b32 v6, 12, v6\nv_and_b32 v7, 7, v7\nv_lshl_add_u32 v6, v7, 4, v6\nv_mul_u32_u24 v7, 655360, v4\nv_add_u32 v6, v6, v7\ns_lshl_b32 s3, s33, 7\nv_add_u32 v6, s3, v6")
    a(f"v_mul_u32_u24 v7, 40960, v4\nv_lshl_add_u32 v7, v5, 3, v7\ns_mul_i32 s3, s33, 1280\ns_mul_i32 s4, {sW}, 160\ns_add_u32 s3, s3, s4\nv_add_u32 v7, s3, v7")
    a("v_mul_u32_u24 v8, 160, v4\nv_lshl_add_u32 v8, v5, 3, v8\nv_add_u32 v8, s34, v8")
    a(f"s_lshl_b32 s3, {sQ}, 12\ns_add_u32 s3, s3, {L.FL + 1024}\nv_mov_b32 v9, s3")
    a(f"s_mov_b32 s40, 0\ns_mov_b32 s41, {L.OUTP}\ns_mov_b32 s42, 0\ns_waitcnt lgkmcnt(0)")
    a.put("FIN")
    if PARTS == "ffn": a("s_mov_b32 s3, 60")
    else: a(f"buffer_load_dword v16, v9, {WS}, 0 offen sc1\ns_waitcnt vmcnt(0)\nv_readfirstlane_b32 s3, v16")
    a(f"s_cmp_ge_u32 s3, {59 if OPT.get('OST') else 60}\ns_cselect_b32 s3, 64, s3\ns_sub_u32 s43, s3, s40\ns_min_u32 s43, s43, 3\ns_mul_i32 s3, s43, 20\ns_bfm_b64 s[44:45], s3, 0")
    a(f"s_cmp_lg_u32 s43, 0\ns_cbranch_scc1 FIN_GO\ns_sleep {OPT.get('FINSL', 8)}")
    budget("FIN")
    a.put("FIN_GO")
    a("s_mov_b64 exec, s[44:45]")
    if PARTS == "ffn":
        for i in range(32): a(f"v_mov_b32 v{20+i}, " + ("1.0" if i < 4 else "0"))
    else:
        for q in range(8):
            a(f"s_add_u32 s3, s41, {81920*q}\nbuffer_load_dwordx4 v[{20+4*q}:{23+4*q}], v6, {WS}, s3 offen sc1")
    a("buffer_load_dwordx2 v[52:53], v7, s[20:23], s42 offen\nds_read_b64 v[54:55], v8")
    A3 = lambda d, x, y, z: f"v_bitop3_b32 {d}, {x}, {y}, {z} bitop3:0x80"
    a("s_waitcnt vmcnt(8)\n" + A3("v17", "1", "v20", "v21") + "\n" + A3("v17", "v17", "v22", "v23"))
    for q in range(1, 8):
        a(f"s_waitcnt vmcnt({8-q})\nv_pk_add_f32 v[20:21], v[20:21], v[{20+4*q}:{21+4*q}]\nv_pk_add_f32 v[22:23], v[22:23], v[{22+4*q}:{23+4*q}]")
        a(A3("v17", "v17", f"v{20+4*q}", f"v{21+4*q}") + "\n" + A3("v17", "v17", f"v{22+4*q}", f"v{23+4*q}"))
    if PARTS != "ffn":
        a("v_cmp_eq_u32 vcc, 0, v17\ns_cbranch_vccz FIN_OK\ns_waitcnt vmcnt(0) lgkmcnt(0)")
        budget("FIN_GO")
        a.put("FIN_OK")
    a("v_cvt_pk_bf16_f32 v20, v20, v21\nv_cvt_pk_bf16_f32 v22, v22, v23\nv_and_b32 v21, 0xffff0000, v20\nv_lshlrev_b32 v20, 16, v20\nv_and_b32 v23, 0xffff0000, v22\nv_lshlrev_b32 v22, 16, v22")
    a("s_waitcnt lgkmcnt(0)\nv_lshlrev_b32 v24, 16, v54\nv_and_b32 v25, 0xffff0000, v54\nv_lshlrev_b32 v26, 16, v55\nv_and_b32 v27, 0xffff0000, v55")
    a("v_pk_mul_f32 v[20:21], v[20:21], v[24:25]\nv_pk_mul_f32 v[22:23], v[22:23], v[26:27]")
    a("v_cvt_pk_bf16_f32 v20, v20, v21\nv_cvt_pk_bf16_f32 v22, v22, v23\nv_and_b32 v21, 0xffff0000, v20\nv_lshlrev_b32 v20, 16, v20\nv_and_b32 v23, 0xffff0000, v22\nv_lshlrev_b32 v22, 16, v22")
    a("s_waitcnt vmcnt(0)\nv_lshlrev_b32 v24, 16, v52\nv_and_b32 v25, 0xffff0000, v52\nv_lshlrev_b32 v26, 16, v53\nv_and_b32 v27, 0xffff0000, v53")
    a("v_pk_add_f32 v[20:21], v[20:21], v[24:25]\nv_pk_add_f32 v[22:23], v[22:23], v[26:27]")
    a("v_cvt_pk_bf16_f32 v20, v20, v21\nv_cvt_pk_bf16_f32 v21, v22, v23\nbuffer_store_dwordx2 v[20:21], v7, s[12:15], s42 offen")
    a("s_mov_b64 exec, -1\ns_add_u32 s40, s40, s43\ns_mul_i32 s3, s43, 655360\ns_add_u32 s41, s41, s3\ns_mul_i32 s3, s43, 40960\ns_add_u32 s42, s42, s3\ns_mul_i32 s3, s43, 160\nv_add_u32 v8, s3, v8")
    a("s_cmp_lt_u32 s40, 64\ns_cbranch_scc1 FIN")
    if INSTR:
        a(f"s_memtime s[92:93]\ns_waitcnt lgkmcnt(0)\ns_sub_u32 s92, s92, s90\nv_mov_b32 v16, s92\ns_lshl_b32 s3, s33, 3\ns_add_u32 s3, s3, {sW}\ns_lshl_b32 s3, s3, 2\ns_add_u32 s3, s3, {L.DBG+1024}\nv_mov_b32 v17, 0\nbuffer_store_dword v16, v17, {WS}, s3 offen")
    a("s_waitcnt vmcnt(0)")
    rtdump()
    a("s_waitcnt vmcnt(0)")
    a.put("END")
    hdr = "".join(l for l in open("cdna_kernels/" + KNAME[:-7] + ".s.ref") if l.startswith(";") and "@launch" not in l)
    return wrap(a.text(), KNAME, "grid=(256,1,1) block=(512,1,1) lds=163840", header=hdr)

if __name__ == "__main__":
    from build import build
    cfg = eval(sys.argv[2]) if len(sys.argv) > 2 else {}
    open(sys.argv[1], "w").write(gen(**cfg)); build(sys.argv[1], KNAME)
```

```python
from asmlib import *
OOB = 0x7fffff00

def chain(c, tag, ST):
    a, L, WS, NS, LOGNS, OPT, INSTR = c["a"], c["L"], c["WS"], c["NS"], c["LOGNS"], c["OPT"], c["INSTR"]
    sW, sQ, sR, sS, sBUD, sG = c["sW"], c["sQ"], c["sR"], c["sS"], c["sBUD"], c["sG"]
    slot, budget, srd = c["slot"], c["budget"], c["srd"]
    FLIP = OPT.get("FLIP", 0); DELTA = OPT.get("DELTA", 200); SSTEP = OPT.get("SSTEP", 55)
    POIS = NS < 64
    T = lambda n: n + "_" + tag
    sFL = "s33"
    def stamp(i):
        if INSTR == 2:
            l = a.lab("ST")
            a(f"s_cmp_lg_u32 {sS}, {SSTEP}\ns_cbranch_scc1 {l}\ns_memtime s[60:61]\ns_waitcnt lgkmcnt(0)\ns_mov_b32 s{44+i}, s60")
            a.put(l)
        if INSTR == 3: a(f"s_memtime s[{64+2*i}:{65+2*i}]")
    def dump():
        if INSTR == 3:
            a(f"s_lshl_b32 s3, {sQ}, 5\ns_add_u32 s3, s3, {sR}\ns_lshl_b32 s3, s3, 3\ns_add_u32 s3, s3, {sW}\ns_lshl_b32 s3, s3, 6\ns_and_b32 s4, {sS}, 63\ns_add_u32 s3, s3, s4\ns_lshl_b32 s3, s3, 5\ns_add_u32 s3, s3, {L.DBG + (1 << 20)}\ns_waitcnt lgkmcnt(0)")
            a("v_mov_b32 v254, s64")
            for i in range(1, 8): a(f"v_writelane_b32 v254, s{64+2*i}, {i}")
            a(f"s_mov_b64 exec, 0xff\nv_lshlrev_b32 v255, 2, v0\nbuffer_store_dword v254, v255, {WS}, s3 offen\ns_mov_b64 exec, -1")
    def rtc(i, step, reg=None):
        if OPT.get("RT") and OPT.get("RTC", 1):
            l = a.lab("RC")
            a(f"s_cmp_lg_u32 {reg or sS}, {step}\ns_cbranch_scc1 {l}")
            c["rt"](i)
            a.put(l)
    def stamp0():
        c["rt"](5)
        if INSTR: a("s_memtime s[60:61]\ns_waitcnt lgkmcnt(0)\ns_sub_u32 s55, s60, s90")
    def finish():
        if INSTR:
            a("s_memtime s[60:61]\ns_waitcnt lgkmcnt(0)\ns_sub_u32 s59, s60, s90")
            a(f"s_lshl_b32 s3, {sQ}, 5\ns_add_u32 s3, s3, {sR}\ns_lshl_b32 s3, s3, 3\ns_add_u32 s3, s3, {sW}\ns_lshl_b32 s3, s3, 6\ns_add_u32 s3, s3, {L.DBG+4096}")
            a(f"s_mov_b32 s58, {sBUD}")
            l = a.lab("CAL")
            a("s_memrealtime s[62:63]\ns_waitcnt lgkmcnt(0)\ns_mov_b32 s4, 200")
            a.put(l)
            a("s_memrealtime s[6:7]\ns_memtime s[60:61]\ns_waitcnt lgkmcnt(0)\ns_sub_u32 s4, s4, 1")
            a(f"s_cbranch_scc1 {l}_x\ns_cmp_eq_u32 s6, s62\ns_cbranch_scc1 {l}")
            a.put(l + "_x")
            a("s_mov_b32 s57, s60\ns_mov_b32 s56, s6")
            for i in range(16): a(f"v_mov_b32 v{8+i}, s{44+i}")
            a("v_mov_b32 v4, 0\ns_mov_b64 exec, 1")
            for i in range(4): a(f"buffer_store_dwordx4 v[{8+4*i}:{11+4*i}], v4, {WS}, s3 offen offset:{16*i}")
        a("s_waitcnt vmcnt(0)")
        c["rtdump"]()
        a("s_waitcnt vmcnt(0)\ns_branch END")
    def delay(n):
        while n > 0:
            m = min(n, 64); a(f"s_nop {max(m//4-1,0)}"); n -= m
    def onelane(v, saddr):
        a(f"v_mov_b32 {v}, {OOB}\nv_writelane_b32 {v}, {saddr}, 0")
    xs_dma = c["xs_dma"]
    def flagwait(vaddr, vtmp, sval):
        lp = a.lab("FW"); ok = a.lab("FO")
        a.put(lp)
        a(f"buffer_load_dword {vtmp}, {vaddr}, {WS}, {sFL} offen sc1\ns_waitcnt vmcnt(0)")
        a(f"v_cmp_gt_u32 vcc, {sval}, {vtmp}\ns_cbranch_vccz {ok}")
        budget(lp)
        a.put(ok)
    AF = OPT.get("AF", 0) if ST == "" else 0
    def afwait(off, n, r0, dl):
        lp = a.lab("AFP"); go = a.lab("AFG"); NF = OPT.get("NFA", 2)
        a(f"s_add_u32 s3, {sS}, 1\nv_min_u32 v{r0+NF}, {n-1}, v0\nv_lshlrev_b32 v{r0+NF}, 2, v{r0+NF}\nv_add_u32 v{r0+NF}, {off}, v{r0+NF}")
        for k in range(NF - 1):
            a(f"buffer_load_dword v{r0+k}, v{r0+NF}, {WS}, {sFL} offen sc1"); delay(OPT.get("AFG", 128))
        a.put(lp)
        for k in range(NF):
            a(f"buffer_load_dword v{r0+(k+NF-1)%NF}, v{r0+NF}, {WS}, {sFL} offen sc1\ns_waitcnt vmcnt({NF-1})\nv_cmp_gt_u32 vcc, s3, v{r0+k}\ns_cbranch_vccz {go}")
        budget(lp)
        a.put(go)
        delay(dl)
    def idxreg(v):
        a(f"v_and_b32 v4, 15, v0\nv_cmp_gt_u32 vcc, 8, v4\nv_mov_b32 {v}, 0xeeee\nv_mov_b32 v6, 0x4444\nv_cndmask_b32 {v}, {v}, v6, vcc")
    def tagreg(s):
        a(f"s_lshr_b32 {s}, {sS}, {LOGNS}\ns_and_b32 {s}, {s}, 1\ns_add_u32 {s}, {s}, 1")

    a(f"s_lshl_b32 {sFL}, {sQ}, 12\ns_add_u32 {sFL}, {sFL}, {L.FL}")
    a(f"s_cmp_ge_u32 {sR}, 18\ns_cbranch_scc1 {T('COMB')}")
    MEM, QKM, QX, KX, DUM = 81920, 92160, 94208, 98304, 102400
    a(f"s_cmp_ge_u32 {sW}, 4\ns_cbranch_scc1 {T('PAUX')}")
    idxreg("v5")
    a(f"v_add_u32 v11, {MEM}, v2")
    NB = 5
    def tokgemm():
        R = lambda i: 16 + 4*(i % NB)
        off = lambda i: (i % 2)*20480 + (i // 2)*1024
        for i in range(NB - 1): a(f"ds_read_b128 v[{R(i)}:{R(i)+3}], v9 offset:{off(i)}")
        for i in range(40):
            if i + NB - 1 < 40: a(f"ds_read_b128 v[{R(i+NB-1)}:{R(i+NB-1)+3}], v9 offset:{off(i+NB-1)}")
            a(f"s_waitcnt lgkmcnt({min(NB-1, 39-i)})")
            kk, tt = i // 2, i % 2
            for t in range(2):
                w = 64 + 16*(kk // 2) + 8*t + 4*(kk % 2); d = 224 + 8*t + 4*tt
                a(f"v_mfma_f32_16x16x32_bf16 v[{d}:{d+3}], v[{w}:{w+3}], v[{R(i)}:{R(i)+3}], " + ("0" if kk == 0 else f"v[{d}:{d+3}]"))
    def crit():
        for b in range(10): a(f"ds_read_b128 v[{16+4*b}:{19+4*b}], v11 offset:{1024*b}")
        for b in range(10):
            a(f"s_waitcnt lgkmcnt({9-b})")
            a(f"v_smfmac_f32_16x16x64_bf16 v[56:59], v[{16+4*b}:{19+4*b}], v[{64+16*b}:{71+16*b}], v5")
            a(f"v_smfmac_f32_16x16x64_bf16 v[60:63], v[{16+4*b}:{19+4*b}], v[{72+16*b}:{79+16*b}], v5")
        for i in range(4): a(f"v_permlane32_swap_b32 v{56+i}, v{60+i}")
        a("v_pk_add_f32 v[56:57], v[56:57], v[60:61]\nv_pk_add_f32 v[58:59], v[58:59], v[62:63]")
        a("v_cvt_pk_bf16_f32 v56, v56, v57\nv_cvt_pk_bf16_f32 v57, v58, v59\nds_write_b64 v6, v[56:57]")
    a(f"s_cmp_ge_u32 {sR}, 12\ns_cbranch_scc1 {T('VG')}")
    a(f"v_and_b32 v4, 15, v0\nv_lshlrev_b32 v6, 5, v4\nv_lshrrev_b32 v7, 4, v0\nv_lshl_add_u32 v6, v7, 3, v6\ns_lshl_b32 s3, {sW}, 9\ns_add_u32 s3, s3, {QKM}\nv_add_u32 v6, s3, v6")
    a(f"s_lshr_b32 s3, {sW}, 1\ns_lshl_b32 s3, s3, 10\ns_and_b32 s4, {sW}, 1\ns_lshl_b32 s4, s4, 3\ns_add_u32 s3, s3, s4\ns_add_u32 s3, s3, {QX}\nv_add_u32 v7, s3, v2")
    c["rt"](5)
    a(f"s_mov_b32 {sS}, -1\ns_branch {T('SG_TOK')}")
    a.put(T("SG_LOOP"))
    for i in range(56, 64): a(f"v_mov_b32 v{i}, 0")
    a("s_waitcnt lgkmcnt(0)")
    stamp(0)
    a("s_barrier")
    crit()
    a("s_waitcnt lgkmcnt(0)")
    stamp(1)
    a("s_barrier")
    a(f"s_cmp_eq_u32 {sS}, 63\ns_cbranch_scc1 {T('SG_END')}")
    a.put(T("SG_TOK"))
    a(f"s_add_u32 {sS}, {sS}, 1\ns_and_b32 s3, {sS}, 1\ns_mul_i32 s3, s3, 40960\nv_add_u32 v9, s3, v2")
    tokgemm()
    for t in range(2):
        for tt in range(2):
            d = 224 + 8*t + 4*tt
            a(f"v_cvt_pk_bf16_f32 v{d}, v{d}, v{d+1}\nv_cvt_pk_bf16_f32 v{d+1}, v{d+2}, v{d+3}\nds_write_b64 v7, v[{d}:{d+1}] offset:{4096*t + 2048*tt}")
    dump()
    a(f"s_cmp_lg_u32 {sS}, 0\ns_cbranch_scc1 {T('SG_LOOP')}\ns_barrier")
    c["verdict_r"]()
    c["rt"](6)
    a(f"s_branch {T('SG_LOOP')}")
    a.put(T("SG_END"))
    finish()
    a.put(T("VG"))
    a("v_bfe_u32 v6, v0, 3, 1\nv_lshlrev_b32 v6, 8, v6\nv_bfe_u32 v7, v0, 2, 1\nv_lshl_add_u32 v6, v7, 7, v6\nv_lshrrev_b32 v7, 5, v0\nv_lshl_add_u32 v6, v7, 6, v6\nv_and_b32 v7, 1, v0\nv_lshl_add_u32 v6, v7, 5, v6")
    a(f"v_bfe_u32 v7, v0, 1, 1\nv_lshl_add_u32 v6, v7, 4, v6\nv_bfe_u32 v7, v0, 4, 1\nv_lshl_add_u32 v6, v7, 3, v6\ns_lshl_b32 s3, {sW}, 9\ns_add_u32 s3, s3, {QKM}\nv_add_u32 v6, s3, v6")
    a("v_bfe_u32 v7, v0, 4, 1\nv_lshlrev_b32 v7, 8, v7\nv_and_b32 v8, 15, v0\nv_lshl_add_u32 v7, v8, 3, v7\nv_add_u32 v7, s3, v7")
    a(f"s_sub_u32 s4, {sR}, 12\ns_lshl_b32 s4, s4, 2\ns_add_u32 s4, s4, {sW}")
    a(f"s_lshl_b32 s3, s4, 9\nv_add_u32 v10, s3, v2\nv_mov_b32 v8, {OOB}\nv_cmp_gt_u32 vcc, 32, v0\nv_cndmask_b32 v10, v8, v10, vcc")
    a("s_lshl_b32 s3, s4, 11\nv_add_u32 v8, s3, v2\ns_lshl_b32 s3, s4, 2")
    onelane("v15", "s3")
    for i in range(4): a(f"v_mov_b32 v{240+i}, -1")
    a(f"s_mov_b32 {sS}, -1\ns_mov_b32 s37, 0")
    c["rt"](5)
    a(f"s_branch {T('VG_TOK')}")
    a.put(T("VG_LOOP"))
    for i in range(56, 64): a(f"v_mov_b32 v{i}, 0")
    slot("s34", L.VMS, L.VM); slot("s35", L.VMS, L.VM, NS - 1)
    a("s_barrier")
    crit()
    a("ds_read_b64_tr_b16 v[56:57], v7\nds_read_b64_tr_b16 v[58:59], v7 offset:128\ns_waitcnt lgkmcnt(1)\nv_min_u32 v56, -2, v56\nv_min_u32 v57, -2, v57\ns_waitcnt lgkmcnt(0)\nv_min_u32 v58, -2, v58\nv_min_u32 v59, -2, v59")
    a(f"buffer_store_dwordx4 v[56:59], v10, {WS}, s34 offen{ST}")
    stamp(0)
    if POIS: a(f"buffer_store_dwordx4 v[240:243], v10, {WS}, s35 offen{ST}")
    a("s_barrier")
    a(f"s_cmp_lt_u32 {sS}, 61\ns_cbranch_scc1 {T('VG_TOK')}\ns_cmp_eq_u32 {sS}, 63\ns_cbranch_scc1 {T('VG_END')}\ns_add_u32 {sS}, {sS}, 1\ns_waitcnt vmcnt(0)\ns_branch {T('VG_LOOP')}")
    a.put(T("VG_TOK"))
    a(f"s_and_b32 s3, s37, 1\ns_mul_i32 s3, s3, 40960\nv_add_u32 v9, s3, v2\ns_and_b32 s36, s37, {NS-1}\ns_mul_i32 s36, s36, {L.VXS}\ns_add_u32 s36, s36, {L.VX}\ns_add_u32 s36, s36, {sG}\ns_add_u32 s37, s37, 1\nv_mov_b32 v14, s37")
    tokgemm()
    a(f"s_cmp_lg_u32 s37, 1\ns_cbranch_scc1 {T('VG_ST')}\ns_barrier")
    c["verdict_r"]()
    a.put(T("VG_ST"))
    for tt in range(2):
        for t in range(2):
            d = 224 + 8*t + 4*tt; o = 16 + 4*tt + 2*t
            a(f"v_cvt_pk_bf16_f32 v{o}, v{d}, v{d+1}\nv_cvt_pk_bf16_f32 v{o+1}, v{d+2}, v{d+3}")
        a(f"buffer_store_dwordx4 v[{16+4*tt}:{19+4*tt}], v8, {WS}, s36 offen offset:{1024*tt}{ST}")
    a(f"s_waitcnt vmcnt(0)\nbuffer_store_dword v14, v15, {WS}, {sFL} offen{ST}")
    stamp(1)
    rtc(6, 1, "s37"); rtc(1, 3, "s37")
    dump()
    a(f"s_lshl_b32 s3, {sS}, 1\ns_add_u32 s3, s3, 2\ns_add_u32 s4, {sS}, 3\ns_min_i32 s3, s3, s4\ns_cmp_le_i32 s37, s3\ns_cbranch_scc1 {T('VG_2')}\ns_add_u32 {sS}, {sS}, 1\ns_branch {T('VG_LOOP')}")
    a.put(T("VG_2"))
    a(f"s_barrier\ns_branch {T('VG_TOK')}")
    a.put(T("VG_END"))
    finish()

    a.put(T("PAUX"))
    a(f"s_setprio 2\ns_sub_u32 s14, {sW}, 4")
    a(f"s_lshl_b32 s3, s14, 10\nv_add_u32 v4, s3, v2\nv_add_u32 v12, {MEM}, v4\ns_cmp_lt_u32 s14, 2\ns_cselect_b64 vcc, -1, 0")
    a(f"v_mov_b32 v8, {OOB}\nv_cndmask_b32 v8, v8, v4, vcc\nv_add_u32 v13, {DUM}, v2\nv_add_u32 v5, 8192, v12\nv_cndmask_b32 v13, v13, v5, vcc")
    a("ds_write_b128 v12, v[200:203]\nds_write_b128 v12, v[204:207] offset:4096\nds_write_b128 v13, v[208:211]")
    SPREAD = OPT.get("SPREAD", 0)
    if SPREAD:
        a(f"s_cmp_ge_u32 {sR}, 12\ns_cselect_b32 s3, 2, 0\ns_xor_b32 s3, s3, s14\ns_lshl_b32 s40, {sR}, 1\ns_add_u32 s40, s40, s3\ns_cmp_lt_u32 s3, 2\ns_cselect_b32 s40, s40, -1")
        a(f"s_lshl_b32 s3, {sR}, 2\ns_add_u32 s3, s3, s14\ns_and_b32 s4, s3, 0xfffffff3\ns_add_u32 s3, {sR}, 36\ns_cmp_eq_u32 s4, 2\ns_cselect_b32 s40, s3, s40")
    else:
        a(f"s_lshl_b32 s40, {sR}, 2\ns_add_u32 s40, s40, s14\ns_cmp_lt_u32 {sR}, 10\ns_cselect_b32 s40, s40, -1")
    a(f"s_lshr_b32 s3, {sR}, 1\ns_lshr_b32 s4, s40, 2\ns_cmp_lt_i32 s40, 0\ns_cselect_b32 s3, s3, s4\ns_lshl_b32 s3, s3, 7\ns_add_u32 s3, s3, 2048\nv_mov_b32 v140, s3")
    a("s_max_i32 s5, s40, 0\ns_lshr_b32 s3, s5, 2\ns_lshl_b32 s3, s3, 15\ns_and_b32 s4, s5, 3\ns_lshl_b32 s4, s4, 9\ns_add_u32 s3, s3, s4")
    a("v_and_b32 v142, 31, v0\nv_lshlrev_b32 v141, 4, v142\nv_lshrrev_b32 v143, 5, v0\nv_lshl_add_u32 v141, v143, 11, v141\nv_add_u32 v141, s3, v141")
    a("s_lshl_b32 s3, s5, 8\nv_lshlrev_b32 v142, 3, v142\nv_lshl_add_u32 v142, v143, 2, v142\nv_add_u32 v142, s3, v142\nv_mov_b32 v143, -1")
    a(f"s_lshr_b32 s41, {sQ}, 2\ns_lshl_b32 s41, s41, 14")
    if AF:
        a(f"s_lshl_b32 s3, {sR}, 2\ns_add_u32 s4, s3, 3584\ns_add_u32 s3, s3, {3456-48}\ns_cmp_lt_u32 {sR}, 12\ns_cselect_b32 s3, s4, s3\ns_cmp_eq_u32 s14, {OPT.get('AFW', 3)}\ns_cselect_b32 s3, s3, {OOB}")
        onelane("v200", "s3")
    def afsig():
        if AF: a(f"buffer_store_dword v201, v200, {WS}, {sFL} offen")
    def afpre():
        if AF: a(f"s_add_u32 s3, {sS}, 1\nv_mov_b32 v201, s3")
    A3 = lambda d, x, y, z: f"v_bitop3_b32 {d}, {x}, {y}, {z} bitop3:0x80"
    def h3task():
        skip = a.lab("H3N"); done = a.lab("H3D"); lp = a.lab("H3F"); go = a.lab("H3G")
        slot("s36", L.H3S, L.H3, NS - 1, False); slot("s37", L.H1S, L.H1); slot("s35", L.H1S, L.H1, NS - 1)
        a(f"s_sub_u32 s3, {sS}, 1\ns_lshr_b32 s25, s3, {LOGNS}\ns_and_b32 s25, s25, 1\ns_add_u32 s25, s25, 1")
        a("s_xor_b32 s3, s41, 16384\ns_add_u32 s16, s36, s41\ns_add_u32 s17, s16, 4096\ns_add_u32 s18, s36, s3\ns_add_u32 s19, s18, 4096")
        NF = 3
        a(f"s_lshl_b32 s43, {sS}, 1")
        for k in range(NF - 1):
            a(f"buffer_load_dword v{144+k}, v140, {WS}, {sFL} offen sc1"); delay(64)
        a.put(lp)
        for k in range(NF):
            a(f"buffer_load_dword v{144+(k+NF-1)%NF}, v140, {WS}, {sFL} offen sc1\ns_waitcnt vmcnt({NF-1})\nv_cmp_gt_u32 vcc, s43, v{144+k}\ns_cbranch_vccz {go}")
        budget(lp)
        a.put(go)
        stamp(6)
        a(f"s_cmp_lt_i32 s40, 0\ns_cbranch_scc1 {skip}")
        a(f"s_cmp_lg_u32 {sS}, 1\ns_cbranch_scc1 {go}_c\ns_waitcnt vmcnt(0)\nv_max3_u32 v147, v144, v145, v146\nv_and_b32 v147, 1, v147\nv_lshl_add_u32 v141, v147, 13, v141")
        a.put(go + "_c")
        delay(DELTA)
        lp = a.lab("H3P"); ok = a.lab("H3K")
        NP = OPT.get("NP", 1); GAP = OPT.get("GAP", 150)
        RB = [148, 168, 184]
        def hiss(k):
            for q in range(4): a(f"buffer_load_dwordx4 v[{RB[k]+4*q}:{RB[k]+3+4*q}], v141, {WS}, s{16+q} offen sc1")
        def hchk(k):
            b = RB[k]; n = 4*(NP - 1)
            a(f"s_waitcnt vmcnt({3+n})\n" + A3("v52", "s25", f"v{b}", f"v{b+1}") + "\n" + A3("v52", "v52", f"v{b+2}", f"v{b+3}"))
            for i in range(1, 4):
                r = b + 4*i; p = b if i == 1 else 164
                a(f"s_waitcnt vmcnt({3-i+n})\nv_pk_add_f32 v[164:165], v[{p}:{p+1}], v[{r}:{r+1}]\nv_pk_add_f32 v[166:167], v[{p+2}:{p+3}], v[{r+2}:{r+3}]\n" + A3("v52", "v52", f"v{r}", f"v{r+1}") + "\n" + A3("v52", "v52", f"v{r+2}", f"v{r+3}"))
            a("v_permlane32_swap_b32 v164, v166\nv_permlane32_swap_b32 v165, v167\nv_cmp_eq_u32 vcc, 0, v52\nv_pk_add_f32 v[164:165], v[164:165], v[166:167]")
            a("v_cvt_pk_bf16_f32 v166, v164, v165\nv_min_u32 v166, -2, v166")
        for k in range(NP - 1):
            hiss(k); delay(GAP)
        a.put(lp)
        a(f"s_sub_u32 {sBUD}, {sBUD}, 1\ns_cbranch_scc1 END")
        for k in range(NP):
            hiss((k + NP - 1) % NP); hchk(k)
            a(f"s_cbranch_vccnz {lp}" if k == NP - 1 else f"s_cbranch_vccz {ok}")
        a.put(ok)
        a(f"buffer_store_dword v166, v142, {WS}, s37 offen{ST}")
        stamp(7)
        rtc(6, 1)
        if POIS: a(f"buffer_store_dword v143, v142, {WS}, s35 offen{ST}")
        if INSTR in (1, 2):
            a(f"s_memtime s[60:61]\ns_lshl_b32 s3, {sQ}, 8\ns_lshl_b32 s4, {sS}, 2\ns_add_u32 s3, s3, s4\ns_add_u32 s3, s3, {L.DBG+262144-4}\ns_cmp_eq_u32 s40, 0\ns_cselect_b32 s4, 0, {OOB}")
            a(f"s_waitcnt lgkmcnt(0)\ns_sub_u32 s60, s60, s90\nv_mov_b32 v164, s60\nv_mov_b32 v165, s4\nbuffer_store_dword v164, v165, {WS}, s3 offen")
        if OPT.get("D1"): a(f"s_sleep {OPT['D1']}")
        a(f"s_branch {done}")
        a.put(skip)
        if OPT.get("D2"): a(f"s_sleep {OPT['D2']}")
        a.put(done)
    def mem0(got):
        c["verdict_w"]()
        a("s_barrier")
        c["verdict_r"]()
        stamp0()
        a(f"s_branch {got}")
    def h1poll(got, sl):
        if sl: a(f"s_sleep {sl}")
        slot("s34", L.H1S, L.H1)
        a("s_add_u32 s35, s34, 4096\ns_add_u32 s36, s34, 8192")
        def issue(r): a(f"buffer_load_dwordx4 v[{r}:{r+3}], v4, {WS}, s34 offen sc1\nbuffer_load_dwordx4 v[{r+4}:{r+7}], v4, {WS}, s35 offen sc1\nbuffer_load_dwordx4 v[{r+8}:{r+11}], v8, {WS}, s36 offen sc1")
        def check(r, n):
            a(f"s_waitcnt vmcnt({n+2})\nds_write_b128 v12, v[{r}:{r+3}]\nv_max3_u32 v52, v{r}, v{r+1}, v{r+2}")
            a(f"s_waitcnt vmcnt({n+1})\nds_write_b128 v12, v[{r+4}:{r+7}] offset:4096\nv_max3_u32 v52, v{r+3}, v{r+4}, v52\nv_max3_u32 v52, v{r+5}, v{r+6}, v52")
            a(f"s_waitcnt vmcnt({n})\nds_write_b128 v13, v[{r+8}:{r+11}]\nv_max3_u32 v52, v{r+7}, v{r+8}, v52\nv_max3_u32 v52, v{r+9}, v{r+10}, v52\nv_max_u32 v52, v{r+11}, v52")
            a(f"v_cmp_eq_u32 vcc, -1, v52\ns_cbranch_vccz {got}\ns_waitcnt lgkmcnt(0)")
        lp = a.lab("H1P")
        P1 = OPT.get("P1", 2)
        if P1 == 1:
            a.put(lp); issue(116); check(116, 0)
        else:
            for k in range(P1 - 1):
                issue(116 + 12*k)
                if OPT.get("P1D"): delay(OPT["P1D"])
            a.put(lp)
            for k in range(P1):
                issue(116 + 12*((k + P1 - 1) % P1)); check(116 + 12*k, 3*(P1 - 1))
        budget(lp)
    a(f"s_cmp_ge_u32 {sR}, 12\ns_cbranch_scc1 {T('VA')}")
    a(f"s_cmp_eq_u32 s14, 3\ns_cselect_b32 s3, 0, {KX-QX}\ns_cmp_eq_u32 s14, 1\ns_cselect_b32 s4, 2048, 0\ns_add_u32 s3, s3, s4\ns_add_u32 s3, s3, {QX}\nv_add_u32 v14, s3, v2")
    a(f"s_cmp_eq_u32 s14, 0\ns_cselect_b32 s3, 0, 2048\ns_add_u32 s3, s3, {QX}\nv_add_u32 v15, s3, v2\nv_add_u32 v7, {QKM}, v3")
    a("v_and_b32 v6, 7, v0\nv_lshrrev_b32 v9, 4, v0\nv_lshl_add_u32 v11, v6, 2, v9\nv_lshlrev_b32 v11, 4, v11\ns_lshl_b32 s3, s14, 9\nv_add_u32 v11, s3, v11")
    a("v_lshl_add_u32 v9, v9, 3, v6\nv_lshlrev_b32 v9, 4, v9\nv_add_u32 v9, 768, v9\ns_cmp_eq_u32 s14, 2\ns_cselect_b64 vcc, -1, 0\nv_cndmask_b32 v11, v11, v9, vcc")
    a(f"s_mul_i32 s3, {sR}, 1280\nv_add_u32 v11, s3, v11\ns_mov_b32 s5, 0x00ff00ff\ns_cselect_b32 s4, 0, s5\ns_mov_b64 vcc, s[4:5]\nv_mov_b32 v9, {OOB}\nv_cndmask_b32 v11, v9, v11, vcc")
    a(f"s_lshl_b32 s3, {sR}, 2\ns_add_u32 s3, s3, s14\ns_lshl_b32 s4, s3, 10\nv_add_u32 v10, s4, v2\ns_lshl_b32 s3, s3, 2\ns_add_u32 s3, s3, 128")
    onelane("v6", "s3")
    a(f"s_mov_b32 {sS}, 0")
    mem0(T("SA_GOT"))
    a.put(T("SA_LOOP"))
    h3task()
    h1poll(T("SA_GOT"), 0)
    a.put(T("SA_GOT"))
    stamp(0)
    afpre()
    a("s_waitcnt lgkmcnt(0)\ns_barrier")
    afsig()
    stamp(1)
    a("ds_read_b128 v[24:27], v14\nds_read_b128 v[28:31], v14 offset:1024\nds_read_b128 v[32:35], v15\nds_read_b128 v[36:39], v15 offset:1024")
    slot("s35", L.H2S, L.H2); slot("s36", L.HXS, L.HX); tagreg("s37")
    a(f"s_add_u32 s3, {sS}, 1\nv_mov_b32 v9, s3\ns_waitcnt lgkmcnt(0)")
    a(f"s_cmp_eq_u32 s14, 2\ns_cbranch_scc1 {T('SA_2')}\ns_cmp_eq_u32 s14, 3\ns_cbranch_scc1 {T('SA_3')}")
    def qkread():
        a("s_barrier")
        stamp(2)
        for i in range(4): a(f"ds_read_b64_tr_b16 v[{40+2*i}:{41+2*i}], v7 offset:{512*i}")
    def h2out(A0, A1):
        a(f"s_waitcnt lgkmcnt(2)\nv_mfma_f32_16x16x32_bf16 v[48:51], v[{A0}:{A0+3}], v[40:43], 0\ns_waitcnt lgkmcnt(0)\nv_mfma_f32_16x16x32_bf16 v[48:51], v[{A1}:{A1+3}], v[44:47], v[48:51]")
        for i in range(4): a(f"v_and_or_b32 v{48+i}, v{48+i}, -4, s37")
        a(f"buffer_store_dwordx4 v[48:51], v11, {WS}, s35 offen{ST}")
        stamp(3)
        rtc(4, 0)
    qkread(); h2out(24, 28)
    a(f"s_branch {T('SA_X')}")
    a.put(T("SA_2"))
    qkread(); h2out(40, 44)
    a.put(T("SA_X"))
    a("v_mfma_f32_16x16x32_bf16 v[56:59], v[24:27], v[32:35], 0\nv_mfma_f32_16x16x32_bf16 v[56:59], v[28:31], v[36:39], v[56:59]")
    a(f"s_branch {T('SA_F')}")
    a.put(T("SA_3"))
    qkread()
    a("s_waitcnt lgkmcnt(0)\nv_mfma_f32_16x16x32_bf16 v[52:55], v[40:43], v[24:27], 0\nv_mfma_f32_16x16x32_bf16 v[56:59], v[40:43], v[32:35], 0")
    a("v_mfma_f32_16x16x32_bf16 v[52:55], v[44:47], v[28:31], v[52:55]\nv_mfma_f32_16x16x32_bf16 v[56:59], v[44:47], v[36:39], v[56:59]")
    for i in range(4): a(f"v_permlane32_swap_b32 v{52+i}, v{56+i}")
    a.put(T("SA_F"))
    a(f"buffer_store_dwordx4 v[56:59], v10, {WS}, s36 offen{ST}\ns_waitcnt vmcnt(0)\nbuffer_store_dword v9, v6, {WS}, {sFL} offen{ST}")
    stamp(4)
    a(f"s_cmp_eq_u32 {sS}, 63\ns_cbranch_scc1 {T('SA_END')}\ns_cmp_eq_u32 {sS}, 62\ns_cbranch_scc1 {T('SA_N')}")
    a(f"s_mul_i32 s5, s14, 10240\ns_and_b32 s3, {sS}, 1\ns_mul_i32 s3, s3, 40960\ns_add_u32 s3, s3, s5\ns_mul_i32 s4, {sS}, 40960\ns_add_u32 s4, s4, s5\ns_add_u32 s4, s4, {L.XN + 2*40960}")
    xs_dma("s3", "s4")
    a.put(T("SA_N"))
    stamp(5)
    dump()
    a(f"s_add_u32 {sS}, {sS}, 1\ns_branch {T('SA_LOOP')}")
    a.put(T("SA_END"))
    finish()
    a.put(T("VA"))
    a(f"s_sub_u32 s15, {sR}, 12")
    a(f"s_mul_i32 s3, s15, 12288\ns_lshl_b32 s4, s14, 11\ns_add_u32 s4, s4, s3\nv_add_u32 v14, s4, v2")
    a(f"s_add_u32 s4, s3, 1024\nv_add_u32 v15, s4, v2\nv_mov_b32 v9, {OOB}\ns_cmp_eq_u32 s14, 1\ns_cselect_b64 vcc, -1, 0\nv_cndmask_b32 v15, v9, v15, vcc")
    a(f"s_lshl_b32 s4, s14, 9\ns_add_u32 s4, s4, s3\ns_add_u32 s4, s4, {3072-512}\nv_add_u32 v7, s4, v2\nv_cmp_le_u32 vcc, 32, v0\nv_cndmask_b32 v7, v9, v7, vcc")
    a("s_mul_i32 s3, s14, 5120\ns_lshl_b32 s4, s15, 10\ns_add_u32 s4, s4, s3\nv_add_u32 v10, s4, v2")
    a("v_and_b32 v6, 15, v0\nv_lshlrev_b32 v11, 4, v6\nv_bfe_u32 v64, v0, 4, 1\nv_lshl_add_u32 v11, v64, 3, v11\ns_lshl_b32 s4, s15, 8\ns_add_u32 s4, s4, s3\ns_add_u32 s4, s4, 4096\nv_add_u32 v11, s4, v11\nv_cndmask_b32 v11, v9, v11, vcc")
    a("v_mov_b32 v65, 0xf149f2ca\nv_mov_b32 v66, 0")
    for i in range(4): a(f"v_cndmask_b32 v{108+i}, v65, v66, vcc")
    a("s_lshl_b32 s3, s14, 4\nv_add_u32 v6, s3, v6\nv_lshrrev_b32 v64, 4, v0\nv_lshlrev_b32 v64, 2, v64\nv_sub_u32 v6, v6, v64")
    for i in range(8): a(f"v_cmp_le_i32 vcc, {i if i < 4 else 12+i}, v6\nv_cndmask_b32 v{100+i}, v65, v66, vcc")
    a("v_min_u32 v6, 11, v0\nv_lshlrev_b32 v6, 2, v6\ns_mul_i32 s3, s15, 48\ns_add_u32 s3, s3, 128\nv_add_u32 v6, s3, v6")
    a("s_lshl_b32 s3, s14, 2\ns_add_u32 s3, s3, s15\ns_lshl_b32 s3, s3, 2\ns_add_u32 s3, s3, 384")
    onelane("v112", "s3")
    a("s_mov_b32 s38, 0x3dd53b95\nv_mov_b32 v114, s38\nv_mov_b32 v115, s38")
    a("s_cmp_lt_u32 s15, 4\ns_cselect_b32 s39, 1, 0\ns_cmp_lt_u32 s14, 2\ns_cselect_b32 s39, s39, 0")
    a(f"s_mov_b32 {sS}, 0\ns_mov_b32 s42, 2")
    mem0(T("VA_GOT"))
    a.put(T("VA_LOOP"))
    if OPT.get("PXS", 1) and not SPREAD:
        a(f"s_cmp_lg_u32 s39, 0\ns_cbranch_scc1 {T('VA_P')}")
    h3task()
    a.put(T("VA_P"))
    h1poll(T("VA_GOT"), 0)
    a.put(T("VA_GOT"))
    stamp(0)
    afpre()
    a("s_waitcnt lgkmcnt(0)\ns_barrier")
    afsig()
    stamp(1)
    a("s_barrier")
    def nextseg():
        a(f"s_mul_i32 s5, s14, 10240\ns_and_b32 s3, s42, 1\ns_mul_i32 s3, s3, 40960\ns_add_u32 s3, s3, s5\ns_mul_i32 s4, s42, 40960\ns_add_u32 s4, s4, s5\ns_add_u32 s4, s4, {L.XN}\ns_add_u32 s42, s42, 1")
        xs_dma("s3", "s4")
    a(f"s_cmp_ge_u32 {sS}, 2\ns_cbranch_scc1 {T('VA_R')}")
    nextseg()
    a("s_waitcnt vmcnt(0)\ns_barrier")
    a.put(T("VA_R"))
    a(f"s_cmp_ge_u32 {sS}, 60\ns_cbranch_scc1 {T('VA_S')}")
    nextseg()
    a.put(T("VA_S"))
    a(f"s_cmp_eq_u32 s39, 0\ns_cbranch_scc1 {T('VA_N')}")
    slot("s34", L.HXS, L.HX); slot("s37", L.PXS, L.PX)
    a(f"s_add_u32 s35, s34, 4096\ns_add_u32 s36, s34, 8192\ns_add_u32 s3, {sS}, 1\nv_mov_b32 v113, s3")
    flagwait("v6", "v64", "s3")
    stamp(4)
    for p in range(3):
        for i, v in enumerate(("v14", "v15", "v7")): a(f"buffer_load_dwordx4 v[{64+12*p+4*i}:{67+12*p+4*i}], {v}, {WS}, s{34+p} offen sc1")
    a("s_waitcnt vmcnt(3)")
    for i in range(6): a(f"v_pk_add_f32 v[{64+2*i}:{65+2*i}], v[{64+2*i}:{65+2*i}], v[{76+2*i}:{77+2*i}]")
    for i in range(6): a(f"v_pk_add_f32 v[{64+2*i}:{65+2*i}], v[{64+2*i}:{65+2*i}], v[{100+2*i}:{101+2*i}]")
    a("s_waitcnt vmcnt(0)")
    for i in range(6): a(f"v_pk_add_f32 v[{64+2*i}:{65+2*i}], v[{64+2*i}:{65+2*i}], v[{88+2*i}:{89+2*i}]")
    a("v_max3_f32 v76, v64, v65, v66")
    for i in range(4): a(f"v_max3_f32 v76, v76, v{67+2*i}, v{68+2*i}")
    a("v_max_f32 v76, v76, v75")
    def xred(op):
        a(f"v_mov_b32 v77, v76\nv_permlane16_swap_b32 v76, v77\n{op} v76, v76, v77\nv_mov_b32 v77, v76\nv_permlane32_swap_b32 v76, v77\n{op} v76, v76, v77")
    xred("v_max_f32")
    a("v_mul_f32 v78, s38, v76")
    for i in range(6): a(f"v_pk_fma_f32 v[{64+2*i}:{65+2*i}], v[{64+2*i}:{65+2*i}], v[114:115], v[78:79] op_sel_hi:[1,1,0] neg_lo:[0,0,1] neg_hi:[0,0,1]")
    for i in range(12): a(f"v_exp_f32 v{64+i}, v{64+i}")
    a("v_pk_add_f32 v[76:77], v[64:65], v[66:67]")
    for i in range(2, 6): a(f"v_pk_add_f32 v[76:77], v[76:77], v[{64+2*i}:{65+2*i}]")
    a("v_add_f32 v76, v76, v77")
    xred("v_add_f32")
    a("v_rcp_f32 v78, v76")
    for i in range(6): a(f"v_pk_mul_f32 v[{64+2*i}:{65+2*i}], v[{64+2*i}:{65+2*i}], v[78:79] op_sel_hi:[1,0]")
    for i in range(6): a(f"v_cvt_pk_bf16_f32 v{80+i}, v{64+2*i}, v{65+2*i}")
    a(f"buffer_store_dwordx4 v[80:83], v10, {WS}, s37 offen{ST}\nbuffer_store_dwordx2 v[84:85], v11, {WS}, s37 offen{ST}")
    a(f"s_waitcnt vmcnt(0)\nbuffer_store_dword v113, v112, {WS}, {sFL} offen{ST}")
    stamp(5)
    a.put(T("VA_N"))
    dump()
    a(f"s_add_u32 {sS}, {sS}, 1\ns_cmp_lt_u32 {sS}, 64\ns_cbranch_scc1 {T('VA_LOOP')}")
    finish()

    a.put(T("COMB"))
    ZM, PT, PM = 65536, 81920, 83968
    OST = OPT.get("OST", 0); OSTG = 86016
    a(f"s_sub_u32 s15, {sR}, 18")
    a(f"s_cmp_ge_u32 {sW}, 4\ns_cbranch_scc1 {T('CAUX')}")
    idxreg("v5")
    a(f"s_mul_i32 s3, {sW}, 3072\nv_add_u32 v4, s3, v2")
    a(f"v_and_b32 v6, 15, v0\nv_lshlrev_b32 v6, 4, v6\nv_bfe_u32 v7, v0, 4, 1\nv_lshl_add_u32 v6, v7, 3, v6\nv_lshrrev_b32 v7, 5, v0\nv_lshl_add_u32 v6, v7, 10, v6\ns_lshl_b32 s3, {sW}, 8\ns_add_u32 s3, s3, {ZM}\nv_add_u32 v6, s3, v6")
    a(f"s_lshl_b32 s3, {sW}, 12\nv_add_u32 v8, s3, v2\ns_mul_i32 s3, {sW}, 12288\nv_add_u32 v14, s3, v2")
    a(f"s_lshr_b32 s4, {sW}, 1\ns_lshl_b32 s3, s4, 11\nv_add_u32 v11, s3, v2\ns_and_b32 s5, {sW}, 1\ns_mul_i32 s3, s5, 5120\nv_add_u32 v12, s3, v2")
    a(f"v_and_b32 v13, 7, v0\nv_lshlrev_b32 v13, 7, v13\nv_lshrrev_b32 v7, 4, v0\nv_lshl_add_u32 v13, v7, 4, v13\nv_bfe_u32 v7, v0, 3, 1\nv_lshl_add_u32 v13, v7, 6, v13\ns_mul_i32 s3, {sQ}, 81920\ns_lshl_b32 s6, s15, 13\ns_add_u32 s3, s3, s6\ns_lshl_b32 s6, {sW}, 11\ns_add_u32 s3, s3, s6\nv_add_u32 v13, s3, v13")
    a(f"v_min_u32 v15, 5, v0\nv_lshlrev_b32 v15, 2, v15\ns_mul_i32 s3, {sW}, 24\nv_add_u32 v15, s3, v15")
    a("v_and_b32 v60, 3, v0\nv_lshlrev_b32 v60, 2, v60\ns_lshl_b32 s3, s5, 4\ns_add_u32 s3, s3, 384\nv_add_u32 v60, s3, v60")
    a(f"s_add_u32 s3, s15, {sW}\ns_cmp_eq_u32 s3, 0\ns_mov_b32 s4, {OOB}\ns_cselect_b32 s3, 1024, s4")
    onelane("v61", "s3")
    a(f"s_mov_b32 s43, {L.OUTP - 2*655360}")
    a(f"s_lshl_b32 s3, s15, 15\ns_lshl_b32 s4, {sW}, 9\ns_add_u32 s3, s3, s4\ns_lshr_b32 s5, {sQ}, 2\ns_lshl_b32 s5, s5, 14\ns_add_u32 s3, s3, s5\ns_and_b32 s4, {sQ}, 3\ns_lshl_b32 s4, s4, 11\ns_add_u32 s3, s3, s4")
    a("v_and_b32 v62, 7, v0\nv_lshrrev_b32 v3, 5, v0\nv_lshlrev_b32 v3, 8, v3\nv_lshl_add_u32 v3, v62, 5, v3\nv_bfe_u32 v7, v0, 4, 1\nv_lshl_add_u32 v3, v7, 4, v3\nv_bfe_u32 v7, v0, 3, 1\nv_lshl_add_u32 v3, v7, 13, v3\nv_add_u32 v3, s3, v3")
    a("v_lshrrev_b32 v7, 4, v0\nv_lshl_add_u32 v1, v7, 3, v62\nv_lshlrev_b32 v1, 4, v1\nv_add_u32 v1, %d, v1" % PT)
    a(f"s_lshl_b32 s38, {sW}, 10")
    def vxloads(add):
        slot("s35", L.VXS, L.VX, add)
        a("s_add_u32 s36, s35, 4096\ns_add_u32 s37, s35, 8192")
        for i in range(12): a(f"buffer_load_dwordx4 v[{160+4*i}:{163+4*i}], v14, {WS}, s{35+i//4} offen offset:{(i%4)*1024} sc1")
    PZA = OPT.get("PZA", 0)
    def pxloads(va="v12"):
        slot("s35", L.PXS, L.PX, NS - 1)
        a("s_add_u32 s36, s35, 4096")
        for h in range(4): a(f"buffer_load_dwordx4 v[{208+4*h}:{211+4*h}], {va}, {WS}, s35 offen offset:{1024*h} sc1")
        a(f"buffer_load_dwordx4 v[224:227], {va}, {WS}, s36 offen sc1")
    VXI = OPT.get("VXI", 1)
    def zx(add, nxt=False):
        if nxt:
            slot("s35", L.VXS, L.VX, 2)
            a((f"s_sub_u32 s3, {sS}, 2\ns_cmp_ge_u32 s3, 60" if OPT.get("EV", 1) == 1 else f"s_cmp_ge_u32 {sS}, 62") + f"\ns_cselect_b32 s35, {OOB - 65536}, s35\ns_add_u32 s36, s35, 4096\ns_add_u32 s37, s35, 8192")
        a(f"s_add_u32 s3, {sS}, {add}\ns_and_b32 s3, s3, 3\ns_lshl_b32 s3, s3, 14\nv_add_u32 v7, s3, v8")
        for i in range(6):
            for ct in range(4):
                for tt in range(2):
                    w = 64 + 32*(i // 2) + 8*ct + 4*(i % 2); d = 16 + 8*ct + 4*tt; x = 160 + 8*i + 4*tt
                    a(f"v_mfma_f32_16x16x32_bf16 v[{d}:{d+3}], v[{x}:{x+3}], v[{w}:{w+3}], " + ("0" if i == 0 else f"v[{d}:{d+3}]"))
            if nxt and i > 0:
                for k in (2*i - 2, 2*i - 1) + ((10, 11) if i == 5 else ()):
                    a(f"buffer_load_dwordx4 v[{160+4*k}:{163+4*k}], v14, {WS}, s{35+k//4} offen offset:{(k%4)*1024} sc1")
        for ct in range(4):
            d = 16 + 8*ct
            for i in range(4): a(f"v_cvt_pk_bf16_f32 v{d+i}, v{d+2*i}, v{d+2*i+1}")
            a(f"ds_write_b128 v7, v[{d}:{d+3}] offset:{1024*ct}")
    PAG = [228, 232, 236, 240, 244, 248, 252, 48, 52, 56]; PAA = [128 + 4*i for i in range(10)]
    def pzreads(PA=PAG, vb="v11", t0="v9", t1="v10", part=3):
        a(f"s_add_u32 s3, {sS}, 2\ns_and_b32 s3, s3, 3\ns_lshl_b32 s4, s3, 14\nv_add_u32 {t0}, s4, {vb}\ns_lshl_b32 s3, s3, 12\ns_add_u32 s3, s3, {ZM}\nv_add_u32 {t1}, s3, {vb}")
        for cc in range(2):
            if part & 1:
                for h in range(4): a(f"ds_read_b128 v[{PA[5*cc+h]}:{PA[5*cc+h]+3}], {t0} offset:{4096*h + 1024*cc}")
            if part & 2: a(f"ds_read_b128 v[{PA[5*cc+4]}:{PA[5*cc+4]+3}], {t1} offset:{1024*cc}")
    def pz(PA=PAG, o=20):
        for h in range(5):
            for cc in range(2):
                d = o + 8*cc
                a(f"v_mfma_f32_16x16x32_bf16 v[{d}:{d+3}], v[{PA[5*cc+h]}:{PA[5*cc+h]+3}], v[{208+4*h}:{211+4*h}], " + ("0" if h == 0 else f"v[{d}:{d+3}]"))
        for i in range(4): a(f"v_and_or_b32 v{o+4+i}, v{o+i}, -4, 1\nv_and_or_b32 v{o+8+i}, v{o+8+i}, -4, 1")
        for i in range(4): a(f"v_mov_b32 v{o+i}, v{o+4+i}")
        for i in range(4): a(f"v_mov_b32_dpp v{o+i}, v{o+8+i} row_ror:8 row_mask:0xf bank_mask:0xc")
        for i in range(4): a(f"v_mov_b32_dpp v{o+8+i}, v{o+4+i} row_ror:8 row_mask:0xf bank_mask:0x3")
    OSC = OPT.get("OSC", " sc1")
    def outp(o=20, va="v13"):
        if not OPT.get("NOOUTP"): a(f"buffer_store_dwordx4 v[{o}:{o+3}], {va}, {WS}, s43 offen{OSC}\nbuffer_store_dwordx4 v[{o+8}:{o+11}], {va}, {WS}, s43 offen offset:1024{OSC}")
    OC = OPT.get("OC", 0); assert not (OC and OST)
    if OC == 1:
        for i in range(4): a(f"v_mov_b32 v{32+i}, 0")
        for k in range(60, 64):
            a(f"s_add_u32 s3, s43, {(k+2)*655360}\nbuffer_store_dwordx4 v[32:35], v13, {WS}, s3 offen sc1\nbuffer_store_dwordx4 v[32:35], v13, {WS}, s3 offen offset:1024 sc1")
    a(f"s_mov_b32 {sS}, 0\ns_mov_b32 s4, 1")
    flagwait("v15", "v62", "s4")
    c["rt"](5)
    vxloads(0)
    a("s_waitcnt vmcnt(0)")
    zx(0)
    a("s_waitcnt lgkmcnt(0)\ns_barrier")
    ES = OPT.get("ES", 1)
    def cghead():
        slot("s34", L.VMS, L.VM)
        for i in range(32, 48): a(f"v_mov_b32 v{i}, 0")
        a(f"s_and_b32 s3, {sS}, 3\ns_lshl_b32 s4, s3, 14\ns_add_u32 s4, s4, s38\nv_add_u32 v9, s4, v2\ns_lshl_b32 s3, s3, 12\nv_add_u32 v7, s3, v6\ns_add_u32 s3, s3, s38\ns_add_u32 s3, s3, {ZM}\nv_add_u32 v10, s3, v2")
        for h in range(4): a(f"ds_read_b128 v[{228+4*h}:{231+4*h}], v9 offset:{4096*h}")
        slot("s39", L.H3S, L.H3, 0, False); tagreg("s25")
    if ES == 2:
        cghead()
        a(f"s_branch {T('CG_P')}")
        if OPT.get("ALG"): a(f".p2align {OPT['ALG']}")
    a.put(T("CG_LOOP"))
    cghead()
    if ES == 1: a(f"s_cmp_lt_u32 {sS}, {OPT.get('ESN', 3)}\ns_cbranch_scc1 {T('CG_P')}")
    if OPT.get("SLV") or not AF: a(f"s_sleep {OPT['SLV'] if AF or not OPT.get('AF') else 10}")
    if AF:
        afwait(3456, 6, 48, OPT.get("AFV", 300))
    stamp(6)
    a.put(T("CG_P"))
    a(f"s_sub_u32 {sBUD}, {sBUD}, 1\ns_cbranch_scc1 END")
    for i in range(3): a(f"buffer_load_dwordx4 v[{48+4*i}:{51+4*i}], v4, {WS}, s34 offen offset:{1024*i} sc1")
    a("s_waitcnt vmcnt(2)\nv_max3_u32 v62, v48, v49, v50\ns_waitcnt vmcnt(1)\nv_max3_u32 v62, v62, v51, v52\nv_max3_u32 v62, v62, v53, v54")
    a(f"s_waitcnt vmcnt(0)\nv_max3_u32 v62, v62, v55, v56\nv_max3_u32 v62, v62, v57, v58\nv_max_u32 v62, v62, v59\nv_cmp_eq_u32 vcc, -1, v62\ns_cbranch_vccnz {T('CG_P')}")
    stamp(0)
    rtc(2, 0)
    EV = OPT.get("EV", 1)
    if EV == 1:
        a(f"s_sub_u32 s3, {sS}, 1\ns_cmp_lt_u32 s3, 2\ns_cbranch_scc1 {T('CG_EV')}")
        a.put(T("CG_EW"))
    for kb in range(3):
        for t in range(4):
            a(f"v_smfmac_f32_16x16x64_bf16 v[{32+4*t}:{35+4*t}], v[{48+4*kb}:{51+4*kb}], v[{64+32*kb+8*t}:{71+32*kb+8*t}], v5")
    for p in range(2):
        o = 32 + 8*p
        for i in range(4): a(f"v_permlane32_swap_b32 v{o+i}, v{o+4+i}")
        a(f"v_pk_add_f32 v[{o}:{o+1}], v[{o}:{o+1}], v[{o+4}:{o+5}]\nv_pk_add_f32 v[{o+2}:{o+3}], v[{o+2}:{o+3}], v[{o+6}:{o+7}]")
        a(f"v_cvt_pk_bf16_f32 v{o}, v{o}, v{o+1}\nv_cvt_pk_bf16_f32 v{o+1}, v{o+2}, v{o+3}\nds_write_b64 v7, v[{o}:{o+1}] offset:{2048*p}")
    a("s_waitcnt lgkmcnt(0)")
    stamp(1)
    a("s_barrier")
    stamp(2)
    rtc(4, 0); rtc(1, 1)
    a(f"s_cmp_eq_u32 {sS}, 63\ns_cbranch_scc1 {T('CG_0')}")
    for h in range(4): a(f"ds_read_b128 v[{16+4*h}:{19+4*h}], v1 offset:{512*h}")
    a(f"ds_read_b128 v[32:35], v1 offset:{PM-PT}\nds_read_b128 v[36:39], v10")
    for h in range(5):
        a(f"s_waitcnt lgkmcnt({[5,4,3,2,0][h]})")
        z = 228 + 4*h if h < 4 else 36
        a(f"v_mfma_f32_16x16x32_bf16 v[40:43], v[{z}:{z+3}], v[{16+4*h}:{19+4*h}], " + ("0" if h == 0 else "v[40:43]"))
    for i in range(4): a(f"v_and_or_b32 v{40+i}, v{40+i}, -4, s25")
    a(f"buffer_store_dwordx4 v[40:43], v3, {WS}, s39 offen sc1")
    stamp(7)
    def rst():
        slot("s3", L.H3S, L.H3, NS - 2, False)
        for i in range(4): a(f"v_mov_b32 v{44+i}, 0")
        a(f"buffer_store_dwordx4 v[44:47], v3, {WS}, s3 offen sc1")
    if OPT.get('RST') == 2: rst()
    if PZA:
        a(f"s_cmp_ge_u32 {sS}, 2\ns_cbranch_scc1 {T('CG_Z')}\ns_cmp_eq_u32 {sS}, 1\ns_cbranch_scc1 {T('CG_Y')}\ns_mov_b32 s4, 2")
        flagwait("v15", "v62", "s4")
        vxloads(1)
        a.put(T("CG_Y"))
        a(f"s_add_u32 s4, {sS}, 3")
        flagwait("v15", "v62", "s4")
        a.put(T("CG_Z"))
        a(f"s_sub_u32 s3, {sS}, 3\ns_max_i32 s3, s3, 0\nv_mov_b32 v63, s3\nbuffer_store_dword v63, v61, {WS}, {sFL} offen{ST}")
        zx(1, VXI)
        if OPT.get('RST') == 1: rst()
        stamp(3); stamp(4)
        a("s_waitcnt lgkmcnt(0)\ns_barrier")
        stamp(5)
        dump()
        a(f"s_add_u32 {sS}, {sS}, 1\ns_branch {T('CG_LOOP')}")
        a.put(T("CG_0"))
        a(f"v_mov_b32 v63, 60\nbuffer_store_dword v63, v61, {WS}, {sFL} offen{ST}")
        c["rt"](6)
        dump()
        finish()
    elif OPT.get("ORD"):
        a.put(T("CG_0"))
        pzreads()
        a(f"s_sub_u32 s3, {sS}, 3\ns_max_i32 s3, s3, 0\nv_mov_b32 v63, s3\ns_cmp_lt_u32 {sS}, 2\ns_cbranch_scc1 {T('CG_3')}\ns_waitcnt lgkmcnt(0)")
        pz()
        if OPT.get("ODL"): a(f"s_sleep {OPT['ODL']}")
        outp()
        a(f"s_sub_u32 s3, {sS}, 8\ns_cmp_ge_u32 s3, 4\ns_cbranch_scc1 {T('CG_3')}\ns_add_u32 s3, s43, {54*655360}")
        for i in range(4): a(f"v_mov_b32 v{24+i}, 0")
        a(f"buffer_store_dwordx4 v[24:27], v13, {WS}, s3 offen sc1\nbuffer_store_dwordx4 v[24:27], v13, {WS}, s3 offen offset:1024 sc1")
        a.put(T("CG_3"))
        if OPT.get('RST') == 1: rst()
        a(f"buffer_store_dword v63, v61, {WS}, {sFL} offen{ST}")
        stamp(3)
        a(f"s_cmp_eq_u32 {sS}, 63\ns_cbranch_scc1 {T('CG_1')}\ns_cmp_ge_u32 {sS}, 2\ns_cbranch_scc1 {T('CG_Z')}\ns_cmp_eq_u32 {sS}, 1\ns_cbranch_scc1 {T('CG_Y')}\ns_mov_b32 s4, 2")
        flagwait("v15", "v62", "s4")
        vxloads(1)
        a("s_waitcnt vmcnt(0)")
        a.put(T("CG_Y"))
        a(f"s_add_u32 s4, {sS}, 3")
        flagwait("v15", "v62", "s4")
        a.put(T("CG_Z"))
        zx(1, False)
        a.put(T("CG_1"))
        stamp(4)
        a("s_waitcnt lgkmcnt(0)\ns_barrier")
        stamp(5)
        if OPT.get("VDL"): a(f"s_sleep {OPT['VDL']}")
        pxloads()
        a(f"s_cmp_ge_u32 {sS}, 62\ns_cbranch_scc1 {T('CG_2')}")
        vxloads(2)
        a.put(T("CG_2"))
        dump()
        a(f"s_add_u32 s43, s43, 655360\ns_add_u32 {sS}, {sS}, 1\ns_cmp_lt_u32 {sS}, 64\ns_cbranch_scc1 {T('CG_LOOP')}")
        c["rt"](6)
        pzreads()
        a("s_waitcnt vmcnt(0) lgkmcnt(0)")
        pz()
        outp()
        a("s_mov_b32 s4, 64")
        flagwait("v60", "v62", "s4")
        pxloads()
        a(f"s_add_u32 s43, s43, 655360\ns_add_u32 {sS}, {sS}, 1")
        pzreads()
        a("s_waitcnt vmcnt(0) lgkmcnt(0)")
        pz()
        outp()
        finish()
    else:
        a.put(T("CG_0"))
        pzreads()
        if EV:
            a(f"s_cmp_eq_u32 {sS}, 63\ns_cbranch_scc1 {T('CG_1')}\ns_cmp_lt_u32 {sS}, {3 if EV == 1 else 2}\ns_cbranch_scc1 {T('CG_E0')}")
        else:
            a(f"s_cmp_eq_u32 {sS}, 63\ns_cbranch_scc1 {T('CG_1')}\ns_cmp_ge_u32 {sS}, 2\ns_cbranch_scc1 {T('CG_Z')}\ns_cmp_eq_u32 {sS}, 1\ns_cbranch_scc1 {T('CG_Y')}\ns_mov_b32 s4, 2")
            flagwait("v15", "v62", "s4")
            vxloads(1)
            a.put(T("CG_Y"))
            a(f"s_add_u32 s4, {sS}, 3")
            flagwait("v15", "v62", "s4")
        a.put(T("CG_Z"))
        zx(1, VXI)
        a.put(T("CG_1"))
        a("s_waitcnt lgkmcnt(0)")
        pz()
        a(f"s_sub_u32 s3, {sS}, {4 if OST else 3}\ns_max_i32 s3, s3, 0\nv_mov_b32 v63, s3")
        OF = OPT.get("OFIRST", 1)
        def outp_c():
            a(f"s_cmp_lt_u32 {sS}, 2\ns_cbranch_scc1 {T('CG_C' if OC == 2 else 'CG_3')}")
            if OST:
                a(f"s_cmp_lt_u32 {sS}, 63\ns_cbranch_scc1 {T('CG_4')}")
                outp()
                a(f"s_branch {T('CG_3')}")
                a.put(T("CG_4"))
                a(f"s_lshl_b32 s3, {sW}, 11\ns_add_u32 s3, s3, {OSTG}\nv_add_u32 v7, s3, v2\nds_write_b128 v7, v[20:23]\nds_write_b128 v7, v[28:31] offset:1024")
            else: outp()
            if not OC:
                CS = OPT.get("CS", 8)
                a(f"s_sub_u32 s3, {sS}, {CS}\ns_cmp_ge_u32 s3, {5 if OST else 4}\ns_cbranch_scc1 {T('CG_3')}\ns_add_u32 s3, s43, {((53 if OST else 54) + 8 - CS)*655360}")
                for i in range(4): a(f"v_mov_b32 v{20+i}, 0")
                a(f"buffer_store_dwordx4 v[20:23], v13, {WS}, s3 offen sc1\nbuffer_store_dwordx4 v[20:23], v13, {WS}, s3 offen offset:1024 sc1")
            a.put(T("CG_3"))
        stamp(3)
        if OPT.get("BD"): a(f"s_sleep {OPT['BD']}")
        if OF == 1: outp_c()
        if OPT.get('RST') == 1: rst()
        a(f"buffer_store_dword v63, v61, {WS}, {sFL} offen{ST}")
        if not VXI:
            a(f"s_cmp_ge_u32 {sS}, 62\ns_cbranch_scc1 {T('CG_2')}")
            vxloads(2)
            a.put(T("CG_2"))
        pxloads()
        if OF == 0: outp_c()
        stamp(4)
        a("s_waitcnt lgkmcnt(0)\ns_barrier")
        if OPT.get("PROBE"):
            stamp(5)
            for i, n in enumerate((13, 7, 2, 0) if OF == 0 else (18, 11, 5, 0)):
                a(f"s_waitcnt vmcnt({n})"); stamp(6 + i)
        stamp(5)
        dump()
        a(f"s_add_u32 s43, s43, 655360\ns_add_u32 {sS}, {sS}, 1\ns_cmp_lt_u32 {sS}, 64\ns_cbranch_scc1 {T('CG_LOOP')}")
        c["rt"](6)
        pzreads()
        a("s_waitcnt vmcnt(%d) lgkmcnt(0)" % (2 if OF == 0 else 0))
        pz()
        outp()
        a("s_mov_b32 s4, 64")
        flagwait("v60", "v62", "s4")
        pxloads()
        a(f"s_add_u32 s43, s43, 655360\ns_add_u32 {sS}, {sS}, 1")
        pzreads()
        a("s_waitcnt vmcnt(0) lgkmcnt(0)")
        pz()
        outp()
        finish()
        if OC == 2:
            a.put(T("CG_C"))
            for i in range(4): a(f"v_mov_b32 v{20+i}, 0")
            a(f"s_mul_i32 s3, {sS}, 655360\ns_add_u32 s3, s3, s43\ns_add_u32 s3, s3, {62*655360}")
            for k in range(2):
                a(f"buffer_store_dwordx4 v[20:23], v13, {WS}, s3 offen sc1\nbuffer_store_dwordx4 v[20:23], v13, {WS}, s3 offen offset:1024 sc1\ns_add_u32 s3, s3, 655360")
            a(f"s_branch {T('CG_3')}")
        if EV == 2:
            a.put(T("CG_E0"))
            a(f"s_cmp_eq_u32 {sS}, 1\ns_cbranch_scc1 {T('CG_Y')}\ns_mov_b32 s4, 2")
            flagwait("v15", "v62", "s4")
            vxloads(1)
            a.put(T("CG_Y"))
            a(f"s_add_u32 s4, {sS}, 3")
            flagwait("v15", "v62", "s4")
            a(f"s_branch {T('CG_Z')}")
        if EV == 1:
            a.put(T("CG_EV"))
            vxloads(1)
            a(f"s_branch {T('CG_EW')}")
            a.put(T("CG_E0"))
            a(f"s_cmp_lg_u32 {sS}, 0\ns_cbranch_scc1 {T('CG_E1')}\ns_mov_b32 s4, 2")
            flagwait("v15", "v62", "s4")
            vxloads(1)
            a(f"s_waitcnt vmcnt(0)\ns_branch {T('CG_Z')}")
            a.put(T("CG_E1"))
            a(f"s_waitcnt vmcnt(1)\ns_branch {T('CG_Z')}")

    a.put(T("CAUX"))
    a(f"s_setprio 2\ns_sub_u32 s14, {sW}, 4")
    a("s_mul_i32 s3, s14, 3840\nv_add_u32 v4, s3, v2\ns_add_u32 s3, s3, 1024\nv_lshlrev_b32 v5, 2, v0\nv_add_u32 v5, s3, v5")
    a("v_and_b32 v6, 3, v0\nv_bfe_u32 v7, v0, 2, 3\nv_lshl_add_u32 v12, v6, 3, v7\nv_lshlrev_b32 v12, 4, v12\nv_lshrrev_b32 v8, 5, v0\nv_lshl_add_u32 v12, v8, 3, v12\ns_lshl_b32 s3, s14, 9\ns_add_u32 s3, s3, %d\nv_add_u32 v12, s3, v12" % PT)
    a("v_lshlrev_b32 v13, 4, v7\nv_lshl_add_u32 v13, v8, 3, v13\nv_lshl_add_u32 v13, v6, 1, v13\ns_lshl_b32 s3, s14, 7\ns_add_u32 s3, s3, %d\nv_add_u32 v13, s3, v13" % PM)
    a(f"s_lshl_b32 s3, s15, 7\ns_add_u32 s3, s3, 2048\ns_cmp_eq_u32 s14, 0\ns_cselect_b32 s3, s3, {OOB}")
    onelane("v10", "s3")
    a("s_mov_b32 s24, 0x3dd53b95\nv_mov_b32 v20, s24\nv_mov_b32 v21, s24")
    if OST:
        a(f"v_and_b32 v14, 7, v0\nv_lshlrev_b32 v14, 7, v14\nv_lshrrev_b32 v7, 4, v0\nv_lshl_add_u32 v14, v7, 4, v14\nv_bfe_u32 v7, v0, 3, 1\nv_lshl_add_u32 v14, v7, 6, v14\ns_mul_i32 s3, {sQ}, 81920\ns_lshl_b32 s6, s15, 13\ns_add_u32 s3, s3, s6\ns_lshl_b32 s6, s14, 11\ns_add_u32 s3, s3, s6\nv_add_u32 v14, s3, v14")
        a(f"s_add_u32 s6, s6, {OSTG}\nv_add_u32 v15, s6, v2\ns_mov_b32 s43, {L.OUTP - 3*655360}")
    def ostrd():
        if OST: a("ds_read_b128 v[80:83], v15\nds_read_b128 v[84:87], v15 offset:1024")
    def ostst():
        if OST:
            l = a.lab("OS")
            a(f"s_cmp_lt_u32 {sS}, 3\ns_cbranch_scc1 {l}")
            if OPT.get("ODL"): a(f"s_sleep {OPT['ODL']}")
            a(f"buffer_store_dwordx4 v[80:83], v14, {WS}, s43 offen sc1\nbuffer_store_dwordx4 v[84:87], v14, {WS}, s43 offen offset:1024 sc1")
            a.put(l)
            a("s_add_u32 s43, s43, 655360")
    if PZA:
        a(f"v_and_b32 v14, 7, v0\nv_lshlrev_b32 v14, 7, v14\nv_lshrrev_b32 v7, 4, v0\nv_lshl_add_u32 v14, v7, 4, v14\nv_bfe_u32 v7, v0, 3, 1\nv_lshl_add_u32 v14, v7, 6, v14\ns_mul_i32 s3, {sQ}, 81920\ns_lshl_b32 s6, s15, 13\ns_add_u32 s3, s3, s6\ns_lshl_b32 s6, s14, 11\ns_add_u32 s3, s3, s6\nv_add_u32 v14, s3, v14")
        a("s_lshr_b32 s4, s14, 1\ns_lshl_b32 s3, s4, 11\nv_add_u32 v15, s3, v2\ns_and_b32 s5, s14, 1\ns_mul_i32 s3, s5, 5120\nv_add_u32 v16, s3, v2")
        a("v_and_b32 v17, 3, v0\nv_lshlrev_b32 v17, 2, v17\ns_lshl_b32 s3, s5, 4\ns_add_u32 s3, s3, 384\nv_add_u32 v17, s3, v17")
        a(f"s_mov_b32 s43, {L.OUTP - 2*655360}")
    def tokout():
        if not PZA: return
        l = a.lab("TO")
        a(f"s_cmp_lt_u32 {sS}, 2\ns_cbranch_scc1 {l}")
        a("s_waitcnt lgkmcnt(0)")
        pz(PAA, 88)
        if OPT.get("ODL"): a(f"s_sleep {OPT['ODL']}")
        outp(88, "v14")
        a(f"s_sub_u32 s3, {sS}, 8\ns_cmp_ge_u32 s3, 4\ns_cbranch_scc1 {l}\ns_add_u32 s3, s43, {54*655360}")
        for i in range(4): a(f"v_mov_b32 v{100+i}, 0")
        a(f"buffer_store_dwordx4 v[100:103], v14, {WS}, s3 offen sc1\nbuffer_store_dwordx4 v[100:103], v14, {WS}, s3 offen offset:1024 sc1")
        a.put(l)
        a("s_add_u32 s43, s43, 655360")
    a(f"s_mov_b32 s40, 0\ns_cmp_lg_u32 s14, 0\ns_cbranch_scc1 {T('CA_C')}")
    a("v_and_b32 v24, 31, v0\nv_lshlrev_b32 v24, 4, v24\nv_lshrrev_b32 v25, 5, v0\nv_lshl_add_u32 v24, v25, 11, v24\ns_lshl_b32 s3, s15, 15\nv_add_u32 v24, s3, v24")
    a(f"s_mov_b32 s6, -1\ns_mov_b32 s7, -1\ns_mov_b32 s4, {L.H3 + 2*L.H3S}\nbuffer_load_dwordx2 v[26:27], v24, {WS}, s4 offen sc1\ns_waitcnt vmcnt(0)")
    CTH = OPT.get("CTH", 520)
    for it in range(8 if CTH else 3):
        if CTH and it >= 2: a(f"s_min_u32 s3, s6, s7\ns_cmp_lt_u32 s3, {CTH}\ns_cbranch_scc1 {T('CA_K')}")
        for cp in range(2):
            a(f"s_mov_b32 s4, {L.H3 + 3*L.H3S + 8192*cp + 4096*(it % 2) + 16384*(it // 2 % 2) + 512*(it // 4)}\ns_memtime s[60:61]\ns_waitcnt lgkmcnt(0)\nbuffer_load_dwordx2 v[26:27], v24, {WS}, s4 offen sc1\ns_waitcnt vmcnt(0)")
            a(f"s_memtime s[62:63]\ns_waitcnt lgkmcnt(0)\ns_sub_u32 s3, s62, s60\ns_min_u32 s{6+cp}, s{6+cp}, s3")
    a.put(T("CA_K"))
    a("s_cmp_lt_u32 s7, s6\ns_cselect_b32 s40, 1, 0")
    if FLIP: a("s_xor_b32 s40, s40, 1")
    if INSTR: a("s_mov_b32 s52, s6\ns_mov_b32 s53, s7\ns_mov_b32 s54, s40")
    a.put(T("CA_C"))
    a(f"s_mov_b32 {sS}, 0\ns_barrier")
    stamp0()
    def cahead():
        ostrd()
        if PZA: pzreads(PAA, "v15", "v18", "v19")
        slot("s34", L.H2S, L.H2); tagreg("s25")
        a(f"s_lshl_b32 s3, {sS}, 1\ns_add_u32 s3, s3, s40\ns_add_u32 s3, s3, 2\nv_mov_b32 v11, s3")
    if ES == 2:
        cahead()
        a(f"s_branch {T('CA_P2')}")
        if OPT.get("ALA"): a(f".p2align {OPT['ALA']}")
    a.put(T("CA_LOOP"))
    cahead()
    if ES == 1: a(f"s_cmp_lt_u32 {sS}, {OPT.get('ESN', 3)}\ns_cbranch_scc1 {T('CA_P2')}")
    if OPT.get("SL2") or not AF: a(f"s_sleep {OPT['SL2'] if AF or not OPT.get('AF') else 16}")
    if AF:
        afwait(3584, 12, 24, OPT.get("AFS", 300))
    stamp(5)
    a.put(T("CA_P2"))
    a(f"s_sub_u32 {sBUD}, {sBUD}, 1\ns_cbranch_scc1 END")
    for p in range(3): a(f"buffer_load_dwordx4 v[{24+4*p}:{27+4*p}], v4, {WS}, s34 offen offset:{1280*p} sc1")
    for p in range(3): a(f"buffer_load_dword v{36+p}, v5, {WS}, s34 offen offset:{1280*p} sc1")
    a("s_waitcnt vmcnt(5)\n" + A3("v40", "s25", "v24", "v25") + "\n" + A3("v40", "v40", "v26", "v27"))
    a("s_waitcnt vmcnt(4)\nv_pk_add_f32 v[72:73], v[24:25], v[28:29]\nv_pk_add_f32 v[74:75], v[26:27], v[30:31]\n" + A3("v40", "v40", "v28", "v29") + "\n" + A3("v40", "v40", "v30", "v31"))
    a("s_waitcnt vmcnt(3)\nv_pk_add_f32 v[72:73], v[72:73], v[32:33]\nv_pk_add_f32 v[74:75], v[74:75], v[34:35]\n" + A3("v40", "v40", "v32", "v33") + "\n" + A3("v40", "v40", "v34", "v35"))
    a("v_max3_f32 v77, v72, v73, v74\ns_waitcnt vmcnt(0)\n" + A3("v40", "v40", "v36", "v37") + "\nv_add_f32 v76, v36, v37\nv_and_b32 v40, v40, v38\nv_add_f32 v76, v76, v38\nv_cmp_eq_u32 vcc, 0, v40\nv_max3_f32 v77, v77, v75, v76")
    a(f"s_cbranch_vccnz {T('CA_P2')}")
    stamp(0)
    rtc(4, 0); rtc(6, 1)
    a("v_max_f32_dpp v77, v77, v77 quad_perm:[1,0,3,2] row_mask:0xf bank_mask:0xf\nv_max_f32_dpp v77, v77, v77 quad_perm:[2,3,0,1] row_mask:0xf bank_mask:0xf")
    a("v_mov_b32 v78, v77\nv_permlane32_swap_b32 v77, v78\nv_max_f32 v77, v77, v78")
    a("v_mul_f32 v78, s24, v77")
    a("v_pk_fma_f32 v[72:73], v[72:73], v[20:21], v[78:79] op_sel_hi:[1,1,0] neg_lo:[0,0,1] neg_hi:[0,0,1]\nv_pk_fma_f32 v[74:75], v[74:75], v[20:21], v[78:79] op_sel_hi:[1,1,0] neg_lo:[0,0,1] neg_hi:[0,0,1]\nv_fma_f32 v76, v76, v20, -v78")
    for i in range(5): a(f"v_exp_f32 v{72+i}, v{72+i}")
    a("v_pk_add_f32 v[78:79], v[72:73], v[74:75]\nv_add_f32 v77, v78, v76\nv_add_f32 v77, v77, v79")
    a("v_add_f32_dpp v77, v77, v77 quad_perm:[1,0,3,2] row_mask:0xf bank_mask:0xf\nv_add_f32_dpp v77, v77, v77 quad_perm:[2,3,0,1] row_mask:0xf bank_mask:0xf")
    a("v_mov_b32 v78, v77\nv_permlane32_swap_b32 v77, v78\nv_add_f32 v77, v77, v78")
    a("v_rcp_f32 v78, v77")
    a("v_pk_mul_f32 v[72:73], v[72:73], v[78:79] op_sel_hi:[1,0]\nv_pk_mul_f32 v[74:75], v[74:75], v[78:79] op_sel_hi:[1,0]\nv_mul_f32 v76, v76, v78")
    a("v_cvt_pk_bf16_f32 v72, v72, v73\nv_cvt_pk_bf16_f32 v73, v74, v75\nv_cvt_pk_bf16_f32 v76, v76, v76")
    a(f"ds_write_b64 v12, v[72:73]\nds_write_b16 v13, v76\ns_waitcnt lgkmcnt(0)")
    stamp(1)
    a("s_barrier")
    stamp(2)
    a(f"buffer_store_dword v11, v10, {WS}, {sFL} offen{ST}")
    ostst()
    tokout()
    if PZA: pxloads("v16")
    a("s_barrier")
    dump()
    a(f"s_add_u32 {sS}, {sS}, 1\ns_cmp_lt_u32 {sS}, 63\ns_cbranch_scc1 {T('CA_LOOP')}")
    if PZA:
        for j in range(3):
            pzreads(PAA, "v15", "v18", "v19", 3 if j < 2 else 1)
            if j:
                a(f"s_mov_b32 s4, {62+j}")
                flagwait("v17", "v24", "s4")
                a(f"s_sub_u32 {sS}, {sS}, 1")
                pxloads("v16")
                a(f"s_add_u32 {sS}, {sS}, 1")
            if j == 2:
                a("s_barrier")
                pzreads(PAA, "v15", "v18", "v19", 2)
            a("s_waitcnt vmcnt(0) lgkmcnt(0)")
            pz(PAA, 88)
            outp(88, "v14")
            a(f"s_add_u32 s43, s43, 655360\ns_add_u32 {sS}, {sS}, 1")
        finish()
        return
    ostrd()
    a("s_waitcnt lgkmcnt(0)")
    ostst()
    a("s_barrier\ns_barrier")
    finish()
```
